```python
import torch

def _softmax(x, axis=-1):
    return torch.softmax(x, dim=axis)

def _gelu(x):
    return torch.nn.functional.gelu(x, approximate='tanh')

def _silu(x):
    return torch.nn.functional.silu(x)

def _sigmoid(x):
    return torch.sigmoid(x)

def _layernorm(x, axis=-1, eps=1e-05):
    m = x.mean(dim=axis, keepdim=True)
    v = x.var(dim=axis, keepdim=True, unbiased=False)
    return (x - m) / torch.sqrt(v + eps)

def _scatter_add(tgt, idx, src, axis=0):
    return tgt.clone().index_add_(axis, idx, src)

def _segment_sum(src, seg, n):
    out = torch.zeros((n,) + src.shape[1:], dtype=src.dtype)
    return out.index_add_(0, seg, src)

def _pad(x, pw):
    flat = tuple((v for pair in reversed(pw) for v in pair))
    return torch.nn.functional.pad(x, flat)
kernel_name = 'concat_heads__spectral_gfnet__memory_aug_recurrent_mem_tr__prompt'

def setup_inputs():

    _w = lambda a: (lambda t: t.to(torch.bfloat16) if t.is_floating_point() else t)(torch.as_tensor(a))

    def _A_setup():
        B, S, D = (1, 2048, 640)
        Df = D // 2 + 1
        return {'x': _w((lambda *s: torch.randn(*s, dtype=torch.bfloat16) * 0.05)(B, S, D)), 'w_r': _w((lambda *s: torch.randn(*s, dtype=torch.bfloat16) * 3.2)(S, Df) * 0.02), 'w_i': _w((lambda *s: torch.randn(*s, dtype=torch.bfloat16) * 3.2)(S, Df) * 0.02)}
    _A_in = _A_setup()

    def _B_setup():
        B, S, Dm = (1, 2048, 640)
        H, Dh = (32, 128)
        M, seg = (8, 32)
        seg = min(seg, S)
        S = S // seg * seg
        return {'x': _w((lambda *s: torch.randn(*s, dtype=torch.bfloat16) * 0.05)(B, S, Dm)), 'mem0': _w((lambda *s: torch.randn(*s, dtype=torch.bfloat16) * 0.4)(B, M, Dm)), 'Wq': _w((lambda *s: torch.randn(*s, dtype=torch.bfloat16) * 6.4)(Dm, H, Dh) * Dm ** (-0.5)), 'Wk': _w((lambda *s: torch.randn(*s, dtype=torch.bfloat16) * 6.4)(Dm, H, Dh) * Dm ** (-0.5)), 'Wv': _w((lambda *s: torch.randn(*s, dtype=torch.bfloat16) * 0.4)(Dm, H, Dh) * Dm ** (-0.5)), 'Wo': _w((lambda *s: torch.randn(*s, dtype=torch.bfloat16) * 0.4)(H, Dh, Dm) * (H * Dh) ** (-0.5)), 'seg_len': seg}
    _B_in = _B_setup()
    return {'A_x': _A_in['x'], 'A_w_r': _A_in['w_r'], 'A_w_i': _A_in['w_i'], 'B_x': _B_in['x'], 'B_mem0': _B_in['mem0'], 'B_Wq': _B_in['Wq'], 'B_Wk': _B_in['Wk'], 'B_Wv': _B_in['Wv'], 'B_Wo': _B_in['Wo'], 'B_seg_len': _B_in['seg_len']}

def reference(A_x, A_w_r, A_w_i, B_x, B_mem0, B_Wq, B_Wk, B_Wv, B_Wo, B_seg_len):

    def _A_ref(x, w_r, w_i):
        B, S, D = x.shape
        X = (lambda x, axes=(-2, -1): torch.fft.rfft2(x.float(), dim=axes))(x, axes=(-2, -1))
        W = w_r + 1j * w_i
        X = X * W
        y = (lambda x, s, axes=(-2, -1): torch.fft.irfft2(x, s=s, dim=axes).to(torch.bfloat16))(X, (S, D), axes=(-2, -1))
        return y

    def _B_ref(x, mem0, Wq, Wk, Wv, Wo, seg_len):
        B, S, Dm = x.shape
        H, Dh = (Wq.shape[1], Wq.shape[2])
        M = mem0.shape[1]
        scale = Dh ** (-0.5)
        n_seg = S // seg_len
        L = M + seg_len
        idx = torch.arange(L)
        mask = (idx[:, None] < M) | (idx[:, None] >= idx[None, :])
        mem = mem0
        outs = []
        for s in range(n_seg):
            xs = x[:, s * seg_len:(s + 1) * seg_len, :].clone()
            h = torch.concatenate([mem, xs], axis=1)
            q = torch.einsum('btd,dhe->bhte', h, Wq)
            k = torch.einsum('btd,dhe->bhte', h, Wk)
            v = torch.einsum('btd,dhe->bhte', h, Wv)
            scores = torch.einsum('bhqe,bhke->bhqk', q, k) * scale
            scores = torch.where(mask[None, None], scores, -1000000000.0)
            p = _softmax(scores, axis=-1)
            o = torch.einsum('bhqk,bhke->bhqe', p, v)
            o = torch.einsum('bhte,hed->btd', o, Wo)
            mem = o[:, :M, :].clone()
            outs.append(o[:, M:, :])
        return torch.concatenate(outs, axis=1)
    a = _A_ref(A_x, A_w_r, A_w_i)
    b = _B_ref(B_x, B_mem0, B_Wq, B_Wk, B_Wv, B_Wo, B_seg_len)
    return torch.concatenate([a, b], axis=-1)
```

```python
class Asm:
    def __init__(self):
        self.lines = []
        self._lab = 0

    def __call__(self, s):
        for ln in s.strip("\n").split("\n"):
            ln = ln.strip()
            if ln:
                self.lines.append("    " + ln)

    def raw(self, s):
        self.lines.append(s)

    def label(self, name):
        self.lines.append(name + ":")

    def newlabel(self, base="L"):
        self._lab += 1
        return f"{base}_{self._lab}"

    def nop(self, n):
        while n > 0:
            k = min(n, 16)
            self(f"s_nop {k-1}")
            n -= k

    def text(self):
        return "\n".join(self.lines) + "\n"


def v(i, n=1):
    return f"v{i}" if n == 1 else f"v[{i}:{i+n-1}]"


def a(i, n=1):
    return f"a{i}" if n == 1 else f"a[{i}:{i+n-1}]"


def s(i, n=1):
    return f"s{i}" if n == 1 else f"s[{i}:{i+n-1}]"


class RegAlloc:
    def __init__(self, start, limit):
        self.next = start
        self.limit = limit

    def alloc(self, n=1, align=1):
        if n >= 2 and align < 2:
            align = 2
        if n >= 4 and align < 4:
            align = 4
        self.next = (self.next + align - 1) // align * align
        r = self.next
        self.next += n
        assert self.next <= self.limit, f"register overflow {self.next} > {self.limit}"
        return r


def kernel_header(A, name):
    A.raw(".text")
    A.raw(f".globl {name}")
    A.raw(".p2align 8")
    A.raw(f".type {name},@function")
    A.label(name)


def kernel_desc(name, vgpr, sgpr, accum):
    return f""".section .rodata,"a"
.p2align 6
.amdhsa_kernel {name}
  .amdhsa_next_free_vgpr {vgpr}
  .amdhsa_next_free_sgpr {sgpr}
  .amdhsa_accum_offset {accum}
  .amdhsa_group_segment_fixed_size 0
  .amdhsa_kernarg_size 104
  .amdhsa_user_sgpr_count 2
  .amdhsa_user_sgpr_kernarg_segment_ptr 1
  .amdhsa_system_sgpr_workgroup_id_x 1
.end_amdhsa_kernel
"""


def make_srd(A, d, base, nbytes):
    A(f"s_mov_b32 s{d}, s{base}")
    A(f"s_and_b32 s{d+1}, s{base+1}, 0xffff")
    A(f"s_mov_b32 s{d+2}, {nbytes:#x}")
    A(f"s_mov_b32 s{d+3}, 0x00020000")
```

```python
MB = 1 << 20
WS_BYTES = 256 * MB
WS_KX = 0 * MB
WS_VX = 16 * MB
WS_U = 32 * MB
WS_KM = 114 * MB
WS_VM = 118 * MB
WS_O = 122 * MB
WS_CNT = 140 * MB
WS_PROF = 141 * MB
WS_RA = 142 * MB
WS_RD = 143 * MB
WS_RC = 144 * MB
RING_FILL_OFF = 142 * MB
RING_FILL_BYTES = 3 * MB
WS_NEXT = 152 * MB

SCALE = 128 ** -0.5
LOG2E = 1.4426950408889634
WS_FH = 152 * MB
WS_FL = 153 * MB
WS_G = 154 * MB
WS_C32 = 157 * MB
WS_C64 = WS_C32 + 8192
WS_TW1 = WS_C64 + 32768
WS_TW3 = WS_TW1 + 16384
WS_WT = 158 * MB
WS_Y = 162 * MB
WS_Z = 168 * MB
WS_END = 176 * MB
```

```python
import struct
from asmlib import *
from layout import *
from wside import *


def split_pack(A, x0, x1, hi, lo, t0, t1):
    A(f"v_cvt_pk_bf16_f32 {v(hi)}, {v(x0)}, {v(x1)}")
    A(f"v_lshlrev_b32 {v(t0)}, 16, {v(hi)}")
    A(f"v_and_b32 {v(t1)}, 0xffff0000, {v(hi)}")
    A(f"v_sub_f32 {v(t0)}, {v(x0)}, {v(t0)}")
    A(f"v_sub_f32 {v(t1)}, {v(x1)}, {v(t1)}")
    A(f"v_cvt_pk_bf16_f32 {v(lo)}, {v(t0)}, {v(t1)}")


NB_FG, NB_WT, NB_FILL = 200, 642, 768
NB_INIT = NB_FG + 1 + NB_WT + NB_FILL


def gen_init(A, name="init_kernel"):
    kernel_header(A, name)
    Lend = A.newlabel("Lend")
    Lsm, Lwt, Lfill = A.newlabel("Lsm"), A.newlabel("Lwt"), A.newlabel("Lfill")
    A(f"s_cmp_ge_u32 s2, {NB_INIT}")
    A(f"s_cbranch_scc1 {Lend}")
    A("s_load_dwordx4 s[24:27], s[0:1], 8")
    A("s_load_dwordx2 s[36:37], s[0:1], 96")
    A("s_waitcnt lgkmcnt(0)")
    make_srd(A, sWS, 36, WS_BYTES)
    A(f"s_cmp_eq_u32 s2, {NB_FG}")
    A(f"s_cbranch_scc1 {Lsm}")
    A(f"s_cmp_gt_u32 s2, {NB_FG + NB_WT}")
    A(f"s_cbranch_scc1 {Lfill}")
    A(f"s_cmp_gt_u32 s2, {NB_FG}")
    A(f"s_cbranch_scc1 {Lwt}")
    A("s_lshl_b32 s3, s2, 8")
    A("v_add_u32 v1, s3, v0")
    A("s_mov_b32 s8, 53687092")
    A("v_mul_hi_u32 v2, v1, s8")
    A("v_mul_u32_u24 v3, 80, v2")
    A("v_sub_u32 v3, v1, v3")
    A("v_lshlrev_b32 v3, 3, v3")
    A("s_mov_b32 s9, 6710887")
    A(f"s_mov_b32 s10, {f32bits(1.0/640):#x}")
    A(f"s_mov_b32 s11, {f32bits(1.0/(2048*640)):#x}")
    A(f"s_mov_b32 s12, {f32bits(2.0/(2048*640)):#x}")
    for e in range(8):
        A(f"v_add_u32 v4, {e}, v3")
        A("v_subrev_u32 v5, 320, v4")
        A("v_cmp_lt_u32 vcc, 320, v4")
        A("s_nop 1")
        A("v_cndmask_b32 v5, v4, v5, vcc")
        A("v_mul_u32_u24 v6, v5, v2")
        A("v_mul_hi_u32 v7, v6, s9")
        A("v_mul_u32_u24 v7, 640, v7")
        A("v_sub_u32 v6, v6, v7")
        A("v_cvt_f32_u32 v6, v6")
        A("v_mul_f32 v6, s10, v6")
        A("v_cos_f32 v7, v6")
        A("v_sin_f32 v8, v6")
        A("s_nop 1")
        A(f"v_cndmask_b32 v{16+e}, v7, -v8, vcc")
        A("v_cmp_eq_u32 vcc, 0, v4")
        A("v_cmp_eq_u32 s[14:15], 320, v4") if False else None
        A("v_mov_b32 v9, 320")
        A("v_cmp_eq_u32 s[14:15], v9, v4")
        A("s_nop 1")
        A("s_or_b64 vcc, vcc, s[14:15]")
        A("v_mov_b32 v9, s12")
        A("v_mov_b32 v10, s11")
        A("v_cndmask_b32 v9, v9, v10, vcc")
        A(f"v_mul_f32 v{24+e}, v{16+e}, v9")
    for j in range(4):
        split_pack(A, 16 + 2 * j, 17 + 2 * j, 32 + j, 36 + j, 4, 5)
        split_pack(A, 24 + 2 * j, 25 + 2 * j, 40 + j, 44 + j, 4, 5)
    A("v_mul_u32_u24 v4, 1280, v2")
    A("v_lshl_add_u32 v4, v3, 1, v4")
    A("v_mul_u32_u24 v5, 3840, v2")
    A("v_lshl_add_u32 v5, v3, 1, v5")
    A(f"s_mov_b32 s8, {WS_FH:#x}")
    A(f"s_mov_b32 s9, {WS_FL:#x}")
    A(f"s_mov_b32 s10, {WS_G:#x}")
    A(f"buffer_store_dwordx4 v[32:35], v4, {srd(sWS)}, s8 offen")
    A(f"buffer_store_dwordx4 v[36:39], v4, {srd(sWS)}, s9 offen")
    A(f"buffer_store_dwordx4 v[44:47], v5, {srd(sWS)}, s10 offen")
    A(f"buffer_store_dwordx4 v[40:43], v5, {srd(sWS)}, s10 offen offset:1280")
    A(f"buffer_store_dwordx4 v[40:43], v5, {srd(sWS)}, s10 offen offset:2560")
    A(f"s_branch {Lend}")
    A.label(Lsm)
    A("v_and_b32 v1, 63, v0")
    A("v_and_b32 v2, 15, v0")
    A("v_bfe_u32 v3, v0, 4, 2")
    A("v_lshrrev_b32 v4, 6, v0")
    A("v_lshlrev_b32 v5, 4, v1")
    for i in range(4):
        A(f"v_mov_b32 v{32+i}, 0")
    A("v_lshlrev_b32 v6, 4, v0")
    A(f"s_mov_b32 s8, {WS_CNT:#x}")
    A(f"buffer_store_dwordx4 v[32:35], v6, {srd(sWS)}, s8 offen")

    def dft_frag(N, a_expr_tile, ks, base_off):
        pass
    A("v_lshl_add_u32 v7, v4, 4, v2")
    for ks in range(2):
        for e in range(8):
            boff = 32 * ks + (e if e < 4 else 16 + e - 4)
            A(f"v_lshl_add_u32 v8, v3, 2, {boff}")
            A("v_mul_u32_u24 v8, v8, v7")
            A("v_and_b32 v8, 63, v8")
            A("v_cvt_f32_u32 v8, v8")
            A(f"v_mul_f32 v8, {f32bits(1/64):#x}, v8")
            A(f"v_cos_f32 v{16+e}, v8")
            A(f"v_sin_f32 v{24+e}, v8")
        A("s_nop 1")
        for j in range(4):
            split_pack(A, 16 + 2 * j, 17 + 2 * j, 32 + j, 36 + j, 9, 10)
            split_pack(A, 24 + 2 * j, 25 + 2 * j, 40 + j, 44 + j, 9, 10)
        A("v_lshl_add_u32 v8, v4, 11, v5")
        for cs in range(2):
            for hl in range(2):
                A(f"s_mov_b32 s8, {WS_C64 + (cs*2+hl)*8192 + ks*1024:#x}")
                r = 32 + cs * 8 + hl * 4
                A(f"buffer_store_dwordx4 v[{r}:{r+3}], v8, {srd(sWS)}, s8 offen")
        A("s_nop 1")
    A("v_and_b32 v11, 1, v4")
    A("v_lshl_add_u32 v7, v11, 4, v2")
    for e in range(8):
        boff = (e if e < 4 else 16 + e - 4)
        A(f"v_lshl_add_u32 v8, v3, 2, {boff}")
        A("v_mul_u32_u24 v8, v8, v7")
        A("v_and_b32 v8, 31, v8")
        A("v_cvt_f32_u32 v8, v8")
        A(f"v_mul_f32 v8, {f32bits(1/32):#x}, v8")
        A(f"v_cos_f32 v{16+e}, v8")
        A(f"v_sin_f32 v{24+e}, v8")
    A("s_nop 1")
    for j in range(4):
        split_pack(A, 16 + 2 * j, 17 + 2 * j, 32 + j, 36 + j, 9, 10)
        split_pack(A, 24 + 2 * j, 25 + 2 * j, 40 + j, 44 + j, 9, 10)
    A("v_lshl_add_u32 v8, v11, 10, v5")
    for cs in range(2):
        for hl in range(2):
            A(f"s_mov_b32 s8, {WS_C32 + (cs*2+hl)*2048:#x}")
            r = 32 + cs * 8 + hl * 4
            A(f"buffer_store_dwordx4 v[{r}:{r+3}], v8, {srd(sWS)}, s8 offen")
    A("s_nop 1")
    for which in range(2):
        for tf in range(2):
            for r in range(4):
                if which == 0:
                    A(f"v_lshl_add_u32 v8, v3, 2, {r}")
                    A("v_lshl_add_u32 v8, v4, 4, v8")
                    A(f"v_add_u32 v9, {16*tf}, v2")
                else:
                    A("v_lshl_add_u32 v8, v4, 4, v2")
                    A(f"v_lshl_add_u32 v9, v3, 2, {16*tf + r}")
                A("v_mul_u32_u24 v8, v8, v9")
                A("v_cvt_f32_u32 v8, v8")
                A(f"v_mul_f32 v8, {f32bits(1/2048):#x}, v8")
                A(f"v_cos_f32 v{16+r}, v8")
                A(f"v_sin_f32 v{20+r}, v8")
            if which == 0:
                A("v_lshl_add_u32 v8, v4, 11, v5")
                off = WS_TW1 + tf * 1024
            else:
                A("v_lshl_add_u32 v8, v4, 10, v5")
                off = WS_TW3 + tf * 4096
            A(f"s_mov_b32 s8, {off:#x}")
            A(f"s_mov_b32 s9, {off + 8192:#x}")
            A(f"buffer_store_dwordx4 v[16:19], v8, {srd(sWS)}, s8 offen")
            A(f"buffer_store_dwordx4 v[20:23], v8, {srd(sWS)}, s9 offen")
            A("s_nop 1")
    A(f"s_branch {Lend}")
    A.label(Lwt)
    A(f"s_sub_u32 s3, s2, {NB_FG+1}")
    A("v_lshrrev_b32 v4, 6, v0")
    A("v_and_b32 v1, 63, v0")
    A("v_readfirstlane_b32 s8, v4")
    A("s_lshl_b32 s3, s3, 2")
    A("s_add_u32 s3, s3, s8")
    A("s_and_b32 s9, s3, 511")
    A("s_lshr_b32 s10, s3, 9")
    A("s_lshl_b32 s10, s10, 6")
    A("v_add_u32 v2, s10, v1")
    A("v_mov_b32 v3, s9")
    A("s_sub_u32 s11, s3, 2560")
    A("s_lshl_b32 s11, s11, 6")
    A("v_add_u32 v5, s11, v1")
    A("s_cmp_ge_u32 s3, 2560")
    A("s_cselect_b64 vcc, -1, 0")
    A("v_mov_b32 v6, 320")
    A("v_cndmask_b32 v2, v2, v6, vcc")
    A("v_cndmask_b32 v3, v3, v5, vcc")
    A("v_and_b32 v5, 15, v3")
    A("v_bfe_u32 v6, v3, 4, 4")
    A("v_lshl_add_u32 v5, v6, 7, v5")
    A("v_mul_u32_u24 v5, 642, v5")
    A("v_lshl_add_u32 v5, v2, 1, v5")
    A("v_lshrrev_b32 v6, 8, v3")
    make_srd(A, 8, 24, 2048 * 642)
    make_srd(A, 12, 26, 2048 * 642)
    A("v_cmp_eq_u32 vcc, 0, v6")
    A("s_mov_b64 s[16:17], exec")
    for ri in range(2):
        Lskip = A.newlabel("Lwts")
        A("s_and_b64 exec, s[16:17], vcc" if ri == 0 else "s_andn2_b64 exec, s[16:17], vcc")
        A(f"s_cbranch_execz {Lskip}")
        for tf1 in range(2):
            for r in range(4):
                A(f"s_mov_b32 s18, {(16*tf1 + 32*r)*642}")
                A(f"buffer_load_ushort v{16+tf1*4+r}, v5, s[{8+4*ri}:{11+4*ri}], s18 offen")
        A.label(Lskip)
    A("s_mov_b64 exec, s[16:17]")
    A("s_waitcnt vmcnt(0)")
    for j in range(4):
        A(f"v_lshl_or_b32 v{24+j}, v{17+2*j}, 16, v{16+2*j}")
    A("v_lshlrev_b32 v5, 13, v2")
    A("v_lshl_add_u32 v5, v3, 4, v5")
    A(f"s_mov_b32 s18, {WS_WT:#x}")
    A(f"buffer_store_dwordx4 v[24:27], v5, {srd(sWS)}, s18 offen")
    A(f"s_branch {Lend}")
    A.label(Lfill)
    A(f"s_sub_u32 s3, s2, {NB_FG+1+NB_WT}")
    A("s_lshl_b32 s3, s3, 12")
    A(f"s_add_u32 s3, s3, {RING_FILL_OFF:#x}")
    A("v_lshlrev_b32 v1, 4, v0")
    for i in range(4):
        A(f"v_mov_b32 v{4+i}, -1")
    A(f"buffer_store_dwordx4 v[4:7], v1, {srd(sWS)}, s3 offen")
    A.label(Lend)
    A("s_endpgm")
    return kernel_desc(name, 64, 102, 64)


def a_prologue(A, Lend, ntasks):
    A(f"s_cmp_ge_u32 s2, {ntasks}")
    A(f"s_cbranch_scc1 {Lend}")
    A("s_load_dwordx2 s[24:25], s[0:1], 0")
    A("s_load_dwordx2 s[36:37], s[0:1], 96")
    A("s_load_dwordx2 s[38:39], s[0:1], 80")
    A("v_and_b32 v1, 63, v0")
    A("v_lshrrev_b32 v5, 6, v0")
    A("v_and_b32 v2, 15, v0")
    A(f"v_readfirstlane_b32 s{sWave}, v5")
    A("v_bfe_u32 v3, v0, 4, 2")
    A("s_waitcnt lgkmcnt(0)")
    make_srd(A, sWS, 36, WS_BYTES)


def gen_a1(A, name="a1_kernel"):
    kernel_header(A, name)
    Lend = A.newlabel("Lend")
    a_prologue(A, Lend, 40)
    make_srd(A, sXS, 24, 2048 * 1280)
    A(f"s_and_b32 s{sRB}, s2, 7")
    A(f"s_lshr_b32 s{sH}, s2, 3")
    R = RegAlloc(6, 256)
    a1_body(A, R)
    A.label(Lend)
    A("s_endpgm")
    return kernel_desc(name, 512, 102, 256)


def a1_body(A, R):
    def acc_of(m, t, rt):
        return a((t * 4 + rt) * 4, 4)
    proj_gemm(A, 2, [sWS, sWS], acc_of, R, None, swap=True, w_pitch=1280, w_base=[WS_FH, WS_FL], x_mode="fft")
    R.next = 6
    T0, T1, vSt = R.alloc(), R.alloc(), R.alloc()
    TMP = R.alloc(8)
    HI = [R.alloc(4), R.alloc(4)]
    LO = [R.alloc(4), R.alloc(4)]
    A(f"s_lshl_b32 s{sTmp}, s{sRB}, 3")
    A(f"s_lshl_b32 s{sTmp2}, s{sWave}, 1")
    A(f"s_add_u32 s{sTmp}, s{sTmp}, s{sTmp2}")
    A(f"s_lshr_b32 s{sTmp2}, s{sTmp}, 4")
    A(f"s_lshl_b32 s{sTmp2}, s{sTmp2}, 10")
    A(f"s_and_b32 s{sTmp}, s{sTmp}, 15")
    A(f"s_lshl_b32 s{sTmp}, s{sTmp}, 4")
    A(f"s_add_u32 s{sTmp}, s{sTmp}, s{sTmp2}")
    A(f"s_lshl_b32 s{sTmp2}, s{sH}, 20")
    A(f"s_add_u32 s{sTmp}, s{sTmp}, s{sTmp2}")
    A(f"v_lshlrev_b32 {v(T0)}, 13, {v(vN)}")
    A(f"v_lshl_add_u32 {v(T0)}, {v(vG)}, 8, {v(T0)}")
    A(f"v_add_u32 {v(vSt)}, s{sTmp}, {v(T0)}")
    i = 0
    for t in range(8):
        for j in range(2):
            p = i % 2
            i += 1
            for half in range(2):
                ab = (t * 4 + j * 2 + half) * 4
                for r in range(4):
                    A(f"v_accvgpr_read_b32 {v(TMP+half*4+r)}, a{ab+r}")
            for q in range(4):
                split_pack(A, TMP + 2 * q, TMP + 2 * q + 1, HI[p] + q, LO[p] + q, T0, T1)
            A(f"s_mov_b32 s{sTmp}, {WS_Y + t*16*8192 + j*16:#x}")
            A(f"s_mov_b32 s{sTmp2}, {WS_Y + t*16*8192 + j*16 + 4096:#x}")
            A(f"buffer_store_dwordx4 {v(HI[p],4)}, {v(vSt)}, {srd(sWS)}, s{sTmp} offen")
            A(f"buffer_store_dwordx4 {v(LO[p],4)}, {v(vSt)}, {srd(sWS)}, s{sTmp2} offen")


def gen_a3(A, name="a3_kernel"):
    kernel_header(A, name)
    Lend = A.newlabel("Lend")
    a_prologue(A, Lend, 32)
    make_srd(A, sWO, 38, 2048 * 2560)
    A(f"s_and_b32 s{sRB}, s2, 1")
    A(f"s_lshr_b32 s{sH}, s2, 1")
    R = RegAlloc(6, 256)
    a3_body(A, R)
    A.label(Lend)
    A("s_endpgm")
    return kernel_desc(name, 512, 102, 256)


def a3_body(A, R):
    def acc_of(m, t, rt):
        return a((t * 5 + rt) * 4, 4)
    proj_gemm(A, 1, [sWS], acc_of, R, None, RTW=5, swap=True, niter=15, w_pitch=4096, w_base=[WS_Z],
              xsrd=sWS, x_base=WS_G, x_pitch=3840, w_wrap=20)
    R.next = 6
    T0, vSt = R.alloc(), R.alloc()
    TMP = R.alloc(4)
    O = [R.alloc(2) for _ in range(4)]
    A(f"s_lshl_b32 s{sTmp}, s{sRB}, 2")
    A(f"s_add_u32 s{sTmp}, s{sTmp}, s{sWave}")
    A(f"s_mul_i32 s{sTmp}, s{sTmp}, 160")
    A(f"s_mul_i32 s{sTmp2}, s{sH}, {128*2560}")
    A(f"s_add_u32 s{sTmp}, s{sTmp}, s{sTmp2}")
    A(f"v_mul_u32_u24 {v(T0)}, 2560, {v(vN)}")
    A(f"v_lshl_add_u32 {v(T0)}, {v(vG)}, 3, {v(T0)}")
    A(f"v_add_u32 {v(vSt)}, s{sTmp}, {v(T0)}")
    i = 0
    for t in range(8):
        A(f"s_mov_b32 s{sTmp}, {t*16*2560}")
        for rt in range(5):
            o = O[i % 4]
            i += 1
            ab = (t * 5 + rt) * 4
            for r in range(4):
                A(f"v_accvgpr_read_b32 {v(TMP+r)}, a{ab+r}")
            A(f"v_cvt_pk_bf16_f32 {v(o)}, {v(TMP)}, {v(TMP+1)}")
            A(f"v_cvt_pk_bf16_f32 {v(o+1)}, {v(TMP+2)}, {v(TMP+3)}")
            A(f"buffer_store_dwordx2 {v(o,2)}, {v(vSt)}, {srd(sWO)}, s{sTmp} offen offset:{rt*32}")


def gen_a2(A, name="a2_kernel"):
    kernel_header(A, name)
    Lend = A.newlabel("Lend")
    a_prologue(A, Lend, 81)
    A("s_lshl_b32 s3, s2, 2")
    A(f"s_add_u32 s{sH}, s3, s{sWave}")
    A(f"s_cmp_gt_u32 s{sH}, 320")
    A(f"s_cbranch_scc1 {Lend}")
    R = RegAlloc(6, 256)
    a2_body(A, R)
    A.label(Lend)
    A("s_endpgm")
    return kernel_desc(name, 512, 102, 256)


def a2_body(A, R):
    OOB = 0x7ff00000
    T0, T1, vL16, vYi, vZ = R.alloc(), R.alloc(), R.alloc(), R.alloc(), R.alloc()
    DAT = R.alloc(96)
    ACC = R.alloc(64)
    TW = R.alloc(64)
    TMP = R.alloc(8)
    sIm = 50

    def dat(part, hl, idx):
        return DAT + ((part * 2 + hl) * 4 + idx) * 4

    def c64(cs, hl, tile, ks):
        return a((((cs * 2 + hl) * 4 + tile) * 2 + ks) * 4, 4)

    def c32(cs, hl, tile):
        return a(128 + ((cs * 2 + hl) * 2 + tile) * 4, 4)

    def acc(ri, i):
        return ACC + (ri * 8 + i) * 4
    A(f"v_lshlrev_b32 {v(vL16)}, 4, {v(vLane)}")
    A(f"s_sub_u32 s{sTmp}, s{sH}, 1")
    A(f"s_cmp_lt_u32 s{sTmp}, 319")
    A(f"s_cselect_b32 s{sIm}, 0, {OOB:#x}")
    A(f"v_add_u32 {v(vYi)}, s{sIm}, {v(vL16)}")
    A(f"s_lshl_b32 s{sTmp}, s{sH}, 13")
    A(f"s_add_u32 s{sTmp}, s{sTmp}, {WS_Y:#x}")
    A(f"s_add_u32 s{sTmp2}, s{sTmp}, {320*8192}")
    for hl in range(2):
        for i in range(4):
            A(f"s_add_u32 s51, s{sTmp}, {hl*4096}")
            A(f"buffer_load_dwordx4 {v(dat(0,hl,i),4)}, {v(vL16)}, {srd(sWS)}, s51 offen offset:{i*1024}")
            A(f"s_add_u32 s51, s{sTmp2}, {hl*4096}")
            A(f"buffer_load_dwordx4 {v(dat(1,hl,i),4)}, {v(vYi)}, {srd(sWS)}, s51 offen offset:{i*1024}")
    for i in range(8):
        A(f"s_mov_b32 s51, {WS_C32 + i*1024:#x}")
        A(f"buffer_load_dwordx4 {a(128+i*4,4)}, {v(vL16)}, {srd(sWS)}, s51 offen")

    def load_tw(base):
        for i in range(16):
            A(f"s_mov_b32 s51, {base + i*1024:#x}")
            A(f"buffer_load_dwordx4 {v(TW+i*4,4)}, {v(vL16)}, {srd(sWS)}, s51 offen")
    load_tw(WS_TW1)
    for i in range(32):
        A(f"s_mov_b32 s51, {WS_C64 + i*1024:#x}")
        A(f"buffer_load_dwordx4 {a(i*4,4)}, {v(vL16)}, {srd(sWS)}, s51 offen")

    def negate(part):
        for hl in range(2):
            for i in range(16):
                A(f"v_xor_b32 {v(dat(2,hl,0)+i)}, 0x80008000, {v(dat(part,hl,0)+i)}")

    def cmm(tiles, data_first, fwd):
        A.nop(2)
        terms = {0: [(0, 0), (1 if fwd else 2, 1)], 1: [(1, 0), (2 if fwd else 0, 1)]}
        seqs = []
        for ai, ksl in tiles:
            for ri in range(2):
                sq = []
                for didx, cf in ksl:
                    for part, cs in terms[ri]:
                        for dh, ch in ((0, 0), (1, 0), (0, 1)):
                            sq.append((acc(ri, ai), dat(part, dh, didx), cf(cs, ch)))
                seqs.append(sq)
        n = len(seqs[0])
        for j in range(n):
            for sq in seqs:
                ac, d, c = sq[j]
                cc = "0" if j == 0 else v(ac, 4)
                if data_first:
                    A(f"v_mfma_f32_16x16x32_bf16 {v(ac,4)}, {v(d,4)}, {c}, {cc}")
                else:
                    A(f"v_mfma_f32_16x16x32_bf16 {v(ac,4)}, {c}, {v(d,4)}, {cc}")
        A.nop(8)

    def twiddle(conj):
        for i in range(8):
            for r in range(4):
                xr, xi, c, s_ = acc(0, i) + r, acc(1, i) + r, TW + i * 4 + r, TW + 32 + i * 4 + r
                A(f"v_mul_f32 {v(T0)}, {v(xr)}, {v(c)}")
                A(f"v_mul_f32 {v(T1)}, {v(xi)}, {v(c)}")
                if not conj:
                    A(f"v_fma_f32 {v(T0)}, {v(xi)}, {v(s_)}, {v(T0)}")
                    A(f"v_fma_f32 {v(xi)}, -{v(xr)}, {v(s_)}, {v(T1)}")
                else:
                    A(f"v_fma_f32 {v(T0)}, -{v(xi)}, {v(s_)}, {v(T0)}")
                    A(f"v_fma_f32 {v(xi)}, {v(xr)}, {v(s_)}, {v(T1)}")
                A(f"v_mov_b32 {v(xr)}, {v(T0)}")

    def to_frags(pairs):
        for ri in range(2):
            for didx, ta, tb in pairs:
                for h, tt in enumerate((ta, tb)):
                    for q in range(2):
                        x = acc(ri, tt) + 2 * q
                        split_pack(A, x, x + 1, dat(ri, 0, didx) + h * 2 + q, dat(ri, 1, didx) + h * 2 + q, T0, T1)

    A("s_waitcnt vmcnt(48)")
    negate(0)
    cmm([(ts * 2 + tf, [(ts, lambda cs, hl, tf=tf: c32(cs, hl, tf))]) for ts in range(4) for tf in range(2)], True, True)
    A("s_waitcnt vmcnt(32)")
    twiddle(False)
    A(f"s_lshl_b32 s{sTmp}, s{sH}, 13")
    A(f"s_add_u32 s{sTmp}, s{sTmp}, {WS_WT:#x}")
    A(f"s_add_u32 s{sTmp2}, s{sTmp}, 4096")
    for i in range(8):
        A(f"buffer_load_dwordx4 {v(TW+i*4,4)}, {v(vL16)}, {srd(sWS)}, s{sTmp if i < 4 else sTmp2} offen offset:{(i%4)*1024}")
    to_frags([(tf * 2 + ks, (2 * ks) * 2 + tf, (2 * ks + 1) * 2 + tf) for tf in range(2) for ks in range(2)])
    negate(0)
    A("s_waitcnt vmcnt(8)")
    cmm([(t2 * 2 + tf, [(tf * 2 + ks, lambda cs, hl, t2=t2, ks=ks: c64(cs, hl, t2, ks)) for ks in range(2)])
         for t2 in range(4) for tf in range(2)], False, True)
    A("s_waitcnt vmcnt(0)")
    for t2 in range(4):
        for tf in range(2):
            for r in range(4):
                xr, xi = acc(0, t2 * 2 + tf) + r, acc(1, t2 * 2 + tf) + r
                wrp, wip = TW + t2 * 4 + tf * 2 + r // 2, TW + 16 + t2 * 4 + tf * 2 + r // 2
                if r % 2 == 0:
                    A(f"v_lshlrev_b32 {v(TMP)}, 16, {v(wrp)}")
                    A(f"v_lshlrev_b32 {v(TMP+1)}, 16, {v(wip)}")
                else:
                    A(f"v_and_b32 {v(TMP)}, 0xffff0000, {v(wrp)}")
                    A(f"v_and_b32 {v(TMP+1)}, 0xffff0000, {v(wip)}")
                A(f"v_mul_f32 {v(T0)}, {v(xr)}, {v(TMP)}")
                A(f"v_mul_f32 {v(T1)}, {v(xr)}, {v(TMP+1)}")
                A(f"v_fma_f32 {v(xr)}, -{v(xi)}, {v(TMP+1)}, {v(T0)}")
                A(f"v_fma_f32 {v(xi)}, {v(xi)}, {v(TMP)}, {v(T1)}")
    load_tw(WS_TW3)
    to_frags([(tf * 2 + ks, (2 * ks) * 2 + tf, (2 * ks + 1) * 2 + tf) for tf in range(2) for ks in range(2)])
    negate(1)
    cmm([(tf * 4 + ts, [(tf * 2 + ks, lambda cs, hl, ts=ts, ks=ks: c64(cs, hl, ts, ks)) for ks in range(2)])
         for tf in range(2) for ts in range(4)], True, False)
    A("s_waitcnt vmcnt(0)")
    twiddle(True)
    to_frags([(ts, ts, 4 + ts) for ts in range(4)])
    negate(1)
    cmm([(ts * 2 + t1, [(ts, lambda cs, hl, t1=t1: c32(cs, hl, t1))]) for ts in range(4) for t1 in range(2)], True, False)
    A(f"v_lshlrev_b32 {v(vZ)}, 7, {v(vN)}")
    A(f"v_lshl_add_u32 {v(vZ)}, {v(vG)}, 3, {v(vZ)}")
    A(f"v_add_u32 {v(vYi)}, s{sIm}, {v(vZ)}")
    A(f"s_lshl_b32 s{sTmp}, s{sH}, 12")
    A(f"s_add_u32 s{sTmp}, s{sTmp}, {WS_Z:#x}")
    i = 0
    for ri in range(2):
        for ts in range(4):
            for t1 in range(2):
                o = DAT + (i % 8) * 4
                i += 1
                x = acc(ri, ts * 2 + t1)
                split_pack(A, x, x + 1, o, o + 2, T0, T1)
                split_pack(A, x + 2, x + 3, o + 1, o + 3, T0, T1)
                for hl in range(2):
                    A(f"s_add_u32 s51, s{sTmp}, {ri*320*4096 + hl*640*4096}")
                    A(f"buffer_store_dwordx2 {v(o+hl*2,2)}, {v(vZ if ri == 0 else vYi)}, {srd(sWS)}, s51 offen offset:{t1*2048 + ts*32}")
```

```python
import struct
from asmlib import *
from layout import *


def f32bits(x):
    return struct.unpack("<I", struct.pack("<f", x))[0]


SPIN_MAX = 400000
WARM = 1
NST = 64
CDELAY = 12
KC = 1
DSLEEP = 8
OOB = 0x7ff00000


def gen_rec(A, name="rec_kernel", prof=False, nsteps=64, exp=()):
    kernel_header(A, name)
    sWS, sM0, sW, sDBG = 4, 8, 12, 32
    sX, sT, sGrp, sMemb, sWave, sStep, sMode, sCnt = 36, 37, 38, 39, 40, 41, 42, 43
    sOffKM, sOffC, sOffD, sOffK, sTmp, sTmp2, sH, sOffU = 44, 45, 46, 47, 48, 49, 50, 51
    sRA, sRC, sRD, sRAp, sRCp, sRDp, sWarm, sOffUM = 90, 91, 92, 93, 94, 95, 96, 101
    sMaskG = 54
    sC = 58
    sEnd = 59
    sCnts = 60
    sPr = 70
    R = RegAlloc(1, 256)
    vLane, vN, vG, vN8 = R.alloc(), R.alloc(), R.alloc(), R.alloc()
    vT0, vT1, vT2, vT3 = R.alloc(), R.alloc(), R.alloc(), R.alloc()
    vD0, vD2 = R.alloc(), R.alloc()
    vRAw, vRAr, vAst, vKMst = R.alloc(), R.alloc(), R.alloc(), R.alloc()
    vQo, vKo = R.alloc(), R.alloc()
    vRCw, vRCr, vCst = R.alloc(), R.alloc(), R.alloc()
    vCg = R.alloc(8)
    vDst = R.alloc()
    vK0, vK1, vU = R.alloc(), R.alloc(), R.alloc()
    vUM0, vUM2 = R.alloc(), R.alloc()
    vWarm = R.alloc()
    vNinf = R.alloc()
    vU2 = R.alloc()
    vOnes = R.alloc(4)
    vSent = R.alloc(4)
    vDummy = R.alloc(4)
    vPub = R.alloc(2)
    assert R.next <= 64
    M = R.alloc(12)
    Mr = R.alloc(8)
    accA = R.alloc(24)
    Q = R.alloc(8)
    Qr = R.alloc(8)
    KM = R.alloc(16)
    VM = R.alloc(16)
    acc1, acc2, acc0 = R.alloc(4), R.alloc(4), R.alloc(4)
    accU = R.alloc(12)
    UA = R.alloc(6)
    P0 = R.alloc(4)
    PM, Blo = R.alloc(2), R.alloc(2)
    vMx, vMx2, vRz = R.alloc(), R.alloc(), R.alloc()
    accZ = R.alloc(4)
    accC = R.alloc(12)
    Cg = R.alloc(16)
    CR = R.alloc(28)
    TMP = 64
    aWA, aWC, aK, aU, aUn = 0, 120, 168, 200, 212

    def WA(t, ks):
        return a(aWA + (t * 5 + ks) * 4, 4)

    def WC(t, s_):
        return a(aWC + (t * 4 + s_) * 4, 4)

    LDS_RA = 65536
    LDS_RC = 65536 + 12288
    LDS_ROLE = 65536 + 24576

    Lend = A.newlabel("Lend")
    Lfail = A.newlabel("Lfail")
    WSR = f"s[{sWS}:{sWS+3}]"

    def stamp(i):
        if not prof:
            return
        if "rt" in exp:
            Ls = A.newlabel("Lst")
            A(f"s_cmp_lg_u32 s{sStep}, {30 if i != 13 else 31}")
            A(f"s_cbranch_scc1 {Ls}")
            A(f"s_memrealtime s[88:89]")
            A("s_waitcnt lgkmcnt(0)")
            A(f"s_mov_b32 s{sPr+i}, s88")
            A.label(Ls)
            return
        A(f"s_memtime s[88:89]")
        A("s_waitcnt lgkmcnt(0)")
        A(f"s_sub_u32 s{sTmp2}, s88, s86")
        A(f"s_add_u32 s{sPr+i}, s{sPr+i}, s{sTmp2}")
        A("s_mov_b32 s86, s88")

    A("s_cmp_ge_u32 s2, 256")
    A(f"s_cbranch_scc1 {Lend}")
    A("s_load_dwordx8 s[16:23], s[0:1], 32")
    A("s_load_dwordx2 s[24:25], s[0:1], 64")
    A("s_load_dwordx4 s[28:31], s[0:1], 88")
    A(f"v_and_b32 {v(vLane)}, 63, v0")
    A(f"v_lshrrev_b32 {v(vT0)}, 6, v0")
    A(f"v_and_b32 {v(vN)}, 15, v0")
    A(f"v_readfirstlane_b32 s{sWave}, {v(vT0)}")
    A(f"v_bfe_u32 {v(vG)}, v0, 4, 2")
    A(f"v_and_b32 {v(vN8)}, 7, v0")
    A(f"s_getreg_b32 s{sX}, hwreg(HW_REG_XCC_ID)")
    A(f"s_and_b32 s{sX}, s{sX}, 7")
    A("s_waitcnt lgkmcnt(0)")
    make_srd(A, sWS, 30, WS_BYTES)
    make_srd(A, sM0, 16, 10240)
    make_srd(A, sDBG, 28, 256)
    make_srd(A, sW, 18, 640 * 4096 * 2)
    Lel_done = A.newlabel("Lel")
    A(f"s_cmp_lg_u32 s{sWave}, 0")
    A(f"s_cbranch_scc1 {Lel_done}")
    A(f"s_lshl_b32 s{sTmp}, s{sX}, 8")
    A(f"s_add_u32 s{sTmp}, s{sTmp}, {WS_CNT:#x}")
    A(f"v_mov_b32 {v(vT0)}, s{sTmp}")
    A(f"v_mov_b32 {v(vT1)}, 1")
    A(f"v_lshlrev_b32 {v(vT2)}, 8, {v(vLane)}")
    A(f"v_add_u32 {v(vT2)}, {WS_CNT:#x}, {v(vT2)}")
    A("s_mov_b64 exec, 1")
    A(f"buffer_atomic_add {v(vT1)}, {v(vT0)}, {WSR}, 0 offen sc0")
    A("s_waitcnt vmcnt(0)")
    A(f"v_readfirstlane_b32 s{sT}, {v(vT1)}")
    A("s_mov_b64 exec, 0xff")
    A(f"s_mov_b32 s{sCnt}, 0")
    Lp = A.newlabel("Lelp")
    A.label(Lp)
    A(f"buffer_load_dword {v(vT3)}, {v(vT2)}, {WSR}, 0 offen sc1")
    A("s_waitcnt vmcnt(0)")
    for i in range(8):
        A(f"v_readlane_b32 s{sCnts+i}, {v(vT3)}, {i}")
    A("s_nop 3")
    A(f"s_add_u32 s{sTmp}, s{sCnts}, s{sCnts+1}")
    for i in range(2, 8):
        A(f"s_add_u32 s{sTmp}, s{sTmp}, s{sCnts+i}")
    A(f"s_add_u32 s{sCnt}, s{sCnt}, 1")
    A(f"s_cmp_gt_u32 s{sCnt}, {SPIN_MAX}")
    A(f"s_cbranch_scc1 {Lfail}")
    A(f"s_cmp_lt_u32 s{sTmp}, 256")
    A(f"s_cbranch_scc1 {Lp}")
    A(f"s_min_u32 s{sTmp}, s{sCnts}, s{sCnts+1}")
    for i in range(2, 4):
        A(f"s_min_u32 s{sTmp}, s{sTmp}, s{sCnts+i}")
    A(f"s_mov_b32 s{sTmp2}, s{sT}")
    for i in range(7):
        A(f"s_cmp_gt_u32 s{sX}, {i}")
        A(f"s_cselect_b32 s{sCnt}, s{sCnts+i}, 0")
        A(f"s_add_u32 s{sTmp2}, s{sTmp2}, s{sCnt}")
    A(f"s_lshl_b32 s{sCnt}, s{sX}, 5")
    A(f"s_add_u32 s{sCnt}, s{sCnt}, s{sT}")
    A(f"s_cmp_lt_u32 s{sT}, 32")
    A(f"s_cselect_b32 s{sCnt}, s{sCnt}, 255")
    A(f"s_cmp_ge_u32 s{sTmp}, 32")
    A(f"s_cselect_b32 s{sCnt}, s{sCnt}, s{sTmp2}")
    A(f"s_cselect_b32 s{sMode}, 0, 1")
    if "slow" in exp:
        A(f"s_mov_b32 s{sCnt}, s{sTmp2}")
        A(f"s_mov_b32 s{sMode}, 1")
    A(f"s_lshl_b32 s{sMode}, s{sMode}, 8")
    A(f"s_or_b32 s{sCnt}, s{sCnt}, s{sMode}")
    A("s_mov_b64 exec, 1")
    A(f"v_mov_b32 {v(vT0)}, {LDS_ROLE}")
    A(f"v_mov_b32 {v(vT1)}, s{sCnt}")
    A(f"ds_write_b32 {v(vT0)}, {v(vT1)}")
    A("s_waitcnt lgkmcnt(0)")
    A("s_mov_b64 exec, -1")
    A.label(Lel_done)
    A("s_barrier")
    A(f"v_mov_b32 {v(vT0)}, {LDS_ROLE}")
    A(f"ds_read_b32 {v(vT1)}, {v(vT0)}")
    A("s_waitcnt lgkmcnt(0)")
    A(f"v_readfirstlane_b32 s{sCnt}, {v(vT1)}")
    A("s_nop 3")
    A(f"s_lshr_b32 s{sMode}, s{sCnt}, 8")
    A(f"s_and_b32 s{sCnt}, s{sCnt}, 255")
    A(f"s_cmp_ge_u32 s{sCnt}, 128")
    A(f"s_cbranch_scc1 {Lend}")
    A(f"s_lshr_b32 s{sGrp}, s{sCnt}, 4")
    A(f"s_and_b32 s{sMemb}, s{sCnt}, 15")

    A(f"s_mov_b32 s{sMaskG}, -1")
    A(f"s_mov_b32 s{sMaskG+1}, 0")
    A(f"s_mov_b32 s{sC}, {f32bits(SCALE*LOG2E):#x}")
    A(f"v_mov_b32 {v(vNinf)}, 0xff800000")
    for i in range(4):
        A(f"v_mov_b32 {v(vOnes+i)}, 0x3f803f80")
        A(f"v_mov_b32 {v(vSent+i)}, -1")

    A(f"s_lshr_b32 s{sTmp}, s{sMemb}, 2")
    A(f"s_lshl_b32 s{sH}, s{sGrp}, 2")
    A(f"s_add_u32 s{sH}, s{sH}, s{sTmp}")
    A(f"s_and_b32 s{sTmp}, s{sMemb}, 3")
    A(f"s_lshl_b32 s{sTmp2}, s{sH}, 8")
    A(f"s_lshl_b32 s{sCnt}, s{sTmp}, 6")
    A(f"s_add_u32 s{sTmp2}, s{sTmp2}, s{sCnt}")
    A(f"s_mul_i32 s{sCnt}, s{sWave}, {160*8192}")
    A(f"s_add_u32 s{sTmp2}, s{sTmp2}, s{sCnt}")
    A(f"v_lshrrev_b32 {v(vT0)}, 2, {v(vLane)}")
    A(f"v_lshlrev_b32 {v(vT0)}, 13, {v(vT0)}")
    A(f"v_and_b32 {v(vT1)}, 3, {v(vLane)}")
    A(f"v_lshl_add_u32 {v(vT0)}, {v(vT1)}, 4, {v(vT0)}")
    A(f"v_add_u32 {v(vT0)}, s{sTmp2}, {v(vT0)}")
    for m in range(3):
        if m:
            make_srd(A, sW, 18 + 2 * m, 640 * 4096 * 2)
        for i in range(10):
            A(f"s_mov_b32 s{sCnt}, {i*131072}")
            A(f"buffer_load_dwordx4 {v(TMP+(m*10+i)*4,4)}, {v(vT0)}, s[{sW}:{sW+3}], s{sCnt} offen")
    make_srd(A, sW, 24, 4096 * 640 * 2)
    A(f"s_lshl_b32 s{sTmp2}, s{sGrp}, 2")
    A(f"s_add_u32 s{sTmp2}, s{sTmp2}, s{sWave}")
    A(f"s_mul_i32 s{sTmp2}, s{sTmp2}, {128*1280}")
    A(f"s_mul_i32 s{sCnt}, s{sMemb}, 80")
    A(f"s_add_u32 s{sTmp2}, s{sTmp2}, s{sCnt}")
    A(f"v_lshrrev_b32 {v(vT1)}, 3, {v(vLane)}")
    A(f"v_mul_u32_u24 {v(vT1)}, 1280, {v(vT1)}")
    A(f"v_and_b32 {v(vT2)}, 7, {v(vLane)}")
    A(f"v_lshl_add_u32 {v(vT1)}, {v(vT2)}, 4, {v(vT1)}")
    A(f"v_add_u32 {v(vT1)}, s{sTmp2}, {v(vT1)}")
    for i in range(16):
        A(f"s_mov_b32 s{sCnt}, {i*8*1280}")
        A(f"buffer_load_dwordx4 {v(TMP+120+i*4,4)}, {v(vT1)}, s[{sW}:{sW+3}], s{sCnt} offen")
    A(f"s_lshl_b32 s{sTmp2}, s{sWave}, 14")
    A(f"v_lshlrev_b32 {v(vT0)}, 4, {v(vLane)}")
    A(f"v_add_u32 {v(vT0)}, s{sTmp2}, {v(vT0)}")
    A(f"v_lshrrev_b32 {v(vT1)}, 2, {v(vN)}")
    A(f"v_lshl_add_u32 {v(vT2)}, {v(vG)}, 3, {v(vT1)}")
    A(f"v_lshlrev_b32 {v(vT2)}, 6, {v(vT2)}")
    A(f"v_and_b32 {v(vT3)}, 3, {v(vN)}")
    A(f"v_lshl_add_u32 {v(vT2)}, {v(vT3)}, 3, {v(vT2)}")
    A(f"v_add_u32 {v(vT2)}, s{sTmp2}, {v(vT2)}")
    for m in range(3):
        A(f"s_waitcnt vmcnt({(2-m)*10+16})")
        for i in range(10):
            A(f"ds_write_b128 {v(vT0)}, {v(TMP+(m*10+i)*4,4)} offset:{i*1024}")
        for tt in range(2):
            for ks in range(5):
                r0 = aWA + ((m * 2 + tt) * 5 + ks) * 4
                A(f"ds_read_b64_tr_b16 {a(r0,2)}, {v(vT2)} offset:{ks*2048+tt*32}")
                A(f"ds_read_b64_tr_b16 {a(r0+2,2)}, {v(vT2)} offset:{ks*2048+tt*32+256}")
            A("s_waitcnt lgkmcnt(0)")
    A(f"v_lshl_add_u32 {v(vT2)}, {v(vG)}, 2, {v(vT1)}")
    A(f"v_lshlrev_b32 {v(vT2)}, 7, {v(vT2)}")
    A(f"v_lshl_add_u32 {v(vT2)}, {v(vT3)}, 3, {v(vT2)}")
    A(f"v_add_u32 {v(vT2)}, s{sTmp2}, {v(vT2)}")
    A("s_waitcnt vmcnt(0)")
    for i in range(16):
        A(f"ds_write_b128 {v(vT0)}, {v(TMP+120+i*4,4)} offset:{i*1024}")
        if i % 8 == 7:
            A("s_waitcnt lgkmcnt(0)")
    for tt in range(3):
        for s_ in range(4):
            r0 = aWC + (tt * 4 + s_) * 4
            A(f"ds_read_b64_tr_b16 {a(r0,2)}, {v(vT2)} offset:{s_*4096+tt*32}")
            A(f"ds_read_b64_tr_b16 {a(r0+2,2)}, {v(vT2)} offset:{s_*4096+tt*32+2048}")
        A("s_waitcnt lgkmcnt(0)")

    A(f"v_mul_u32_u24 {v(vT0)}, 1280, {v(vN8)}")
    A(f"v_lshl_add_u32 {v(vT0)}, {v(vG)}, 4, {v(vT0)}")
    A(f"s_mul_i32 s{sTmp}, s{sWave}, 320")
    A(f"v_add_u32 {v(vT0)}, s{sTmp}, {v(vT0)}")
    A(f"v_add_u32 {v(Cg+1)}, 256, {v(vT0)}")
    A(f"v_lshrrev_b32 {v(vT1)}, 3, {v(vN)}")
    A(f"v_lshl_add_u32 {v(Cg)}, {v(vT1)}, 6, {v(vT0)}")
    A(f"s_mul_i32 s{sTmp}, s{sWave}, 2560")
    A(f"v_lshlrev_b32 {v(vT0)}, 4, {v(vLane)}")
    A(f"v_add_u32 {v(vD0)}, s{sTmp}, {v(vT0)}")
    A(f"v_lshl_add_u32 {v(vT1)}, {v(vG)}, 3, {v(vN8)}")
    A(f"v_lshlrev_b32 {v(vT1)}, 4, {v(vT1)}")
    A(f"s_add_u32 s{sTmp}, s{sTmp}, 2048")
    A(f"v_add_u32 {v(vD2)}, s{sTmp}, {v(vT1)}")
    A(f"s_lshl_b32 s{sTmp2}, s{sGrp}, 2")
    A(f"s_add_u32 s{sTmp2}, s{sTmp2}, s{sWave}")
    A(f"s_mul_i32 s{sTmp}, s{sTmp2}, 6144")
    A(f"v_add_u32 {v(vQo)}, s{sTmp}, {v(vT0)}")
    A(f"v_add_u32 {v(vKo)}, 2048, {v(vQo)}")
    A(f"s_lshl_b32 s{sTmp}, s{sTmp2}, 13")
    A(f"v_add_u32 {v(vK0)}, s{sTmp}, {v(vT0)}")
    A(f"v_add_u32 {v(vK1)}, 4096, {v(vK0)}")
    A(f"s_mul_i32 s{sTmp}, s{sTmp2}, 40960")
    A(f"s_mul_i32 s{sCnt}, s{sMemb}, 2560")
    A(f"s_add_u32 s{sTmp}, s{sTmp}, s{sCnt}")
    A(f"v_lshrrev_b32 {v(vT2)}, 3, {v(vN)}")
    A(f"v_lshl_add_u32 {v(vU)}, {v(vT2)}, 9, {v(vT1)}")
    A(f"v_add_u32 {v(vU)}, s{sTmp}, {v(vU)}")
    A(f"v_mov_b32 {v(vU2)}, {OOB:#x}")
    A(f"v_cmp_gt_u32 vcc, 8, {v(vN)}")
    A("s_nop 1")
    A(f"v_cndmask_b32 {v(vU2)}, {v(vU2)}, {v(vU)}, vcc")
    A(f"s_mul_i32 s{sTmp}, s{sWave}, 3072")
    A(f"s_add_u32 s{sCnt}, s{sTmp}, {LDS_RA}")
    A(f"v_add_u32 {v(vRAw)}, s{sCnt}, {v(vT0)}")
    A(f"s_add_u32 s{sCnt}, s{sTmp}, {LDS_RC}")
    A(f"v_add_u32 {v(vRCw)}, s{sCnt}, {v(vT0)}")
    A(f"s_mul_i32 s{sTmp}, s{sWave}, 48")
    A(f"v_add_u32 {v(vT0)}, s{sTmp}, {v(vLane)}")
    A(f"v_lshrrev_b32 {v(vT1)}, 6, {v(vT0)}")
    A(f"v_bfe_u32 {v(vT2)}, {v(vT0)}, 1, 3")
    A(f"v_bfe_u32 {v(vT3)}, {v(vT0)}, 4, 2")
    A(f"v_and_b32 {v(vT0)}, 1, {v(vT0)}")
    A(f"v_lshl_add_u32 {v(vRAr)}, {v(vT3)}, 4, {v(vT2)}")
    A(f"v_lshlrev_b32 {v(vAst)}, 4, {v(vRAr)}")
    A(f"v_lshl_add_u32 {v(vRAr)}, {v(vT0)}, 3, {v(vRAr)}")
    A(f"v_lshlrev_b32 {v(vRAr)}, 4, {v(vRAr)}")
    A(f"v_lshl_add_u32 {v(vRAr)}, {v(vT1)}, 10, {v(vRAr)}")
    A(f"v_add_u32 {v(vRAr)}, {LDS_RA}, {v(vRAr)}")
    A(f"s_and_b32 s{sTmp}, s{sMemb}, 3")
    A(f"s_lshr_b32 s{sTmp2}, s{sTmp}, 1")
    A(f"s_lshl_b32 s{sTmp2}, s{sTmp2}, 10")
    A(f"s_and_b32 s{sCnt}, s{sTmp}, 1")
    A(f"s_lshl_b32 s{sCnt}, s{sCnt}, 7")
    A(f"s_add_u32 s{sTmp2}, s{sTmp2}, s{sCnt}")
    A(f"v_add_u32 {v(vAst)}, s{sTmp2}, {v(vAst)}")
    A(f"s_lshl_b32 s{sTmp2}, s{sTmp}, 9")
    A(f"v_lshl_add_u32 {v(vT2)}, {v(vT3)}, 3, {v(vT2)}")
    A(f"v_lshlrev_b32 {v(vT2)}, 4, {v(vT2)}")
    A(f"v_add_u32 {v(vT2)}, s{sTmp2}, {v(vT2)}")
    A(f"v_lshl_add_u32 {v(vT2)}, {v(vT0)}, 3, {v(vT2)}")
    A(f"s_lshl_b32 s{sTmp}, s{sH}, 11")
    A(f"v_add_u32 {v(vKMst)}, s{sTmp}, {v(vT2)}")
    A(f"v_add_u32 {v(vT3)}, {WS_VM - WS_KM:#x}, {v(vKMst)}")
    A(f"v_cmp_eq_u32 vcc, 2, {v(vT1)}")
    A("s_nop 1")
    A(f"v_cndmask_b32 {v(vKMst)}, {v(vKMst)}, {v(vT3)}, vcc")
    A(f"v_mov_b32 {v(vT3)}, {OOB:#x}")
    A(f"v_cmp_eq_u32 vcc, 0, {v(vT1)}")
    A("s_nop 1")
    A(f"v_cndmask_b32 {v(vKMst)}, {v(vKMst)}, {v(vT3)}, vcc")
    A(f"v_lshl_add_u32 {v(vAst)}, {v(vT0)}, 3, {v(vAst)}")
    A(f"v_lshl_add_u32 {v(vAst)}, {v(vT1)}, 11, {v(vAst)}")
    A(f"s_mul_i32 s{sTmp}, s{sH}, 6144")
    A(f"v_add_u32 {v(vAst)}, s{sTmp}, {v(vAst)}")
    A(f"s_and_b32 s{sTmp}, s{sGrp}, 1")
    A(f"s_cmp_lt_u32 s{sWave}, 2")
    A(f"s_cselect_b32 s{sTmp}, s{sWave}, s{sTmp}")
    A(f"v_lshrrev_b32 {v(vT1)}, 3, {v(vLane)}")
    A(f"v_and_b32 {v(vT2)}, 1, {v(vLane)}")
    A(f"v_lshl_add_u32 {v(vT0)}, {v(vT1)}, 1, {v(vT2)}")
    A(f"v_bfe_u32 {v(vT2)}, {v(vLane)}, 1, 2")
    A(f"s_lshl_b32 s{sTmp2}, s{sTmp}, 2")
    A(f"v_add_u32 {v(vT2)}, s{sTmp2}, {v(vT2)}")
    A(f"v_and_b32 {v(vT3)}, 3, {v(vT0)}")
    A(f"v_lshl_add_u32 {v(vT3)}, {v(vT3)}, 4, {v(vT2)}")
    A(f"v_lshlrev_b32 {v(vT3)}, 4, {v(vT3)}")
    A(f"v_lshrrev_b32 {v(vT0)}, 2, {v(vT0)}")
    A(f"v_lshl_add_u32 {v(vT3)}, {v(vT0)}, 10, {v(vT3)}")
    A(f"v_add_u32 {v(vRCr)}, {LDS_RC}, {v(vT3)}")
    A(f"s_mul_i32 s{sTmp2}, s{sMemb}, 1280")
    A(f"s_mul_i32 s{sTmp}, s{sTmp}, 640")
    A(f"s_add_u32 s{sTmp}, s{sTmp}, s{sTmp2}")
    A(f"v_lshlrev_b32 {v(vT0)}, 4, {v(vLane)}")
    A(f"v_add_u32 {v(vCst)}, s{sTmp}, {v(vT0)}")
    for r in range(1, 8):
        A(f"s_xor_b32 s{sTmp2}, s{sGrp}, {r}")
        A(f"s_mul_i32 s{sTmp2}, s{sTmp2}, 20480")
        A(f"v_add_u32 {v(vCg+r)}, s{sTmp2}, {v(vCst)}")
    A(f"s_mul_i32 s{sTmp}, s{sMemb}, 5")
    A(f"v_add_u32 {v(vT1)}, s{sTmp}, {v(vT1)}")
    A(f"v_lshlrev_b32 {v(vDst)}, 4, {v(vT2)}")
    A(f"v_and_b32 {v(vT2)}, 1, {v(vLane)}")
    A(f"v_lshl_add_u32 {v(vDst)}, {v(vT2)}, 3, {v(vDst)}")
    A(f"v_mul_u32_u24 {v(vT2)}, 205, {v(vT1)}")
    A(f"v_lshrrev_b32 {v(vT2)}, 12, {v(vT2)}")
    A(f"v_mul_u32_u24 {v(vT3)}, 20, {v(vT2)}")
    A(f"v_sub_u32 {v(vT1)}, {v(vT1)}, {v(vT3)}")
    A(f"v_mul_u32_u24 {v(vT2)}, 2560, {v(vT2)}")
    A(f"v_add_u32 {v(vDst)}, {v(vDst)}, {v(vT2)}")
    A(f"v_and_b32 {v(vT2)}, 3, {v(vT1)}")
    A(f"v_lshrrev_b32 {v(vT1)}, 2, {v(vT1)}")
    A(f"v_lshrrev_b32 {v(vT3)}, 1, {v(vT1)}")
    A(f"v_lshl_add_u32 {v(vDst)}, {v(vT3)}, 10, {v(vDst)}")
    A(f"v_and_b32 {v(vT3)}, 1, {v(vT1)}")
    A(f"v_lshl_add_u32 {v(vDst)}, {v(vT3)}, 7, {v(vDst)}")
    A(f"v_lshlrev_b32 {v(vT3)}, 8, {v(vT2)}")
    A(f"v_lshlrev_b32 {v(vT2)}, 7, {v(vT2)}")
    A(f"v_cmp_gt_u32 vcc, 4, {v(vT1)}")
    A("s_nop 1")
    A(f"v_cndmask_b32 {v(vT2)}, {v(vT2)}, {v(vT3)}, vcc")
    A(f"v_add_u32 {v(vDst)}, {v(vDst)}, {v(vT2)}")
    A(f"s_lshl_b32 s{sTmp}, s{sMemb}, 1")
    A(f"s_and_b32 s{sTmp2}, s{sWave}, 1")
    A(f"s_add_u32 s{sTmp}, s{sTmp}, s{sTmp2}")
    A(f"s_lshl_b32 s{sTmp}, s{sTmp}, 10")
    A(f"s_lshl_b32 s{sTmp2}, s{sGrp}, 15")
    A(f"s_add_u32 s{sTmp}, s{sTmp}, s{sTmp2}")
    A(f"v_lshlrev_b32 {v(vWarm)}, 4, {v(vLane)}")
    A(f"v_add_u32 {v(vWarm)}, s{sTmp}, {v(vWarm)}")

    A(f"s_mov_b32 s{sStep}, 0")
    A(f"s_mov_b32 s{sOffKM}, {WS_KM:#x}")
    A(f"s_mov_b32 s{sOffK}, {WS_KX:#x}")
    A(f"s_mov_b32 s{sOffU}, {WS_U:#x}")

    def k_load(f):
        vo = vK0 if f < 4 else vK1
        return f"buffer_load_dwordx4 {a(aK+f*4,4)}, {v(vo)}, {WSR}, s{sOffK} offen offset:{(f%4)*1024}"

    def u_load(t, dst):
        return f"buffer_load_dwordx4 {a(dst+t*4,4)}, {v(vU if t < 2 else vU2)}, {WSR}, s{sOffU} offen offset:{t*1024}"

    def check_sentinel(regs, tmp):
        regs = list(regs)
        A(f"v_max3_u32 {v(tmp)}, {v(regs[0])}, {v(regs[1])}, {v(regs[2])}")
        rest = regs[3:]
        while rest:
            if len(rest) >= 2:
                A(f"v_max3_u32 {v(tmp)}, {v(tmp)}, {v(rest[0])}, {v(rest[1])}")
                rest = rest[2:]
            else:
                A(f"v_max_u32 {v(tmp)}, {v(tmp)}, {v(rest[0])}")
                rest = []
        A(f"v_cmp_eq_u32 vcc, -1, {v(tmp)}")

    def poll(issue, regs, code):
        Lp_ = A.newlabel("Lpoll")
        Ld_ = A.newlabel("Lpd")
        A(f"s_mov_b32 s{sCnt}, 0")
        A.label(Lp_)
        issue()
        A("s_waitcnt vmcnt(0)")
        check_sentinel(regs, vT0)
        A(f"s_cbranch_vccz {Ld_}")
        A(f"s_add_u32 s{sCnt}, s{sCnt}, 1")
        A(f"s_cmp_lt_u32 s{sCnt}, {SPIN_MAX}")
        A(f"s_cbranch_scc1 {Lp_}")
        A(f"s_mov_b32 s{sTmp}, {code}")
        A(f"s_branch {Lfail}")
        A.label(Ld_)
        if prof:
            r = {4: 97, 1: 98, 3: 100}[code]
            A(f"s_add_u32 s{r}, s{r}, s{sCnt}")

    def store_local(instr):
        L1 = A.newlabel("Lsl")
        L2 = A.newlabel("Lsl")
        A(f"s_cmp_lg_u32 s{sMode}, 0")
        A(f"s_cbranch_scc1 {L1}")
        A(instr)
        A(f"s_branch {L2}")
        A.label(L1)
        A(instr + " sc1")
        A.label(L2)

    for f in range(8):
        A(k_load(f))
    for t in range(3):
        A(u_load(t, aUn))
    if prof:
        for i in range(16):
            A(f"s_mov_b32 s{sPr+i}, 0")
        for i in range(97, 101):
            A(f"s_mov_b32 s{i}, 0")
        A("s_memtime s[86:87]")
        A("s_waitcnt lgkmcnt(0)")

    ring = []
    ring += [f"s_and_b32 s{sTmp}, s{sStep}, 3",
             f"s_add_u32 s{sTmp2}, s{sStep}, 3",
             f"s_and_b32 s{sTmp2}, s{sTmp2}, 3",
             f"s_mul_i32 s{sRA}, s{sTmp}, {32*6144}",
             f"s_add_u32 s{sRA}, s{sRA}, {WS_RA:#x}",
             f"s_mul_i32 s{sRAp}, s{sTmp2}, {32*6144}",
             f"s_add_u32 s{sRAp}, s{sRAp}, {WS_RA:#x}",
             f"s_mul_i32 s{sRC}, s{sTmp}, {KC*8*20480}",
             f"s_add_u32 s{sRC}, s{sRC}, {WS_RC:#x}",
             f"s_add_u32 s{sRCp}, s{sStep}, 2",
             f"s_and_b32 s{sRCp}, s{sRCp}, 3",
             f"s_mul_i32 s{sRCp}, s{sRCp}, {KC*8*20480}",
             f"s_add_u32 s{sRCp}, s{sRCp}, {WS_RC:#x}",
             f"s_mul_i32 s{sCnt}, s{sGrp}, 20480",
             f"s_add_u32 s{sRCp}, s{sRCp}, s{sCnt}",
             f"s_add_u32 s{sOffC}, s{sRC}, s{sCnt}",
             f"s_lshr_b32 s{sCnt}, s{sGrp}, 1",
             f"s_mul_i32 s{sCnt}, s{sCnt}, 10240",
             f"s_add_u32 s{sCnt}, s{sCnt}, {WS_RD:#x}",
             f"s_mul_i32 s{sRDp}, s{sTmp2}, {8*10240}",
             f"s_add_u32 s{sRDp}, s{sRDp}, s{sCnt}",
             f"s_add_u32 s{sTmp}, s{sStep}, 1",
             f"s_and_b32 s{sTmp}, s{sTmp}, 3",
             f"s_mul_i32 s{sRD}, s{sTmp}, {8*10240}",
             f"s_add_u32 s{sRD}, s{sRD}, s{sCnt}",
             f"s_add_u32 s{sOffK}, s{sOffK}, {32*8192}",
             f"s_add_u32 s{sOffU}, s{sOffU}, {32*40960}",
             f"s_add_u32 s{sWarm}, s{sOffK}, {WARM*32*8192}",
             f"s_min_u32 s{sWarm}, s{sWarm}, {WS_KX+63*32*8192}"]

    for ins in ring:
        A(ins)
    A(f"buffer_load_dwordx4 {v(M,4)}, {v(Cg)}, s[{sM0}:{sM0+3}], 0 offen")
    A(f"buffer_load_dwordx4 {v(M+4,4)}, {v(Cg)}, s[{sM0}:{sM0+3}], 0 offen offset:128")
    A(f"buffer_load_dwordx4 {v(M+8,4)}, {v(Cg+1)}, s[{sM0}:{sM0+3}], 0 offen")
    A("s_waitcnt vmcnt(0)")
    Lloop = A.newlabel("Lloop")
    A.label(Lloop)
    stamp(0)
    Bks = [M, Mr, M + 4, Mr + 4, M + 8]
    fill = [f"v_mov_b32_dpp {v(Mr+i)}, {v(M+i)} row_ror:8 row_mask:0xf bank_mask:0xf" for i in range(8)]
    fill += [f"v_accvgpr_mov_b32 {a(aU+i)}, {a(aUn+i)}" for i in range(12)]
    order = [(ks, t) for ks in (0, 2, 1) for t in range(6)]
    order += [(ks, t) for t in range(6) for ks in (3, 4)]
    merged = []
    for idx, (ks, t) in enumerate(order):
        c = "0" if ks == 0 else v(accA + t * 4, 4)
        A(f"v_mfma_f32_16x16x32_bf16 {v(accA+t*4,4)}, {WA(t,ks)}, {v(Bks[ks],4)}, {c}")
        for _ in range(2):
            if fill:
                A(fill.pop(0))
    assert not fill
    for p in range(3):
        if p == 2:
            A.nop(1)
        for i in range(4):
            A(f"v_mov_b32_dpp {v(accA+8*p+i)}, {v(accA+8*p+4+i)} row_ror:8 row_mask:0xf bank_mask:0xc")
        A(f"ds_write_b128 {v(vRAw)}, {v(accA+8*p,4)} offset:{p*1024}")
    stamp(6)
    A("s_waitcnt lgkmcnt(0)")
    if "cround" not in exp:
        stamp(7)
    A("s_barrier")
    stamp(8)
    A("s_mov_b32 exec_hi, 0xffff")
    for w in range(4):
        A(f"ds_read_b128 {v(accA+w*4,4)}, {v(vRAr)} offset:{w*3072}")
    A("s_waitcnt lgkmcnt(2)")
    for i in range(4):
        A(f"v_add_f32 {v(accA+i)}, {v(accA+i)}, {v(accA+4+i)}")
    A("s_waitcnt lgkmcnt(0)")
    for i in range(4):
        A(f"v_add_f32 {v(accA+8+i)}, {v(accA+8+i)}, {v(accA+12+i)}")
    for i in range(4):
        A(f"v_add_f32 {v(accA+i)}, {v(accA+i)}, {v(accA+8+i)}")
    A(f"v_cvt_pk_bf16_f32 {v(vPub)}, {v(accA)}, {v(accA+1)}")
    A(f"v_cvt_pk_bf16_f32 {v(vPub+1)}, {v(accA+2)}, {v(accA+3)}")
    A(f"v_min_u32 {v(vPub)}, 0xfffffffe, {v(vPub)}")
    A(f"v_min_u32 {v(vPub+1)}, 0xfffffffe, {v(vPub+1)}")
    A(f"s_cmp_eq_u32 s{sStep}, {nsteps-1}")
    Lfin = A.newlabel("Lfin")
    A(f"s_cbranch_scc1 {Lfin}")
    store_local(f"buffer_store_dwordx2 {v(vPub,2)}, {v(vAst)}, {WSR}, s{sRA} offen")
    A("s_mov_b64 exec, -1")
    stamp(1)

    def issue_q():
        A(f"buffer_load_dwordx4 {v(Q,4)}, {v(vQo)}, {WSR}, s{sRA} offen sc1")
        A(f"buffer_load_dwordx4 {v(Q+4,4)}, {v(vQo)}, {WSR}, s{sRA} offen offset:1024 sc1")
    poll(issue_q, range(Q, Q + 8), 1)
    stamp(2)

    def issue_kv():
        for c in range(2):
            A(f"buffer_load_dwordx4 {v(KM+c*8,4)}, {v(vKo)}, {WSR}, s{sRA} offen offset:{c*1024} sc1")
        for c in range(2):
            A(f"buffer_load_dwordx4 {v(VM+c*8,4)}, {v(vKo)}, {WSR}, s{sRA} offen offset:{2048+c*1024} sc1")
    issue_kv()
    Qks = [Q, Qr, Q + 4, Qr + 4]
    A(f"v_mfma_f32_16x16x32_bf16 {v(acc1,4)}, {a(aK+0,4)}, {v(Q,4)}, 0")
    for i in range(4):
        A(f"v_mov_b32_dpp {v(Qr+i)}, {v(Q+i)} row_ror:8 row_mask:0xf bank_mask:0xf")
    A(f"v_mfma_f32_16x16x32_bf16 {v(acc2,4)}, {a(aK+16,4)}, {v(Q,4)}, 0")
    for i in range(4, 8):
        A(f"v_mov_b32_dpp {v(Qr+i)}, {v(Q+i)} row_ror:8 row_mask:0xf bank_mask:0xf")
    for ks in (2, 1, 3):
        A(f"v_mfma_f32_16x16x32_bf16 {v(acc1,4)}, {a(aK+ks*4,4)}, {v(Qks[ks],4)}, {v(acc1,4)}")
        A(f"v_mfma_f32_16x16x32_bf16 {v(acc2,4)}, {a(aK+16+ks*4,4)}, {v(Qks[ks],4)}, {v(acc2,4)}")
    Lkv = A.newlabel("Lkv")
    Lkvd = A.newlabel("Lkvd")
    A(f"s_mov_b32 s{sCnt}, 0")
    A.label(Lkv)
    A("s_waitcnt vmcnt(2)")
    A(f"v_mfma_f32_16x16x32_bf16 {v(acc0,4)}, {v(KM,4)}, {v(Qks[0],4)}, 0")
    for i in range(4):
        A(f"v_mov_b32_dpp {v(KM+4+i)}, {v(KM+i)} row_ror:8 row_mask:0xf bank_mask:0xf")
    A(f"v_mfma_f32_16x16x32_bf16 {v(acc0,4)}, {v(KM+8,4)}, {v(Qks[2],4)}, {v(acc0,4)}")
    for i in range(4):
        A(f"v_mov_b32_dpp {v(KM+12+i)}, {v(KM+8+i)} row_ror:8 row_mask:0xf bank_mask:0xf")
    A(f"v_mfma_f32_16x16x32_bf16 {v(acc0,4)}, {v(KM+4,4)}, {v(Qks[1],4)}, {v(acc0,4)}")
    A("s_waitcnt vmcnt(0)")
    A(f"v_mfma_f32_16x16x32_bf16 {v(acc0,4)}, {v(KM+12,4)}, {v(Qks[3],4)}, {v(acc0,4)}")
    check_sentinel(list(range(KM, KM + 4)) + list(range(KM + 8, KM + 12)) + list(range(VM, VM + 4)) + list(range(VM + 8, VM + 12)), vT0)
    A(f"s_cbranch_vccz {Lkvd}")
    issue_kv()
    A(f"s_add_u32 s{sCnt}, s{sCnt}, 1")
    A(f"s_cmp_lt_u32 s{sCnt}, {SPIN_MAX}")
    A(f"s_cbranch_scc1 {Lkv}")
    A(f"s_mov_b32 s{sTmp}, 2")
    A(f"s_branch {Lfail}")
    A.label(Lkvd)
    if prof:
        A(f"s_add_u32 s99, s99, s{sCnt}")
    stamp(9)
    um = []
    for s_ in (0, 2, 1, 3):
        for t in range(3):
            c = "0" if s_ == 0 else v(accU + t * 4, 4)
            um.append(f"v_mfma_f32_16x16x32_bf16 {v(accU+t*4,4)}, {v(VM+s_*4,4)}, {WC(t,s_)}, {c}")
    Lnw = A.newlabel("Lnw")
    pre = [u_load(t, aUn) for t in range(3)] + [k_load(f) for f in range(8)]
    if "nokv" in exp:
        pre = []
    S = [acc1 + i for i in range(4)] + [acc2 + i for i in range(4)] + [acc0 + i for i in range(4)]
    sm = []
    sm += [f"v_max3_f32 {v(vMx)}, {v(S[0])}, {v(S[1])}, {v(S[2])}",
           f"v_max3_f32 {v(vMx)}, {v(vMx)}, {v(S[3])}, {v(S[4])}",
           f"v_max3_f32 {v(vMx)}, {v(vMx)}, {v(S[5])}, {v(S[6])}"]
    for i in range(4):
        sm.append(f"v_cndmask_b32 {v(acc0+i)}, {v(vNinf)}, {v(acc0+i)}, s[{sMaskG}:{sMaskG+1}]")
    sm += [
           f"v_max3_f32 {v(vMx)}, {v(vMx)}, {v(S[7])}, {v(S[8])}",
           f"v_max3_f32 {v(vMx)}, {v(vMx)}, {v(S[9])}, {v(S[10])}",
           f"v_max_f32 {v(vMx)}, {v(vMx)}, {v(S[11])}",
           f"v_mov_b32 {v(vMx2)}, {v(vMx)}",
           "s_nop 1",
           f"v_permlane16_swap_b32 {v(vMx)}, {v(vMx2)}",
           "s_nop 0",
           f"v_max_f32 {v(vMx)}, {v(vMx)}, {v(vMx2)}",
           f"v_mov_b32 {v(vMx2)}, {v(vMx)}",
           "s_nop 1",
           f"v_permlane32_swap_b32 {v(vMx)}, {v(vMx2)}",
           "s_nop 0",
           f"v_max_f32 {v(vMx)}, {v(vMx)}, {v(vMx2)}",
           f"v_mul_f32 {v(vMx)}, s{sC}, {v(vMx)}"]
    vr = [f"v_mov_b32_dpp {v(VM+4+i)}, {v(VM+i)} row_ror:8 row_mask:0xf bank_mask:0xf" for i in range(4)]
    vr += [f"v_mov_b32_dpp {v(VM+12+i)}, {v(VM+8+i)} row_ror:8 row_mask:0xf bank_mask:0xf" for i in range(4)]
    sm2 = []
    for ins in sm:
        if ins == "s_nop 1":
            sm2 += [vr.pop(0), vr.pop(0)]
        elif ins == "s_nop 0":
            sm2 += [vr.pop(0)]
        else:
            sm2.append(ins)
    sm = sm2 + vr
    for r in S:
        sm.append(f"v_fma_f32 {v(r)}, {v(r)}, s{sC}, -{v(vMx)}")
    for r in S:
        sm.append(f"v_exp_f32 {v(r)}, {v(r)}")
    sm.append("s_nop 0")
    for i in range(4):
        sm.append(f"v_cvt_pk_bf16_f32 {v(P0+i)}, {v(S[2*i])}, {v(S[2*i+1])}")
    sm.append(f"v_cvt_pk_bf16_f32 {v(Blo)}, {v(S[8])}, {v(S[9])}")
    sm.append(f"v_cvt_pk_bf16_f32 {v(Blo+1)}, {v(S[10])}, {v(S[11])}")
    for idx, ins in enumerate(sm):
        A(ins)
        if idx % 3 == 1 and um and (len(um) > 6 or idx >= 27):
            A(um.pop(0))
        if idx % 4 == 3 and pre:
            A(pre.pop(0))
    while um:
        A(um.pop(0))
    while pre:
        A(pre.pop(0))
    stamp(3)
    for t in range(3):
        A(f"v_mfma_f32_16x16x32_bf16 {v(accC+t*4,4)}, {a(aU+t*4,4)}, {v(P0,4)}, 0")
    A(f"v_mfma_f32_16x16x32_bf16 {v(accZ,4)}, {v(vOnes,4)}, {v(P0,4)}, 0")
    A.nop(4)
    for t in range(3):
        A(f"v_cvt_pk_bf16_f32 {v(UA+t*2)}, {v(accU+t*4)}, {v(accU+t*4+1)}")
        A(f"v_cvt_pk_bf16_f32 {v(UA+t*2+1)}, {v(accU+t*4+2)}, {v(accU+t*4+3)}")
    A(f"v_mfma_f32_16x16x16_bf16 {v(accZ,4)}, {v(vOnes,2)}, {v(Blo,2)}, {v(accZ,4)}")
    A.nop(1)
    for t in range(3):
        A(f"v_mfma_f32_16x16x16_bf16 {v(accC+t*4,4)}, {v(UA+t*2,2)}, {v(Blo,2)}, {v(accC+t*4,4)}")
    A.nop(4)
    A(f"v_rcp_f32 {v(vRz)}, {v(accZ)}")
    A.nop(2)
    stamp(10)
    for t in range(3):
        for i in range(4):
            A(f"v_mul_f32 {v(accC+t*4+i)}, {v(accC+t*4+i)}, {v(vRz)}")
        A(f"ds_write_b128 {v(vRCw)}, {v(accC+t*4,4)} offset:{t*1024}")
    A("s_waitcnt lgkmcnt(0)")
    stamp(11)
    A("s_barrier")
    stamp(12)
    A("s_mov_b32 exec_hi, 0xff")
    for w in range(4):
        A(f"ds_read_b128 {v(Cg+w*4,4)}, {v(vRCr)} offset:{w*3072}")
    A("s_waitcnt lgkmcnt(2)")
    for i in range(4):
        A(f"v_add_f32 {v(Cg+i)}, {v(Cg+i)}, {v(Cg+4+i)}")
    A("s_waitcnt lgkmcnt(0)")
    for i in range(4):
        A(f"v_add_f32 {v(Cg+8+i)}, {v(Cg+8+i)}, {v(Cg+12+i)}")
    for i in range(4):
        A(f"v_add_f32 {v(Cg+i)}, {v(Cg+i)}, {v(Cg+8+i)}")

    def persist():
        A("s_mov_b32 exec_lo, -1")
        A("s_mov_b32 exec_hi, 0xffff")
        A(f"buffer_store_dwordx2 {v(vPub,2)}, {v(vKMst)}, {WSR}, s{sOffKM} offen")

    def background(storer):
        persist()
        store_local(f"buffer_store_dwordx2 {v(vSent,2)}, {v(vAst)}, {WSR}, s{sRAp} offen")
        A("s_mov_b32 exec_hi, 0xff")
        if storer:
            for kc in range(KC):
                A(f"buffer_store_dwordx4 {v(vSent,4)}, {v(vCst)}, {WSR}, s{sRCp} offen sc1")
                if kc < KC - 1:
                    A(f"s_add_u32 s{sRCp}, s{sRCp}, {8*20480}")
            if "nokv" not in exp:
                A("s_mov_b64 exec, -1")
                A(f"buffer_load_dwordx4 {v(vDummy,4)}, {v(vWarm)}, {WSR}, s{sWarm} offen")
        else:
            store_local(f"buffer_store_dwordx2 {v(vSent,2)}, {v(vDst)}, {WSR}, s{sRDp} offen")

    Lpw = A.newlabel("Lpw")
    Lcdone = A.newlabel("Lcdone")
    A(f"s_cmp_ge_u32 s{sWave}, 2")
    A(f"s_cbranch_scc1 {Lpw}")
    for i in range(4):
        A(f"v_min_u32 {v(Cg+i)}, 0xfffffffe, {v(Cg+i)}")
    for kc in range(KC):
        A(f"buffer_store_dwordx4 {v(Cg,4)}, {v(vCst)}, {WSR}, s{sOffC} offen sc1")
        if kc < KC - 1:
            A(f"s_add_u32 s{sOffC}, s{sOffC}, {8*20480}")
    stamp(4)
    background(True)
    if DSLEEP:
        A(f"s_sleep {DSLEEP}")
    A(f"s_branch {Lcdone}")
    A.label(Lpw)
    stamp(4)
    Lw3 = A.newlabel("Lw3")
    A(f"s_cmp_eq_u32 s{sWave}, 3")
    A(f"s_cbranch_scc1 {Lw3}")
    A(f"s_mov_b32 s{sOffD}, s{sRC}")
    A(f"s_add_u32 s{sEnd}, s{sRC}, {KC*8*20480}")
    if CDELAY:
        A(f"s_sleep {CDELAY}")

    def issue_c():
        if "cround" in exp:
            stamp(7)
        for r in range(1, 8):
            A(f"buffer_load_dwordx4 {v(CR+(r-1)*4,4)}, {v(vCg+r)}, {WSR}, s{sOffD} offen sc1")
        if KC > 1:
            A(f"s_add_u32 s{sOffD}, s{sOffD}, {8*20480}")
            A(f"s_cmp_eq_u32 s{sOffD}, s{sEnd}")
            A(f"s_cselect_b32 s{sOffD}, s{sRC}, s{sOffD}")
    poll(issue_c, range(CR, CR + 28), 3)
    stamp(5)
    c = CR
    for i in range(4):
        A(f"v_add_f32 {v(Cg+i)}, {v(Cg+i)}, {v(c+i)}")
        A(f"v_add_f32 {v(Cg+4+i)}, {v(c+4+i)}, {v(c+8+i)}")
        A(f"v_add_f32 {v(Cg+8+i)}, {v(c+12+i)}, {v(c+16+i)}")
        A(f"v_add_f32 {v(Cg+12+i)}, {v(c+20+i)}, {v(c+24+i)}")
    for i in range(4):
        A(f"v_add_f32 {v(Cg+i)}, {v(Cg+i)}, {v(Cg+4+i)}")
        A(f"v_add_f32 {v(Cg+8+i)}, {v(Cg+8+i)}, {v(Cg+12+i)}")
    for i in range(4):
        A(f"v_add_f32 {v(Cg+i)}, {v(Cg+i)}, {v(Cg+8+i)}")
    A(f"v_cvt_pk_bf16_f32 {v(Cg+4)}, {v(Cg)}, {v(Cg+1)}")
    A(f"v_cvt_pk_bf16_f32 {v(Cg+5)}, {v(Cg+2)}, {v(Cg+3)}")
    A(f"v_min_u32 {v(Cg+4)}, 0xfffffffe, {v(Cg+4)}")
    A(f"v_min_u32 {v(Cg+5)}, 0xfffffffe, {v(Cg+5)}")
    store_local(f"buffer_store_dwordx2 {v(Cg+4,2)}, {v(vDst)}, {WSR}, s{sRD} offen")
    background(False)
    A(f"s_branch {Lcdone}")
    A.label(Lw3)
    persist()
    store_local(f"buffer_store_dwordx2 {v(vSent,2)}, {v(vAst)}, {WSR}, s{sRAp} offen")
    if DSLEEP:
        A(f"s_sleep {DSLEEP}")
    A.label(Lcdone)
    A("s_mov_b64 exec, -1")
    A(f"s_add_u32 s{sStep}, s{sStep}, 1")
    A(f"s_add_u32 s{sOffKM}, s{sOffKM}, {32*2048}")
    A(f"s_mov_b32 s{sOffD}, s{sRD}")
    for ins in ring:
        A(ins)
    stamp(13)

    def issue_d():
        A(f"buffer_load_dwordx4 {v(M,4)}, {v(vD0)}, {WSR}, s{sOffD} offen sc1")
        A(f"buffer_load_dwordx4 {v(M+4,4)}, {v(vD0)}, {WSR}, s{sOffD} offen offset:1024 sc1")
        A(f"buffer_load_dwordx4 {v(M+8,4)}, {v(vD2)}, {WSR}, s{sOffD} offen sc1")
    poll(issue_d, range(M, M + 12), 4)
    A(f"s_branch {Lloop}")

    A.label(Lfin)
    persist()
    A("s_mov_b64 exec, -1")
    if prof:
        A(f"s_lshl_b32 s{sTmp}, s{sGrp}, 4")
        A(f"s_add_u32 s{sTmp}, s{sTmp}, s{sMemb}")
        A(f"s_lshl_b32 s{sTmp}, s{sTmp}, 2")
        A(f"s_add_u32 s{sTmp}, s{sTmp}, s{sWave}")
        A(f"s_lshl_b32 s{sTmp}, s{sTmp}, 6")
        A(f"s_add_u32 s{sTmp}, s{sTmp}, {WS_PROF:#x}")
        A("s_mov_b64 exec, 1")
        A(f"s_lshl_b32 s97, s97, 16")
        A(f"s_or_b32 s{sPr+14}, s97, s98")
        A(f"s_lshl_b32 s99, s99, 16")
        A(f"s_or_b32 s{sPr+15}, s99, s100")
        for i in range(16):
            A(f"v_mov_b32 {v(vT0)}, s{sPr+i}")
            A(f"v_mov_b32 {v(vT1)}, {i*4}")
            A(f"buffer_store_dword {v(vT0)}, {v(vT1)}, {WSR}, s{sTmp} offen")
    A(f"s_branch {Lend}")
    A.label(Lfail)
    A("s_mov_b64 exec, 1")
    A(f"v_mov_b32 {v(vT0)}, s{sTmp}")
    A(f"v_mov_b32 {v(vT1)}, 0")
    A(f"v_or_b32 {v(vT0)}, 0x100, {v(vT0)}")
    A(f"buffer_store_dword {v(vT0)}, {v(vT1)}, s[{sDBG}:{sDBG+3}], 0 offen")
    A.label(Lend)
    A("s_endpgm")
    return kernel_desc(name, 512, 102, 256)
```

```python
import struct
from asmlib import *
from layout import *


def f32bits(x):
    return struct.unpack("<I", struct.pack("<f", x))[0]


class Q:
    def __init__(self, A, name, maxn):
        self.A, self.name, self.maxn = A, name, maxn
        self.q = []

    def issue(self, tag):
        self.q.append(tag)

    def need(self, tag):
        idx = max((i for i, t in enumerate(self.q) if t == tag), default=-1)
        if idx < 0:
            return
        n = len(self.q) - 1 - idx
        self.A(f"s_waitcnt {self.name}({min(n, self.maxn)})")
        self.q = self.q[idx + 1:] if n <= self.maxn else self.q[len(self.q) - self.maxn:]

    def drain(self):
        self.A(f"s_waitcnt {self.name}(0)")
        self.q = []


sWS, sXS, sWA, sWB, sWO = 4, 8, 12, 16, 20
sRB, sH, sWave, sIt, sTmp, sTmp2, sKoffW, sKoffX, sOut = 40, 41, 42, 43, 44, 45, 46, 47, 48
STAGE = 32768


def srd(b):
    return f"s[{b}:{b+3}]"


def w_prologue(A, Lend, ntasks):
    A(f"s_cmp_ge_u32 s2, {ntasks}")
    A(f"s_cbranch_scc1 {Lend}")
    A("s_load_dwordx4 s[24:27], s[0:1], 24")
    A("s_load_dwordx8 s[28:35], s[0:1], 40")
    A("s_load_dwordx2 s[36:37], s[0:1], 96")
    A("s_load_dwordx2 s[38:39], s[0:1], 80")
    A("v_and_b32 v1, 63, v0")
    A("v_lshrrev_b32 v5, 6, v0")
    A("v_and_b32 v2, 15, v0")
    A(f"v_readfirstlane_b32 s{sWave}, v5")
    A("v_bfe_u32 v3, v0, 4, 2")
    A("s_waitcnt lgkmcnt(0)")


vLane, vN, vG = 1, 2, 3


def proj_gemm(A, NM, wsrds, acc_of, R, vq, RTW=4, swap=False, niter=5, w_pitch=8192, w_base=None,
              xsrd=None, x_base=0, x_pitch=1280, x_mode="std", w_wrap=None):
    xsrd = sXS if xsrd is None else xsrd
    w_base = w_base or [0] * NM
    T0, T1, T2 = R.alloc(), R.alloc(), R.alloc()
    vWoff, vXoff = R.alloc(), R.alloc()
    vWa = [R.alloc(8), R.alloc(8)]
    vXa = [R.alloc(), R.alloc()]
    XF = [R.alloc(4 * RTW), R.alloc(4 * RTW)]
    WF = R.alloc(16)
    NT = NM * 8
    XB = NM * 8192
    assert XB + 4 * RTW * 1024 <= STAGE
    A(f"s_and_b32 s{sTmp}, s{sWave}, 1")
    A(f"s_lshl_b32 s{sTmp}, s{sTmp}, 2")
    A(f"v_or_b32 {v(T0)}, s{sTmp}, {v(vG)}")
    A(f"v_lshrrev_b32 {v(T1)}, 1, {v(vN)}")
    A(f"v_xor_b32 {v(T1)}, {v(T1)}, {v(T0)}")
    A(f"v_and_b32 {v(T2)}, 1, {v(vN)}")
    A(f"v_lshl_add_u32 {v(T1)}, {v(T1)}, 1, {v(T2)}")
    A(f"v_lshlrev_b32 {v(T1)}, 4, {v(T1)}")
    A(f"v_mul_u32_u24 {v(T2)}, {w_pitch}, {v(vG)}")
    A(f"v_add_u32 {v(T1)}, {v(T1)}, {v(T2)}")
    A(f"s_mul_i32 s{sTmp}, s{sWave}, {8*w_pitch}")
    A(f"s_lshl_b32 s{sTmp2}, s{sH}, 8")
    A(f"s_add_u32 s{sTmp}, s{sTmp}, s{sTmp2}")
    A(f"v_add_u32 {v(vWoff)}, s{sTmp}, {v(T1)}")
    if x_mode == "std":
        rowstride, wavestride = x_pitch, RTW * 16 * x_pitch
        e_off = [e * 16 * x_pitch for e in range(RTW)]
    else:
        rowstride, wavestride = 64 * x_pitch, 2 * x_pitch
        e_off = [(e % 2) * 16 * 64 * x_pitch + (e // 2) * x_pitch for e in range(4)]
    A(f"v_lshrrev_b32 {v(T0)}, 2, {v(vLane)}")
    A(f"v_mul_u32_u24 {v(T0)}, {rowstride}, {v(T0)}")
    A(f"v_and_b32 {v(T1)}, 3, {v(vLane)}")
    A(f"v_xor_b32 {v(T1)}, {v(T1)}, {v(vG)}")
    A(f"v_lshl_add_u32 {v(T0)}, {v(T1)}, 4, {v(T0)}")
    A(f"s_lshl_b32 s{sTmp}, s{sRB}, 2")
    A(f"s_add_u32 s{sTmp}, s{sTmp}, s{sWave}")
    A(f"s_mul_i32 s{sTmp}, s{sTmp}, {wavestride}")
    A(f"v_add_u32 {v(vXoff)}, s{sTmp}, {v(T0)}")
    A(f"v_lshrrev_b32 {v(T0)}, 2, {v(vN)}")
    A(f"v_and_b32 {v(T1)}, 1, {v(vG)}")
    A(f"v_lshl_or_b32 {v(T1)}, {v(T1)}, 2, {v(T0)}")
    A(f"v_lshl_add_u32 {v(T0)}, {v(vG)}, 3, {v(T0)}")
    A(f"v_lshlrev_b32 {v(T0)}, 8, {v(T0)}")
    A(f"v_and_b32 {v(T2)}, 3, {v(vN)}")
    A(f"v_lshl_add_u32 {v(T0)}, {v(T2)}, 3, {v(T0)}")
    for t in range(8):
        A(f"v_xor_b32 {v(T2)}, {t}, {v(T1)}")
        A(f"v_lshl_add_u32 {v(vWa[0]+t)}, {v(T2)}, 5, {v(T0)}")
        A(f"v_add_u32 {v(vWa[1]+t)}, 0x10000, {v(vWa[0]+t)}")
    A(f"v_lshrrev_b32 {v(T0)}, 2, {v(vN)}")
    A(f"v_xor_b32 {v(T0)}, {v(T0)}, {v(vG)}")
    A(f"v_lshlrev_b32 {v(T0)}, 4, {v(T0)}")
    A(f"v_lshl_add_u32 {v(T0)}, {v(vN)}, 6, {v(T0)}")
    A(f"s_mul_i32 s{sTmp}, s{sWave}, {RTW*1024}")
    A(f"s_add_u32 s{sTmp}, s{sTmp}, {XB}")
    A(f"v_add_u32 {v(vXa[0])}, s{sTmp}, {v(T0)}")
    A(f"v_add_u32 {v(vXa[1])}, 0x10000, {v(vXa[0])}")
    sM0W, sM0X, sKW2, sKc = 50, 51, 52, 53
    A(f"s_lshl_b32 s{sM0W}, s{sWave}, 11")
    A(f"s_mov_b32 s{sM0X}, s{sTmp}")
    A(f"s_mov_b32 s{sKoffW}, 0")
    A(f"s_mov_b32 s{sKoffX}, {x_base:#x}")
    A(f"s_mov_b32 s{sKc}, 0")

    def dma_list(st):
        g = []
        for m in range(NM):
            for e in range(2):
                g.append([f"s_add_u32 m0, s{sM0W}, {st*STAGE + m*8192 + e*1024}",
                          f"s_add_u32 s{sKW2}, s{sKoffW}, {w_base[m] + e*4*w_pitch:#x}",
                          f"buffer_load_dwordx4 {v(vWoff)}, {srd(wsrds[m])}, s{sKW2} offen lds"])
        for e in range(RTW):
            g.append([f"s_add_u32 m0, s{sM0X}, {st*STAGE + e*1024}",
                      f"s_add_u32 s{sKW2}, s{sKoffX}, {e_off[e]}",
                      f"buffer_load_dwordx4 {v(vXoff)}, {srd(xsrd)}, s{sKW2} offen lds"])
        last = [f"s_add_u32 s{sKoffW}, s{sKoffW}, {32*w_pitch}", f"s_add_u32 s{sKoffX}, s{sKoffX}, 64"]
        if w_wrap is not None:
            last += [f"s_add_u32 s{sKc}, s{sKc}, 1", f"s_cmp_eq_u32 s{sKc}, {w_wrap}",
                     f"s_cselect_b32 s{sKoffW}, 0, s{sKoffW}"]
        g.append(last)
        return g
    D = 2 * NM + RTW
    lq = Q(A, "lgkmcnt", 15)

    def rd_w(st, tile):
        m, t = tile // 8, tile % 8
        hi, off = st // 2, (st % 2) * STAGE + m * 8192
        r = WF + (tile % 4) * 4
        A(f"ds_read_b64_tr_b16 {v(r,2)}, {v(vWa[hi]+t)} offset:{off}")
        A(f"ds_read_b64_tr_b16 {v(r+2,2)}, {v(vWa[hi]+t)} offset:{off+1024}")
        lq.issue(("w", tile % 4))
        lq.issue(("w", tile % 4))

    def rd_x(st, par, rt):
        hi, off = st // 2, (st % 2) * STAGE + rt * 1024
        A(f"ds_read_b128 {v(XF[par]+rt*4,4)}, {v(vXa[hi])} offset:{off}")
        lq.issue(("x", par))

    for st in range(3):
        for grp in dma_list(st):
            for ins in grp:
                A(ins)
    seen = set()
    for m in range(NM):
        for t in range(8):
            for rt in range(RTW):
                reg = acc_of(m, t, rt)
                if reg in seen:
                    continue
                seen.add(reg)
                base = int(reg[2:reg.index(":")])
                for i in range(4):
                    A(f"v_accvgpr_write_b32 a{base+i}, 0" if reg[0] == "a" else f"v_mov_b32 v{base+i}, 0")
    A(f"s_waitcnt vmcnt({2*D})")
    A("s_barrier")
    for rt in range(RTW):
        rd_x(0, 0, rt)
    rd_w(0, 0)
    rd_w(0, 1)
    A(f"s_mov_b32 s{sIt}, 0")
    Lloop = A.newlabel("Lpg")
    A.label(Lloop)
    q_at_entry = list(lq.q)
    for st in range(4):
        par = st % 2
        dmas = []
        for tile in range(NT):
            if tile == NT // 2:
                A(f"s_waitcnt vmcnt({D})")
                A("s_barrier")
                dmas = dma_list((st + 3) % 4)
            nt = tile + 2
            if nt < NT:
                rd_w(st, nt)
            else:
                if nt == NT:
                    for rt in range(RTW):
                        rd_x((st + 1) % 4, 1 - par, rt)
                rd_w((st + 1) % 4, nt - NT)
            if tile == 0:
                lq.need(("x", par))
            lq.need(("w", tile % 4))
            m, t = tile // 8, tile % 8
            for rt in range(RTW):
                acc = acc_of(m, t, rt)
                wf, xf = v(WF + (tile % 4) * 4, 4), v(XF[par] + rt * 4, 4)
                if swap:
                    A(f"v_mfma_f32_16x16x32_bf16 {acc}, {xf}, {wf}, {acc}")
                else:
                    A(f"v_mfma_f32_16x16x32_bf16 {acc}, {wf}, {xf}, {acc}")
                if dmas and rt % 2 == 1 and (NM == 1 or rt == 1):
                    for ins in dmas.pop(0):
                        A(ins)
        for grp in dmas:
            for ins in grp:
                A(ins)
    assert [t for t in lq.q] == q_at_entry, (lq.q, q_at_entry)
    A(f"s_add_u32 s{sIt}, s{sIt}, 1")
    A(f"s_cmp_lt_u32 s{sIt}, {niter}")
    A(f"s_cbranch_scc1 {Lloop}")
    A("s_waitcnt vmcnt(0) lgkmcnt(0)")
    A("s_barrier")
    A.nop(4)


def gen_kvu(A, name="kvu_kernel"):
    kernel_header(A, name)
    Lend = A.newlabel("Lend")
    w_prologue(A, Lend, 256)
    make_srd(A, sWS, 36, WS_BYTES)
    make_srd(A, sXS, 24, 2048 * 1280)
    make_srd(A, sWA, 30, 640 * 8192)
    make_srd(A, sWB, 32, 640 * 8192)
    make_srd(A, sWO, 34, 4096 * 1280)
    A(f"s_and_b32 s{sH}, s2, 31")
    A(f"s_lshr_b32 s{sRB}, s2, 5")
    R = RegAlloc(6, 256)

    def acc_of(m, t, rt):
        return a(((m * 8 + t) * 4 + rt) * 4, 4)
    vq = Q(A, "vmcnt", 63)
    proj_gemm(A, 2, [sWA, sWB], acc_of, R, vq)
    R.next = 6
    T0, T1, T2 = R.alloc(), R.alloc(), R.alloc()
    vOo = [R.alloc(), R.alloc()]
    vOa = [R.alloc(8), R.alloc(8)]
    vSt, vUst = R.alloc(), R.alloc()
    VA = R.alloc(64)
    TMP = R.alloc(8)
    OF = R.alloc(32)
    aU = [R.alloc(16), R.alloc(16)]
    UO = [R.alloc(8), R.alloc(8)]
    for par in range(2):
        A(f"v_or_b32 {v(T0)}, {par*4}, {v(vG)}")
        A(f"v_lshrrev_b32 {v(T1)}, 1, {v(vN)}")
        A(f"v_xor_b32 {v(T1)}, {v(T1)}, {v(T0)}")
        A(f"v_and_b32 {v(T2)}, 1, {v(vN)}")
        A(f"v_lshl_add_u32 {v(T1)}, {v(T1)}, 1, {v(T2)}")
        A(f"v_lshlrev_b32 {v(T1)}, 4, {v(T1)}")
        A(f"v_mul_u32_u24 {v(T2)}, 1280, {v(vG)}")
        A(f"v_add_u32 {v(T1)}, {v(T1)}, {v(T2)}")
        A(f"s_lshl_b32 s{sTmp}, s{sH}, 7")
        A(f"s_lshl_b32 s{sTmp2}, s{sWave}, 5")
        A(f"s_add_u32 s{sTmp}, s{sTmp}, s{sTmp2}")
        A(f"s_mul_i32 s{sTmp}, s{sTmp}, 1280")
        A(f"v_add_u32 {v(vOo[par])}, s{sTmp}, {v(T1)}")
    A(f"s_lshl_b32 s50, s{sWave}, 13")

    def dma_wo(ch):
        for e in range(8):
            A(f"s_add_u32 m0, s50, {(ch%4)*STAGE + e*1024}")
            A(f"s_mov_b32 s52, {e*4*1280 + ch*256}")
            A(f"buffer_load_dwordx4 {v(vOo[e%2])}, {srd(sWO)}, s52 offen lds")
            vq.issue(("wo", ch))
    for ch in range(4):
        dma_wo(ch)
    A(f"v_lshrrev_b32 {v(T0)}, 2, {v(vN)}")
    A(f"v_lshl_add_u32 {v(T0)}, {v(vG)}, 2, {v(T0)}")
    A(f"v_and_b32 {v(T1)}, 7, {v(T0)}")
    A(f"v_lshlrev_b32 {v(T0)}, 8, {v(T0)}")
    A(f"v_and_b32 {v(T2)}, 3, {v(vN)}")
    A(f"v_lshl_add_u32 {v(T0)}, {v(T2)}, 3, {v(T0)}")
    for t in range(8):
        A(f"v_xor_b32 {v(T2)}, {t}, {v(T1)}")
        A(f"v_lshl_add_u32 {v(vOa[0]+t)}, {v(T2)}, 5, {v(T0)}")
        A(f"v_add_u32 {v(vOa[1]+t)}, 0x10000, {v(vOa[0]+t)}")
    A(f"s_lshl_b32 s{sTmp}, s{sRB}, 3")
    A(f"s_lshl_b32 s{sTmp2}, s{sWave}, 1")
    A(f"s_add_u32 s{sTmp}, s{sTmp}, s{sTmp2}")
    A(f"s_lshl_b32 s{sTmp}, s{sTmp}, 5")
    A(f"s_add_u32 s{sTmp}, s{sTmp}, s{sH}")
    A(f"s_lshl_b32 s{sOut}, s{sTmp}, 13")
    A(f"v_lshlrev_b32 {v(vSt)}, 4, {v(vLane)}")
    A(f"v_add_u32 {v(vSt)}, s{sOut}, {v(vSt)}")
    A(f"s_mul_i32 s{sOut}, s{sTmp}, 40960")
    A(f"v_and_b32 {v(T0)}, 7, {v(vN)}")
    A(f"v_lshl_add_u32 {v(T0)}, {v(vG)}, 3, {v(T0)}")
    A(f"v_lshlrev_b32 {v(T0)}, 4, {v(T0)}")
    A(f"v_lshrrev_b32 {v(T1)}, 3, {v(vN)}")
    A(f"v_lshl_add_u32 {v(T0)}, {v(T1)}, 9, {v(T0)}")
    A(f"v_add_u32 {v(vUst)}, s{sOut}, {v(T0)}")
    for m in range(2):
        for rt in range(4):
            for s_ in range(4):
                dst = (VA + (rt * 4 + s_) * 4) if m == 1 else (OF + ((rt * 4 + s_) % 8) * 4)
                for half in range(2):
                    ab = ((m * 8 + 2 * s_ + half) * 4 + rt) * 4
                    for i in range(4):
                        A(f"v_accvgpr_read_b32 {v(TMP+half*4+i)}, a{ab+i}")
                for j in range(4):
                    A(f"v_cvt_pk_bf16_f32 {v(dst+j)}, {v(TMP+2*j)}, {v(TMP+2*j+1)}")
                so = (WS_KX if m == 0 else WS_VX) + (rt // 2) * 32 * 8192 + ((rt % 2) * 4 + s_) * 1024
                A(f"s_mov_b32 s{sTmp2}, {so:#x}")
                A(f"buffer_store_dwordx4 {v(dst,4)}, {v(vSt)}, {srd(sWS)}, s{sTmp2} offen")
                vq.issue("st")
    lq = Q(A, "lgkmcnt", 15)

    def rd_o(gt):
        ch, t = gt // 8, gt % 8
        st = ch % 4
        hi, off = st // 2, (st % 2) * STAGE
        for s_ in range(4):
            r = OF + (gt % 2) * 16 + s_ * 4
            A(f"ds_read_b64_tr_b16 {v(r,2)}, {v(vOa[hi]+t)} offset:{off + s_*8192}")
            A(f"ds_read_b64_tr_b16 {v(r+2,2)}, {v(vOa[hi]+t)} offset:{off + s_*8192 + 4096}")
            lq.issue(("o", gt % 2))
            lq.issue(("o", gt % 2))

    def u_out(gt):
        p = gt % 2
        for sg in range(2):
            for half in range(2):
                ab = aU[p] + (sg * 2 + half) * 4
                A(f"v_cvt_pk_bf16_f32 {v(UO[p]+sg*4+half*2)}, {v(ab)}, {v(ab+1)}")
                A(f"v_cvt_pk_bf16_f32 {v(UO[p]+sg*4+half*2+1)}, {v(ab+2)}, {v(ab+3)}")
            A(f"s_mov_b32 s{sTmp2}, {WS_U + sg*32*40960 + gt*1024:#x}")
            A(f"buffer_store_dwordx4 {v(UO[p]+sg*4,4)}, {v(vUst)}, {srd(sWS)}, s{sTmp2} offen")
            vq.issue("st")

    vq.need(("wo", 0))
    A("s_barrier")
    rd_o(0)
    for gt in range(40):
        if gt + 1 < 40:
            if (gt + 1) % 8 == 0:
                vq.need(("wo", (gt + 1) // 8))
                A("s_barrier")
                if gt + 1 == 16:
                    dma_wo(4)
            rd_o(gt + 1)
        lq.need(("o", gt % 2))
        for s_ in range(4):
            for rt in range(4):
                acc = v(aU[gt % 2] + rt * 4, 4)
                c = "0" if s_ == 0 else acc
                A(f"v_mfma_f32_16x16x32_bf16 {acc}, {v(VA+(rt*4+s_)*4,4)}, {v(OF+(gt%2)*16+s_*4,4)}, {c}")
            if s_ == 2 and gt > 0:
                u_out(gt - 1)
    A.nop(8)
    u_out(39)
    A.label(Lend)
    A("s_endpgm")
    return kernel_desc(name, 512, 102, 256)


def gen_att(A, name="att_kernel"):
    kernel_header(A, name)
    Lend = A.newlabel("Lend")
    w_prologue(A, Lend, 256)
    make_srd(A, sWS, 36, WS_BYTES)
    make_srd(A, sXS, 24, 2048 * 1280)
    make_srd(A, sWA, 28, 640 * 8192)
    A(f"s_and_b32 s{sH}, s2, 31")
    A(f"s_lshr_b32 s{sRB}, s2, 5")
    R = RegAlloc(6, 256)

    def acc_of(m, t, rt):
        return a((t * 4 + rt) * 4, 4)
    vq = Q(A, "vmcnt", 63)
    proj_gemm(A, 1, [sWA], acc_of, R, vq)
    R.next = 6
    att_body(A, R)
    A.label(Lend)
    A("s_endpgm")
    return kernel_desc(name, 512, 102, 256)


def att_body(A, R):
    T0, T1, T2 = R.alloc(), R.alloc(), R.alloc()
    vL16, vKm, vVa, vVm, vNinf = R.alloc(), R.alloc(), R.alloc(), R.alloc(), R.alloc()
    vMx, vMx2, vSum = R.alloc(), R.alloc(), R.alloc()
    QB = R.alloc(64)
    TMP = R.alloc(8)
    KM = R.alloc(16)
    S = R.alloc(20)
    P = R.alloc(12)
    VF = R.alloc(32)
    VMF = R.alloc(16)
    accO = R.alloc(32)
    OB = R.alloc(16)
    aK = 128
    sMask = 56
    sC, sSeg, sL = 66, 67, 68
    A(f"s_mov_b32 s{sC}, {f32bits(SCALE*LOG2E):#x}")
    A(f"v_mov_b32 {v(vNinf)}, 0xff800000")
    A("s_mov_b32 s64, -1")
    A("s_mov_b32 s65, 0")
    A(f"v_lshlrev_b32 {v(vL16)}, 4, {v(vLane)}")
    for r in range(4):
        A(f"v_lshl_add_u32 {v(T0)}, {v(vG)}, 2, {r}")
        A(f"v_cmp_le_u32 s[{sMask+2*r}:{sMask+2*r+1}], {v(T0)}, {v(vN)}")
    A(f"v_and_b32 {v(T0)}, 7, {v(vN)}")
    A(f"v_lshl_add_u32 {v(T0)}, {v(vG)}, 3, {v(T0)}")
    A(f"v_lshlrev_b32 {v(vKm)}, 4, {v(T0)}")
    A(f"s_lshl_b32 s{sL}, s{sWave}, 15")
    A(f"v_lshrrev_b32 {v(T0)}, 2, {v(vN)}")
    A(f"v_lshl_add_u32 {v(T0)}, {v(vG)}, 2, {v(T0)}")
    A(f"v_and_b32 {v(T1)}, 3, {v(vN)}")
    A(f"v_lshl_add_u32 {v(T2)}, {v(T1)}, 4, {v(T0)}")
    A(f"v_lshlrev_b32 {v(T2)}, 4, {v(T2)}")
    A(f"v_add_u32 {v(vVa)}, s{sL}, {v(T2)}")
    A(f"v_and_b32 {v(T0)}, 7, {v(T0)}")
    A(f"v_lshl_add_u32 {v(T2)}, {v(T1)}, 3, {v(T0)}")
    A(f"v_lshlrev_b32 {v(T2)}, 4, {v(T2)}")
    A(f"v_add_u32 {v(vVm)}, s{sL}, {v(T2)}")
    A(f"s_lshl_b32 s{sTmp}, s{sRB}, 3")
    A(f"s_lshl_b32 s{sTmp2}, s{sWave}, 1")
    A(f"s_add_u32 s{sTmp}, s{sTmp}, s{sTmp2}")
    A(f"s_lshl_b32 s{sTmp}, s{sTmp}, 5")
    A(f"s_add_u32 s{sSeg}, s{sTmp}, s{sH}")
    for sg in range(2):
        A(f"s_add_u32 s{sTmp}, s{sSeg}, {sg*32}")
        A(f"s_lshl_b32 s{sTmp}, s{sTmp}, 13")
        for f in range(8):
            A(f"s_add_u32 s{sTmp2}, s{sTmp}, {WS_KX + f*1024:#x}")
            A(f"buffer_load_dwordx4 {a(aK+sg*32+f*4,4)}, {v(vL16)}, {srd(sWS)}, s{sTmp2} offen")
        for f in range(8):
            A(f"s_add_u32 m0, s{sL}, {sg*16384 + f*1024}")
            A(f"s_add_u32 s{sTmp2}, s{sTmp}, {WS_VX + f*1024:#x}")
            A(f"buffer_load_dwordx4 {v(vL16)}, {srd(sWS)}, s{sTmp2} offen lds")
        A(f"s_add_u32 s{sTmp}, s{sSeg}, {sg*32}")
        A(f"s_lshl_b32 s{sTmp}, s{sTmp}, 11")
        for f in range(2):
            A(f"s_add_u32 m0, s{sL}, {sg*16384 + 8192 + f*1024}")
            A(f"s_add_u32 s{sTmp2}, s{sTmp}, {WS_VM + f*1024:#x}")
            A(f"buffer_load_dwordx4 {v(vL16)}, {srd(sWS)}, s{sTmp2} offen lds")
    for rt in range(4):
        for s_ in range(4):
            for half in range(2):
                ab = ((2 * s_ + half) * 4 + rt) * 4
                for i in range(4):
                    A(f"v_accvgpr_read_b32 {v(TMP+half*4+i)}, a{ab+i}")
            for j in range(4):
                A(f"v_cvt_pk_bf16_f32 {v(QB+(rt*4+s_)*4+j)}, {v(TMP+2*j)}, {v(TMP+2*j+1)}")

    def xlane(op, reg):
        for sw in ("v_permlane16_swap_b32", "v_permlane32_swap_b32"):
            A(f"v_mov_b32 {v(vMx2)}, {v(reg)}")
            A.nop(2)
            A(f"{sw} {v(reg)}, {v(vMx2)}")
            A.nop(1)
            A(f"{op} {v(reg)}, {v(reg)}, {v(vMx2)}")

    for sg in range(2):
        A(f"s_add_u32 s{sTmp}, s{sSeg}, {sg*32}")
        A(f"s_lshl_b32 s{sTmp}, s{sTmp}, 11")
        A(f"s_add_u32 s{sTmp}, s{sTmp}, {WS_KM:#x}")
        for s_ in range(4):
            A(f"buffer_load_dwordx4 {v(KM+s_*4,4)}, {v(vKm)}, {srd(sWS)}, s{sTmp} offen offset:{s_*512}")
        A("s_waitcnt vmcnt(0)")
        for t in range(8):
            for T in range(2):
                A(f"ds_read_b64_tr_b16 {v(VF+t*4+T*2,2)}, {v(vVa)} offset:{sg*16384 + (T*4+t//2)*1024 + (t%2)*8}")
            A(f"ds_read_b64_tr_b16 {v(VMF+t*2,2)}, {v(vVm)} offset:{sg*16384 + 8192 + (t//2)*512 + (t%2)*8}")
            if t % 4 == 3:
                A("s_waitcnt lgkmcnt(0)")
        combos = [(0, 0, S), (0, 1, S + 4), (1, 0, S + 8), (1, 1, S + 12), (1, 2, S + 16)]
        for s_ in range(4):
            for qt, T, acc in combos:
                aop = v(KM + s_ * 4, 4) if T == 0 else a(aK + sg * 32 + ((T - 1) * 4 + s_) * 4, 4)
                c = "0" if s_ == 0 else v(acc, 4)
                A(f"v_mfma_f32_16x16x32_bf16 {v(acc,4)}, {aop}, {v(QB+((sg*2+qt)*4+s_)*4,4)}, {c}")
        A.nop(8)
        for qt in range(2):
            base = S if qt == 0 else S + 8
            nv = 8 if qt == 0 else 12
            dg = base + nv - 4
            for i in range(4):
                A(f"v_cndmask_b32 {v(base+i)}, {v(vNinf)}, {v(base+i)}, s[64:65]")
                A(f"v_cndmask_b32 {v(dg+i)}, {v(vNinf)}, {v(dg+i)}, s[{sMask+2*i}:{sMask+2*i+1}]")
            A(f"v_max3_f32 {v(vMx)}, {v(base)}, {v(base+1)}, {v(base+2)}")
            for i in range(3, nv - 1, 2):
                A(f"v_max3_f32 {v(vMx)}, {v(vMx)}, {v(base+i)}, {v(base+i+1)}")
            A(f"v_max_f32 {v(vMx)}, {v(vMx)}, {v(base+nv-1)}")
            xlane("v_max_f32", vMx)
            A(f"v_mul_f32 {v(vMx)}, s{sC}, {v(vMx)}")
            for i in range(nv):
                A(f"v_fma_f32 {v(base+i)}, {v(base+i)}, s{sC}, -{v(vMx)}")
            for i in range(nv):
                A(f"v_exp_f32 {v(base+i)}, {v(base+i)}")
            A.nop(1)
            A(f"v_add_f32 {v(vSum)}, {v(base)}, {v(base+1)}")
            for i in range(2, nv):
                A(f"v_add_f32 {v(vSum)}, {v(vSum)}, {v(base+i)}")
            xlane("v_add_f32", vSum)
            A(f"v_rcp_f32 {v(vSum)}, {v(vSum)}")
            A.nop(1)
            for i in range(nv):
                A(f"v_mul_f32 {v(base+i)}, {v(base+i)}, {v(vSum)}")
            pq = P + qt * 6
            A(f"v_cvt_pk_bf16_f32 {v(pq+4)}, {v(base)}, {v(base+1)}")
            A(f"v_cvt_pk_bf16_f32 {v(pq+5)}, {v(base+2)}, {v(base+3)}")
            A(f"v_cvt_pk_bf16_f32 {v(TMP)}, {v(base+4)}, {v(base+5)}")
            A(f"v_cvt_pk_bf16_f32 {v(TMP+1)}, {v(base+6)}, {v(base+7)}")
            if qt == 0:
                A(f"v_mov_b32 {v(TMP+2)}, 0")
                A(f"v_mov_b32 {v(TMP+3)}, 0")
            else:
                A(f"v_cvt_pk_bf16_f32 {v(TMP+2)}, {v(base+8)}, {v(base+9)}")
                A(f"v_cvt_pk_bf16_f32 {v(TMP+3)}, {v(base+10)}, {v(base+11)}")
            A.nop(2)
            for t in range(8):
                A(f"v_mfma_f32_16x16x32_bf16 {v(accO+t*4,4)}, {v(VF+t*4,4)}, {v(TMP,4)}, 0")
            for t in range(8):
                A(f"v_mfma_f32_16x16x16_bf16 {v(accO+t*4,4)}, {v(VMF+t*2,2)}, {v(pq+4,2)}, {v(accO+t*4,4)}")
            A.nop(8)
            A(f"s_add_u32 s{sTmp}, s{sSeg}, {sg*32}")
            A(f"s_lshl_b32 s{sTmp}, s{sTmp}, 1")
            A(f"s_sub_u32 s{sTmp}, s{sTmp}, s{sH}")
            A(f"s_add_u32 s{sTmp}, s{sTmp}, {qt*32}")
            A(f"s_lshl_b32 s{sTmp}, s{sTmp}, 12")
            A(f"s_add_u32 s{sTmp}, s{sTmp}, {WS_O:#x}")
            for s_ in range(4):
                for j in range(4):
                    A(f"v_cvt_pk_bf16_f32 {v(OB+s_*4+j)}, {v(accO+s_*8+2*j)}, {v(accO+s_*8+2*j+1)}")
                A(f"buffer_store_dwordx4 {v(OB+s_*4,4)}, {v(vL16)}, {srd(sWS)}, s{sTmp} offen offset:{s_*1024}")
            A.nop(2)


def gen_outp(A, name="outp_kernel", RT=4):
    kernel_header(A, name)
    Lend = A.newlabel("Lend")
    ntask = (128 // RT) * 8
    w_prologue(A, Lend, ntask)
    make_srd(A, sWS, 36, WS_BYTES)
    make_srd(A, sWO, 34, 4096 * 1280)
    make_srd(A, sXS, 38, 2048 * 2560)
    sCB = sH
    A(f"s_and_b32 s{sCB}, s2, 7")
    A(f"s_lshr_b32 s{sRB}, s2, 3")
    R = RegAlloc(6, 256)
    outp_body(A, R, RT, sCB)
    A.label(Lend)
    A("s_endpgm")
    return kernel_desc(name, 512, 102, 256)


def outp_body(A, R, RT, sCB):
    T0, T1, T2 = R.alloc(), R.alloc(), R.alloc()
    vWo = R.alloc(5)
    vOf, vTr, vLw, vOut = R.alloc(), R.alloc(), R.alloc(), R.alloc()
    OF = [R.alloc(4 * RT) for _ in range(4)]
    WF = [R.alloc(20) for _ in range(2)]
    TMP = R.alloc(16)
    sL, sKo, sKw = 50, 51, 52
    A(f"s_mul_i32 s{sTmp}, s{sCB}, 160")
    A(f"s_mul_i32 s{sTmp2}, s{sWave}, {1024*1280}")
    A(f"s_add_u32 s{sTmp}, s{sTmp}, s{sTmp2}")
    for i in range(5):
        A(f"v_add_u32 {v(T0)}, {64*i}, {v(vLane)}")
        A(f"v_mul_u32_u24 {v(T1)}, 205, {v(T0)}")
        A(f"v_lshrrev_b32 {v(T1)}, 11, {v(T1)}")
        A(f"v_mul_u32_u24 {v(T2)}, 10, {v(T1)}")
        A(f"v_sub_u32 {v(T0)}, {v(T0)}, {v(T2)}")
        A(f"v_mul_u32_u24 {v(T1)}, 1280, {v(T1)}")
        A(f"v_lshl_add_u32 {v(T0)}, {v(T0)}, 4, {v(T1)}")
        A(f"v_add_u32 {v(vWo+i)}, s{sTmp}, {v(T0)}")
    assert all((i * 205) >> 11 == i // 10 for i in range(320))
    A(f"s_mul_i32 s{sTmp}, s{sRB}, {RT*131072}")
    A(f"s_lshl_b32 s{sTmp2}, s{sWave}, 15")
    A(f"s_add_u32 s{sTmp}, s{sTmp}, s{sTmp2}")
    A(f"s_add_u32 s{sTmp}, s{sTmp}, {WS_O:#x}")
    A(f"v_lshlrev_b32 {v(T0)}, 4, {v(vLane)}")
    A(f"v_add_u32 {v(vOf)}, s{sTmp}, {v(T0)}")
    A(f"s_mul_i32 s{sL}, s{sWave}, 20480")
    A(f"v_lshrrev_b32 {v(T1)}, 2, {v(vN)}")
    A(f"v_lshl_add_u32 {v(T1)}, {v(vG)}, 2, {v(T1)}")
    A(f"v_mul_u32_u24 {v(T1)}, 160, {v(T1)}")
    A(f"v_and_b32 {v(T2)}, 3, {v(vN)}")
    A(f"v_lshl_add_u32 {v(T1)}, {v(T2)}, 3, {v(T1)}")
    A(f"v_add_u32 {v(vTr)}, s{sL}, {v(T1)}")
    A(f"s_mov_b32 s{sKo}, 0")
    A(f"s_mov_b32 s{sKw}, 0")
    for i in range(RT * 20):
        A(f"v_accvgpr_write_b32 a{i}, 0")
    vq = Q(A, "vmcnt", 63)
    lq = Q(A, "lgkmcnt", 15)

    def load(slot):
        g = []
        for i in range(5):
            g.append([f"s_add_u32 m0, s{sL}, {slot*5120 + i*1024}", "s_nop 0",
                      f"buffer_load_dwordx4 {v(vWo+i)}, {srd(sWO)}, s{sKw} offen lds"])
        for rt in range(RT):
            g.append([f"s_add_u32 s{sTmp}, s{sKo}, {rt*131072}",
                      f"buffer_load_dwordx4 {v(OF[slot]+rt*4,4)}, {v(vOf)}, {srd(sWS)}, s{sTmp} offen"])
        g.append([f"s_add_u32 s{sKw}, s{sKw}, {32*1280}", f"s_add_u32 s{sKo}, s{sKo}, 1024"])
        return g

    def emit_load(slot):
        for grp in load(slot):
            for ins in grp:
                A(ins)
    D = 5 + RT

    def rd(slot, par):
        for t in range(5):
            A(f"ds_read_b64_tr_b16 {v(WF[par]+t*4,2)}, {v(vTr)} offset:{slot*5120 + t*32}")
            A(f"ds_read_b64_tr_b16 {v(WF[par]+t*4+2,2)}, {v(vTr)} offset:{slot*5120 + t*32 + 16*160}")
    for slot in range(3):
        emit_load(slot)
    A(f"s_waitcnt vmcnt({2*D})")
    rd(0, 0)
    A(f"s_mov_b32 s{sIt}, 0")
    Lloop = A.newlabel("Lop")
    A.label(Lloop)
    for slot in range(4):
        par = slot % 2
        A(f"s_waitcnt vmcnt({D}) lgkmcnt(0)")
        rd((slot + 1) % 4, 1 - par)
        grps = load((slot + 3) % 4)
        for t in range(5):
            for rt in range(RT):
                acc = a((t * RT + rt) * 4, 4)
                A(f"v_mfma_f32_16x16x32_bf16 {acc}, {v(WF[par]+t*4,4)}, {v(OF[slot]+rt*4,4)}, {acc}")
                if grps and rt % 2 == 1:
                    for ins in grps.pop(0):
                        A(ins)
        for grp in grps:
            for ins in grp:
                A(ins)
    A(f"s_add_u32 s{sIt}, s{sIt}, 1")
    A(f"s_cmp_lt_u32 s{sIt}, 8")
    A(f"s_cbranch_scc1 {Lloop}")
    A("s_waitcnt vmcnt(0) lgkmcnt(0)")
    A("s_barrier")
    NTL = 5 * RT
    A(f"s_mul_i32 s{sTmp}, s{sWave}, {NTL*1024}")
    A(f"v_lshlrev_b32 {v(T0)}, 4, {v(vLane)}")
    A(f"v_add_u32 {v(vLw)}, s{sTmp}, {v(T0)}")
    A.nop(4)
    for i in range(NTL):
        A(f"ds_write_b128 {v(vLw)}, {a(i*4,4)} offset:{i*1024}")
    A("s_waitcnt lgkmcnt(0)")
    A("s_barrier")
    RPW = RT // 4
    A(f"s_mul_i32 s{sTmp}, s{sWave}, {RPW*1024}")
    A(f"v_add_u32 {v(vLw)}, s{sTmp}, {v(T0)}")
    A(f"v_add_u32 {v(vTr)}, {2*NTL*1024}, {v(vLw)}")
    A(f"s_mul_i32 s{sTmp}, s{sRB}, {RT}")
    A(f"s_mul_i32 s{sTmp2}, s{sWave}, {RPW}")
    A(f"s_add_u32 s{sTmp}, s{sTmp}, s{sTmp2}")
    A(f"s_mul_i32 s{sTmp}, s{sTmp}, {16*2560}")
    A(f"s_mul_i32 s{sTmp2}, s{sCB}, 160")
    A(f"s_add_u32 s{sTmp}, s{sTmp}, s{sTmp2}")
    A(f"s_add_u32 s{sTmp}, s{sTmp}, 1280")
    A(f"v_mul_u32_u24 {v(T1)}, 2560, {v(vN)}")
    A(f"v_lshl_add_u32 {v(T1)}, {v(vG)}, 3, {v(T1)}")
    A(f"v_add_u32 {v(vOut)}, s{sTmp}, {v(T1)}")
    for j in range(RPW):
        for t in range(5):
            for w in range(4):
                ad = vLw if w < 2 else vTr
                A(f"ds_read_b128 {v(TMP+w*4,4)}, {v(ad)} offset:{(w%2)*NTL*1024 + (t*RT+j)*1024}")
            A("s_waitcnt lgkmcnt(0)")
            for i in range(4):
                A(f"v_add_f32 {v(TMP+i)}, {v(TMP+i)}, {v(TMP+4+i)}")
                A(f"v_add_f32 {v(TMP+8+i)}, {v(TMP+8+i)}, {v(TMP+12+i)}")
            for i in range(4):
                A(f"v_add_f32 {v(TMP+i)}, {v(TMP+i)}, {v(TMP+8+i)}")
            o = OF[0] + (t % 2) * 2
            A(f"v_cvt_pk_bf16_f32 {v(o)}, {v(TMP)}, {v(TMP+1)}")
            A(f"v_cvt_pk_bf16_f32 {v(o+1)}, {v(TMP+2)}, {v(TMP+3)}")
            A(f"s_mov_b32 s{sTmp}, {j*16*2560}")
            A(f"buffer_store_dwordx2 {v(o,2)}, {v(vOut)}, {srd(sXS)}, s{sTmp} offen offset:{t*32}")
```

```python
import sys
sys.path.insert(0, "gen")
from asmlib import *
import parta, wside, rec
NAME = "concat_heads__spectral_gfnet__memory_aug_recurrent_mem_tr__prompt"
A = Asm()
hdr = open(f"cdna_kernels/{NAME}.s.ref").read().split("\n")
for ln in hdr:
    if ln.startswith(";") and "@launch" not in ln and "Override launch" not in ln and "grid=ceil" not in ln:
        A.raw(ln)
A.raw(f"; @launch kernel=init_kernel grid=({parta.NB_INIT},1,1) block=(256,1,1) lds=0")
A.raw(f"; @launch kernel=kvu_kernel grid=(256,1,1) block=(256,1,1) lds=131072")
A.raw(f"; @launch kernel=rec_kernel grid=(256,1,1) block=(256,1,1) lds=106496")
A.raw(f"; @launch kernel=att_kernel grid=(256,1,1) block=(256,1,1) lds=131072")
A.raw(f"; @launch kernel=outp_kernel grid=(256,1,1) block=(256,1,1) lds=131072")
A.raw(f"; @launch kernel=a1_kernel grid=(40,1,1) block=(256,1,1) lds=131072")
A.raw(f"; @launch kernel=a2_kernel grid=(81,1,1) block=(256,1,1) lds=0")
A.raw(f"; @launch kernel=a3_kernel grid=(32,1,1) block=(256,1,1) lds=131072")
A.raw('.amdgcn_target "amdgcn-amd-amdhsa--gfx950"')
d = parta.gen_init(A) + wside.gen_kvu(A) + rec.gen_rec(A) + wside.gen_att(A) + wside.gen_outp(A) + parta.gen_a1(A) + parta.gen_a2(A) + parta.gen_a3(A)
out = sys.argv[1] if len(sys.argv) > 1 else f"cdna_kernels/{NAME}.s"
open(out, "w").write(A.text() + d)
print(len(A.text() + d))
```

```python
from asmlib import *
from layout import *
from wside import *
import parta

SPIN = 4000000
sW, sJ, sHead, sRnd, sPoll = 70, 71, 72, 73, 74


TL = False
A3_AT = 9
NRM = 6
SC = " sc1"


def wrole(A, sIdx):
    Lq = A.newlabel("Lwq")

    def tl():
        if not TL:
            return
        Ls = A.newlabel("Ltl")
        A(f"s_cmp_lg_u32 s{sWave}, 0")
        A(f"s_cbranch_scc1 {Ls}")
        A("s_memrealtime s[78:79]")
        A("s_waitcnt lgkmcnt(0)")
        A("s_mov_b64 exec, 1")
        A("v_mov_b32 v4, s78")
        A("v_mov_b32 v5, 0")
        A(f"buffer_store_dword v4, v5, {srd(sWS)}, s80 offen")
        A("s_mov_b64 exec, -1")
        A("s_add_u32 s80, s80, 4")
        A.label(Ls)
        return 1
    A(f"s_mov_b32 s{sW}, s{sIdx}")
    A("s_load_dwordx4 s[24:27], s[0:1], 24")
    A("s_load_dwordx8 s[28:35], s[0:1], 40")
    A("s_load_dwordx2 s[36:37], s[0:1], 96")
    A("s_load_dwordx2 s[38:39], s[0:1], 80")
    A("s_load_dwordx2 s[76:77], s[0:1], 0")
    A("v_and_b32 v1, 63, v0")
    A("v_lshrrev_b32 v5, 6, v0")
    A("v_and_b32 v2, 15, v0")
    A(f"v_readfirstlane_b32 s{sWave}, v5")
    A("v_bfe_u32 v3, v0, 4, 2")
    A("s_waitcnt lgkmcnt(0)")
    make_srd(A, sWS, 36, WS_BYTES)
    A(f"s_lshr_b32 s{sHead}, s{sW}, 5")
    A(f"s_lshl_b32 s{sHead}, s{sHead}, 3")
    A(f"s_and_b32 s{sTmp}, s{sW}, 7")
    A(f"s_add_u32 s{sHead}, s{sHead}, s{sTmp}")
    A(f"s_bfe_u32 s{sJ}, s{sW}, 0x20003")
    A(f"s_lshl_b32 s80, s{sW}, 8")
    A(f"s_add_u32 s80, s80, {WS_PROF + 65536:#x}")
    tl()

    def signal(off_sreg, n=1, stride=0):
        Ls = A.newlabel("Lsig")
        A("s_waitcnt vmcnt(0)")
        A("s_barrier")
        A(f"s_cmp_lg_u32 s{sWave}, 0")
        A(f"s_cbranch_scc1 {Ls}")
        A("s_mov_b64 exec, 1")
        A("v_mov_b32 v4, 1")
        A("v_mov_b32 v5, 0")
        for i in range(n):
            A(f"buffer_atomic_add v4, v5, {srd(sWS)}, s{off_sreg} offen")
            if i < n - 1:
                A(f"s_add_u32 s{off_sreg}, s{off_sreg}, {stride}")
        A("s_mov_b64 exec, -1")
        A.label(Ls)
        tl()

    def wait(off_sreg, target):
        Lp, Ld = A.newlabel("Lwt"), A.newlabel("Lwtd")
        A(f"s_cmp_lg_u32 s{sWave}, 0")
        A(f"s_cbranch_scc1 {Ld}")
        A("v_mov_b32 v5, 0")
        A(f"s_mov_b32 s{sPoll}, 0")
        A.label(Lp)
        A(f"buffer_load_dword v4, v5, {srd(sWS)}, s{off_sreg} offen sc1")
        A("s_waitcnt vmcnt(0)")
        A(f"v_cmp_gt_u32 vcc, {target:#x}, v4")
        A(f"s_cbranch_vccz {Ld}")
        A("s_sleep 8")
        A(f"s_add_u32 s{sPoll}, s{sPoll}, 1")
        A(f"s_cmp_lt_u32 s{sPoll}, {SPIN}")
        A(f"s_cbranch_scc1 {Lp}")
        A.label(Ld)
        A("s_barrier")
        tl()

    def cnt_rbh(base):
        A(f"s_lshl_b32 s75, s{sRB}, 12")
        A(f"s_lshl_b32 s{sTmp}, s{sH}, 7")
        A(f"s_add_u32 s75, s75, s{sTmp}")
        A(f"s_add_u32 s75, s75, {WS_CNT + base:#x}")

    def cond_block(cmps, body):
        Lskip = A.newlabel("Lcs")
        for c in cmps:
            Lgo = A.newlabel("Lcg")
            A(c)
            A(f"s_cbranch_scc1 {Lgo}")
            A(f"s_branch {Lskip}")
            A.label(Lgo)
        body()
        A.label(Lskip)

    A(f"s_mov_b32 s{sRnd}, 0")
    Lk = A.newlabel("Lkvu")
    A.label(Lk)
    A(f"s_lshl_b32 s{sRB}, s{sRnd}, 2")
    A(f"s_add_u32 s{sRB}, s{sRB}, s{sJ}")
    A(f"s_mov_b32 s{sH}, s{sHead}")
    kvu_body(A, 2, SC, tl=tl)
    cnt_rbh(CNT_KVU)
    signal(75)
    A(f"s_add_u32 s{sRnd}, s{sRnd}, 1")
    A(f"s_cmp_lt_u32 s{sRnd}, 2")
    Lk2 = A.newlabel("Lkvu2")
    A(f"s_cbranch_scc0 {Lk2}")
    A(f"s_branch {Lk}")
    A.label(Lk2)
    def idx40(dst, ja, jb):
        A(f"s_add_u32 s{dst}, s{sHead}, 32")
        A(f"s_cmp_eq_u32 s{sJ}, {jb}")
        A(f"s_cselect_b32 s{dst}, s{dst}, 99")
        A(f"s_cmp_eq_u32 s{sJ}, {ja}")
        A(f"s_cselect_b32 s{dst}, s{sHead}, s{dst}")

    def do_a1():
        A(f"s_mov_b32 s75, {WS_CNT + CNT_CONST:#x}")
        wait(75, 512)
        A(f"s_and_b32 s{sRB}, s85, 7")
        A(f"s_lshr_b32 s{sH}, s85, 3")
        parta.a1_body(A, 76, " sc1")
        A(f"s_mov_b32 s75, {WS_CNT + CNT_A1:#x}")
        signal(75)
    idx40(85, 1, 2)
    cond_block(["s_cmp_lt_u32 s85, 40"], do_a1)
    A(f"s_mov_b32 s{sRB}, s{sJ}")
    A(f"s_mov_b32 s{sH}, s{sHead}")
    kvu_body(A, 4, SC, seg_base=32, tl=tl)
    A(f"s_lshl_b32 s{sRB}, s{sJ}, 1")
    A(f"s_add_u32 s{sRB}, s{sRB}, 8")
    cnt_rbh(CNT_KVU)
    signal(75, 2, 4096)

    def do_a2():
        A(f"s_mov_b32 s75, {WS_CNT + CNT_A1:#x}")
        wait(75, 40)
        La = A.newlabel("La2l")
        A.label(La)
        A(f"s_lshl_b32 s{sH}, s85, 2")
        A(f"s_add_u32 s{sH}, s{sH}, s{sWave}")
        cond_block([f"s_cmp_le_u32 s{sH}, 320"], lambda: parta.a2_body(A, " sc1"))
        A(f"s_mov_b32 s75, {WS_CNT + CNT_A2:#x}")
        signal(75)
        A("s_add_u32 s85, s85, 32")
        A("s_cmp_lt_u32 s85, 64")
        Lb = A.newlabel("La2e")
        A(f"s_cbranch_scc0 {Lb}")
        A(f"s_branch {La}")
        A.label(Lb)
    A(f"s_add_u32 s85, s{sHead}, 56")
    A(f"s_cmp_lt_u32 s{sHead}, 8")
    A(f"s_cselect_b32 s85, 99, s85")
    A(f"s_cmp_lt_u32 s{sJ}, 2")
    A(f"s_cselect_b32 s85, 99, s85")
    A(f"s_cmp_eq_u32 s{sJ}, 3")
    A(f"s_cselect_b32 s85, s{sHead}, s85")
    cond_block(["s_cmp_lt_u32 s85, 81"], do_a2)

    def do_a3():
        A(f"s_mov_b32 s75, {WS_CNT + CNT_A2:#x}")
        wait(75, 81)
        A(f"s_and_b32 s{sRB}, s{sHead}, 1")
        A(f"s_lshr_b32 s{sH}, s{sHead}, 1")
        parta.a3_body(A)
        A("s_barrier")
        tl()
    cond_block([f"s_cmp_eq_u32 s{sJ}, 3"], do_a3)
    A(f"s_mov_b32 s{sRB}, s{sJ}")
    A(f"s_mov_b32 s{sH}, s{sHead}")
    q_body(A, " sc1")
    cnt_rbh(CNT_Q)
    signal(75)

    def do_att():
        A(f"s_mov_b32 s{sRnd}, 0")
        Lt = A.newlabel("Latt")
        A.label(Lt)
        A(f"s_mov_b32 s{sH}, s{sHead}")
        A(f"s_lshr_b32 s{sRB}, s{sRnd}, 2")
        cnt_rbh(CNT_Q)
        wait(75, 1)
        A(f"s_mov_b32 s{sRB}, s{sRnd}")
        cnt_rbh(CNT_KVU)
        wait(75, 1)

        def hook():
            cnt_rbh(CNT_MEM)
            wait(75, 16)
        att_body(A, 2, " sc1", hook, rm_below=NRM, light=True)
        A(f"s_lshl_b32 s75, s{sRB}, 7")
        A(f"s_add_u32 s75, s75, {WS_CNT + CNT_ATT:#x}")
        signal(75)
        A(f"s_add_u32 s{sRnd}, s{sRnd}, 1")
        A(f"s_cmp_lt_u32 s{sRnd}, 16")
        Le = A.newlabel("Latte")
        A(f"s_cbranch_scc0 {Le}")
        A(f"s_branch {Lt}")
        A.label(Le)
        A("s_endpgm")
    cond_block([f"s_cmp_eq_u32 s{sJ}, 0"], do_att)

    def do_outp():
        A(f"s_mul_i32 s{sRB}, s85, 52")
        A(f"s_lshr_b32 s{sRB}, s{sRB}, 8")
        A(f"s_mul_i32 s{sTmp}, s{sRB}, 5")
        A(f"s_sub_u32 s{sH}, s85, s{sTmp}")
        A(f"s_lshl_b32 s75, s{sRB}, 7")
        A(f"s_add_u32 s75, s75, {WS_CNT + CNT_ATT:#x}")
        wait(75, 32)
        outp2_body(A)
        A("s_barrier")
        tl()
    assert all((c * 52) >> 8 == c // 5 for c in range(40))
    idx40(85, 2, 1)
    cond_block([f"s_cmp_lt_u32 s85, {5*NRM}"], do_outp)
    sF = 84
    A(f"s_sub_u32 s{sF}, s{sJ}, 2")
    A(f"s_lshl_b32 s{sF}, s{sF}, 5")
    A(f"s_cmp_eq_u32 s{sJ}, 1")
    A(f"s_cselect_b32 s{sF}, 64, s{sF}")
    A(f"s_add_u32 s{sF}, s{sF}, s{sHead}")

    def hook2(sBlk):
        A(f"s_lshl_b32 s75, s{sBlk}, 7")
        A(f"s_add_u32 s75, s75, {WS_CNT + CNT_ATT + NRM*128:#x}")
        wait(75, 32)
    outp_fast_body(A, sF, 8*NRM, hook2, nblk=16-NRM)
    tl()
```

```python
MB = 1 << 20
WS_BYTES = 256 * MB
WS_KX = 0 * MB
WS_VX = 16 * MB
WS_U = 32 * MB
WS_KM = 114 * MB
WS_VM = 118 * MB
WS_O = 122 * MB
WS_CNT = 140 * MB
WS_PROF = 141 * MB
WS_RA = 142 * MB
WS_RD = 143 * MB
WS_RC = 144 * MB
RING_FILL_OFF = 142 * MB
RING_FILL_BYTES = 5 * MB
WS_NEXT = 152 * MB

SCALE = 128 ** -0.5
LOG2E = 1.4426950408889634
WS_FH = 152 * MB
WS_FL = 153 * MB
WS_G = 154 * MB
WS_C32 = 157 * MB
WS_C64 = WS_C32 + 8192
WS_TW1 = WS_C64 + 32768
WS_TW3 = WS_TW1 + 16384
WS_WT = 158 * MB
WS_Y = 162 * MB
WS_Z = 168 * MB
WS_QX = 176 * MB
WS_END = 192 * MB
CNT_ELECT = 0
CNT_KVU = 4096
CNT_MEM = CNT_KVU + 65536
CNT_ATT = CNT_MEM + 65536
CNT_A1 = CNT_ATT + 4096
CNT_A2 = CNT_A1 + 128
CNT_Q = CNT_A2 + 128
CNT_CONST = CNT_Q + 16384
CNT_VU = CNT_CONST + 128
CNT_BYTES = CNT_VU + 65536
```

```python
import struct
from asmlib import *
from layout import *
from wside import *


def split_pack(A, x0, x1, hi, lo, t0, t1):
    A(f"v_cvt_pk_bf16_f32 {v(hi)}, {v(x0)}, {v(x1)}")
    A(f"v_lshlrev_b32 {v(t0)}, 16, {v(hi)}")
    A(f"v_and_b32 {v(t1)}, 0xffff0000, {v(hi)}")
    A(f"v_sub_f32 {v(t0)}, {v(x0)}, {v(t0)}")
    A(f"v_sub_f32 {v(t1)}, {v(x1)}, {v(t1)}")
    A(f"v_cvt_pk_bf16_f32 {v(lo)}, {v(t0)}, {v(t1)}")


NB_FG, NB_WT = 200, 642
NB_CONST = NB_FG + 1 + NB_WT
FILL_RANGES = [(WS_RA, 4 * 32 * 6144), (WS_RD, 4 * 8 * 10240), (WS_RC, 4 * 8 * 20480)]
NB_ZERO = (CNT_BYTES + 4095) // 4096
NB_INIT = sum(n // 4096 for _, n in FILL_RANGES) + NB_ZERO


def gen_init(A, name="init_kernel"):
    kernel_header(A, name)
    Lend = A.newlabel("Lend")
    A(f"s_cmp_ge_u32 s2, {NB_INIT}")
    A(f"s_cbranch_scc1 {Lend}")
    A("s_load_dwordx2 s[36:37], s[0:1], 96")
    A("v_lshlrev_b32 v1, 4, v0")
    A("s_lshl_b32 s3, s2, 12")
    A(f"s_add_u32 s8, s3, {WS_CNT:#x}")
    A("s_mov_b32 s9, 0")
    base = NB_ZERO
    for off, n in FILL_RANGES:
        A(f"s_add_u32 s10, s3, {off - base*4096:#x}")
        A(f"s_cmp_ge_u32 s2, {base}")
        A("s_cselect_b32 s8, s10, s8")
        A("s_cselect_b32 s9, -1, s9")
        base += n // 4096
    for i in range(4):
        A(f"v_mov_b32 v{4+i}, s9")
    A("s_waitcnt lgkmcnt(0)")
    make_srd(A, sWS, 36, WS_BYTES)
    A(f"buffer_store_dwordx4 v[4:7], v1, {srd(sWS)}, s8 offen")
    A.label(Lend)
    A("s_endpgm")
    return kernel_desc(name, 8, 102, 8)


def const_unit(A, sU):
    Lend = A.newlabel("Lcend")
    Lsm, Lwt = A.newlabel("Lsm"), A.newlabel("Lwt")
    A(f"s_cmp_eq_u32 s{sU}, {NB_FG}")
    A(f"s_cbranch_scc1 {Lsm}")
    A(f"s_cmp_gt_u32 s{sU}, {NB_FG}")
    A(f"s_cbranch_scc1 {Lwt}")
    A(f"s_lshl_b32 s3, s{sU}, 8")
    A("v_add_u32 v1, s3, v0")
    A("s_mov_b32 s8, 53687092")
    A("v_mul_hi_u32 v2, v1, s8")
    A("v_mul_u32_u24 v3, 80, v2")
    A("v_sub_u32 v3, v1, v3")
    A("v_lshlrev_b32 v3, 3, v3")
    A("s_mov_b32 s9, 6710887")
    A(f"s_mov_b32 s10, {f32bits(1.0/640):#x}")
    A(f"s_mov_b32 s11, {f32bits(1.0/(2048*640)):#x}")
    A(f"s_mov_b32 s12, {f32bits(2.0/(2048*640)):#x}")
    for e in range(8):
        A(f"v_add_u32 v4, {e}, v3")
        A("v_subrev_u32 v5, 320, v4")
        A("v_cmp_lt_u32 vcc, 320, v4")
        A("s_nop 1")
        A("v_cndmask_b32 v5, v4, v5, vcc")
        A("v_mul_u32_u24 v6, v5, v2")
        A("v_mul_hi_u32 v7, v6, s9")
        A("v_mul_u32_u24 v7, 640, v7")
        A("v_sub_u32 v6, v6, v7")
        A("v_cvt_f32_u32 v6, v6")
        A("v_mul_f32 v6, s10, v6")
        A("v_cos_f32 v7, v6")
        A("v_sin_f32 v8, v6")
        A("s_nop 1")
        A(f"v_cndmask_b32 v{16+e}, v7, -v8, vcc")
        A("v_cmp_eq_u32 vcc, 0, v4")
        A("v_cmp_eq_u32 s[14:15], 320, v4") if False else None
        A("v_mov_b32 v9, 320")
        A("v_cmp_eq_u32 s[14:15], v9, v4")
        A("s_nop 1")
        A("s_or_b64 vcc, vcc, s[14:15]")
        A("v_mov_b32 v9, s12")
        A("v_mov_b32 v10, s11")
        A("v_cndmask_b32 v9, v9, v10, vcc")
        A(f"v_mul_f32 v{24+e}, v{16+e}, v9")
    for j in range(4):
        split_pack(A, 16 + 2 * j, 17 + 2 * j, 32 + j, 36 + j, 4, 5)
        split_pack(A, 24 + 2 * j, 25 + 2 * j, 40 + j, 44 + j, 4, 5)
    A("v_mul_u32_u24 v4, 1280, v2")
    A("v_lshl_add_u32 v4, v3, 1, v4")
    A("v_mul_u32_u24 v5, 3840, v2")
    A("v_lshl_add_u32 v5, v3, 1, v5")
    A(f"s_mov_b32 s8, {WS_FH:#x}")
    A(f"s_mov_b32 s9, {WS_FL:#x}")
    A(f"s_mov_b32 s10, {WS_G:#x}")
    A(f"buffer_store_dwordx4 v[32:35], v4, {srd(sWS)}, s8 offen sc1")
    A(f"buffer_store_dwordx4 v[36:39], v4, {srd(sWS)}, s9 offen sc1")
    A(f"buffer_store_dwordx4 v[44:47], v5, {srd(sWS)}, s10 offen sc1")
    A(f"buffer_store_dwordx4 v[40:43], v5, {srd(sWS)}, s10 offen offset:1280 sc1")
    A(f"buffer_store_dwordx4 v[40:43], v5, {srd(sWS)}, s10 offen offset:2560 sc1")
    A(f"s_branch {Lend}")
    A.label(Lsm)
    A("v_and_b32 v1, 63, v0")
    A("v_and_b32 v2, 15, v0")
    A("v_bfe_u32 v3, v0, 4, 2")
    A("v_lshrrev_b32 v4, 6, v0")
    A("v_lshlrev_b32 v5, 4, v1")

    def dft_frag(N, a_expr_tile, ks, base_off):
        pass
    A("v_lshl_add_u32 v7, v4, 4, v2")
    for ks in range(2):
        for e in range(8):
            boff = 32 * ks + (e if e < 4 else 16 + e - 4)
            A(f"v_lshl_add_u32 v8, v3, 2, {boff}")
            A("v_mul_u32_u24 v8, v8, v7")
            A("v_and_b32 v8, 63, v8")
            A("v_cvt_f32_u32 v8, v8")
            A(f"v_mul_f32 v8, {f32bits(1/64):#x}, v8")
            A(f"v_cos_f32 v{16+e}, v8")
            A(f"v_sin_f32 v{24+e}, v8")
        A("s_nop 1")
        for j in range(4):
            split_pack(A, 16 + 2 * j, 17 + 2 * j, 32 + j, 36 + j, 9, 10)
            split_pack(A, 24 + 2 * j, 25 + 2 * j, 40 + j, 44 + j, 9, 10)
        A("v_lshl_add_u32 v8, v4, 11, v5")
        for cs in range(2):
            for hl in range(2):
                A(f"s_mov_b32 s8, {WS_C64 + (cs*2+hl)*8192 + ks*1024:#x}")
                r = 32 + cs * 8 + hl * 4
                A(f"buffer_store_dwordx4 v[{r}:{r+3}], v8, {srd(sWS)}, s8 offen sc1")
        A("s_nop 1")
    A("v_and_b32 v11, 1, v4")
    A("v_lshl_add_u32 v7, v11, 4, v2")
    for e in range(8):
        boff = (e if e < 4 else 16 + e - 4)
        A(f"v_lshl_add_u32 v8, v3, 2, {boff}")
        A("v_mul_u32_u24 v8, v8, v7")
        A("v_and_b32 v8, 31, v8")
        A("v_cvt_f32_u32 v8, v8")
        A(f"v_mul_f32 v8, {f32bits(1/32):#x}, v8")
        A(f"v_cos_f32 v{16+e}, v8")
        A(f"v_sin_f32 v{24+e}, v8")
    A("s_nop 1")
    for j in range(4):
        split_pack(A, 16 + 2 * j, 17 + 2 * j, 32 + j, 36 + j, 9, 10)
        split_pack(A, 24 + 2 * j, 25 + 2 * j, 40 + j, 44 + j, 9, 10)
    A("v_lshl_add_u32 v8, v11, 10, v5")
    for cs in range(2):
        for hl in range(2):
            A(f"s_mov_b32 s8, {WS_C32 + (cs*2+hl)*2048:#x}")
            r = 32 + cs * 8 + hl * 4
            A(f"buffer_store_dwordx4 v[{r}:{r+3}], v8, {srd(sWS)}, s8 offen sc1")
    A("s_nop 1")
    for which in range(2):
        for tf in range(2):
            for r in range(4):
                if which == 0:
                    A(f"v_lshl_add_u32 v8, v3, 2, {r}")
                    A("v_lshl_add_u32 v8, v4, 4, v8")
                    A(f"v_add_u32 v9, {16*tf}, v2")
                else:
                    A("v_lshl_add_u32 v8, v4, 4, v2")
                    A(f"v_lshl_add_u32 v9, v3, 2, {16*tf + r}")
                A("v_mul_u32_u24 v8, v8, v9")
                A("v_cvt_f32_u32 v8, v8")
                A(f"v_mul_f32 v8, {f32bits(1/2048):#x}, v8")
                A(f"v_cos_f32 v{16+r}, v8")
                A(f"v_sin_f32 v{20+r}, v8")
            if which == 0:
                A("v_lshl_add_u32 v8, v4, 11, v5")
                off = WS_TW1 + tf * 1024
            else:
                A("v_lshl_add_u32 v8, v4, 10, v5")
                off = WS_TW3 + tf * 4096
            A(f"s_mov_b32 s8, {off:#x}")
            A(f"s_mov_b32 s9, {off + 8192:#x}")
            A(f"buffer_store_dwordx4 v[16:19], v8, {srd(sWS)}, s8 offen sc1")
            A(f"buffer_store_dwordx4 v[20:23], v8, {srd(sWS)}, s9 offen sc1")
            A("s_nop 1")
    A(f"s_branch {Lend}")
    A.label(Lwt)
    A(f"s_sub_u32 s3, s{sU}, {NB_FG+1}")
    A("v_lshrrev_b32 v4, 6, v0")
    A("v_and_b32 v1, 63, v0")
    A("v_readfirstlane_b32 s8, v4")
    A("s_lshl_b32 s3, s3, 2")
    A("s_add_u32 s3, s3, s8")
    A("s_and_b32 s9, s3, 511")
    A("s_lshr_b32 s10, s3, 9")
    A("s_lshl_b32 s10, s10, 6")
    A("v_add_u32 v2, s10, v1")
    A("v_mov_b32 v3, s9")
    A("s_sub_u32 s11, s3, 2560")
    A("s_lshl_b32 s11, s11, 6")
    A("v_add_u32 v5, s11, v1")
    A("s_cmp_ge_u32 s3, 2560")
    A("s_cselect_b64 vcc, -1, 0")
    A("v_mov_b32 v6, 320")
    A("v_cndmask_b32 v2, v2, v6, vcc")
    A("v_cndmask_b32 v3, v3, v5, vcc")
    A("v_and_b32 v5, 15, v3")
    A("v_bfe_u32 v6, v3, 4, 4")
    A("v_lshl_add_u32 v5, v6, 7, v5")
    A("v_mul_u32_u24 v5, 642, v5")
    A("v_lshl_add_u32 v5, v2, 1, v5")
    A("v_lshrrev_b32 v6, 8, v3")
    make_srd(A, 8, 24, 2048 * 642)
    make_srd(A, 12, 26, 2048 * 642)
    A("v_cmp_eq_u32 vcc, 0, v6")
    A("s_mov_b64 s[16:17], exec")
    for ri in range(2):
        Lskip = A.newlabel("Lwts")
        A("s_and_b64 exec, s[16:17], vcc" if ri == 0 else "s_andn2_b64 exec, s[16:17], vcc")
        A(f"s_cbranch_execz {Lskip}")
        for tf1 in range(2):
            for r in range(4):
                A(f"s_mov_b32 s18, {(16*tf1 + 32*r)*642}")
                A(f"buffer_load_ushort v{16+tf1*4+r}, v5, s[{8+4*ri}:{11+4*ri}], s18 offen")
        A.label(Lskip)
    A("s_mov_b64 exec, s[16:17]")
    A("s_waitcnt vmcnt(0)")
    for j in range(4):
        A(f"v_lshl_or_b32 v{24+j}, v{17+2*j}, 16, v{16+2*j}")
    A("v_lshlrev_b32 v5, 13, v2")
    A("v_lshl_add_u32 v5, v3, 4, v5")
    A(f"s_mov_b32 s18, {WS_WT:#x}")
    A(f"buffer_store_dwordx4 v[24:27], v5, {srd(sWS)}, s18 offen sc1")
    A(f"s_branch {Lend}")
    A.label(Lend)
    A("s_nop 1")


def a_prologue(A, Lend, ntasks):
    A(f"s_cmp_ge_u32 s2, {ntasks}")
    A(f"s_cbranch_scc1 {Lend}")
    A("s_load_dwordx2 s[24:25], s[0:1], 0")
    A("s_load_dwordx2 s[36:37], s[0:1], 96")
    A("s_load_dwordx2 s[38:39], s[0:1], 80")
    A("v_and_b32 v1, 63, v0")
    A("v_lshrrev_b32 v5, 6, v0")
    A("v_and_b32 v2, 15, v0")
    A(f"v_readfirstlane_b32 s{sWave}, v5")
    A("v_bfe_u32 v3, v0, 4, 2")
    A("s_waitcnt lgkmcnt(0)")
    make_srd(A, sWS, 36, WS_BYTES)


def gen_a1(A, name="a1_kernel"):
    kernel_header(A, name)
    Lend = A.newlabel("Lend")
    a_prologue(A, Lend, 40)
    A(f"s_and_b32 s{sRB}, s2, 7")
    A(f"s_lshr_b32 s{sH}, s2, 3")
    a1_body(A, 24, "")
    A.label(Lend)
    A("s_endpgm")
    return kernel_desc(name, 512, 102, 256)


def a1_body(A, xptr, sc):
    make_srd(A, sXS, xptr, 2048 * 1280)
    R = RegAlloc(6, 256)

    def acc_of(m, t, rt):
        return a((t * 4 + rt) * 4, 4)
    proj_gemm(A, 2, [sWS, sWS], acc_of, R, None, swap=True, w_pitch=1280, w_base=[WS_FH, WS_FL], x_mode="fft")
    R.next = 6
    T0, T1, vSt = R.alloc(), R.alloc(), R.alloc()
    TMP = R.alloc(8)
    HI = [R.alloc(4), R.alloc(4)]
    LO = [R.alloc(4), R.alloc(4)]
    A(f"s_lshl_b32 s{sTmp}, s{sRB}, 3")
    A(f"s_lshl_b32 s{sTmp2}, s{sWave}, 1")
    A(f"s_add_u32 s{sTmp}, s{sTmp}, s{sTmp2}")
    A(f"s_lshr_b32 s{sTmp2}, s{sTmp}, 4")
    A(f"s_lshl_b32 s{sTmp2}, s{sTmp2}, 10")
    A(f"s_and_b32 s{sTmp}, s{sTmp}, 15")
    A(f"s_lshl_b32 s{sTmp}, s{sTmp}, 4")
    A(f"s_add_u32 s{sTmp}, s{sTmp}, s{sTmp2}")
    A(f"s_lshl_b32 s{sTmp2}, s{sH}, 20")
    A(f"s_add_u32 s{sTmp}, s{sTmp}, s{sTmp2}")
    A(f"v_lshlrev_b32 {v(T0)}, 13, {v(vN)}")
    A(f"v_lshl_add_u32 {v(T0)}, {v(vG)}, 8, {v(T0)}")
    A(f"v_add_u32 {v(vSt)}, s{sTmp}, {v(T0)}")
    i = 0
    for t in range(8):
        for j in range(2):
            p = i % 2
            i += 1
            for half in range(2):
                ab = (t * 4 + j * 2 + half) * 4
                for r in range(4):
                    A(f"v_accvgpr_read_b32 {v(TMP+half*4+r)}, a{ab+r}")
            for q in range(4):
                split_pack(A, TMP + 2 * q, TMP + 2 * q + 1, HI[p] + q, LO[p] + q, T0, T1)
            A(f"s_mov_b32 s{sTmp}, {WS_Y + t*16*8192 + j*16:#x}")
            A(f"s_mov_b32 s{sTmp2}, {WS_Y + t*16*8192 + j*16 + 4096:#x}")
            A(f"buffer_store_dwordx4 {v(HI[p],4)}, {v(vSt)}, {srd(sWS)}, s{sTmp} offen{sc}")
            A(f"buffer_store_dwordx4 {v(LO[p],4)}, {v(vSt)}, {srd(sWS)}, s{sTmp2} offen{sc}")


def gen_a3(A, name="a3_kernel"):
    kernel_header(A, name)
    Lend = A.newlabel("Lend")
    a_prologue(A, Lend, 32)
    A(f"s_and_b32 s{sRB}, s2, 1")
    A(f"s_lshr_b32 s{sH}, s2, 1")
    a3_body(A)
    A.label(Lend)
    A("s_endpgm")
    return kernel_desc(name, 512, 102, 256)


def a3_body(A):
    make_srd(A, sWO, 38, 2048 * 2560)
    R = RegAlloc(6, 256)

    def acc_of(m, t, rt):
        return a((t * 5 + rt) * 4, 4)
    proj_gemm(A, 1, [sWS], acc_of, R, None, RTW=5, swap=True, niter=15, w_pitch=4096, w_base=[WS_Z],
              xsrd=sWS, x_base=WS_G, x_pitch=3840, w_wrap=20, NST=5)
    R.next = 6
    T0, vSt = R.alloc(), R.alloc()
    TMP = R.alloc(4)
    O = [R.alloc(2) for _ in range(4)]
    A(f"s_lshl_b32 s{sTmp}, s{sRB}, 2")
    A(f"s_add_u32 s{sTmp}, s{sTmp}, s{sWave}")
    A(f"s_mul_i32 s{sTmp}, s{sTmp}, 160")
    A(f"s_mul_i32 s{sTmp2}, s{sH}, {128*2560}")
    A(f"s_add_u32 s{sTmp}, s{sTmp}, s{sTmp2}")
    A(f"v_mul_u32_u24 {v(T0)}, 2560, {v(vN)}")
    A(f"v_lshl_add_u32 {v(T0)}, {v(vG)}, 3, {v(T0)}")
    A(f"v_add_u32 {v(vSt)}, s{sTmp}, {v(T0)}")
    i = 0
    for t in range(8):
        A(f"s_mov_b32 s{sTmp}, {t*16*2560}")
        for rt in range(5):
            o = O[i % 4]
            i += 1
            ab = (t * 5 + rt) * 4
            for r in range(4):
                A(f"v_accvgpr_read_b32 {v(TMP+r)}, a{ab+r}")
            A(f"v_cvt_pk_bf16_f32 {v(o)}, {v(TMP)}, {v(TMP+1)}")
            A(f"v_cvt_pk_bf16_f32 {v(o+1)}, {v(TMP+2)}, {v(TMP+3)}")
            A(f"buffer_store_dwordx2 {v(o,2)}, {v(vSt)}, {srd(sWO)}, s{sTmp} offen offset:{rt*32}")


def gen_a2(A, name="a2_kernel"):
    kernel_header(A, name)
    Lend = A.newlabel("Lend")
    a_prologue(A, Lend, 81)
    A("s_lshl_b32 s3, s2, 2")
    A(f"s_add_u32 s{sH}, s3, s{sWave}")
    A(f"s_cmp_gt_u32 s{sH}, 320")
    A(f"s_cbranch_scc1 {Lend}")
    a2_body(A, "")
    A.label(Lend)
    A("s_endpgm")
    return kernel_desc(name, 512, 102, 256)


def a2_body(A, sc):
    OOB = 0x7ff00000
    R = RegAlloc(6, 256)
    T0, T1, vL16, vYi, vZ = R.alloc(), R.alloc(), R.alloc(), R.alloc(), R.alloc()
    DAT = R.alloc(96)
    ACC = R.alloc(64)
    TW = R.alloc(64)
    TMP = R.alloc(8)
    sIm = 50

    def dat(part, hl, idx):
        return DAT + ((part * 2 + hl) * 4 + idx) * 4

    def c64(cs, hl, tile, ks):
        return a((((cs * 2 + hl) * 4 + tile) * 2 + ks) * 4, 4)

    def c32(cs, hl, tile):
        return a(128 + ((cs * 2 + hl) * 2 + tile) * 4, 4)

    def acc(ri, i):
        return ACC + (ri * 8 + i) * 4
    A(f"v_lshlrev_b32 {v(vL16)}, 4, {v(vLane)}")
    A(f"s_sub_u32 s{sTmp}, s{sH}, 1")
    A(f"s_cmp_lt_u32 s{sTmp}, 319")
    A(f"s_cselect_b32 s{sIm}, 0, {OOB:#x}")
    A(f"v_add_u32 {v(vYi)}, s{sIm}, {v(vL16)}")
    A(f"s_lshl_b32 s{sTmp}, s{sH}, 13")
    A(f"s_add_u32 s{sTmp}, s{sTmp}, {WS_Y:#x}")
    A(f"s_add_u32 s{sTmp2}, s{sTmp}, {320*8192}")
    for hl in range(2):
        for i in range(4):
            A(f"s_add_u32 s51, s{sTmp}, {hl*4096}")
            A(f"buffer_load_dwordx4 {v(dat(0,hl,i),4)}, {v(vL16)}, {srd(sWS)}, s51 offen offset:{i*1024}")
            A(f"s_add_u32 s51, s{sTmp2}, {hl*4096}")
            A(f"buffer_load_dwordx4 {v(dat(1,hl,i),4)}, {v(vYi)}, {srd(sWS)}, s51 offen offset:{i*1024}")
    for i in range(8):
        A(f"s_mov_b32 s51, {WS_C32 + i*1024:#x}")
        A(f"buffer_load_dwordx4 {a(128+i*4,4)}, {v(vL16)}, {srd(sWS)}, s51 offen")

    def load_tw(base):
        for i in range(16):
            A(f"s_mov_b32 s51, {base + i*1024:#x}")
            A(f"buffer_load_dwordx4 {v(TW+i*4,4)}, {v(vL16)}, {srd(sWS)}, s51 offen")
    load_tw(WS_TW1)
    for i in range(32):
        A(f"s_mov_b32 s51, {WS_C64 + i*1024:#x}")
        A(f"buffer_load_dwordx4 {a(i*4,4)}, {v(vL16)}, {srd(sWS)}, s51 offen")

    def negate(part):
        for hl in range(2):
            for i in range(16):
                A(f"v_xor_b32 {v(dat(2,hl,0)+i)}, 0x80008000, {v(dat(part,hl,0)+i)}")

    def cmm(tiles, data_first, fwd):
        A.nop(2)
        terms = {0: [(0, 0), (1 if fwd else 2, 1)], 1: [(1, 0), (2 if fwd else 0, 1)]}
        seqs = []
        for ai, ksl in tiles:
            for ri in range(2):
                sq = []
                for didx, cf in ksl:
                    for part, cs in terms[ri]:
                        for dh, ch in ((0, 0), (1, 0), (0, 1)):
                            sq.append((acc(ri, ai), dat(part, dh, didx), cf(cs, ch)))
                seqs.append(sq)
        n = len(seqs[0])
        for j in range(n):
            for sq in seqs:
                ac, d, c = sq[j]
                cc = "0" if j == 0 else v(ac, 4)
                if data_first:
                    A(f"v_mfma_f32_16x16x32_bf16 {v(ac,4)}, {v(d,4)}, {c}, {cc}")
                else:
                    A(f"v_mfma_f32_16x16x32_bf16 {v(ac,4)}, {c}, {v(d,4)}, {cc}")
        A.nop(8)

    def twiddle(conj):
        for i in range(8):
            for r in range(4):
                xr, xi, c, s_ = acc(0, i) + r, acc(1, i) + r, TW + i * 4 + r, TW + 32 + i * 4 + r
                A(f"v_mul_f32 {v(T0)}, {v(xr)}, {v(c)}")
                A(f"v_mul_f32 {v(T1)}, {v(xi)}, {v(c)}")
                if not conj:
                    A(f"v_fma_f32 {v(T0)}, {v(xi)}, {v(s_)}, {v(T0)}")
                    A(f"v_fma_f32 {v(xi)}, -{v(xr)}, {v(s_)}, {v(T1)}")
                else:
                    A(f"v_fma_f32 {v(T0)}, -{v(xi)}, {v(s_)}, {v(T0)}")
                    A(f"v_fma_f32 {v(xi)}, {v(xr)}, {v(s_)}, {v(T1)}")
                A(f"v_mov_b32 {v(xr)}, {v(T0)}")

    def to_frags(pairs):
        for ri in range(2):
            for didx, ta, tb in pairs:
                for h, tt in enumerate((ta, tb)):
                    for q in range(2):
                        x = acc(ri, tt) + 2 * q
                        split_pack(A, x, x + 1, dat(ri, 0, didx) + h * 2 + q, dat(ri, 1, didx) + h * 2 + q, T0, T1)

    A("s_waitcnt vmcnt(48)")
    negate(0)
    cmm([(ts * 2 + tf, [(ts, lambda cs, hl, tf=tf: c32(cs, hl, tf))]) for ts in range(4) for tf in range(2)], True, True)
    A("s_waitcnt vmcnt(32)")
    twiddle(False)
    A(f"s_lshl_b32 s{sTmp}, s{sH}, 13")
    A(f"s_add_u32 s{sTmp}, s{sTmp}, {WS_WT:#x}")
    A(f"s_add_u32 s{sTmp2}, s{sTmp}, 4096")
    for i in range(8):
        A(f"buffer_load_dwordx4 {v(TW+i*4,4)}, {v(vL16)}, {srd(sWS)}, s{sTmp if i < 4 else sTmp2} offen offset:{(i%4)*1024}")
    to_frags([(tf * 2 + ks, (2 * ks) * 2 + tf, (2 * ks + 1) * 2 + tf) for tf in range(2) for ks in range(2)])
    negate(0)
    A("s_waitcnt vmcnt(8)")
    cmm([(t2 * 2 + tf, [(tf * 2 + ks, lambda cs, hl, t2=t2, ks=ks: c64(cs, hl, t2, ks)) for ks in range(2)])
         for t2 in range(4) for tf in range(2)], False, True)
    A("s_waitcnt vmcnt(0)")
    for t2 in range(4):
        for tf in range(2):
            for r in range(4):
                xr, xi = acc(0, t2 * 2 + tf) + r, acc(1, t2 * 2 + tf) + r
                wrp, wip = TW + t2 * 4 + tf * 2 + r // 2, TW + 16 + t2 * 4 + tf * 2 + r // 2
                if r % 2 == 0:
                    A(f"v_lshlrev_b32 {v(TMP)}, 16, {v(wrp)}")
                    A(f"v_lshlrev_b32 {v(TMP+1)}, 16, {v(wip)}")
                else:
                    A(f"v_and_b32 {v(TMP)}, 0xffff0000, {v(wrp)}")
                    A(f"v_and_b32 {v(TMP+1)}, 0xffff0000, {v(wip)}")
                A(f"v_mul_f32 {v(T0)}, {v(xr)}, {v(TMP)}")
                A(f"v_mul_f32 {v(T1)}, {v(xr)}, {v(TMP+1)}")
                A(f"v_fma_f32 {v(xr)}, -{v(xi)}, {v(TMP+1)}, {v(T0)}")
                A(f"v_fma_f32 {v(xi)}, {v(xi)}, {v(TMP)}, {v(T1)}")
    load_tw(WS_TW3)
    to_frags([(tf * 2 + ks, (2 * ks) * 2 + tf, (2 * ks + 1) * 2 + tf) for tf in range(2) for ks in range(2)])
    negate(1)
    cmm([(tf * 4 + ts, [(tf * 2 + ks, lambda cs, hl, ts=ts, ks=ks: c64(cs, hl, ts, ks)) for ks in range(2)])
         for tf in range(2) for ts in range(4)], True, False)
    A("s_waitcnt vmcnt(0)")
    twiddle(True)
    to_frags([(ts, ts, 4 + ts) for ts in range(4)])
    negate(1)
    cmm([(ts * 2 + t1, [(ts, lambda cs, hl, t1=t1: c32(cs, hl, t1))]) for ts in range(4) for t1 in range(2)], True, False)
    A(f"v_lshlrev_b32 {v(vZ)}, 7, {v(vN)}")
    A(f"v_lshl_add_u32 {v(vZ)}, {v(vG)}, 3, {v(vZ)}")
    A(f"v_add_u32 {v(vYi)}, s{sIm}, {v(vZ)}")
    A(f"s_lshl_b32 s{sTmp}, s{sH}, 12")
    A(f"s_add_u32 s{sTmp}, s{sTmp}, {WS_Z:#x}")
    i = 0
    for ri in range(2):
        for ts in range(4):
            for t1 in range(2):
                o = DAT + (i % 8) * 4
                i += 1
                x = acc(ri, ts * 2 + t1)
                split_pack(A, x, x + 1, o, o + 2, T0, T1)
                split_pack(A, x + 2, x + 3, o + 1, o + 3, T0, T1)
                for hl in range(2):
                    A(f"s_add_u32 s51, s{sTmp}, {ri*320*4096 + hl*640*4096}")
                    A(f"buffer_store_dwordx2 {v(o+hl*2,2)}, {v(vZ if ri == 0 else vYi)}, {srd(sWS)}, s51 offen offset:{t1*2048 + ts*32}{sc}")
```

```python
import struct
from asmlib import *
from layout import *


def f32bits(x):
    return struct.unpack("<I", struct.pack("<f", x))[0]


SPIN_MAX = 400000
WARM = 1
NST = 64
CDELAY = 14
KC = 1
DSLEEP = 8
AALL = 1
ADELAY = 5
PDELAY = 0
OOB = 0x7ff00000


def gen_rec(A, name="rec_kernel", prof=False, nsteps=64, exp=(), wrole=None):
    kernel_header(A, name)
    sWS, sM0, sW, sDBG = 4, 8, 12, 32
    sX, sT, sGrp, sMemb, sWave, sStep, sMode, sCnt = 36, 37, 38, 39, 40, 41, 42, 43
    sOffKM, sOffC, sOffD, sOffK, sTmp, sTmp2, sH, sOffU = 44, 45, 46, 47, 48, 49, 50, 51
    sRA, sRC, sRD, sRAp, sRCp, sRDp, sWarm, sOffUM = 90, 91, 92, 93, 94, 95, 96, 101
    sMaskG = 54
    sC = 58
    sEnd = 59
    sCnts = 60
    sPr = 70
    R = RegAlloc(1, 256)
    vLane, vN, vG, vN8 = R.alloc(), R.alloc(), R.alloc(), R.alloc()
    vT0, vT1, vT2, vT3 = R.alloc(), R.alloc(), R.alloc(), R.alloc()
    vD0, vD2 = R.alloc(), R.alloc()
    vRAw, vRAr, vAst, vKMst = R.alloc(), R.alloc(), R.alloc(), R.alloc()
    vQo, vKo = R.alloc(), R.alloc()
    vRCw, vRCr, vCst = R.alloc(), R.alloc(), R.alloc()
    vCg = R.alloc(8)
    vDst = R.alloc()
    vK0, vK1, vU = R.alloc(), R.alloc(), R.alloc()
    vUM0, vUM2 = R.alloc(), R.alloc()
    vWarm = R.alloc()
    vNinf = R.alloc()
    vFlag, vSig, vOne = R.alloc(), R.alloc(), R.alloc()
    vU2 = R.alloc()
    vOnes = R.alloc(4)
    vSent = R.alloc(4)
    vDummy = R.alloc(4)
    vPub = R.alloc(2)
    assert R.next <= 64
    M = R.alloc(12)
    Mr = R.alloc(8)
    accA = R.alloc(24)
    Q = R.alloc(8)
    Qr = R.alloc(8)
    KM = R.alloc(16)
    VM = R.alloc(16)
    acc1, acc2, acc0 = R.alloc(4), R.alloc(4), R.alloc(4)
    accU = R.alloc(12)
    UA = R.alloc(6)
    P0 = R.alloc(4)
    PM, Blo = R.alloc(2), R.alloc(2)
    vMx, vMx2, vRz = R.alloc(), R.alloc(), R.alloc()
    accZ = R.alloc(4)
    accC = R.alloc(12)
    Cg = R.alloc(16)
    CR = R.alloc(28)
    TMP = 64
    aWA, aWC, aK, aU, aUn = 0, 120, 168, 200, 212

    def WA(t, ks):
        return a(aWA + (t * 5 + ks) * 4, 4)

    def WC(t, s_):
        return a(aWC + (t * 4 + s_) * 4, 4)

    LDS_RA = 65536
    LDS_RC = 65536 + 12288
    LDS_ROLE = 65536 + 24576

    Lend = A.newlabel("Lend")
    Lfail = A.newlabel("Lfail")
    WSR = f"s[{sWS}:{sWS+3}]"

    def rtl(cond8=False):
        if "tl" not in exp:
            return
        Ls = A.newlabel("Lrtl")
        A(f"s_cmp_lg_u32 s{sWave}, 3")
        A(f"s_cbranch_scc1 {Ls}")
        if cond8:
            A(f"s_and_b32 s70, s{sStep}, 7")
            A(f"s_cmp_lg_u32 s70, 0")
            A(f"s_cbranch_scc1 {Ls}")
        A("s_memrealtime s[72:73]")
        A("s_waitcnt lgkmcnt(0)")
        A("s_mov_b64 exec, 1")
        A(f"v_mov_b32 {v(vT0)}, s72")
        A(f"v_mov_b32 {v(vT1)}, 0")
        A(f"buffer_store_dword {v(vT0)}, {v(vT1)}, {WSR}, s71 offen")
        A("s_mov_b64 exec, -1")
        A("s_add_u32 s71, s71, 4")
        A.label(Ls)

    def stamp(i):
        if not prof:
            return
        if "rt" in exp:
            Ls = A.newlabel("Lst")
            A(f"s_cmp_lg_u32 s{sStep}, {30 if i != 13 else 31}")
            A(f"s_cbranch_scc1 {Ls}")
            A(f"s_memrealtime s[88:89]")
            A("s_waitcnt lgkmcnt(0)")
            A(f"s_mov_b32 s{sPr+i}, s88")
            A.label(Ls)
            return
        A(f"s_memtime s[88:89]")
        A("s_waitcnt lgkmcnt(0)")
        A(f"s_sub_u32 s{sTmp2}, s88, s86")
        A(f"s_add_u32 s{sPr+i}, s{sPr+i}, s{sTmp2}")
        A("s_mov_b32 s86, s88")

    A("s_cmp_ge_u32 s2, 256")
    A(f"s_cbranch_scc1 {Lend}")
    A("s_load_dwordx8 s[16:23], s[0:1], 32")
    A("s_load_dwordx2 s[24:25], s[0:1], 64")
    A("s_load_dwordx4 s[28:31], s[0:1], 88")
    A(f"v_and_b32 {v(vLane)}, 63, v0")
    A(f"v_lshrrev_b32 {v(vT0)}, 6, v0")
    A(f"v_and_b32 {v(vN)}, 15, v0")
    A(f"v_readfirstlane_b32 s{sWave}, {v(vT0)}")
    A(f"v_bfe_u32 {v(vG)}, v0, 4, 2")
    A(f"v_and_b32 {v(vN8)}, 7, v0")
    A(f"s_getreg_b32 s{sX}, hwreg(HW_REG_XCC_ID)")
    A(f"s_and_b32 s{sX}, s{sX}, 7")
    A("s_waitcnt lgkmcnt(0)")
    make_srd(A, sWS, 30, WS_BYTES)
    make_srd(A, sM0, 16, 10240)
    make_srd(A, sDBG, 28, 256)
    make_srd(A, sW, 18, 640 * 4096 * 2)
    Lel_done = A.newlabel("Lel")
    A(f"s_cmp_lg_u32 s{sWave}, 0")
    A(f"s_cbranch_scc1 {Lel_done}")
    A(f"s_lshl_b32 s{sTmp}, s{sX}, 8")
    A(f"s_add_u32 s{sTmp}, s{sTmp}, {WS_CNT:#x}")
    A(f"v_mov_b32 {v(vT0)}, s{sTmp}")
    A(f"v_mov_b32 {v(vT1)}, 1")
    A(f"v_lshlrev_b32 {v(vT2)}, 8, {v(vLane)}")
    A(f"v_add_u32 {v(vT2)}, {WS_CNT:#x}, {v(vT2)}")
    A("s_mov_b64 exec, 1")
    A(f"buffer_atomic_add {v(vT1)}, {v(vT0)}, {WSR}, 0 offen sc0")
    A("s_waitcnt vmcnt(0)")
    A(f"v_readfirstlane_b32 s{sT}, {v(vT1)}")
    A("s_mov_b64 exec, 0xff")
    A(f"s_mov_b32 s{sCnt}, 0")
    Lp = A.newlabel("Lelp")
    A.label(Lp)
    A(f"buffer_load_dword {v(vT3)}, {v(vT2)}, {WSR}, 0 offen sc1")
    A("s_waitcnt vmcnt(0)")
    for i in range(8):
        A(f"v_readlane_b32 s{sCnts+i}, {v(vT3)}, {i}")
    A("s_nop 3")
    A(f"s_add_u32 s{sTmp}, s{sCnts}, s{sCnts+1}")
    for i in range(2, 8):
        A(f"s_add_u32 s{sTmp}, s{sTmp}, s{sCnts+i}")
    A(f"s_add_u32 s{sCnt}, s{sCnt}, 1")
    A(f"s_cmp_gt_u32 s{sCnt}, {SPIN_MAX}")
    A(f"s_cbranch_scc1 {Lfail}")
    A(f"s_cmp_lt_u32 s{sTmp}, 256")
    A(f"s_cbranch_scc1 {Lp}")
    A(f"s_min_u32 s{sTmp}, s{sCnts}, s{sCnts+1}")
    for i in range(2, 8):
        A(f"s_min_u32 s{sTmp}, s{sTmp}, s{sCnts+i}")
    A(f"s_mov_b32 s{sTmp2}, s{sT}")
    for i in range(7):
        A(f"s_cmp_gt_u32 s{sX}, {i}")
        A(f"s_cselect_b32 s{sCnt}, s{sCnts+i}, 0")
        A(f"s_add_u32 s{sTmp2}, s{sTmp2}, s{sCnt}")
    A(f"s_lshl_b32 s{sCnt}, s{sX}, 5")
    A(f"s_add_u32 s{sCnt}, s{sCnt}, s{sT}")
    A(f"s_cmp_lt_u32 s{sT}, 32")
    A(f"s_cselect_b32 s{sCnt}, s{sCnt}, 255")
    A(f"s_cmp_ge_u32 s{sTmp}, 32")
    A(f"s_cselect_b32 s{sCnt}, s{sCnt}, s{sTmp2}")
    A(f"s_cselect_b32 s{sMode}, 0, 1")
    if "slow" in exp:
        A(f"s_mov_b32 s{sCnt}, s{sTmp2}")
        A(f"s_mov_b32 s{sMode}, 1")
    A(f"s_lshl_b32 s{sMode}, s{sMode}, 8")
    A(f"s_or_b32 s{sCnt}, s{sCnt}, s{sMode}")
    A("s_mov_b64 exec, 1")
    A(f"v_mov_b32 {v(vT0)}, {LDS_ROLE}")
    A(f"v_mov_b32 {v(vT1)}, s{sCnt}")
    A(f"ds_write_b32 {v(vT0)}, {v(vT1)}")
    A("s_waitcnt lgkmcnt(0)")
    A("s_mov_b64 exec, -1")
    A.label(Lel_done)
    A("s_barrier")
    A(f"v_mov_b32 {v(vT0)}, {LDS_ROLE}")
    A(f"ds_read_b32 {v(vT1)}, {v(vT0)}")
    A("s_waitcnt lgkmcnt(0)")
    A(f"v_readfirstlane_b32 s{sCnt}, {v(vT1)}")
    A("s_nop 3")
    A(f"s_lshr_b32 s{sMode}, s{sCnt}, 8")
    A(f"s_and_b32 s{sCnt}, s{sCnt}, 255")
    Lw = A.newlabel("Lwrole")
    Lr = A.newlabel("Lrrole")
    A(f"s_cmp_ge_u32 s{sCnt}, 128")
    if wrole:
        A(f"s_cbranch_scc0 {Lr}")
        A(f"s_branch {Lw}")
        A.label(Lr)
    else:
        A(f"s_cbranch_scc1 {Lend}")
    A(f"s_lshr_b32 s{sGrp}, s{sCnt}, 4")
    A(f"s_and_b32 s{sMemb}, s{sCnt}, 15")
    A(f"s_lshl_b32 s71, s{sCnt}, 8")
    A(f"s_add_u32 s71, s71, {WS_PROF:#x}")
    rtl()

    A(f"s_mov_b32 s{sMaskG}, -1")
    A(f"s_mov_b32 s{sMaskG+1}, 0")
    A(f"s_mov_b32 s{sC}, {f32bits(SCALE*LOG2E):#x}")
    A(f"v_mov_b32 {v(vNinf)}, 0xff800000")
    for i in range(4):
        A(f"v_mov_b32 {v(vOnes+i)}, 0x3f803f80")
        A(f"v_mov_b32 {v(vSent+i)}, -1")

    A(f"s_lshr_b32 s{sTmp}, s{sMemb}, 2")
    A(f"s_lshl_b32 s{sH}, s{sGrp}, 2")
    A(f"s_add_u32 s{sH}, s{sH}, s{sTmp}")
    A(f"s_and_b32 s{sTmp}, s{sMemb}, 3")
    A(f"s_lshl_b32 s{sTmp2}, s{sH}, 8")
    A(f"s_lshl_b32 s{sCnt}, s{sTmp}, 6")
    A(f"s_add_u32 s{sTmp2}, s{sTmp2}, s{sCnt}")
    A(f"s_mul_i32 s{sCnt}, s{sWave}, {160*8192}")
    A(f"s_add_u32 s{sTmp2}, s{sTmp2}, s{sCnt}")
    A(f"v_lshrrev_b32 {v(vT0)}, 2, {v(vLane)}")
    A(f"v_lshlrev_b32 {v(vT0)}, 13, {v(vT0)}")
    A(f"v_and_b32 {v(vT1)}, 3, {v(vLane)}")
    A(f"v_lshl_add_u32 {v(vT0)}, {v(vT1)}, 4, {v(vT0)}")
    A(f"v_add_u32 {v(vT0)}, s{sTmp2}, {v(vT0)}")
    for m in range(3):
        if m:
            make_srd(A, sW, 18 + 2 * m, 640 * 4096 * 2)
        for i in range(10):
            A(f"s_mov_b32 s{sCnt}, {i*131072}")
            A(f"buffer_load_dwordx4 {v(TMP+(m*10+i)*4,4)}, {v(vT0)}, s[{sW}:{sW+3}], s{sCnt} offen")
    make_srd(A, sW, 24, 4096 * 640 * 2)
    A(f"s_lshl_b32 s{sTmp2}, s{sGrp}, 2")
    A(f"s_add_u32 s{sTmp2}, s{sTmp2}, s{sWave}")
    A(f"s_mul_i32 s{sTmp2}, s{sTmp2}, {128*1280}")
    A(f"s_mul_i32 s{sCnt}, s{sMemb}, 80")
    A(f"s_add_u32 s{sTmp2}, s{sTmp2}, s{sCnt}")
    A(f"v_lshrrev_b32 {v(vT1)}, 3, {v(vLane)}")
    A(f"v_mul_u32_u24 {v(vT1)}, 1280, {v(vT1)}")
    A(f"v_and_b32 {v(vT2)}, 7, {v(vLane)}")
    A(f"v_lshl_add_u32 {v(vT1)}, {v(vT2)}, 4, {v(vT1)}")
    A(f"v_add_u32 {v(vT1)}, s{sTmp2}, {v(vT1)}")
    for i in range(16):
        A(f"s_mov_b32 s{sCnt}, {i*8*1280}")
        A(f"buffer_load_dwordx4 {v(TMP+120+i*4,4)}, {v(vT1)}, s[{sW}:{sW+3}], s{sCnt} offen")
    A(f"s_lshl_b32 s{sTmp2}, s{sWave}, 14")
    A(f"v_lshlrev_b32 {v(vT0)}, 4, {v(vLane)}")
    A(f"v_add_u32 {v(vT0)}, s{sTmp2}, {v(vT0)}")
    A(f"v_lshrrev_b32 {v(vT1)}, 2, {v(vN)}")
    A(f"v_lshl_add_u32 {v(vT2)}, {v(vG)}, 3, {v(vT1)}")
    A(f"v_lshlrev_b32 {v(vT2)}, 6, {v(vT2)}")
    A(f"v_and_b32 {v(vT3)}, 3, {v(vN)}")
    A(f"v_lshl_add_u32 {v(vT2)}, {v(vT3)}, 3, {v(vT2)}")
    A(f"v_add_u32 {v(vT2)}, s{sTmp2}, {v(vT2)}")
    for m in range(3):
        A(f"s_waitcnt vmcnt({(2-m)*10+16})")
        for i in range(10):
            A(f"ds_write_b128 {v(vT0)}, {v(TMP+(m*10+i)*4,4)} offset:{i*1024}")
        for tt in range(2):
            for ks in range(5):
                r0 = aWA + ((m * 2 + tt) * 5 + ks) * 4
                A(f"ds_read_b64_tr_b16 {a(r0,2)}, {v(vT2)} offset:{ks*2048+tt*32}")
                A(f"ds_read_b64_tr_b16 {a(r0+2,2)}, {v(vT2)} offset:{ks*2048+tt*32+256}")
            A("s_waitcnt lgkmcnt(0)")
    A(f"v_lshl_add_u32 {v(vT2)}, {v(vG)}, 2, {v(vT1)}")
    A(f"v_lshlrev_b32 {v(vT2)}, 7, {v(vT2)}")
    A(f"v_lshl_add_u32 {v(vT2)}, {v(vT3)}, 3, {v(vT2)}")
    A(f"v_add_u32 {v(vT2)}, s{sTmp2}, {v(vT2)}")
    A("s_waitcnt vmcnt(0)")
    for i in range(16):
        A(f"ds_write_b128 {v(vT0)}, {v(TMP+120+i*4,4)} offset:{i*1024}")
        if i % 8 == 7:
            A("s_waitcnt lgkmcnt(0)")
    for tt in range(3):
        for s_ in range(4):
            r0 = aWC + (tt * 4 + s_) * 4
            A(f"ds_read_b64_tr_b16 {a(r0,2)}, {v(vT2)} offset:{s_*4096+tt*32}")
            A(f"ds_read_b64_tr_b16 {a(r0+2,2)}, {v(vT2)} offset:{s_*4096+tt*32+2048}")
        A("s_waitcnt lgkmcnt(0)")

    if wrole:
        import parta
        A("s_load_dwordx4 s[24:27], s[0:1], 8")
        A(f"s_lshl_b32 s{sEnd}, s{sGrp}, 4")
        A(f"s_add_u32 s{sEnd}, s{sEnd}, s{sMemb}")
        A("s_waitcnt lgkmcnt(0)")
        Lcu = A.newlabel("Lcu")
        A.label(Lcu)
        parta.const_unit(A, sEnd)
        A(f"s_add_u32 s{sEnd}, s{sEnd}, 128")
        A(f"s_cmp_lt_u32 s{sEnd}, {parta.NB_CONST}")
        A(f"s_cbranch_scc1 {Lcu}")
        A("s_waitcnt vmcnt(0)")
        A("s_barrier")
        A("s_mov_b64 exec, 1")
        A("v_mov_b32 v1, 1")
        A("v_mov_b32 v2, 0")
        A(f"s_mov_b32 s{sTmp}, {WS_CNT + CNT_CONST:#x}")
        A(f"buffer_atomic_add v1, v2, {WSR}, s{sTmp} offen")
        A("s_mov_b64 exec, -1")
        A("s_load_dwordx2 s[16:17], s[0:1], 32")
        A(f"v_and_b32 {v(vLane)}, 63, v0")
        A(f"v_and_b32 {v(vN)}, 15, v0")
        A(f"v_bfe_u32 {v(vG)}, v0, 4, 2")
        A(f"v_and_b32 {v(vN8)}, 7, v0")
        A(f"v_mov_b32 {v(vNinf)}, 0xff800000")
        for i in range(4):
            A(f"v_mov_b32 {v(vOnes+i)}, 0x3f803f80")
            A(f"v_mov_b32 {v(vSent+i)}, -1")
        A("s_waitcnt lgkmcnt(0)")
        make_srd(A, sM0, 16, 10240)
    A(f"v_mul_u32_u24 {v(vT0)}, 1280, {v(vN8)}")
    A(f"v_lshl_add_u32 {v(vT0)}, {v(vG)}, 4, {v(vT0)}")
    A(f"s_mul_i32 s{sTmp}, s{sWave}, 320")
    A(f"v_add_u32 {v(vT0)}, s{sTmp}, {v(vT0)}")
    A(f"v_add_u32 {v(Cg+1)}, 256, {v(vT0)}")
    A(f"v_lshrrev_b32 {v(vT1)}, 3, {v(vN)}")
    A(f"v_lshl_add_u32 {v(Cg)}, {v(vT1)}, 6, {v(vT0)}")
    A(f"s_mul_i32 s{sTmp}, s{sWave}, 2560")
    A(f"v_lshlrev_b32 {v(vT0)}, 4, {v(vLane)}")
    A(f"v_add_u32 {v(vD0)}, s{sTmp}, {v(vT0)}")
    A(f"v_lshl_add_u32 {v(vT1)}, {v(vG)}, 3, {v(vN8)}")
    A(f"v_lshlrev_b32 {v(vT1)}, 4, {v(vT1)}")
    A(f"s_add_u32 s{sTmp}, s{sTmp}, 2048")
    A(f"v_add_u32 {v(vD2)}, s{sTmp}, {v(vT1)}")
    A(f"s_lshl_b32 s{sTmp2}, s{sGrp}, 2")
    A(f"s_add_u32 s{sTmp2}, s{sTmp2}, s{sWave}")
    A(f"s_mul_i32 s{sTmp}, s{sTmp2}, 6144")
    A(f"v_add_u32 {v(vQo)}, s{sTmp}, {v(vT0)}")
    A(f"v_add_u32 {v(vKo)}, 2048, {v(vQo)}")
    A(f"s_lshl_b32 s{sTmp}, s{sTmp2}, 13")
    A(f"v_add_u32 {v(vK0)}, s{sTmp}, {v(vT0)}")
    A(f"v_add_u32 {v(vK1)}, 4096, {v(vK0)}")
    A(f"s_mul_i32 s{sTmp}, s{sTmp2}, 40960")
    A(f"s_mul_i32 s{sCnt}, s{sMemb}, 2560")
    A(f"s_add_u32 s{sTmp}, s{sTmp}, s{sCnt}")
    A(f"v_lshrrev_b32 {v(vT2)}, 3, {v(vN)}")
    A(f"v_lshl_add_u32 {v(vU)}, {v(vT2)}, 9, {v(vT1)}")
    A(f"v_add_u32 {v(vU)}, s{sTmp}, {v(vU)}")
    A(f"v_mov_b32 {v(vU2)}, {OOB:#x}")
    A(f"v_cmp_gt_u32 vcc, 8, {v(vN)}")
    A("s_nop 1")
    A(f"v_cndmask_b32 {v(vU2)}, {v(vU2)}, {v(vU)}, vcc")
    A(f"s_mul_i32 s{sTmp}, s{sWave}, 3072")
    A(f"s_add_u32 s{sCnt}, s{sTmp}, {LDS_RA}")
    A(f"v_add_u32 {v(vRAw)}, s{sCnt}, {v(vT0)}")
    A(f"s_add_u32 s{sCnt}, s{sTmp}, {LDS_RC}")
    A(f"v_add_u32 {v(vRCw)}, s{sCnt}, {v(vT0)}")
    A(f"s_mul_i32 s{sTmp}, s{sWave}, 48")
    A(f"v_add_u32 {v(vT0)}, s{sTmp}, {v(vLane)}")
    A(f"v_lshrrev_b32 {v(vT1)}, 6, {v(vT0)}")
    A(f"v_bfe_u32 {v(vT2)}, {v(vT0)}, 1, 3")
    A(f"v_bfe_u32 {v(vT3)}, {v(vT0)}, 4, 2")
    A(f"v_and_b32 {v(vT0)}, 1, {v(vT0)}")
    A(f"v_lshl_add_u32 {v(vRAr)}, {v(vT3)}, 4, {v(vT2)}")
    A(f"v_lshlrev_b32 {v(vAst)}, 4, {v(vRAr)}")
    A(f"v_lshl_add_u32 {v(vRAr)}, {v(vT0)}, 3, {v(vRAr)}")
    A(f"v_lshlrev_b32 {v(vRAr)}, 4, {v(vRAr)}")
    A(f"v_lshl_add_u32 {v(vRAr)}, {v(vT1)}, 10, {v(vRAr)}")
    A(f"v_add_u32 {v(vRAr)}, {LDS_RA}, {v(vRAr)}")
    A(f"s_and_b32 s{sTmp}, s{sMemb}, 3")
    A(f"s_lshr_b32 s{sTmp2}, s{sTmp}, 1")
    A(f"s_lshl_b32 s{sTmp2}, s{sTmp2}, 10")
    A(f"s_and_b32 s{sCnt}, s{sTmp}, 1")
    A(f"s_lshl_b32 s{sCnt}, s{sCnt}, 7")
    A(f"s_add_u32 s{sTmp2}, s{sTmp2}, s{sCnt}")
    A(f"v_add_u32 {v(vAst)}, s{sTmp2}, {v(vAst)}")
    A(f"s_lshl_b32 s{sTmp2}, s{sTmp}, 9")
    A(f"v_lshl_add_u32 {v(vT2)}, {v(vT3)}, 3, {v(vT2)}")
    A(f"v_lshlrev_b32 {v(vT2)}, 4, {v(vT2)}")
    A(f"v_add_u32 {v(vT2)}, s{sTmp2}, {v(vT2)}")
    A(f"v_lshl_add_u32 {v(vT2)}, {v(vT0)}, 3, {v(vT2)}")
    A(f"s_lshl_b32 s{sTmp}, s{sH}, 11")
    A(f"v_add_u32 {v(vKMst)}, s{sTmp}, {v(vT2)}")
    A(f"v_add_u32 {v(vT3)}, {WS_VM - WS_KM:#x}, {v(vKMst)}")
    A(f"v_cmp_eq_u32 vcc, 2, {v(vT1)}")
    A("s_nop 1")
    A(f"v_cndmask_b32 {v(vKMst)}, {v(vKMst)}, {v(vT3)}, vcc")
    A(f"v_mov_b32 {v(vT3)}, {OOB:#x}")
    A(f"v_cmp_eq_u32 vcc, 0, {v(vT1)}")
    A("s_nop 1")
    A(f"v_cndmask_b32 {v(vKMst)}, {v(vKMst)}, {v(vT3)}, vcc")
    A(f"v_lshl_add_u32 {v(vAst)}, {v(vT0)}, 3, {v(vAst)}")
    A(f"v_lshl_add_u32 {v(vAst)}, {v(vT1)}, 11, {v(vAst)}")
    A(f"s_mul_i32 s{sTmp}, s{sH}, 6144")
    A(f"v_add_u32 {v(vAst)}, s{sTmp}, {v(vAst)}")
    A(f"s_and_b32 s{sTmp}, s{sGrp}, 1")
    A(f"s_cmp_lt_u32 s{sWave}, 2")
    A(f"s_cselect_b32 s{sTmp}, s{sWave}, s{sTmp}")
    A(f"v_lshrrev_b32 {v(vT1)}, 3, {v(vLane)}")
    A(f"v_and_b32 {v(vT2)}, 1, {v(vLane)}")
    A(f"v_lshl_add_u32 {v(vT0)}, {v(vT1)}, 1, {v(vT2)}")
    A(f"v_bfe_u32 {v(vT2)}, {v(vLane)}, 1, 2")
    A(f"s_lshl_b32 s{sTmp2}, s{sTmp}, 2")
    A(f"v_add_u32 {v(vT2)}, s{sTmp2}, {v(vT2)}")
    A(f"v_and_b32 {v(vT3)}, 3, {v(vT0)}")
    A(f"v_lshl_add_u32 {v(vT3)}, {v(vT3)}, 4, {v(vT2)}")
    A(f"v_lshlrev_b32 {v(vT3)}, 4, {v(vT3)}")
    A(f"v_lshrrev_b32 {v(vT0)}, 2, {v(vT0)}")
    A(f"v_lshl_add_u32 {v(vT3)}, {v(vT0)}, 10, {v(vT3)}")
    A(f"v_add_u32 {v(vRCr)}, {LDS_RC}, {v(vT3)}")
    A(f"s_mul_i32 s{sTmp2}, s{sMemb}, 1280")
    A(f"s_mul_i32 s{sTmp}, s{sTmp}, 640")
    A(f"s_add_u32 s{sTmp}, s{sTmp}, s{sTmp2}")
    A(f"v_lshlrev_b32 {v(vT0)}, 4, {v(vLane)}")
    A(f"v_add_u32 {v(vCst)}, s{sTmp}, {v(vT0)}")
    for r in range(1, 8):
        A(f"s_xor_b32 s{sTmp2}, s{sGrp}, {r}")
        A(f"s_mul_i32 s{sTmp2}, s{sTmp2}, 20480")
        A(f"v_add_u32 {v(vCg+r)}, s{sTmp2}, {v(vCst)}")
    A(f"s_mul_i32 s{sTmp}, s{sMemb}, 5")
    A(f"v_add_u32 {v(vT1)}, s{sTmp}, {v(vT1)}")
    A(f"v_lshlrev_b32 {v(vDst)}, 4, {v(vT2)}")
    A(f"v_and_b32 {v(vT2)}, 1, {v(vLane)}")
    A(f"v_lshl_add_u32 {v(vDst)}, {v(vT2)}, 3, {v(vDst)}")
    A(f"v_mul_u32_u24 {v(vT2)}, 205, {v(vT1)}")
    A(f"v_lshrrev_b32 {v(vT2)}, 12, {v(vT2)}")
    A(f"v_mul_u32_u24 {v(vT3)}, 20, {v(vT2)}")
    A(f"v_sub_u32 {v(vT1)}, {v(vT1)}, {v(vT3)}")
    A(f"v_mul_u32_u24 {v(vT2)}, 2560, {v(vT2)}")
    A(f"v_add_u32 {v(vDst)}, {v(vDst)}, {v(vT2)}")
    A(f"v_and_b32 {v(vT2)}, 3, {v(vT1)}")
    A(f"v_lshrrev_b32 {v(vT1)}, 2, {v(vT1)}")
    A(f"v_lshrrev_b32 {v(vT3)}, 1, {v(vT1)}")
    A(f"v_lshl_add_u32 {v(vDst)}, {v(vT3)}, 10, {v(vDst)}")
    A(f"v_and_b32 {v(vT3)}, 1, {v(vT1)}")
    A(f"v_lshl_add_u32 {v(vDst)}, {v(vT3)}, 7, {v(vDst)}")
    A(f"v_lshlrev_b32 {v(vT3)}, 8, {v(vT2)}")
    A(f"v_lshlrev_b32 {v(vT2)}, 7, {v(vT2)}")
    A(f"v_cmp_gt_u32 vcc, 4, {v(vT1)}")
    A("s_nop 1")
    A(f"v_cndmask_b32 {v(vT2)}, {v(vT2)}, {v(vT3)}, vcc")
    A(f"v_add_u32 {v(vDst)}, {v(vDst)}, {v(vT2)}")
    A(f"s_lshl_b32 s{sTmp}, s{sMemb}, 1")
    A(f"s_and_b32 s{sTmp2}, s{sWave}, 1")
    A(f"s_add_u32 s{sTmp}, s{sTmp}, s{sTmp2}")
    A(f"s_lshl_b32 s{sTmp}, s{sTmp}, 10")
    A(f"s_lshl_b32 s{sTmp2}, s{sGrp}, 15")
    A(f"s_add_u32 s{sTmp}, s{sTmp}, s{sTmp2}")
    A(f"v_lshlrev_b32 {v(vWarm)}, 4, {v(vLane)}")
    A(f"v_add_u32 {v(vWarm)}, s{sTmp}, {v(vWarm)}")

    A(f"s_lshl_b32 s{sTmp}, s{sGrp}, 9")
    A(f"v_and_b32 {v(vT0)}, 3, {v(vLane)}")
    A(f"v_lshlrev_b32 {v(vT0)}, 7, {v(vT0)}")
    A(f"v_add_u32 {v(vFlag)}, s{sTmp}, {v(vT0)}")
    A(f"s_lshl_b32 s{sTmp}, s{sH}, 7")
    A(f"v_mov_b32 {v(vSig)}, s{sTmp}")
    A(f"v_mov_b32 {v(vT0)}, {OOB:#x}")
    A(f"v_cmp_eq_u32 vcc, 0, {v(vLane)}")
    A("s_nop 1")
    A(f"v_cndmask_b32 {v(vSig)}, {v(vT0)}, {v(vSig)}, vcc")
    A(f"v_mov_b32 {v(vOne)}, 1")

    def wait_kvu(srb):
        Lp_ = A.newlabel("Lkf")
        Ld_ = A.newlabel("Lkfd")
        A(f"s_lshl_b32 s{sTmp2}, s{srb}, 12")
        A(f"s_add_u32 s{sTmp2}, s{sTmp2}, {WS_CNT + CNT_KVU:#x}")
        A(f"s_mov_b32 s{sCnt}, 0")
        A.label(Lp_)
        A(f"buffer_load_dword {v(vT0)}, {v(vFlag)}, {WSR}, s{sTmp2} offen sc1")
        A("s_waitcnt vmcnt(0)")
        A(f"v_cmp_eq_u32 vcc, 0, {v(vT0)}")
        A(f"s_cbranch_vccz {Ld_}")
        A("s_sleep 4")
        A(f"s_add_u32 s{sCnt}, s{sCnt}, 1")
        A(f"s_cmp_lt_u32 s{sCnt}, {SPIN_MAX}")
        A(f"s_cbranch_scc1 {Lp_}")
        A(f"s_mov_b32 s{sTmp}, 5")
        A(f"s_branch {Lfail}")
        A.label(Ld_)

    def signal_mem(srb):
        A(f"s_lshl_b32 s{sTmp2}, s{srb}, 12")
        A(f"s_add_u32 s{sTmp2}, s{sTmp2}, {WS_CNT + CNT_MEM:#x}")
        A(f"buffer_atomic_add {v(vOne)}, {v(vSig)}, {WSR}, s{sTmp2} offen")

    A(f"s_mov_b32 s{sStep}, 0")
    rtl()
    if wrole:
        wait_kvu(sStep)
    A(f"s_mov_b32 s{sOffKM}, {WS_KM:#x}")
    A(f"s_mov_b32 s{sOffK}, {WS_KX:#x}")
    A(f"s_mov_b32 s{sOffU}, {WS_U:#x}")

    def k_load(f):
        vo = vK0 if f < 4 else vK1
        return f"buffer_load_dwordx4 {a(aK+f*4,4)}, {v(vo)}, {WSR}, s{sOffK} offen offset:{(f%4)*1024}"

    def u_load(t, dst):
        return f"buffer_load_dwordx4 {a(dst+t*4,4)}, {v(vU if t < 2 else vU2)}, {WSR}, s{sOffU} offen offset:{t*1024}"

    def check_sentinel(regs, tmp):
        regs = list(regs)
        A(f"v_max3_u32 {v(tmp)}, {v(regs[0])}, {v(regs[1])}, {v(regs[2])}")
        rest = regs[3:]
        while rest:
            if len(rest) >= 2:
                A(f"v_max3_u32 {v(tmp)}, {v(tmp)}, {v(rest[0])}, {v(rest[1])}")
                rest = rest[2:]
            else:
                A(f"v_max_u32 {v(tmp)}, {v(tmp)}, {v(rest[0])}")
                rest = []
        A(f"v_cmp_eq_u32 vcc, -1, {v(tmp)}")

    def poll(issue, regs, code):
        Lp_ = A.newlabel("Lpoll")
        Ld_ = A.newlabel("Lpd")
        A(f"s_mov_b32 s{sCnt}, 0")
        A.label(Lp_)
        issue()
        A("s_waitcnt vmcnt(0)")
        check_sentinel(regs, vT0)
        A(f"s_cbranch_vccz {Ld_}")
        A(f"s_add_u32 s{sCnt}, s{sCnt}, 1")
        A(f"s_cmp_lt_u32 s{sCnt}, {SPIN_MAX}")
        A(f"s_cbranch_scc1 {Lp_}")
        A(f"s_mov_b32 s{sTmp}, {code}")
        A(f"s_branch {Lfail}")
        A.label(Ld_)
        if prof:
            r = {4: 97, 1: 98, 3: 100}[code]
            A(f"s_add_u32 s{r}, s{r}, s{sCnt}")

    def store_local(instr):
        L1 = A.newlabel("Lsl")
        L2 = A.newlabel("Lsl")
        A(f"s_cmp_lg_u32 s{sMode}, 0")
        A(f"s_cbranch_scc1 {L1}")
        A(instr)
        A(f"s_branch {L2}")
        A.label(L1)
        A(instr + " sc1")
        A.label(L2)

    for f in range(8):
        A(k_load(f))
    for t in range(3):
        A(u_load(t, aUn))
    if prof:
        for i in range(16):
            A(f"s_mov_b32 s{sPr+i}, 0")
        for i in range(97, 101):
            A(f"s_mov_b32 s{i}, 0")
        A("s_memtime s[86:87]")
        A("s_waitcnt lgkmcnt(0)")

    ring = []
    ring += [f"s_and_b32 s{sTmp}, s{sStep}, 3",
             f"s_add_u32 s{sTmp2}, s{sStep}, 3",
             f"s_and_b32 s{sTmp2}, s{sTmp2}, 3",
             f"s_mul_i32 s{sRA}, s{sTmp}, {32*6144}",
             f"s_add_u32 s{sRA}, s{sRA}, {WS_RA:#x}",
             f"s_mul_i32 s{sRAp}, s{sTmp2}, {32*6144}",
             f"s_add_u32 s{sRAp}, s{sRAp}, {WS_RA:#x}",
             f"s_mul_i32 s{sRC}, s{sTmp}, {KC*8*20480}",
             f"s_add_u32 s{sRC}, s{sRC}, {WS_RC:#x}",
             f"s_add_u32 s{sRCp}, s{sStep}, 2",
             f"s_and_b32 s{sRCp}, s{sRCp}, 3",
             f"s_mul_i32 s{sRCp}, s{sRCp}, {KC*8*20480}",
             f"s_add_u32 s{sRCp}, s{sRCp}, {WS_RC:#x}",
             f"s_mul_i32 s{sCnt}, s{sGrp}, 20480",
             f"s_add_u32 s{sRCp}, s{sRCp}, s{sCnt}",
             f"s_add_u32 s{sOffC}, s{sRC}, s{sCnt}",
             f"s_lshr_b32 s{sCnt}, s{sGrp}, 1",
             f"s_mul_i32 s{sCnt}, s{sCnt}, 10240",
             f"s_add_u32 s{sCnt}, s{sCnt}, {WS_RD:#x}",
             f"s_mul_i32 s{sRDp}, s{sTmp2}, {8*10240}",
             f"s_add_u32 s{sRDp}, s{sRDp}, s{sCnt}",
             f"s_add_u32 s{sTmp}, s{sStep}, 1",
             f"s_and_b32 s{sTmp}, s{sTmp}, 3",
             f"s_mul_i32 s{sRD}, s{sTmp}, {8*10240}",
             f"s_add_u32 s{sRD}, s{sRD}, s{sCnt}",
             f"s_add_u32 s{sOffK}, s{sOffK}, {32*8192}",
             f"s_add_u32 s{sOffU}, s{sOffU}, {32*40960}",
             f"s_add_u32 s{sWarm}, s{sOffK}, {WARM*32*8192}",
             f"s_min_u32 s{sWarm}, s{sWarm}, {WS_KX+63*32*8192}"]

    for ins in ring:
        A(ins)
    A(f"buffer_load_dwordx4 {v(M,4)}, {v(Cg)}, s[{sM0}:{sM0+3}], 0 offen")
    A(f"buffer_load_dwordx4 {v(M+4,4)}, {v(Cg)}, s[{sM0}:{sM0+3}], 0 offen offset:128")
    A(f"buffer_load_dwordx4 {v(M+8,4)}, {v(Cg+1)}, s[{sM0}:{sM0+3}], 0 offen")
    A("s_waitcnt vmcnt(0)")
    Lloop = A.newlabel("Lloop")
    A.label(Lloop)
    rtl(True)
    stamp(0)
    Bks = [M, Mr, M + 4, Mr + 4, M + 8]
    fill = [f"v_mov_b32_dpp {v(Mr+i)}, {v(M+i)} row_ror:8 row_mask:0xf bank_mask:0xf" for i in range(8)]
    fill += [f"v_accvgpr_mov_b32 {a(aU+i)}, {a(aUn+i)}" for i in range(12)]
    order = [(ks, t) for ks in (0, 2, 1) for t in range(6)]
    order += [(ks, t) for t in range(6) for ks in (3, 4)]
    merged = []
    for idx, (ks, t) in enumerate(order):
        c = "0" if ks == 0 else v(accA + t * 4, 4)
        A(f"v_mfma_f32_16x16x32_bf16 {v(accA+t*4,4)}, {WA(t,ks)}, {v(Bks[ks],4)}, {c}")
        for _ in range(2):
            if fill:
                A(fill.pop(0))
    assert not fill
    for p in range(3):
        if p == 2:
            A.nop(1)
        for i in range(4):
            A(f"v_mov_b32_dpp {v(accA+8*p+i)}, {v(accA+8*p+4+i)} row_ror:8 row_mask:0xf bank_mask:0xc")
        A(f"ds_write_b128 {v(vRAw)}, {v(accA+8*p,4)} offset:{p*1024}")
    stamp(6)
    A("s_waitcnt lgkmcnt(0)")
    if "cround" not in exp:
        stamp(7)
    A("s_barrier")
    stamp(8)
    A("s_mov_b32 exec_hi, 0xffff")
    for w in range(4):
        A(f"ds_read_b128 {v(accA+w*4,4)}, {v(vRAr)} offset:{w*3072}")
    A("s_waitcnt lgkmcnt(2)")
    for i in range(4):
        A(f"v_add_f32 {v(accA+i)}, {v(accA+i)}, {v(accA+4+i)}")
    A("s_waitcnt lgkmcnt(0)")
    for i in range(4):
        A(f"v_add_f32 {v(accA+8+i)}, {v(accA+8+i)}, {v(accA+12+i)}")
    for i in range(4):
        A(f"v_add_f32 {v(accA+i)}, {v(accA+i)}, {v(accA+8+i)}")
    A(f"v_cvt_pk_bf16_f32 {v(vPub)}, {v(accA)}, {v(accA+1)}")
    A(f"v_cvt_pk_bf16_f32 {v(vPub+1)}, {v(accA+2)}, {v(accA+3)}")
    A(f"v_min_u32 {v(vPub)}, 0xfffffffe, {v(vPub)}")
    A(f"v_min_u32 {v(vPub+1)}, 0xfffffffe, {v(vPub+1)}")
    A(f"s_cmp_eq_u32 s{sStep}, {nsteps-1}")
    Lfin = A.newlabel("Lfin")
    A(f"s_cbranch_scc1 {Lfin}")
    store_local(f"buffer_store_dwordx2 {v(vPub,2)}, {v(vAst)}, {WSR}, s{sRA} offen")
    A("s_mov_b64 exec, -1")
    stamp(1)

    def issue_q():
        A(f"buffer_load_dwordx4 {v(Q,4)}, {v(vQo)}, {WSR}, s{sRA} offen sc1")
        A(f"buffer_load_dwordx4 {v(Q+4,4)}, {v(vQo)}, {WSR}, s{sRA} offen offset:1024 sc1")

    def issue_kv():
        for c in range(2):
            A(f"buffer_load_dwordx4 {v(KM+c*8,4)}, {v(vKo)}, {WSR}, s{sRA} offen offset:{c*1024} sc1")
        for c in range(2):
            A(f"buffer_load_dwordx4 {v(VM+c*8,4)}, {v(vKo)}, {WSR}, s{sRA} offen offset:{2048+c*1024} sc1")
    if ADELAY:
        A(f"s_sleep {ADELAY}")
    if AALL:
        Lp_, Ld_ = A.newlabel("Lpa"), A.newlabel("Lpad")
        A(f"s_mov_b32 s{sCnt}, 0")
        A.label(Lp_)
        issue_q()
        issue_kv()
        A("s_waitcnt vmcnt(4)")
        check_sentinel(range(Q, Q + 8), vT0)
        A(f"s_cbranch_vccz {Ld_}")
        A(f"s_add_u32 s{sCnt}, s{sCnt}, 1")
        A(f"s_cmp_lt_u32 s{sCnt}, {SPIN_MAX}")
        A(f"s_cbranch_scc1 {Lp_}")
        A(f"s_mov_b32 s{sTmp}, 1")
        A(f"s_branch {Lfail}")
        A.label(Ld_)
        stamp(2)
    else:
        poll(issue_q, range(Q, Q + 8), 1)
        stamp(2)
        issue_kv()
    Qks = [Q, Qr, Q + 4, Qr + 4]
    A(f"v_mfma_f32_16x16x32_bf16 {v(acc1,4)}, {a(aK+0,4)}, {v(Q,4)}, 0")
    for i in range(4):
        A(f"v_mov_b32_dpp {v(Qr+i)}, {v(Q+i)} row_ror:8 row_mask:0xf bank_mask:0xf")
    A(f"v_mfma_f32_16x16x32_bf16 {v(acc2,4)}, {a(aK+16,4)}, {v(Q,4)}, 0")
    for i in range(4, 8):
        A(f"v_mov_b32_dpp {v(Qr+i)}, {v(Q+i)} row_ror:8 row_mask:0xf bank_mask:0xf")
    for ks in (2, 1, 3):
        A(f"v_mfma_f32_16x16x32_bf16 {v(acc1,4)}, {a(aK+ks*4,4)}, {v(Qks[ks],4)}, {v(acc1,4)}")
        A(f"v_mfma_f32_16x16x32_bf16 {v(acc2,4)}, {a(aK+16+ks*4,4)}, {v(Qks[ks],4)}, {v(acc2,4)}")
    Lkv = A.newlabel("Lkv")
    Lkvd = A.newlabel("Lkvd")
    A(f"s_mov_b32 s{sCnt}, 0")
    A.label(Lkv)
    A("s_waitcnt vmcnt(2)")
    A(f"v_mfma_f32_16x16x32_bf16 {v(acc0,4)}, {v(KM,4)}, {v(Qks[0],4)}, 0")
    for i in range(4):
        A(f"v_mov_b32_dpp {v(KM+4+i)}, {v(KM+i)} row_ror:8 row_mask:0xf bank_mask:0xf")
    A(f"v_mfma_f32_16x16x32_bf16 {v(acc0,4)}, {v(KM+8,4)}, {v(Qks[2],4)}, {v(acc0,4)}")
    for i in range(4):
        A(f"v_mov_b32_dpp {v(KM+12+i)}, {v(KM+8+i)} row_ror:8 row_mask:0xf bank_mask:0xf")
    A(f"v_mfma_f32_16x16x32_bf16 {v(acc0,4)}, {v(KM+4,4)}, {v(Qks[1],4)}, {v(acc0,4)}")
    A("s_waitcnt vmcnt(0)")
    A(f"v_mfma_f32_16x16x32_bf16 {v(acc0,4)}, {v(KM+12,4)}, {v(Qks[3],4)}, {v(acc0,4)}")
    check_sentinel(list(range(KM, KM + 4)) + list(range(KM + 8, KM + 12)) + list(range(VM, VM + 4)) + list(range(VM + 8, VM + 12)), vT0)
    A(f"s_cbranch_vccz {Lkvd}")
    issue_kv()
    A(f"s_add_u32 s{sCnt}, s{sCnt}, 1")
    A(f"s_cmp_lt_u32 s{sCnt}, {SPIN_MAX}")
    A(f"s_cbranch_scc1 {Lkv}")
    A(f"s_mov_b32 s{sTmp}, 2")
    A(f"s_branch {Lfail}")
    A.label(Lkvd)
    if prof:
        A(f"s_add_u32 s99, s99, s{sCnt}")
    stamp(9)
    um = []
    for s_ in (0, 2, 1, 3):
        for t in range(3):
            c = "0" if s_ == 0 else v(accU + t * 4, 4)
            um.append(f"v_mfma_f32_16x16x32_bf16 {v(accU+t*4,4)}, {v(VM+s_*4,4)}, {WC(t,s_)}, {c}")
    Lnw = A.newlabel("Lnw")
    pre = [u_load(t, aUn) for t in range(3)] + [k_load(f) for f in range(8)]
    if "nokv" in exp:
        pre = []
    S = [acc1 + i for i in range(4)] + [acc2 + i for i in range(4)] + [acc0 + i for i in range(4)]
    sm = []
    sm += [f"v_max3_f32 {v(vMx)}, {v(S[0])}, {v(S[1])}, {v(S[2])}",
           f"v_max3_f32 {v(vMx)}, {v(vMx)}, {v(S[3])}, {v(S[4])}",
           f"v_max3_f32 {v(vMx)}, {v(vMx)}, {v(S[5])}, {v(S[6])}"]
    for i in range(4):
        sm.append(f"v_cndmask_b32 {v(acc0+i)}, {v(vNinf)}, {v(acc0+i)}, s[{sMaskG}:{sMaskG+1}]")
    sm += [
           f"v_max3_f32 {v(vMx)}, {v(vMx)}, {v(S[7])}, {v(S[8])}",
           f"v_max3_f32 {v(vMx)}, {v(vMx)}, {v(S[9])}, {v(S[10])}",
           f"v_max_f32 {v(vMx)}, {v(vMx)}, {v(S[11])}",
           f"v_mov_b32 {v(vMx2)}, {v(vMx)}",
           "s_nop 1",
           f"v_permlane16_swap_b32 {v(vMx)}, {v(vMx2)}",
           "s_nop 0",
           f"v_max_f32 {v(vMx)}, {v(vMx)}, {v(vMx2)}",
           f"v_mov_b32 {v(vMx2)}, {v(vMx)}",
           "s_nop 1",
           f"v_permlane32_swap_b32 {v(vMx)}, {v(vMx2)}",
           "s_nop 0",
           f"v_max_f32 {v(vMx)}, {v(vMx)}, {v(vMx2)}",
           f"v_mul_f32 {v(vMx)}, s{sC}, {v(vMx)}"]
    vr = [f"v_mov_b32_dpp {v(VM+4+i)}, {v(VM+i)} row_ror:8 row_mask:0xf bank_mask:0xf" for i in range(4)]
    vr += [f"v_mov_b32_dpp {v(VM+12+i)}, {v(VM+8+i)} row_ror:8 row_mask:0xf bank_mask:0xf" for i in range(4)]
    sm2 = []
    for ins in sm:
        if ins == "s_nop 1":
            sm2 += [vr.pop(0), vr.pop(0)]
        elif ins == "s_nop 0":
            sm2 += [vr.pop(0)]
        else:
            sm2.append(ins)
    sm = sm2 + vr
    for r in S:
        sm.append(f"v_fma_f32 {v(r)}, {v(r)}, s{sC}, -{v(vMx)}")
    for r in S:
        sm.append(f"v_exp_f32 {v(r)}, {v(r)}")
    sm.append("s_nop 0")
    for i in range(4):
        sm.append(f"v_cvt_pk_bf16_f32 {v(P0+i)}, {v(S[2*i])}, {v(S[2*i+1])}")
    sm.append(f"v_cvt_pk_bf16_f32 {v(Blo)}, {v(S[8])}, {v(S[9])}")
    sm.append(f"v_cvt_pk_bf16_f32 {v(Blo+1)}, {v(S[10])}, {v(S[11])}")
    for idx, ins in enumerate(sm):
        A(ins)
        if idx % 3 == 1 and um and (len(um) > 6 or idx >= 27):
            A(um.pop(0))
        if idx % 4 == 3 and pre:
            A(pre.pop(0))
    while um:
        A(um.pop(0))
    while pre:
        A(pre.pop(0))
    stamp(3)
    for t in range(3):
        A(f"v_mfma_f32_16x16x32_bf16 {v(accC+t*4,4)}, {a(aU+t*4,4)}, {v(P0,4)}, 0")
    A(f"v_mfma_f32_16x16x32_bf16 {v(accZ,4)}, {v(vOnes,4)}, {v(P0,4)}, 0")
    A.nop(4)
    for t in range(3):
        A(f"v_cvt_pk_bf16_f32 {v(UA+t*2)}, {v(accU+t*4)}, {v(accU+t*4+1)}")
        A(f"v_cvt_pk_bf16_f32 {v(UA+t*2+1)}, {v(accU+t*4+2)}, {v(accU+t*4+3)}")
    A(f"v_mfma_f32_16x16x16_bf16 {v(accZ,4)}, {v(vOnes,2)}, {v(Blo,2)}, {v(accZ,4)}")
    A.nop(1)
    for t in range(3):
        A(f"v_mfma_f32_16x16x16_bf16 {v(accC+t*4,4)}, {v(UA+t*2,2)}, {v(Blo,2)}, {v(accC+t*4,4)}")
    A.nop(4)
    A(f"v_rcp_f32 {v(vRz)}, {v(accZ)}")
    A.nop(2)
    stamp(10)
    for t in range(3):
        for i in range(4):
            A(f"v_mul_f32 {v(accC+t*4+i)}, {v(accC+t*4+i)}, {v(vRz)}")
        A(f"ds_write_b128 {v(vRCw)}, {v(accC+t*4,4)} offset:{t*1024}")
    A("s_waitcnt lgkmcnt(0)")
    stamp(11)
    A("s_barrier")
    stamp(12)
    A("s_mov_b32 exec_hi, 0xff")
    for w in range(4):
        A(f"ds_read_b128 {v(Cg+w*4,4)}, {v(vRCr)} offset:{w*3072}")
    A("s_waitcnt lgkmcnt(2)")
    for i in range(4):
        A(f"v_add_f32 {v(Cg+i)}, {v(Cg+i)}, {v(Cg+4+i)}")
    A("s_waitcnt lgkmcnt(0)")
    for i in range(4):
        A(f"v_add_f32 {v(Cg+8+i)}, {v(Cg+8+i)}, {v(Cg+12+i)}")
    for i in range(4):
        A(f"v_add_f32 {v(Cg+i)}, {v(Cg+i)}, {v(Cg+8+i)}")

    def persist(final=False):
        A("s_mov_b32 exec_lo, -1")
        A("s_mov_b32 exec_hi, 0xffff")
        A(f"buffer_store_dwordx2 {v(vPub,2)}, {v(vKMst)}, {WSR}, s{sOffKM} offen" + (" sc1" if wrole else ""))
        if wrole and not final:
            Lns = A.newlabel("Lns")
            A(f"s_and_b32 s{sTmp}, s{sStep}, 3")
            A(f"s_cmp_lg_u32 s{sTmp}, 0")
            A(f"s_cbranch_scc1 {Lns}")
            A(f"s_cmp_eq_u32 s{sStep}, 0")
            A(f"s_cbranch_scc1 {Lns}")
            A(f"s_lshr_b32 s{sTmp}, s{sStep}, 2")
            A(f"s_sub_u32 s{sTmp}, s{sTmp}, 1")
            signal_mem(sTmp)
            A.label(Lns)

    def background(storer):
        persist()
        store_local(f"buffer_store_dwordx2 {v(vSent,2)}, {v(vAst)}, {WSR}, s{sRAp} offen")
        A("s_mov_b32 exec_hi, 0xff")
        if storer:
            for kc in range(KC):
                A(f"buffer_store_dwordx4 {v(vSent,4)}, {v(vCst)}, {WSR}, s{sRCp} offen sc1")
                if kc < KC - 1:
                    A(f"s_add_u32 s{sRCp}, s{sRCp}, {8*20480}")
            if "nokv" not in exp:
                A("s_mov_b64 exec, -1")
                A(f"buffer_load_dwordx4 {v(vDummy,4)}, {v(vWarm)}, {WSR}, s{sWarm} offen")
        else:
            store_local(f"buffer_store_dwordx2 {v(vSent,2)}, {v(vDst)}, {WSR}, s{sRDp} offen")

    Lpw = A.newlabel("Lpw")
    Lcdone = A.newlabel("Lcdone")
    A(f"s_cmp_ge_u32 s{sWave}, 2")
    A(f"s_cbranch_scc1 {Lpw}")
    for i in range(4):
        A(f"v_min_u32 {v(Cg+i)}, 0xfffffffe, {v(Cg+i)}")
    for kc in range(KC):
        A(f"buffer_store_dwordx4 {v(Cg,4)}, {v(vCst)}, {WSR}, s{sOffC} offen sc1")
        if kc < KC - 1:
            A(f"s_add_u32 s{sOffC}, s{sOffC}, {8*20480}")
    stamp(4)
    background(True)
    if DSLEEP:
        A(f"s_sleep {DSLEEP}")
    A(f"s_branch {Lcdone}")
    A.label(Lpw)
    stamp(4)
    Lw3 = A.newlabel("Lw3")
    A(f"s_cmp_eq_u32 s{sWave}, 3")
    A(f"s_cbranch_scc1 {Lw3}")
    A(f"s_mov_b32 s{sOffD}, s{sRC}")
    A(f"s_add_u32 s{sEnd}, s{sRC}, {KC*8*20480}")
    if CDELAY:
        A(f"s_sleep {CDELAY}")

    def issue_c():
        if "cround" in exp:
            stamp(7)
        for r in range(1, 8):
            A(f"buffer_load_dwordx4 {v(CR+(r-1)*4,4)}, {v(vCg+r)}, {WSR}, s{sOffD} offen sc1")
        if KC > 1:
            A(f"s_add_u32 s{sOffD}, s{sOffD}, {8*20480}")
            A(f"s_cmp_eq_u32 s{sOffD}, s{sEnd}")
            A(f"s_cselect_b32 s{sOffD}, s{sRC}, s{sOffD}")
    poll(issue_c, range(CR, CR + 28), 3)
    stamp(5)
    c = CR
    for i in range(4):
        A(f"v_add_f32 {v(Cg+i)}, {v(Cg+i)}, {v(c+i)}")
        A(f"v_add_f32 {v(Cg+4+i)}, {v(c+4+i)}, {v(c+8+i)}")
        A(f"v_add_f32 {v(Cg+8+i)}, {v(c+12+i)}, {v(c+16+i)}")
        A(f"v_add_f32 {v(Cg+12+i)}, {v(c+20+i)}, {v(c+24+i)}")
    for i in range(4):
        A(f"v_add_f32 {v(Cg+i)}, {v(Cg+i)}, {v(Cg+4+i)}")
        A(f"v_add_f32 {v(Cg+8+i)}, {v(Cg+8+i)}, {v(Cg+12+i)}")
    for i in range(4):
        A(f"v_add_f32 {v(Cg+i)}, {v(Cg+i)}, {v(Cg+8+i)}")
    A(f"v_cvt_pk_bf16_f32 {v(Cg+4)}, {v(Cg)}, {v(Cg+1)}")
    A(f"v_cvt_pk_bf16_f32 {v(Cg+5)}, {v(Cg+2)}, {v(Cg+3)}")
    A(f"v_min_u32 {v(Cg+4)}, 0xfffffffe, {v(Cg+4)}")
    A(f"v_min_u32 {v(Cg+5)}, 0xfffffffe, {v(Cg+5)}")
    store_local(f"buffer_store_dwordx2 {v(Cg+4,2)}, {v(vDst)}, {WSR}, s{sRD} offen")
    background(False)
    A(f"s_branch {Lcdone}")
    A.label(Lw3)
    persist()
    store_local(f"buffer_store_dwordx2 {v(vSent,2)}, {v(vAst)}, {WSR}, s{sRAp} offen")
    Lnf = A.newlabel("Lnf")
    if wrole:
        A("s_mov_b64 exec, -1")
        A(f"s_and_b32 s{sTmp}, s{sStep}, 3")
        A(f"s_cmp_lg_u32 s{sTmp}, 1")
        A(f"s_cbranch_scc1 {Lnf}")
        A(f"s_add_u32 s{sEnd}, s{sStep}, 3")
        A(f"s_lshr_b32 s{sEnd}, s{sEnd}, 2")
        A(f"s_cmp_gt_u32 s{sEnd}, 15")
        A(f"s_cbranch_scc1 {Lnf}")
        wait_kvu(sEnd)
        A(f"s_branch {Lcdone}")
    A.label(Lnf)
    if DSLEEP:
        A(f"s_sleep {DSLEEP}")
    A.label(Lcdone)
    A("s_mov_b64 exec, -1")
    A(f"s_add_u32 s{sStep}, s{sStep}, 1")
    A(f"s_add_u32 s{sOffKM}, s{sOffKM}, {32*2048}")
    A(f"s_mov_b32 s{sOffD}, s{sRD}")
    for ins in ring:
        A(ins)
    stamp(13)

    if PDELAY:
        Lpd = A.newlabel("Lpdl")
        A(f"s_cmp_lg_u32 s{sWave}, 2")
        A(f"s_cbranch_scc1 {Lpd}")
        A(f"s_sleep {PDELAY}")
        A.label(Lpd)

    def issue_d():
        A(f"buffer_load_dwordx4 {v(M,4)}, {v(vD0)}, {WSR}, s{sOffD} offen sc1")
        A(f"buffer_load_dwordx4 {v(M+4,4)}, {v(vD0)}, {WSR}, s{sOffD} offen offset:1024 sc1")
        A(f"buffer_load_dwordx4 {v(M+8,4)}, {v(vD2)}, {WSR}, s{sOffD} offen sc1")
    poll(issue_d, range(M, M + 12), 4)
    A(f"s_branch {Lloop}")

    A.label(Lfin)
    persist(True)
    A("s_mov_b64 exec, -1")
    rtl()
    if wrole:
        A("s_waitcnt vmcnt(0)")
        A(f"s_mov_b32 s{sTmp}, 15")
        signal_mem(sTmp)
    if prof:
        A(f"s_lshl_b32 s{sTmp}, s{sGrp}, 4")
        A(f"s_add_u32 s{sTmp}, s{sTmp}, s{sMemb}")
        A(f"s_lshl_b32 s{sTmp}, s{sTmp}, 2")
        A(f"s_add_u32 s{sTmp}, s{sTmp}, s{sWave}")
        A(f"s_lshl_b32 s{sTmp}, s{sTmp}, 6")
        A(f"s_add_u32 s{sTmp}, s{sTmp}, {WS_PROF:#x}")
        A("s_mov_b64 exec, 1")
        A(f"s_lshl_b32 s97, s97, 16")
        A(f"s_or_b32 s{sPr+14}, s97, s98")
        A(f"s_lshl_b32 s99, s99, 16")
        A(f"s_or_b32 s{sPr+15}, s99, s100")
        for i in range(16):
            A(f"v_mov_b32 {v(vT0)}, s{sPr+i}")
            A(f"v_mov_b32 {v(vT1)}, {i*4}")
            A(f"buffer_store_dword {v(vT0)}, {v(vT1)}, {WSR}, s{sTmp} offen")
    A(f"s_branch {Lend}")
    A.label(Lfail)
    A("s_mov_b64 exec, 1")
    A(f"v_mov_b32 {v(vT0)}, s{sTmp}")
    A(f"v_mov_b32 {v(vT1)}, 0")
    A(f"v_or_b32 {v(vT0)}, 0x100, {v(vT0)}")
    A(f"buffer_store_dword {v(vT0)}, {v(vT1)}, s[{sDBG}:{sDBG+3}], 0 offen")
    A.label(Lend)
    A("s_endpgm")
    if wrole:
        A.label(Lw)
        A(f"s_sub_u32 s54, s{sCnt}, 128")
        wrole(A, 54)
        A("s_endpgm")
    return kernel_desc(name, 512, 102, 256)
```

```python
import struct
from asmlib import *
from layout import *


def f32bits(x):
    return struct.unpack("<I", struct.pack("<f", x))[0]


class Q:
    def __init__(self, A, name, maxn):
        self.A, self.name, self.maxn = A, name, maxn
        self.q = []

    def issue(self, tag):
        self.q.append(tag)

    def need(self, tag):
        idx = max((i for i, t in enumerate(self.q) if t == tag), default=-1)
        if idx < 0:
            return
        n = len(self.q) - 1 - idx
        self.A(f"s_waitcnt {self.name}({min(n, self.maxn)})")
        self.q = self.q[idx + 1:] if n <= self.maxn else self.q[len(self.q) - self.maxn:]

    def drain(self):
        self.A(f"s_waitcnt {self.name}(0)")
        self.q = []


sWS, sXS, sWA, sWB, sWO = 4, 8, 12, 16, 20
sRB, sH, sWave, sIt, sTmp, sTmp2, sKoffW, sKoffX, sOut = 40, 41, 42, 43, 44, 45, 46, 47, 48
STAGE = 32768
LDS_MAX = 163840
EXPF = set()


def srd(b):
    return f"s[{b}:{b+3}]"


def w_prologue(A, Lend, ntasks):
    A(f"s_cmp_ge_u32 s2, {ntasks}")
    A(f"s_cbranch_scc1 {Lend}")
    A("s_load_dwordx4 s[24:27], s[0:1], 24")
    A("s_load_dwordx8 s[28:35], s[0:1], 40")
    A("s_load_dwordx2 s[36:37], s[0:1], 96")
    A("s_load_dwordx2 s[38:39], s[0:1], 80")
    A("v_and_b32 v1, 63, v0")
    A("v_lshrrev_b32 v5, 6, v0")
    A("v_and_b32 v2, 15, v0")
    A(f"v_readfirstlane_b32 s{sWave}, v5")
    A("v_bfe_u32 v3, v0, 4, 2")
    A("s_waitcnt lgkmcnt(0)")


vLane, vN, vG = 1, 2, 3


def proj_gemm(A, NM, wsrds, acc_of, R, vq, RTW=4, swap=False, niter=5, w_pitch=8192, w_base=None,
              xsrd=None, x_base=0, x_pitch=1280, x_mode="std", w_wrap=None, NST=4):
    xsrd = sXS if xsrd is None else xsrd
    w_base = w_base or [0] * NM
    T0, T1, T2 = R.alloc(), R.alloc(), R.alloc()
    vWoff, vXoff = R.alloc(), R.alloc()
    SG = NM * 8192 + 4 * RTW * 1024
    NSET = (NST * SG + 65535) // 65536
    assert NST * SG <= LDS_MAX
    nsteps = niter * 4
    UNR = NST if NST % 2 == 0 else 2 * NST
    assert nsteps % UNR == 0
    vWa = [R.alloc(8) for _ in range(NSET)]
    vXa = [R.alloc() for _ in range(NSET)]
    XF = [R.alloc(4 * RTW), R.alloc(4 * RTW)]
    WF = R.alloc(16)
    NT = NM * 8
    XB = NM * 8192
    A(f"s_and_b32 s{sTmp}, s{sWave}, 1")
    A(f"s_lshl_b32 s{sTmp}, s{sTmp}, 2")
    A(f"v_or_b32 {v(T0)}, s{sTmp}, {v(vG)}")
    A(f"v_lshrrev_b32 {v(T1)}, 1, {v(vN)}")
    A(f"v_xor_b32 {v(T1)}, {v(T1)}, {v(T0)}")
    A(f"v_and_b32 {v(T2)}, 1, {v(vN)}")
    A(f"v_lshl_add_u32 {v(T1)}, {v(T1)}, 1, {v(T2)}")
    A(f"v_lshlrev_b32 {v(T1)}, 4, {v(T1)}")
    A(f"v_mul_u32_u24 {v(T2)}, {w_pitch}, {v(vG)}")
    A(f"v_add_u32 {v(T1)}, {v(T1)}, {v(T2)}")
    A(f"s_mul_i32 s{sTmp}, s{sWave}, {8*w_pitch}")
    A(f"s_lshl_b32 s{sTmp2}, s{sH}, 8")
    A(f"s_add_u32 s{sTmp}, s{sTmp}, s{sTmp2}")
    A(f"v_add_u32 {v(vWoff)}, s{sTmp}, {v(T1)}")
    if x_mode == "std":
        rowstride, wavestride = x_pitch, RTW * 16 * x_pitch
        e_off = [e * 16 * x_pitch for e in range(RTW)]
    else:
        rowstride, wavestride = 64 * x_pitch, 2 * x_pitch
        e_off = [(e % 2) * 16 * 64 * x_pitch + (e // 2) * x_pitch for e in range(4)]
    A(f"v_lshrrev_b32 {v(T0)}, 2, {v(vLane)}")
    A(f"v_mul_u32_u24 {v(T0)}, {rowstride}, {v(T0)}")
    A(f"v_and_b32 {v(T1)}, 3, {v(vLane)}")
    A(f"v_xor_b32 {v(T1)}, {v(T1)}, {v(vG)}")
    A(f"v_lshl_add_u32 {v(T0)}, {v(T1)}, 4, {v(T0)}")
    A(f"s_lshl_b32 s{sTmp}, s{sRB}, 2")
    A(f"s_add_u32 s{sTmp}, s{sTmp}, s{sWave}")
    A(f"s_mul_i32 s{sTmp}, s{sTmp}, {wavestride}")
    A(f"v_add_u32 {v(vXoff)}, s{sTmp}, {v(T0)}")
    A(f"v_lshrrev_b32 {v(T0)}, 2, {v(vN)}")
    A(f"v_and_b32 {v(T1)}, 1, {v(vG)}")
    A(f"v_lshl_or_b32 {v(T1)}, {v(T1)}, 2, {v(T0)}")
    A(f"v_lshl_add_u32 {v(T0)}, {v(vG)}, 3, {v(T0)}")
    A(f"v_lshlrev_b32 {v(T0)}, 8, {v(T0)}")
    A(f"v_and_b32 {v(T2)}, 3, {v(vN)}")
    A(f"v_lshl_add_u32 {v(T0)}, {v(T2)}, 3, {v(T0)}")
    for t in range(8):
        A(f"v_xor_b32 {v(T2)}, {t}, {v(T1)}")
        A(f"v_lshl_add_u32 {v(vWa[0]+t)}, {v(T2)}, 5, {v(T0)}")
        for k in range(1, NSET):
            A(f"v_add_u32 {v(vWa[k]+t)}, {k*0x10000:#x}, {v(vWa[0]+t)}")
    A(f"v_lshrrev_b32 {v(T0)}, 2, {v(vN)}")
    A(f"v_xor_b32 {v(T0)}, {v(T0)}, {v(vG)}")
    A(f"v_lshlrev_b32 {v(T0)}, 4, {v(T0)}")
    A(f"v_lshl_add_u32 {v(T0)}, {v(vN)}, 6, {v(T0)}")
    A(f"s_mul_i32 s{sTmp}, s{sWave}, {RTW*1024}")
    A(f"s_add_u32 s{sTmp}, s{sTmp}, {XB}")
    A(f"v_add_u32 {v(vXa[0])}, s{sTmp}, {v(T0)}")
    for k in range(1, NSET):
        A(f"v_add_u32 {v(vXa[k])}, {k*0x10000:#x}, {v(vXa[0])}")
    sM0W, sM0X, sKW2, sKc = 50, 51, 52, 53
    A(f"s_lshl_b32 s{sM0W}, s{sWave}, 11")
    A(f"s_mov_b32 s{sM0X}, s{sTmp}")
    A(f"s_mov_b32 s{sKoffW}, 0")
    A(f"s_mov_b32 s{sKoffX}, {x_base:#x}")
    A(f"s_mov_b32 s{sKc}, 0")

    def dma_list(st):
        g = []
        for m in range(NM):
            for e in range(2):
                g.append([f"s_add_u32 m0, s{sM0W}, {st*SG + m*8192 + e*1024}",
                          f"s_add_u32 s{sKW2}, s{sKoffW}, {w_base[m] + e*4*w_pitch:#x}",
                          f"buffer_load_dwordx4 {v(vWoff)}, {srd(wsrds[m])}, s{sKW2} offen lds"])
        for e in range(RTW):
            g.append([f"s_add_u32 m0, s{sM0X}, {st*SG + e*1024}",
                      f"s_add_u32 s{sKW2}, s{sKoffX}, {e_off[e]}",
                      f"buffer_load_dwordx4 {v(vXoff)}, {srd(xsrd)}, s{sKW2} offen lds"])
        last = [f"s_add_u32 s{sKoffW}, s{sKoffW}, {32*w_pitch}", f"s_add_u32 s{sKoffX}, s{sKoffX}, 64"]
        if w_wrap is not None:
            last += [f"s_add_u32 s{sKc}, s{sKc}, 1", f"s_cmp_eq_u32 s{sKc}, {w_wrap}",
                     f"s_cselect_b32 s{sKoffW}, 0, s{sKoffW}"]
        g.append(last)
        return g
    D = 2 * NM + RTW
    lq = Q(A, "lgkmcnt", 15)

    def rd_w(st, tile):
        m, t = tile // 8, tile % 8
        r = WF + (tile % 4) * 4
        for h2 in range(2):
            off = st * SG + m * 8192 + h2 * 1024
            if "nolds" in EXPF:
                continue
            A(f"ds_read_b64_tr_b16 {v(r+2*h2,2)}, {v(vWa[off >> 16]+t)} offset:{off & 0xffff}")
        lq.issue(("w", tile % 4))
        lq.issue(("w", tile % 4))

    def rd_x(st, par, rt):
        off = st * SG + rt * 1024
        A(f"ds_read_b128 {v(XF[par]+rt*4,4)}, {v(vXa[off >> 16])} offset:{off & 0xffff}")
        lq.issue(("x", par))

    for st in range(NST - 1):
        for grp in dma_list(st):
            for ins in grp:
                A(ins)
    seen = set()
    for m in range(NM):
        for t in range(8):
            for rt in range(RTW):
                reg = acc_of(m, t, rt)
                if reg in seen:
                    continue
                seen.add(reg)
                base = int(reg[2:reg.index(":")])
                for i in range(4):
                    A(f"v_accvgpr_write_b32 a{base+i}, 0" if reg[0] == "a" else f"v_mov_b32 v{base+i}, 0")
    A(f"s_waitcnt vmcnt({min(63, (NST-2)*D)})")
    A("s_barrier")
    for rt in range(RTW):
        rd_x(0, 0, rt)
    rd_w(0, 0)
    rd_w(0, 1)
    A(f"s_mov_b32 s{sIt}, 0")
    Lloop = A.newlabel("Lpg")
    A.label(Lloop)
    q_at_entry = list(lq.q)
    for stp in range(UNR):
        st = stp % NST
        par = stp % 2
        dmas = []
        for tile in range(NT):
            if tile == NT // 2:
                A(f"s_waitcnt vmcnt({min(63, (NST-3)*D)})")
                A("s_barrier")
                dmas = dma_list((st + NST - 1) % NST) if "nodma" not in EXPF else []
            nt = tile + 2
            if nt < NT:
                rd_w(st, nt)
            else:
                if nt == NT:
                    for rt in range(RTW):
                        rd_x((st + 1) % NST, 1 - par, rt)
                rd_w((st + 1) % NST, nt - NT)
            if tile == 0:
                lq.need(("x", par))
            lq.need(("w", tile % 4))
            m, t = tile // 8, tile % 8
            for rt in range(RTW):
                acc = acc_of(m, t, rt)
                wf, xf = v(WF + (tile % 4) * 4, 4), v(XF[par] + rt * 4, 4)
                if swap:
                    A(f"v_mfma_f32_16x16x32_bf16 {acc}, {xf}, {wf}, {acc}")
                else:
                    A(f"v_mfma_f32_16x16x32_bf16 {acc}, {wf}, {xf}, {acc}")
                if dmas and rt % 2 == 1 and (NM == 1 or rt == 1):
                    for ins in dmas.pop(0):
                        A(ins)
        for grp in dmas:
            for ins in grp:
                A(ins)
    assert [t for t in lq.q] == q_at_entry, (lq.q, q_at_entry)
    A(f"s_add_u32 s{sIt}, s{sIt}, 1")
    A(f"s_cmp_lt_u32 s{sIt}, {nsteps // UNR}")
    A(f"s_cbranch_scc1 {Lloop}")
    A("s_waitcnt vmcnt(0) lgkmcnt(0)")
    A("s_barrier")
    A.nop(4)


def w_srds(A):
    make_srd(A, sWS, 36, WS_BYTES)


def gen_kvu(A, name="kvu_kernel", RTW=4):
    kernel_header(A, name)
    Lend = A.newlabel("Lend")
    w_prologue(A, Lend, 32 * 32 // RTW)
    make_srd(A, sWS, 36, WS_BYTES)
    A(f"s_and_b32 s{sH}, s2, 31")
    A(f"s_lshr_b32 s{sRB}, s2, 5")
    kvu_body(A, RTW, "")
    A.label(Lend)
    A("s_endpgm")
    return kernel_desc(name, 512, 102, 256)


def kvu_body(A, RTW, sc, seg_base=0, tl=lambda: None, u_hook=None):
    make_srd(A, sXS, 24, 2048 * 1280)
    make_srd(A, sWA, 30, 640 * 8192)
    make_srd(A, sWB, 32, 640 * 8192)
    make_srd(A, sWO, 34, 4096 * 1280)
    R = RegAlloc(6, 128 if RTW > 4 else 256)
    NSG = RTW // 2

    def acc_idx(m, t, rt):
        return (((1 - m) * 8 + t) * RTW + rt) * 4

    def acc_of(m, t, rt):
        i = acc_idx(m, t, rt)
        return a(i, 4) if i < 256 else v(128 + i - 256, 4)
    vq = Q(A, "vmcnt", 63)
    proj_gemm(A, 2, [sWA, sWB], acc_of, R, vq, RTW=RTW, NST=(5 if RTW == 2 else 4), x_base=seg_base * 32 * 1280)
    tl()
    R.next = 6
    R.limit = 256
    T0, T1, T2 = R.alloc(), R.alloc(), R.alloc()
    vOo = [R.alloc(), R.alloc()]
    vOa = [R.alloc(8), R.alloc(8)]
    vSt, vUst = R.alloc(), R.alloc()
    TMP = R.alloc(8)
    OF = R.alloc(32)
    assert R.next <= 128
    VA = R.alloc(16 * RTW)
    aU = [R.alloc(4 * RTW), R.alloc(4 * RTW)]
    UO = [R.alloc(4 * NSG), R.alloc(4 * NSG)]
    for par in range(2):
        A(f"v_or_b32 {v(T0)}, {par*4}, {v(vG)}")
        A(f"v_lshrrev_b32 {v(T1)}, 1, {v(vN)}")
        A(f"v_xor_b32 {v(T1)}, {v(T1)}, {v(T0)}")
        A(f"v_and_b32 {v(T2)}, 1, {v(vN)}")
        A(f"v_lshl_add_u32 {v(T1)}, {v(T1)}, 1, {v(T2)}")
        A(f"v_lshlrev_b32 {v(T1)}, 4, {v(T1)}")
        A(f"v_mul_u32_u24 {v(T2)}, 1280, {v(vG)}")
        A(f"v_add_u32 {v(T1)}, {v(T1)}, {v(T2)}")
        A(f"s_lshl_b32 s{sTmp}, s{sH}, 7")
        A(f"s_lshl_b32 s{sTmp2}, s{sWave}, 5")
        A(f"s_add_u32 s{sTmp}, s{sTmp}, s{sTmp2}")
        A(f"s_mul_i32 s{sTmp}, s{sTmp}, 1280")
        A(f"v_add_u32 {v(vOo[par])}, s{sTmp}, {v(T1)}")
    A(f"s_lshl_b32 s50, s{sWave}, 13")

    def dma_wo(ch):
        for e in range(8):
            A(f"s_add_u32 m0, s50, {(ch%4)*STAGE + e*1024}")
            A(f"s_mov_b32 s52, {e*4*1280 + ch*256}")
            A(f"buffer_load_dwordx4 {v(vOo[e%2])}, {srd(sWO)}, s52 offen lds")
            vq.issue(("wo", ch))
    for ch in range(4):
        dma_wo(ch)
    A(f"v_lshrrev_b32 {v(T0)}, 2, {v(vN)}")
    A(f"v_lshl_add_u32 {v(T0)}, {v(vG)}, 2, {v(T0)}")
    A(f"v_and_b32 {v(T1)}, 7, {v(T0)}")
    A(f"v_lshlrev_b32 {v(T0)}, 8, {v(T0)}")
    A(f"v_and_b32 {v(T2)}, 3, {v(vN)}")
    A(f"v_lshl_add_u32 {v(T0)}, {v(T2)}, 3, {v(T0)}")
    for t in range(8):
        A(f"v_xor_b32 {v(T2)}, {t}, {v(T1)}")
        A(f"v_lshl_add_u32 {v(vOa[0]+t)}, {v(T2)}, 5, {v(T0)}")
        A(f"v_add_u32 {v(vOa[1]+t)}, 0x10000, {v(vOa[0]+t)}")
    A(f"s_lshl_b32 s{sTmp}, s{sRB}, 2")
    A(f"s_add_u32 s{sTmp}, s{sTmp}, s{sWave}")
    A(f"s_mul_i32 s{sTmp}, s{sTmp}, {NSG*32}")
    A(f"s_add_u32 s{sTmp}, s{sTmp}, s{sH}")
    if seg_base:
        A(f"s_add_u32 s{sTmp}, s{sTmp}, {seg_base*32}")
    A(f"s_lshl_b32 s{sOut}, s{sTmp}, 13")
    A(f"v_lshlrev_b32 {v(vSt)}, 4, {v(vLane)}")
    A(f"v_add_u32 {v(vSt)}, s{sOut}, {v(vSt)}")
    A(f"s_mul_i32 s{sOut}, s{sTmp}, 40960")
    A(f"v_and_b32 {v(T0)}, 7, {v(vN)}")
    A(f"v_lshl_add_u32 {v(T0)}, {v(vG)}, 3, {v(T0)}")
    A(f"v_lshlrev_b32 {v(T0)}, 4, {v(T0)}")
    A(f"v_lshrrev_b32 {v(T1)}, 3, {v(vN)}")
    A(f"v_lshl_add_u32 {v(T0)}, {v(T1)}, 9, {v(T0)}")
    A(f"v_add_u32 {v(vUst)}, s{sOut}, {v(T0)}")
    for m in range(2):
        for rt in range(RTW):
            for s_ in range(4):
                dst = (VA + (rt * 4 + s_) * 4) if m == 1 else (OF + ((rt * 4 + s_) % 8) * 4)
                for half in range(2):
                    ab = acc_idx(m, 2 * s_ + half, rt)
                    if ab < 256:
                        for i in range(4):
                            A(f"v_accvgpr_read_b32 {v(TMP+half*4+i)}, a{ab+i}")
                        src = TMP + half * 4
                    else:
                        src = 128 + ab - 256
                    for j in range(2):
                        A(f"v_cvt_pk_bf16_f32 {v(dst+half*2+j)}, {v(src+2*j)}, {v(src+2*j+1)}")
                so = (WS_KX if m == 0 else WS_VX) + (rt // 2) * 32 * 8192 + ((rt % 2) * 4 + s_) * 1024
                A(f"s_mov_b32 s{sTmp2}, {so:#x}")
                A(f"buffer_store_dwordx4 {v(dst,4)}, {v(vSt)}, {srd(sWS)}, s{sTmp2} offen{sc}")
                vq.issue("st")
    lq = Q(A, "lgkmcnt", 15)

    def rd_o(gt):
        ch, t = gt // 8, gt % 8
        st = ch % 4
        hi, off = st // 2, (st % 2) * STAGE
        for s_ in range(4):
            r = OF + (gt % 2) * 16 + s_ * 4
            A(f"ds_read_b64_tr_b16 {v(r,2)}, {v(vOa[hi]+t)} offset:{off + s_*8192}")
            A(f"ds_read_b64_tr_b16 {v(r+2,2)}, {v(vOa[hi]+t)} offset:{off + s_*8192 + 4096}")
            lq.issue(("o", gt % 2))
            lq.issue(("o", gt % 2))

    def u_out(gt):
        p = gt % 2
        for sg in range(NSG):
            for half in range(2):
                ab = aU[p] + (sg * 2 + half) * 4
                A(f"v_cvt_pk_bf16_f32 {v(UO[p]+sg*4+half*2)}, {v(ab)}, {v(ab+1)}")
                A(f"v_cvt_pk_bf16_f32 {v(UO[p]+sg*4+half*2+1)}, {v(ab+2)}, {v(ab+3)}")
            A(f"s_mov_b32 s{sTmp2}, {WS_U + sg*32*40960 + gt*1024:#x}")
            A(f"buffer_store_dwordx4 {v(UO[p]+sg*4,4)}, {v(vUst)}, {srd(sWS)}, s{sTmp2} offen{sc}")
            vq.issue("st")

    vq.need(("wo", 0))
    A("s_barrier")
    if u_hook:
        u_hook()
    if tl() is not None:
        vq.issue("st")
    rd_o(0)
    for gt in range(40):
        if gt + 1 < 40:
            if (gt + 1) % 8 == 0:
                vq.need(("wo", (gt + 1) // 8))
                A("s_barrier")
                if gt + 1 == 16:
                    dma_wo(4)
            rd_o(gt + 1)
        lq.need(("o", gt % 2))
        for s_ in range(4):
            for rt in range(RTW):
                acc = v(aU[gt % 2] + rt * 4, 4)
                c = "0" if s_ == 0 else acc
                A(f"v_mfma_f32_16x16x32_bf16 {acc}, {v(VA+(rt*4+s_)*4,4)}, {v(OF+(gt%2)*16+s_*4,4)}, {c}")
            if s_ == (2 if RTW >= 4 else 3) and gt > 0:
                u_out(gt - 1)
    A.nop(8)
    u_out(39)


def gen_att(A, name="att_kernel", RTW=4):
    kernel_header(A, name)
    Lend = A.newlabel("Lend")
    w_prologue(A, Lend, 32 * 32 // RTW)
    make_srd(A, sWS, 36, WS_BYTES)
    A(f"s_and_b32 s{sH}, s2, 31")
    A(f"s_lshr_b32 s{sRB}, s2, 5")
    att_body(A, RTW, "", None)
    A.label(Lend)
    A("s_endpgm")
    return kernel_desc(name, 512, 102, 256)


def att_body(A, RTW, sc, wait_hook, rm_below=None, light=False):
    if not light:
        make_srd(A, sXS, 24, 2048 * 1280)
        make_srd(A, sWA, 28, 640 * 8192)
    R = RegAlloc(6, 256)
    NSG = RTW // 2

    def acc_of(m, t, rt):
        return a((t * RTW + rt) * 4, 4)
    if not light:
        proj_gemm(A, 1, [sWA], acc_of, R, None, RTW=RTW, NST=5)
    R.next = 6
    T0, T1, T2 = R.alloc(), R.alloc(), R.alloc()
    vL16, vKm, vVa, vVm, vNinf = R.alloc(), R.alloc(), R.alloc(), R.alloc(), R.alloc()
    vMx, vMx2, vSum = R.alloc(), R.alloc(), R.alloc()
    QB = R.alloc(64)
    TMP = R.alloc(8)
    KM = R.alloc(16)
    S = R.alloc(20)
    P = R.alloc(12)
    VF = R.alloc(32)
    VMF = R.alloc(16)
    accO = R.alloc(32)
    OB = R.alloc(16)
    aK = 128
    sMask = 56
    sC, sSeg, sL = 66, 67, 68
    A(f"s_mov_b32 s{sC}, {f32bits(SCALE*LOG2E):#x}")
    A(f"v_mov_b32 {v(vNinf)}, 0xff800000")
    A("s_mov_b32 s64, -1")
    A("s_mov_b32 s65, 0")
    A(f"v_lshlrev_b32 {v(vL16)}, 4, {v(vLane)}")
    for r in range(4):
        A(f"v_lshl_add_u32 {v(T0)}, {v(vG)}, 2, {r}")
        A(f"v_cmp_le_u32 s[{sMask+2*r}:{sMask+2*r+1}], {v(T0)}, {v(vN)}")
    A(f"v_and_b32 {v(T0)}, 7, {v(vN)}")
    A(f"v_lshl_add_u32 {v(T0)}, {v(vG)}, 3, {v(T0)}")
    A(f"v_lshlrev_b32 {v(vKm)}, 4, {v(T0)}")
    A(f"s_lshl_b32 s{sL}, s{sWave}, 15")
    A(f"v_lshrrev_b32 {v(T0)}, 2, {v(vN)}")
    A(f"v_lshl_add_u32 {v(T0)}, {v(vG)}, 2, {v(T0)}")
    A(f"v_and_b32 {v(T1)}, 3, {v(vN)}")
    A(f"v_lshl_add_u32 {v(T2)}, {v(T1)}, 4, {v(T0)}")
    A(f"v_lshlrev_b32 {v(T2)}, 4, {v(T2)}")
    A(f"v_add_u32 {v(vVa)}, s{sL}, {v(T2)}")
    A(f"v_and_b32 {v(T0)}, 7, {v(T0)}")
    A(f"v_lshl_add_u32 {v(T2)}, {v(T1)}, 3, {v(T0)}")
    A(f"v_lshlrev_b32 {v(T2)}, 4, {v(T2)}")
    A(f"v_add_u32 {v(vVm)}, s{sL}, {v(T2)}")
    A(f"s_lshl_b32 s{sTmp}, s{sRB}, 2")
    A(f"s_add_u32 s{sTmp}, s{sTmp}, s{sWave}")
    A(f"s_mul_i32 s{sTmp}, s{sTmp}, {NSG*32}")
    A(f"s_add_u32 s{sSeg}, s{sTmp}, s{sH}")
    for sg in range(NSG):
        A(f"s_add_u32 s{sTmp}, s{sSeg}, {sg*32}")
        A(f"s_lshl_b32 s{sTmp}, s{sTmp}, 13")
        for f in range(8):
            A(f"s_add_u32 s{sTmp2}, s{sTmp}, {WS_KX + f*1024:#x}")
            A(f"buffer_load_dwordx4 {a(aK+sg*32+f*4,4)}, {v(vL16)}, {srd(sWS)}, s{sTmp2} offen")
        for f in range(8):
            A(f"s_add_u32 m0, s{sL}, {sg*16384 + f*1024}")
            A(f"s_add_u32 s{sTmp2}, s{sTmp}, {WS_VX + f*1024:#x}")
            A(f"buffer_load_dwordx4 {v(vL16)}, {srd(sWS)}, s{sTmp2} offen lds")
        if light:
            for f in range(8):
                A(f"s_add_u32 s{sTmp2}, s{sTmp}, {WS_QX + f*1024:#x}")
                A(f"buffer_load_dwordx4 {v(QB+(sg*8+f)*4,4)}, {v(vL16)}, {srd(sWS)}, s{sTmp2} offen")
    for rt in range(0 if light else RTW):
        for s_ in range(4):
            for half in range(2):
                ab = ((2 * s_ + half) * RTW + rt) * 4
                for i in range(4):
                    A(f"v_accvgpr_read_b32 {v(TMP+half*4+i)}, a{ab+i}")
            for j in range(4):
                A(f"v_cvt_pk_bf16_f32 {v(QB+(rt*4+s_)*4+j)}, {v(TMP+2*j)}, {v(TMP+2*j+1)}")

    def xlane(op, reg):
        for sw in ("v_permlane16_swap_b32", "v_permlane32_swap_b32"):
            A(f"v_mov_b32 {v(vMx2)}, {v(reg)}")
            A.nop(2)
            A(f"{sw} {v(reg)}, {v(vMx2)}")
            A.nop(1)
            A(f"{op} {v(reg)}, {v(reg)}, {v(vMx2)}")

    if wait_hook:
        wait_hook()
    for sg in range(NSG):
        A(f"s_add_u32 s{sTmp}, s{sSeg}, {sg*32}")
        A(f"s_lshl_b32 s{sTmp}, s{sTmp}, 11")
        for f in range(2):
            A(f"s_add_u32 m0, s{sL}, {sg*16384 + 8192 + f*1024}")
            A(f"s_add_u32 s{sTmp2}, s{sTmp}, {WS_VM + f*1024:#x}")
            A(f"buffer_load_dwordx4 {v(vL16)}, {srd(sWS)}, s{sTmp2} offen lds")
    for sg in range(NSG):
        A(f"s_add_u32 s{sTmp}, s{sSeg}, {sg*32}")
        A(f"s_lshl_b32 s{sTmp}, s{sTmp}, 11")
        A(f"s_add_u32 s{sTmp}, s{sTmp}, {WS_KM:#x}")
        for s_ in range(4):
            A(f"buffer_load_dwordx4 {v(KM+s_*4,4)}, {v(vKm)}, {srd(sWS)}, s{sTmp} offen offset:{s_*512}")
        A("s_waitcnt vmcnt(0)")
        for t in range(8):
            for T in range(2):
                A(f"ds_read_b64_tr_b16 {v(VF+t*4+T*2,2)}, {v(vVa)} offset:{sg*16384 + (T*4+t//2)*1024 + (t%2)*8}")
            A(f"ds_read_b64_tr_b16 {v(VMF+t*2,2)}, {v(vVm)} offset:{sg*16384 + 8192 + (t//2)*512 + (t%2)*8}")
            if t % 4 == 3:
                A("s_waitcnt lgkmcnt(0)")
        combos = [(0, 0, S), (0, 1, S + 4), (1, 0, S + 8), (1, 1, S + 12), (1, 2, S + 16)]
        for s_ in range(4):
            for qt, T, acc in combos:
                aop = v(KM + s_ * 4, 4) if T == 0 else a(aK + sg * 32 + ((T - 1) * 4 + s_) * 4, 4)
                c = "0" if s_ == 0 else v(acc, 4)
                A(f"v_mfma_f32_16x16x32_bf16 {v(acc,4)}, {aop}, {v(QB+((sg*2+qt)*4+s_)*4,4)}, {c}")
        A.nop(8)
        for qt in range(2):
            base = S if qt == 0 else S + 8
            nv = 8 if qt == 0 else 12
            dg = base + nv - 4
            for i in range(4):
                A(f"v_cndmask_b32 {v(base+i)}, {v(vNinf)}, {v(base+i)}, s[64:65]")
                A(f"v_cndmask_b32 {v(dg+i)}, {v(vNinf)}, {v(dg+i)}, s[{sMask+2*i}:{sMask+2*i+1}]")
            A(f"v_max3_f32 {v(vMx)}, {v(base)}, {v(base+1)}, {v(base+2)}")
            for i in range(3, nv - 1, 2):
                A(f"v_max3_f32 {v(vMx)}, {v(vMx)}, {v(base+i)}, {v(base+i+1)}")
            A(f"v_max_f32 {v(vMx)}, {v(vMx)}, {v(base+nv-1)}")
            xlane("v_max_f32", vMx)
            A(f"v_mul_f32 {v(vMx)}, s{sC}, {v(vMx)}")
            for i in range(nv):
                A(f"v_fma_f32 {v(base+i)}, {v(base+i)}, s{sC}, -{v(vMx)}")
            for i in range(nv):
                A(f"v_exp_f32 {v(base+i)}, {v(base+i)}")
            A.nop(1)
            A(f"v_add_f32 {v(vSum)}, {v(base)}, {v(base+1)}")
            for i in range(2, nv):
                A(f"v_add_f32 {v(vSum)}, {v(vSum)}, {v(base+i)}")
            xlane("v_add_f32", vSum)
            A(f"v_rcp_f32 {v(vSum)}, {v(vSum)}")
            A.nop(1)
            for i in range(nv):
                A(f"v_mul_f32 {v(base+i)}, {v(base+i)}, {v(vSum)}")
            pq = P + qt * 6
            A(f"v_cvt_pk_bf16_f32 {v(pq+4)}, {v(base)}, {v(base+1)}")
            A(f"v_cvt_pk_bf16_f32 {v(pq+5)}, {v(base+2)}, {v(base+3)}")
            A(f"v_cvt_pk_bf16_f32 {v(TMP)}, {v(base+4)}, {v(base+5)}")
            A(f"v_cvt_pk_bf16_f32 {v(TMP+1)}, {v(base+6)}, {v(base+7)}")
            if qt == 0:
                A(f"v_mov_b32 {v(TMP+2)}, 0")
                A(f"v_mov_b32 {v(TMP+3)}, 0")
            else:
                A(f"v_cvt_pk_bf16_f32 {v(TMP+2)}, {v(base+8)}, {v(base+9)}")
                A(f"v_cvt_pk_bf16_f32 {v(TMP+3)}, {v(base+10)}, {v(base+11)}")
            A.nop(2)
            for t in range(8):
                A(f"v_mfma_f32_16x16x32_bf16 {v(accO+t*4,4)}, {v(VF+t*4,4)}, {v(TMP,4)}, 0")
            for t in range(8):
                A(f"v_mfma_f32_16x16x16_bf16 {v(accO+t*4,4)}, {v(VMF+t*2,2)}, {v(pq+4,2)}, {v(accO+t*4,4)}")
            A.nop(8)
            A(f"s_add_u32 s{sTmp}, s{sSeg}, {sg*32}")
            A(f"s_lshl_b32 s{sTmp}, s{sTmp}, 1")
            A(f"s_sub_u32 s{sTmp}, s{sTmp}, s{sH}")
            A(f"s_add_u32 s{sTmp}, s{sTmp}, {qt*32}")
            A(f"s_lshl_b32 s{sTmp}, s{sTmp}, 12")
            A(f"s_add_u32 s{sTmp}, s{sTmp}, {WS_O:#x}")
            for s_ in range(4):
                for j in range(4):
                    A(f"v_cvt_pk_bf16_f32 {v(OB+s_*4+j)}, {v(accO+s_*8+2*j)}, {v(accO+s_*8+2*j+1)}")
            Lrm, Lrd = A.newlabel("Lrm"), A.newlabel("Lrd")
            if rm_below is not None:
                A(f"s_cmp_lt_u32 s{sRB}, {rm_below}")
                A(f"s_cbranch_scc1 {Lrm}")
            for s_ in range(4):
                A(f"buffer_store_dwordx4 {v(OB+s_*4,4)}, {v(vL16)}, {srd(sWS)}, s{sTmp} offen offset:{s_*1024}{sc}")
            if rm_below is not None:
                A(f"s_branch {Lrd}")
                A.label(Lrm)
                A(f"s_add_u32 s{sTmp}, s{sSeg}, {sg*32}")
                A(f"s_sub_u32 s{sTmp}, s{sTmp}, s{sH}")
                A(f"s_add_u32 s{sTmp}, s{sTmp}, {qt*16}")
                A(f"s_lshl_b32 s{sTmp}, s{sTmp}, 13")
                A(f"s_lshl_b32 s{sTmp2}, s{sH}, 8")
                A(f"s_add_u32 s{sTmp}, s{sTmp}, s{sTmp2}")
                A(f"s_add_u32 s{sTmp}, s{sTmp}, {WS_O:#x}")
                A(f"v_lshlrev_b32 {v(T0)}, 13, {v(vN)}")
                A(f"v_lshl_add_u32 {v(T0)}, {v(vG)}, 3, {v(T0)}")
                for t in range(8):
                    A(f"buffer_store_dwordx2 {v(OB+t*2,2)}, {v(T0)}, {srd(sWS)}, s{sTmp} offen offset:{t*32}{sc}")
                A.label(Lrd)
            A.nop(2)


def gen_outp(A, name="outp_kernel", RT=4):
    kernel_header(A, name)
    Lend = A.newlabel("Lend")
    ntask = (128 // RT) * 8
    w_prologue(A, Lend, ntask)
    make_srd(A, sWS, 36, WS_BYTES)
    sCB = sH
    A(f"s_and_b32 s{sCB}, s2, 7")
    A(f"s_lshr_b32 s{sRB}, s2, 3")
    outp_body(A, RT, sCB)
    A.label(Lend)
    A("s_endpgm")
    return kernel_desc(name, 512, 102, 256)


def outp_body(A, RT, sCB):
    make_srd(A, sWO, 34, 4096 * 1280)
    make_srd(A, sXS, 38, 2048 * 2560)
    R = RegAlloc(6, 256)
    T0, T1, T2 = R.alloc(), R.alloc(), R.alloc()
    vWo = R.alloc(5)
    vOf, vTr, vLw, vOut = R.alloc(), R.alloc(), R.alloc(), R.alloc()
    OF = [R.alloc(4 * RT) for _ in range(4)]
    WF = [R.alloc(20) for _ in range(2)]
    TMP = R.alloc(16)
    sL, sKo, sKw = 50, 51, 52
    A(f"s_mul_i32 s{sTmp}, s{sCB}, 160")
    A(f"s_mul_i32 s{sTmp2}, s{sWave}, {1024*1280}")
    A(f"s_add_u32 s{sTmp}, s{sTmp}, s{sTmp2}")
    for i in range(5):
        A(f"v_add_u32 {v(T0)}, {64*i}, {v(vLane)}")
        A(f"v_mul_u32_u24 {v(T1)}, 205, {v(T0)}")
        A(f"v_lshrrev_b32 {v(T1)}, 11, {v(T1)}")
        A(f"v_mul_u32_u24 {v(T2)}, 10, {v(T1)}")
        A(f"v_sub_u32 {v(T0)}, {v(T0)}, {v(T2)}")
        A(f"v_mul_u32_u24 {v(T1)}, 1280, {v(T1)}")
        A(f"v_lshl_add_u32 {v(T0)}, {v(T0)}, 4, {v(T1)}")
        A(f"v_add_u32 {v(vWo+i)}, s{sTmp}, {v(T0)}")
    assert all((i * 205) >> 11 == i // 10 for i in range(320))
    A(f"s_mul_i32 s{sTmp}, s{sRB}, {RT*131072}")
    A(f"s_lshl_b32 s{sTmp2}, s{sWave}, 15")
    A(f"s_add_u32 s{sTmp}, s{sTmp}, s{sTmp2}")
    A(f"s_add_u32 s{sTmp}, s{sTmp}, {WS_O:#x}")
    A(f"v_lshlrev_b32 {v(T0)}, 4, {v(vLane)}")
    A(f"v_add_u32 {v(vOf)}, s{sTmp}, {v(T0)}")
    A(f"s_mul_i32 s{sL}, s{sWave}, 20480")
    A(f"v_lshrrev_b32 {v(T1)}, 2, {v(vN)}")
    A(f"v_lshl_add_u32 {v(T1)}, {v(vG)}, 2, {v(T1)}")
    A(f"v_mul_u32_u24 {v(T1)}, 160, {v(T1)}")
    A(f"v_and_b32 {v(T2)}, 3, {v(vN)}")
    A(f"v_lshl_add_u32 {v(T1)}, {v(T2)}, 3, {v(T1)}")
    A(f"v_add_u32 {v(vTr)}, s{sL}, {v(T1)}")
    A(f"s_mov_b32 s{sKo}, 0")
    A(f"s_mov_b32 s{sKw}, 0")
    for i in range(RT * 20):
        A(f"v_accvgpr_write_b32 a{i}, 0")
    vq = Q(A, "vmcnt", 63)
    lq = Q(A, "lgkmcnt", 15)

    def load(slot):
        g = []
        for i in range(5):
            g.append([f"s_add_u32 m0, s{sL}, {slot*5120 + i*1024}", "s_nop 0",
                      f"buffer_load_dwordx4 {v(vWo+i)}, {srd(sWO)}, s{sKw} offen lds"])
        for rt in range(RT):
            g.append([f"s_add_u32 s{sTmp}, s{sKo}, {rt*131072}",
                      f"buffer_load_dwordx4 {v(OF[slot]+rt*4,4)}, {v(vOf)}, {srd(sWS)}, s{sTmp} offen"])
        g.append([f"s_add_u32 s{sKw}, s{sKw}, {32*1280}", f"s_add_u32 s{sKo}, s{sKo}, 1024"])
        return g

    def emit_load(slot):
        for grp in load(slot):
            for ins in grp:
                A(ins)
    D = 5 + RT

    def rd(slot, par):
        for t in range(5):
            A(f"ds_read_b64_tr_b16 {v(WF[par]+t*4,2)}, {v(vTr)} offset:{slot*5120 + t*32}")
            A(f"ds_read_b64_tr_b16 {v(WF[par]+t*4+2,2)}, {v(vTr)} offset:{slot*5120 + t*32 + 16*160}")
    for slot in range(3):
        emit_load(slot)
    A(f"s_waitcnt vmcnt({2*D})")
    rd(0, 0)
    A(f"s_mov_b32 s{sIt}, 0")
    Lloop = A.newlabel("Lop")
    A.label(Lloop)
    for slot in range(4):
        par = slot % 2
        A(f"s_waitcnt vmcnt({D}) lgkmcnt(0)")
        rd((slot + 1) % 4, 1 - par)
        grps = load((slot + 3) % 4)
        for t in range(5):
            for rt in range(RT):
                acc = a((t * RT + rt) * 4, 4)
                A(f"v_mfma_f32_16x16x32_bf16 {acc}, {v(WF[par]+t*4,4)}, {v(OF[slot]+rt*4,4)}, {acc}")
                if grps and rt % 2 == 1:
                    for ins in grps.pop(0):
                        A(ins)
        for grp in grps:
            for ins in grp:
                A(ins)
    A(f"s_add_u32 s{sIt}, s{sIt}, 1")
    A(f"s_cmp_lt_u32 s{sIt}, 8")
    A(f"s_cbranch_scc1 {Lloop}")
    A("s_waitcnt vmcnt(0) lgkmcnt(0)")
    A("s_barrier")
    NTL = 5 * RT
    A(f"s_mul_i32 s{sTmp}, s{sWave}, {NTL*1024}")
    A(f"v_lshlrev_b32 {v(T0)}, 4, {v(vLane)}")
    A(f"v_add_u32 {v(vLw)}, s{sTmp}, {v(T0)}")
    A.nop(4)
    for i in range(NTL):
        A(f"ds_write_b128 {v(vLw)}, {a(i*4,4)} offset:{i*1024}")
    A("s_waitcnt lgkmcnt(0)")
    A("s_barrier")
    RPW = RT // 4
    A(f"s_mul_i32 s{sTmp}, s{sWave}, {RPW*1024}")
    A(f"v_add_u32 {v(vLw)}, s{sTmp}, {v(T0)}")
    A(f"v_add_u32 {v(vTr)}, {2*NTL*1024}, {v(vLw)}")
    A(f"s_mul_i32 s{sTmp}, s{sRB}, {RT}")
    A(f"s_mul_i32 s{sTmp2}, s{sWave}, {RPW}")
    A(f"s_add_u32 s{sTmp}, s{sTmp}, s{sTmp2}")
    A(f"s_mul_i32 s{sTmp}, s{sTmp}, {16*2560}")
    A(f"s_mul_i32 s{sTmp2}, s{sCB}, 160")
    A(f"s_add_u32 s{sTmp}, s{sTmp}, s{sTmp2}")
    A(f"s_add_u32 s{sTmp}, s{sTmp}, 1280")
    A(f"v_mul_u32_u24 {v(T1)}, 2560, {v(vN)}")
    A(f"v_lshl_add_u32 {v(T1)}, {v(vG)}, 3, {v(T1)}")
    A(f"v_add_u32 {v(vOut)}, s{sTmp}, {v(T1)}")
    for j in range(RPW):
        for t in range(5):
            for w in range(4):
                ad = vLw if w < 2 else vTr
                A(f"ds_read_b128 {v(TMP+w*4,4)}, {v(ad)} offset:{(w%2)*NTL*1024 + (t*RT+j)*1024}")
            A("s_waitcnt lgkmcnt(0)")
            for i in range(4):
                A(f"v_add_f32 {v(TMP+i)}, {v(TMP+i)}, {v(TMP+4+i)}")
                A(f"v_add_f32 {v(TMP+8+i)}, {v(TMP+8+i)}, {v(TMP+12+i)}")
            for i in range(4):
                A(f"v_add_f32 {v(TMP+i)}, {v(TMP+i)}, {v(TMP+8+i)}")
            o = OF[0] + (t % 2) * 2
            A(f"v_cvt_pk_bf16_f32 {v(o)}, {v(TMP)}, {v(TMP+1)}")
            A(f"v_cvt_pk_bf16_f32 {v(o+1)}, {v(TMP+2)}, {v(TMP+3)}")
            A(f"s_mov_b32 s{sTmp}, {j*16*2560}")
            A(f"buffer_store_dwordx2 {v(o,2)}, {v(vOut)}, {srd(sXS)}, s{sTmp} offen offset:{t*32}")


def outp_fast_body(A, sIdx, rowtile0, wait_hook, nblk=2):
    make_srd(A, sWO, 34, 4096 * 1280)
    make_srd(A, sXS, 38, 2048 * 2560)
    R = RegAlloc(6, 256)
    T0, T1, T2 = R.alloc(), R.alloc(), R.alloc()
    vWo, vTr, vOf, vLw, vOut = R.alloc(), R.alloc(), R.alloc(), R.alloc(), R.alloc()
    acc = R.alloc(12)
    TMP = R.alloc(16)
    WJ = R.alloc(48)
    assert R.next <= 96
    WV = 96
    OFR = 128
    sL, sCb, sRt = 50, 51, 52

    def wreg(hh, t, s_):
        i = (hh * 12 + t * 4 + s_) * 4
        return a(i, 4) if i < 256 else v(WV + i - 256, 4)

    def wreg2(hh, t, s_, half):
        i = (hh * 12 + t * 4 + s_) * 4 + half * 2
        return a(i, 2) if i < 256 else v(WV + i - 256, 2)
    A(f"s_and_b32 s{sCb}, s{sIdx}, 15")
    sRtEnd = 53
    A(f"s_lshr_b32 s{sRt}, s{sIdx}, 4")
    A(f"s_add_u32 s{sRtEnd}, s{sRt}, 1")
    A(f"s_cmp_eq_u32 s{sRt}, 4")
    A(f"s_cselect_b32 s{sRtEnd}, 6, s{sRtEnd}")
    A(f"s_cmp_eq_u32 s{sRt}, 5")
    A(f"s_cselect_b32 s{sRtEnd}, 8, s{sRtEnd}")
    A(f"s_cselect_b32 s{sRt}, 6, s{sRt}")
    A(f"s_lshl_b32 s{sL}, s{sWave}, 15")
    A(f"s_mul_i32 s{sTmp}, s{sWave}, {1024*1280}")
    A(f"s_mul_i32 s{sTmp2}, s{sCb}, 80")
    A(f"s_add_u32 s{sTmp}, s{sTmp}, s{sTmp2}")
    A(f"v_lshrrev_b32 {v(T0)}, 3, {v(vLane)}")
    A(f"v_mul_u32_u24 {v(T0)}, 1280, {v(T0)}")
    A(f"v_and_b32 {v(T1)}, 7, {v(vLane)}")
    A(f"v_lshl_add_u32 {v(T0)}, {v(T1)}, 4, {v(T0)}")
    A(f"v_add_u32 {v(vWo)}, s{sTmp}, {v(T0)}")
    A(f"v_lshrrev_b32 {v(T0)}, 2, {v(vN)}")
    A(f"v_lshl_add_u32 {v(T0)}, {v(vG)}, 2, {v(T0)}")
    A(f"v_lshlrev_b32 {v(T0)}, 7, {v(T0)}")
    A(f"v_and_b32 {v(T1)}, 3, {v(vN)}")
    A(f"v_lshl_add_u32 {v(T0)}, {v(T1)}, 3, {v(T0)}")
    A(f"v_add_u32 {v(vTr)}, s{sL}, {v(T0)}")

    def dma(hh):
        for i in range(16):
            A(f"s_add_u32 m0, s{sL}, {(hh%2)*16384 + i*1024}")
            A(f"s_mov_b32 s{sTmp}, {(hh*128 + i*8)*1280}")
            A(f"buffer_load_dwordx4 {v(vWo)}, {srd(sWO)}, s{sTmp} offen lds")

    def trs(hh, dst):
        for t in range(3):
            for s_ in range(4):
                for half in range(2):
                    A(f"ds_read_b64_tr_b16 {dst(t,s_,half)}, {v(vTr)} offset:{(hh%2)*16384 + s_*4096 + t*32 + half*2048}")
            A("s_waitcnt lgkmcnt(0)")
    dma(0)
    dma(1)
    for hh in range(6):
        A("s_waitcnt vmcnt(16)")
        trs(hh, lambda t, s_, half, hh=hh: wreg2(hh, t, s_, half))
        dma(hh + 2)
    A("s_waitcnt vmcnt(0)")
    sBlk, sRt0 = 54, 55
    A(f"s_mov_b32 s{sRt0}, s{sRt}")
    A(f"s_mov_b32 s{sBlk}, 0")
    Lblk = A.newlabel("Lofb")
    A.label(Lblk)
    wait_hook(sBlk)
    Lrt = A.newlabel("Lofl")
    A.label(Lrt)
    A(f"s_add_u32 s{sTmp}, s{sRt}, {rowtile0}")
    A(f"s_lshl_b32 s{sTmp}, s{sTmp}, 17")
    A(f"s_lshl_b32 s{sTmp2}, s{sWave}, 15")
    A(f"s_add_u32 s{sTmp}, s{sTmp}, s{sTmp2}")
    A(f"s_add_u32 s{sTmp}, s{sTmp}, {WS_O:#x}")
    A(f"v_lshlrev_b32 {v(T0)}, 4, {v(vLane)}")
    A(f"v_add_u32 {v(vOf)}, s{sTmp}, {v(T0)}")
    order = [6, 0, 1, 2, 3, 4, 5, 7]
    for hh in order:
        for s_ in range(4):
            k = hh * 4 + s_
            A(f"s_mov_b32 s{sTmp}, {(k//4)*4096}")
            A(f"buffer_load_dwordx4 {v(OFR+k*4,4)}, {v(vOf)}, {srd(sWS)}, s{sTmp} offen offset:{(k%4)*1024}")
    trs(6, lambda t, s_, half: v(WJ + (t * 4 + s_) * 4 + half * 2, 2))
    first = True
    for idx, hh in enumerate(order):
        A(f"s_waitcnt vmcnt({(7-idx)*4})")
        if hh == 7:
            A("s_waitcnt lgkmcnt(0)")
        for s_ in range(4):
            for t in range(3):
                w = v(WJ + (t * 4 + s_) * 4, 4) if hh >= 6 else wreg(hh, t, s_)
                c = "0" if first and s_ == 0 else v(acc + t * 4, 4)
                A(f"v_mfma_f32_16x16x32_bf16 {v(acc+t*4,4)}, {w}, {v(OFR+(hh*4+s_)*4,4)}, {c}")
        first = False
        if idx == 1:
            for t in range(3):
                for s_ in range(4):
                    for half in range(2):
                        A(f"ds_read_b64_tr_b16 {v(WJ+(t*4+s_)*4+half*2,2)}, {v(vTr)} offset:{16384 + s_*4096 + t*32 + half*2048}")
                if t < 2:
                    A("s_waitcnt lgkmcnt(8)")
    A("s_barrier")
    A(f"s_mul_i32 s{sTmp}, s{sWave}, 3072")
    A(f"s_add_u32 s{sTmp}, s{sTmp}, 0x20000")
    A(f"v_add_u32 {v(vLw)}, s{sTmp}, {v(T0)}")
    A.nop(6)
    for t in range(3):
        A(f"ds_write_b128 {v(vLw)}, {v(acc+t*4,4)} offset:{t*1024}")
    A("s_waitcnt lgkmcnt(0)")
    A("s_barrier")
    Lx = A.newlabel("Lofx")
    A(f"s_cmp_eq_u32 s{sWave}, 3")
    A(f"s_cbranch_scc1 {Lx}")
    A(f"s_lshl_b32 s{sTmp}, s{sWave}, 10")
    A(f"s_add_u32 s{sTmp}, s{sTmp}, 0x20000")
    A(f"v_add_u32 {v(vLw)}, s{sTmp}, {v(T0)}")
    for w in range(4):
        A(f"ds_read_b128 {v(TMP+w*4,4)}, {v(vLw)} offset:{w*3072}")
    A(f"s_add_u32 s{sTmp}, s{sRt}, {rowtile0}")
    A(f"s_mul_i32 s{sTmp}, s{sTmp}, {16*2560}")
    A(f"s_mul_i32 s{sTmp2}, s{sCb}, 80")
    A(f"s_add_u32 s{sTmp}, s{sTmp}, s{sTmp2}")
    A(f"s_lshl_b32 s{sTmp2}, s{sWave}, 5")
    A(f"s_add_u32 s{sTmp}, s{sTmp}, s{sTmp2}")
    A(f"s_add_u32 s{sTmp}, s{sTmp}, 1280")
    A(f"v_mul_u32_u24 {v(T1)}, 2560, {v(vN)}")
    A(f"v_lshl_add_u32 {v(T1)}, {v(vG)}, 3, {v(T1)}")
    A(f"v_add_u32 {v(vOut)}, s{sTmp}, {v(T1)}")
    A(f"s_cmp_eq_u32 s{sWave}, 2")
    A("s_cselect_b32 exec_hi, 0, -1")
    A("s_waitcnt lgkmcnt(0)")
    for i in range(4):
        A(f"v_add_f32 {v(TMP+i)}, {v(TMP+i)}, {v(TMP+4+i)}")
        A(f"v_add_f32 {v(TMP+8+i)}, {v(TMP+8+i)}, {v(TMP+12+i)}")
    for i in range(4):
        A(f"v_add_f32 {v(TMP+i)}, {v(TMP+i)}, {v(TMP+8+i)}")
    A(f"v_cvt_pk_bf16_f32 {v(TMP+4)}, {v(TMP)}, {v(TMP+1)}")
    A(f"v_cvt_pk_bf16_f32 {v(TMP+5)}, {v(TMP+2)}, {v(TMP+3)}")
    A(f"buffer_store_dwordx2 {v(TMP+4,2)}, {v(vOut)}, {srd(sXS)}, 0 offen")
    A("s_mov_b64 exec, -1")
    A.label(Lx)
    A("s_waitcnt vmcnt(0)")
    A(f"s_add_u32 s{sRt}, s{sRt}, 1")
    A(f"s_cmp_lt_u32 s{sRt}, s{sRtEnd}")
    A(f"s_cbranch_scc1 {Lrt}")
    A(f"s_add_u32 s{sRt0}, s{sRt0}, 8")
    A(f"s_add_u32 s{sRtEnd}, s{sRtEnd}, 8")
    A(f"s_mov_b32 s{sRt}, s{sRt0}")
    A(f"s_add_u32 s{sBlk}, s{sBlk}, 1")
    A(f"s_cmp_lt_u32 s{sBlk}, {nblk}")
    A(f"s_cbranch_scc1 {Lblk}")


def outp2_body(A):
    make_srd(A, sWO, 34, 4096 * 1280)
    make_srd(A, sWA, 38, 2048 * 2560)
    R = RegAlloc(6, 256)

    def acc_of(m, t, rt):
        return a((t * 2 + rt) * 4, 4)
    proj_gemm(A, 1, [sWO], acc_of, R, None, RTW=2, niter=32, w_pitch=1280, xsrd=sWS, x_base=WS_O, x_pitch=8192, NST=8)
    R.next = 6
    T0, vSt = R.alloc(), R.alloc()
    TMP = R.alloc(4)
    O = [R.alloc(2) for _ in range(4)]
    A(f"s_lshl_b32 s{sTmp}, s{sRB}, 2")
    A(f"s_add_u32 s{sTmp}, s{sTmp}, s{sWave}")
    A(f"s_mul_i32 s{sTmp}, s{sTmp}, {32*2560}")
    A(f"s_lshl_b32 s{sTmp2}, s{sH}, 8")
    A(f"s_add_u32 s{sTmp}, s{sTmp}, s{sTmp2}")
    A(f"s_add_u32 s{sTmp}, s{sTmp}, 1280")
    A(f"v_mul_u32_u24 {v(T0)}, 2560, {v(vN)}")
    A(f"v_lshl_add_u32 {v(T0)}, {v(vG)}, 3, {v(T0)}")
    A(f"v_add_u32 {v(vSt)}, s{sTmp}, {v(T0)}")
    i = 0
    for rt in range(2):
        A(f"s_mov_b32 s{sTmp}, {rt*16*2560}")
        for t in range(8):
            o = O[i % 4]
            i += 1
            ab = (t * 2 + rt) * 4
            for r in range(4):
                A(f"v_accvgpr_read_b32 {v(TMP+r)}, a{ab+r}")
            A(f"v_cvt_pk_bf16_f32 {v(o)}, {v(TMP)}, {v(TMP+1)}")
            A(f"v_cvt_pk_bf16_f32 {v(o+1)}, {v(TMP+2)}, {v(TMP+3)}")
            A(f"buffer_store_dwordx2 {v(o,2)}, {v(vSt)}, {srd(sWA)}, s{sTmp} offen offset:{t*32}")


def q_body(A, sc):
    RTW = 8
    make_srd(A, sXS, 24, 2048 * 1280)
    make_srd(A, sWA, 28, 640 * 8192)
    R = RegAlloc(6, 256)

    def acc_of(m, t, rt):
        return a((t * RTW + rt) * 4, 4)
    proj_gemm(A, 1, [sWA], acc_of, R, None, RTW=RTW, NST=4)
    R.next = 6
    vSt = R.alloc()
    TMP = R.alloc(8)
    O = [R.alloc(4) for _ in range(4)]
    A(f"s_lshl_b32 s{sTmp}, s{sRB}, 2")
    A(f"s_add_u32 s{sTmp}, s{sTmp}, s{sWave}")
    A(f"s_mul_i32 s{sTmp}, s{sTmp}, {4*32}")
    A(f"s_add_u32 s{sTmp}, s{sTmp}, s{sH}")
    A(f"s_lshl_b32 s{sTmp}, s{sTmp}, 13")
    A(f"v_lshlrev_b32 {v(vSt)}, 4, {v(vLane)}")
    A(f"v_add_u32 {v(vSt)}, s{sTmp}, {v(vSt)}")
    i = 0
    for rt in range(RTW):
        for s_ in range(4):
            o = O[i % 4]
            i += 1
            for half in range(2):
                ab = ((2 * s_ + half) * RTW + rt) * 4
                for k in range(4):
                    A(f"v_accvgpr_read_b32 {v(TMP+half*4+k)}, a{ab+k}")
            for j in range(4):
                A(f"v_cvt_pk_bf16_f32 {v(o+j)}, {v(TMP+2*j)}, {v(TMP+2*j+1)}")
            A(f"s_mov_b32 s{sTmp2}, {WS_QX + (rt//2)*32*8192 + ((rt%2)*4+s_)*1024:#x}")
            A(f"buffer_store_dwordx4 {v(o,4)}, {v(vSt)}, {srd(sWS)}, s{sTmp2} offen{sc}")


def gen_gtest(A, name, RTW):
    kernel_header(A, name)
    Lend = A.newlabel("Lend")
    w_prologue(A, Lend, 128)
    make_srd(A, sWS, 36, WS_BYTES)
    A(f"s_and_b32 s{sH}, s2, 31")
    A(f"s_lshr_b32 s{sRB}, s2, 5")
    make_srd(A, sXS, 24, 2048 * 1280)
    make_srd(A, sWA, 30, 640 * 8192)
    make_srd(A, sWB, 32, 640 * 8192)
    R = RegAlloc(6, 128)

    def acc_of(m, t, rt):
        i = (((1 - m) * 8 + t) * RTW + rt) * 4
        return a(i, 4) if i < 256 else v(128 + i - 256, 4)
    proj_gemm(A, 2, [sWA, sWB], acc_of, R, None, RTW=RTW, NST=4, niter=50)
    A.label(Lend)
    A("s_endpgm")
    return kernel_desc(name, 512, 102, 256)
```

```python
import sys
sys.path.insert(0, "gen")
from asmlib import *
import parta, wside, rec, fused
NAME = "concat_heads__spectral_gfnet__memory_aug_recurrent_mem_tr__prompt"
for x in sys.argv:
    if x.startswith("-D"):
        k, val = x[2:].split("="); setattr(rec, k, int(val))
    if x.startswith("-P"):
        k, val = x[2:].split("="); setattr(parta, k, int(val))
    if x.startswith("-F"):
        k, val = x[2:].split("="); setattr(fused, k, int(val))
exp = [x[2:] for x in sys.argv if x.startswith("-e")]
fused.TL = "tl" in exp
if "nosc" in exp: fused.SC = ""
A = Asm()
hdr = open(f"cdna_kernels/{NAME}.s.ref").read().split("\n")
for ln in hdr:
    if ln.startswith(";") and "@launch" not in ln and "Override launch" not in ln and "grid=ceil" not in ln:
        A.raw(ln)
A.raw(f"; @launch kernel=main_kernel grid=(256,1,1) block=(256,1,1) lds=163840")
A.raw('.amdgcn_target "amdgcn-amd-amdhsa--gfx950"')
d = rec.gen_rec(A, "main_kernel", wrole=fused.wrole, exp=exp, prof="--prof" in sys.argv)
outs = [x for x in sys.argv[1:] if x.endswith(".s")]
out = outs[0] if outs else f"cdna_kernels/{NAME}.s"
open(out, "w").write(A.text() + d)
print(len(A.text() + d))
```

```python
from asmlib import *
from layout import *
from wside import *
import parta

SPIN = 4000000
sW, sJ, sHead, sRnd, sPoll = 70, 71, 72, 73, 74


TL = False
A3_AT = 9
NRM = 6
STAG = 3
SC = " sc1"


def wrole(A, sIdx, confirm):
    Lq = A.newlabel("Lwq")

    def tl():
        if not TL:
            return
        Ls = A.newlabel("Ltl")
        A(f"s_cmp_lg_u32 s{sWave}, 0")
        A(f"s_cbranch_scc1 {Ls}")
        A("s_memrealtime s[78:79]")
        A("s_waitcnt lgkmcnt(0)")
        A("s_mov_b64 exec, 1")
        A("v_mov_b32 v4, s78")
        A("v_mov_b32 v5, 0")
        A(f"buffer_store_dword v4, v5, {srd(sWS)}, s80 offen")
        A("s_mov_b64 exec, -1")
        A("s_add_u32 s80, s80, 4")
        A.label(Ls)
        return 1
    A(f"s_mov_b32 s{sW}, s{sIdx}")
    A("s_load_dwordx4 s[24:27], s[0:1], 24")
    A("s_load_dwordx8 s[28:35], s[0:1], 40")
    A("s_load_dwordx2 s[36:37], s[0:1], 96")
    A("s_load_dwordx2 s[38:39], s[0:1], 80")
    A("s_load_dwordx2 s[76:77], s[0:1], 0")
    A("v_and_b32 v1, 63, v0")
    A("v_lshrrev_b32 v5, 6, v0")
    A("v_and_b32 v2, 15, v0")
    A(f"v_readfirstlane_b32 s{sWave}, v5")
    A("v_bfe_u32 v3, v0, 4, 2")
    A("s_waitcnt lgkmcnt(0)")
    make_srd(A, sWS, 36, WS_BYTES)
    A(f"s_lshr_b32 s{sHead}, s{sW}, 5")
    A(f"s_lshl_b32 s{sHead}, s{sHead}, 3")
    A(f"s_and_b32 s{sTmp}, s{sW}, 7")
    A(f"s_add_u32 s{sHead}, s{sHead}, s{sTmp}")
    A(f"s_bfe_u32 s{sJ}, s{sW}, 0x20003")
    A(f"s_lshl_b32 s80, s{sW}, 8")
    A(f"s_add_u32 s80, s80, {WS_PROF + 65536:#x}")
    tl()

    def signal(off_sreg, n=1, stride=0):
        Ls = A.newlabel("Lsig")
        A("s_waitcnt vmcnt(0)")
        A("s_barrier")
        A(f"s_cmp_lg_u32 s{sWave}, 0")
        A(f"s_cbranch_scc1 {Ls}")
        A("s_mov_b64 exec, 1")
        A("v_mov_b32 v4, 1")
        A("v_mov_b32 v5, 0")
        for i in range(n):
            A(f"buffer_atomic_add v4, v5, {srd(sWS)}, s{off_sreg} offen")
            if i < n - 1:
                A(f"s_add_u32 s{off_sreg}, s{off_sreg}, {stride}")
        A("s_mov_b64 exec, -1")
        A.label(Ls)
        tl()

    def wait(off_sreg, target):
        Lp, Ld = A.newlabel("Lwt"), A.newlabel("Lwtd")
        A(f"s_cmp_lg_u32 s{sWave}, 0")
        A(f"s_cbranch_scc1 {Ld}")
        A("v_mov_b32 v5, 0")
        A(f"s_mov_b32 s{sPoll}, 0")
        A.label(Lp)
        A(f"buffer_load_dword v4, v5, {srd(sWS)}, s{off_sreg} offen sc1")
        A("s_waitcnt vmcnt(0)")
        A(f"v_cmp_gt_u32 vcc, {target:#x}, v4")
        A(f"s_cbranch_vccz {Ld}")
        A("s_sleep 8")
        A(f"s_add_u32 s{sPoll}, s{sPoll}, 1")
        A(f"s_cmp_lt_u32 s{sPoll}, {SPIN}")
        A(f"s_cbranch_scc1 {Lp}")
        A.label(Ld)
        A("s_barrier")
        tl()

    def cnt_rbh(base):
        A(f"s_lshl_b32 s75, s{sRB}, 12")
        A(f"s_lshl_b32 s{sTmp}, s{sH}, 7")
        A(f"s_add_u32 s75, s75, s{sTmp}")
        A(f"s_add_u32 s75, s75, {WS_CNT + base:#x}")

    def cond_block(cmps, body):
        Lskip = A.newlabel("Lcs")
        for c in cmps:
            Lgo = A.newlabel("Lcg")
            A(c)
            A(f"s_cbranch_scc1 {Lgo}")
            A(f"s_branch {Lskip}")
            A.label(Lgo)
        body()
        A.label(Lskip)

    def confirm_lds():
        confirm(sWave)

    A(f"s_mov_b32 s{sRnd}, 0")
    Lk = A.newlabel("Lkvu")
    A.label(Lk)
    A(f"s_lshl_b32 s{sRB}, s{sRnd}, 2")
    A(f"s_add_u32 s{sRB}, s{sRB}, s{sJ}")
    A(f"s_mov_b32 s{sH}, s{sHead}")

    def u_hook():
        def w():
            confirm_lds()
            A(f"s_sub_u32 s75, s{sRB}, 1")
            A(f"s_lshl_b32 s75, s75, 12")
            A(f"s_lshl_b32 s86, s{sH}, 7")
            A(f"s_add_u32 s75, s75, s86")
            A(f"s_add_u32 s75, s75, {WS_CNT + CNT_KVU:#x}")
            wait(75, 1)
        cond_block([f"s_cmp_eq_u32 s{sRnd}, 0", f"s_cmp_gt_u32 s{sJ}, 0", f"s_cmp_le_u32 s{sJ}, {STAG}"], w)
    kvu_body(A, 2, SC, tl=tl, u_hook=u_hook)
    cnt_rbh(CNT_KVU)
    signal(75)
    confirm_lds()
    A(f"s_add_u32 s{sRnd}, s{sRnd}, 1")
    A(f"s_cmp_lt_u32 s{sRnd}, 2")
    Lk2 = A.newlabel("Lkvu2")
    A(f"s_cbranch_scc0 {Lk2}")
    A(f"s_branch {Lk}")
    A.label(Lk2)
    def idx40(dst, ja, jb):
        A(f"s_add_u32 s{dst}, s{sHead}, 32")
        A(f"s_cmp_eq_u32 s{sJ}, {jb}")
        A(f"s_cselect_b32 s{dst}, s{dst}, 99")
        A(f"s_cmp_eq_u32 s{sJ}, {ja}")
        A(f"s_cselect_b32 s{dst}, s{sHead}, s{dst}")

    def do_a1():
        A(f"s_mov_b32 s75, {WS_CNT + CNT_CONST:#x}")
        wait(75, 512)
        A(f"s_and_b32 s{sRB}, s85, 7")
        A(f"s_lshr_b32 s{sH}, s85, 3")
        parta.a1_body(A, 76, " sc1")
        A(f"s_mov_b32 s75, {WS_CNT + CNT_A1:#x}")
        signal(75)
    idx40(85, 1, 2)
    cond_block(["s_cmp_lt_u32 s85, 40"], do_a1)
    A(f"s_mov_b32 s{sRB}, s{sJ}")
    A(f"s_mov_b32 s{sH}, s{sHead}")
    kvu_body(A, 4, SC, seg_base=32, tl=tl)
    A(f"s_lshl_b32 s{sRB}, s{sJ}, 1")
    A(f"s_add_u32 s{sRB}, s{sRB}, 8")
    cnt_rbh(CNT_KVU)
    signal(75, 2, 4096)

    def do_a2():
        A(f"s_mov_b32 s75, {WS_CNT + CNT_A1:#x}")
        wait(75, 40)
        La = A.newlabel("La2l")
        A.label(La)
        A(f"s_lshl_b32 s{sH}, s85, 2")
        A(f"s_add_u32 s{sH}, s{sH}, s{sWave}")
        cond_block([f"s_cmp_le_u32 s{sH}, 320"], lambda: parta.a2_body(A, " sc1"))
        A(f"s_mov_b32 s75, {WS_CNT + CNT_A2:#x}")
        signal(75)
        A("s_add_u32 s85, s85, 32")
        A("s_cmp_lt_u32 s85, 64")
        Lb = A.newlabel("La2e")
        A(f"s_cbranch_scc0 {Lb}")
        A(f"s_branch {La}")
        A.label(Lb)
    A(f"s_add_u32 s85, s{sHead}, 56")
    A(f"s_cmp_lt_u32 s{sHead}, 8")
    A(f"s_cselect_b32 s85, 99, s85")
    A(f"s_cmp_lt_u32 s{sJ}, 2")
    A(f"s_cselect_b32 s85, 99, s85")
    A(f"s_cmp_eq_u32 s{sJ}, 3")
    A(f"s_cselect_b32 s85, s{sHead}, s85")
    cond_block(["s_cmp_lt_u32 s85, 81"], do_a2)

    def do_a3():
        A(f"s_mov_b32 s75, {WS_CNT + CNT_A2:#x}")
        wait(75, 81)
        A(f"s_and_b32 s{sRB}, s{sHead}, 1")
        A(f"s_lshr_b32 s{sH}, s{sHead}, 1")
        parta.a3_body(A)
        A("s_barrier")
        tl()
    cond_block([f"s_cmp_eq_u32 s{sJ}, 3"], do_a3)
    A(f"s_mov_b32 s{sRB}, s{sJ}")
    A(f"s_mov_b32 s{sH}, s{sHead}")
    q_body(A, " sc1")
    cnt_rbh(CNT_Q)
    signal(75)

    def do_att():
        A(f"s_mov_b32 s{sRnd}, 0")
        Lt = A.newlabel("Latt")
        A.label(Lt)
        A(f"s_mov_b32 s{sH}, s{sHead}")
        A(f"s_lshr_b32 s{sRB}, s{sRnd}, 2")
        cnt_rbh(CNT_Q)
        wait(75, 1)
        A(f"s_mov_b32 s{sRB}, s{sRnd}")
        cnt_rbh(CNT_KVU)
        wait(75, 1)

        def hook():
            cnt_rbh(CNT_MEM)
            wait(75, 16)
        att_body(A, 2, " sc1", hook, rm_below=NRM, light=True)
        A(f"s_lshl_b32 s75, s{sRB}, 7")
        A(f"s_add_u32 s75, s75, {WS_CNT + CNT_ATT:#x}")
        signal(75)
        A(f"s_add_u32 s{sRnd}, s{sRnd}, 1")
        A(f"s_cmp_lt_u32 s{sRnd}, 16")
        Le = A.newlabel("Latte")
        A(f"s_cbranch_scc0 {Le}")
        A(f"s_branch {Lt}")
        A.label(Le)
        A("s_endpgm")
    cond_block([f"s_cmp_eq_u32 s{sJ}, 0"], do_att)

    def do_outp():
        A(f"s_mul_i32 s{sRB}, s85, 52")
        A(f"s_lshr_b32 s{sRB}, s{sRB}, 8")
        A(f"s_mul_i32 s{sTmp}, s{sRB}, 5")
        A(f"s_sub_u32 s{sH}, s85, s{sTmp}")
        A(f"s_lshl_b32 s75, s{sRB}, 7")
        A(f"s_add_u32 s75, s75, {WS_CNT + CNT_ATT:#x}")
        wait(75, 32)
        outp2_body(A)
        A("s_barrier")
        tl()
    assert all((c * 52) >> 8 == c // 5 for c in range(40))
    idx40(85, 2, 1)
    cond_block([f"s_cmp_lt_u32 s85, {5*NRM}"], do_outp)
    sF = 84
    A(f"s_sub_u32 s{sF}, s{sJ}, 2")
    A(f"s_lshl_b32 s{sF}, s{sF}, 5")
    A(f"s_cmp_eq_u32 s{sJ}, 1")
    A(f"s_cselect_b32 s{sF}, 64, s{sF}")
    A(f"s_add_u32 s{sF}, s{sF}, s{sHead}")

    def hook2(sBlk):
        A(f"s_lshl_b32 s75, s{sBlk}, 7")
        A(f"s_add_u32 s75, s75, {WS_CNT + CNT_ATT + NRM*128:#x}")
        wait(75, 32)
    outp_fast_body(A, sF, 8*NRM, hook2, nblk=16-NRM)
    tl()
```

```python
import struct
from asmlib import *
from layout import *


def f32bits(x):
    return struct.unpack("<I", struct.pack("<f", x))[0]


SPIN_MAX = 400000
WARM = 1
NST = 64
CDELAY = 9
KC = 1
DSLEEP = 24
AALL = 1
ADELAY = 0
VSPLIT = 4
EARLY = 1
PDELAY = 0
OOB = 0x7ff00000


def gen_rec(A, name="rec_kernel", prof=False, nsteps=64, exp=(), wrole=None):
    kernel_header(A, name)
    sWS, sM0, sW, sDBG = 4, 8, 12, 32
    sX, sT, sGrp, sMemb, sWave, sStep, sMode, sCnt = 36, 37, 38, 39, 40, 41, 42, 43
    sOffKM, sOffC, sOffD, sOffK, sTmp, sTmp2, sH, sOffU = 44, 45, 46, 47, 48, 49, 50, 51
    sRA, sRC, sRD, sRAp, sRCp, sRDp, sWarm, sOffUM = 90, 91, 92, 93, 94, 95, 96, 101
    sMaskG = 54
    sC = 58
    sEnd = 59
    sCnts = 60
    sPr = 70
    R = RegAlloc(1, 256)
    vLane, vN, vG, vN8 = R.alloc(), R.alloc(), R.alloc(), R.alloc()
    vT0, vT1, vT2, vT3 = R.alloc(), R.alloc(), R.alloc(), R.alloc()
    vD0, vD2 = R.alloc(), R.alloc()
    vRAw, vRAr, vAst, vKMst = R.alloc(), R.alloc(), R.alloc(), R.alloc()
    vRAr2, vAst2, vVMst = R.alloc(), R.alloc(), R.alloc()
    vQo, vKo = R.alloc(), R.alloc()
    vRCw, vRCr, vCst = R.alloc(), R.alloc(), R.alloc()
    vCg = R.alloc(8)
    vDst = R.alloc()
    vK0, vK1, vU = R.alloc(), R.alloc(), R.alloc()
    vWarm = R.alloc()
    vNinf = R.alloc()
    vFlag, vSig, vOne = R.alloc(), R.alloc(), R.alloc()
    vU2 = R.alloc()
    vOnes = R.alloc(4)
    vSent = R.alloc(4)
    vDummy = R.alloc(4)
    vPub = R.alloc(2)
    vPub2 = R.alloc(2)
    assert R.next <= 64
    M = R.alloc(12)
    Mr = R.alloc(8)
    accA = R.alloc(24)
    Q = R.alloc(8)
    Qr = R.alloc(8)
    KM = R.alloc(16)
    VM = R.alloc(16)
    acc1, acc2, acc0 = R.alloc(4), R.alloc(4), R.alloc(4)
    accU = R.alloc(12)
    UA = R.alloc(6)
    P0 = R.alloc(4)
    PM, Blo = R.alloc(2), R.alloc(2)
    vMx, vMx2 = R.alloc(), R.alloc()
    vRz = R.alloc(2)
    accZ = R.alloc(4)
    accC = R.alloc(12)
    Cg = R.alloc(16)
    CR = KM
    TMP = 64
    aWA, aWC, aK, aU, aUn = 0, 120, 168, 200, 212

    def WA(t, ks):
        return a(aWA + (t * 5 + ks) * 4, 4)

    def WC(t, s_):
        return a(aWC + (t * 4 + s_) * 4, 4)

    LDS_RA = 65536
    LDS_RC = 65536 + 12288
    LDS_ROLE = 163840 - 16

    Lend = A.newlabel("Lend")
    Lfail = A.newlabel("Lfail")
    WSR = f"s[{sWS}:{sWS+3}]"

    def rtl(cond8=False):
        if "tl" not in exp:
            return
        Ls = A.newlabel("Lrtl")
        A(f"s_cmp_lg_u32 s{sWave}, 3")
        A(f"s_cbranch_scc1 {Ls}")
        if cond8:
            A(f"s_and_b32 s70, s{sStep}, 7")
            A(f"s_cmp_lg_u32 s70, 0")
            A(f"s_cbranch_scc1 {Ls}")
        A("s_memrealtime s[72:73]")
        A("s_waitcnt lgkmcnt(0)")
        A("s_mov_b64 exec, 1")
        A(f"v_mov_b32 {v(vT0)}, s72")
        A(f"v_mov_b32 {v(vT1)}, 0")
        A(f"buffer_store_dword {v(vT0)}, {v(vT1)}, {WSR}, s71 offen")
        A("s_mov_b64 exec, -1")
        A("s_add_u32 s71, s71, 4")
        A.label(Ls)

    def stamp(i):
        if not prof:
            return
        if "rt" in exp:
            Ls = A.newlabel("Lst")
            A(f"s_cmp_lg_u32 s{sStep}, {30 if i != 13 else 31}")
            A(f"s_cbranch_scc1 {Ls}")
            A(f"s_memrealtime s[88:89]")
            A("s_waitcnt lgkmcnt(0)")
            A(f"s_mov_b32 s{sPr+i}, s88")
            A.label(Ls)
            return
        A(f"s_memtime s[88:89]")
        A("s_waitcnt lgkmcnt(0)")
        A(f"s_sub_u32 s{sTmp2}, s88, s86")
        A(f"s_add_u32 s{sPr+i}, s{sPr+i}, s{sTmp2}")
        A("s_mov_b32 s86, s88")

    sKX, sKT, sKR = 98, 99, 97
    assert not prof or not wrole
    A("s_cmp_ge_u32 s2, 256")
    A(f"s_cbranch_scc1 {Lend}")
    if "tl" in exp:
        A("s_memrealtime s[68:69]")
    A(f"s_mov_b32 s{sKR}, 0")
    Lentry = A.newlabel("Lentry")
    A.label(Lentry)
    A("s_waitcnt vmcnt(0) lgkmcnt(0)")
    A("s_load_dwordx8 s[16:23], s[0:1], 32")
    A("s_load_dwordx2 s[24:25], s[0:1], 64")
    A("s_load_dwordx4 s[28:31], s[0:1], 88")
    A(f"v_and_b32 {v(vLane)}, 63, v0")
    A(f"v_lshrrev_b32 {v(vT0)}, 6, v0")
    A(f"v_and_b32 {v(vN)}, 15, v0")
    A(f"v_readfirstlane_b32 s{sWave}, {v(vT0)}")
    A(f"v_bfe_u32 {v(vG)}, v0, 4, 2")
    A(f"v_and_b32 {v(vN8)}, 7, v0")
    A("s_waitcnt lgkmcnt(0)")
    make_srd(A, sWS, 30, WS_BYTES)
    make_srd(A, sM0, 16, 10240)
    make_srd(A, sDBG, 28, 256)
    make_srd(A, sW, 18, 640 * 4096 * 2)

    def confirm(swave, force_jump=False):
        Lskip, Lw0, Lp = A.newlabel("Lcf"), A.newlabel("Lcf0"), A.newlabel("Lcfp")
        A(f"s_cmp_lg_u32 s{sKR}, 0")
        A(f"s_cbranch_scc1 {Lskip}")
        A(f"s_cmp_lg_u32 s{swave}, 0")
        A(f"s_cbranch_scc1 {Lw0}")
        A("v_and_b32 v4, 63, v0")
        A("v_lshlrev_b32 v4, 8, v4")
        A(f"v_add_u32 v4, {WS_CNT:#x}, v4")
        A("s_mov_b64 exec, 0xff")
        A("s_mov_b32 s43, 0")
        A.label(Lp)
        A("buffer_load_dword v5, v4, s[4:7], 0 offen sc1")
        A("s_waitcnt vmcnt(0)")
        for i in range(8):
            A(f"v_readlane_b32 s{sCnts+i}, v5, {i}")
        A("s_nop 3")
        A(f"s_add_u32 s48, s{sCnts}, s{sCnts+1}")
        for i in range(2, 8):
            A(f"s_add_u32 s48, s48, s{sCnts+i}")
        A("s_add_u32 s43, s43, 1")
        A(f"s_cmp_gt_u32 s43, {SPIN_MAX}")
        Lok = A.newlabel("Lcfo")
        A(f"s_cbranch_scc0 {Lok}")
        A("s_endpgm")
        A.label(Lok)
        A("s_cmp_lt_u32 s48, 256")
        A(f"s_cbranch_scc1 {Lp}")
        A(f"s_min_u32 s48, s{sCnts}, s{sCnts+1}")
        for i in range(2, 8):
            A(f"s_min_u32 s48, s48, s{sCnts+i}")
        A(f"s_mov_b32 s49, s{sKT}")
        for i in range(7):
            A(f"s_cmp_gt_u32 s{sKX}, {i}")
            A(f"s_cselect_b32 s43, s{sCnts+i}, 0")
            A("s_add_u32 s49, s49, s43")
        A("s_or_b32 s49, s49, 0x300")
        A(f"s_lshl_b32 s43, s{sKX}, 5")
        A(f"s_add_u32 s43, s43, s{sKT}")
        A("s_or_b32 s43, s43, 0x200")
        A(f"s_cmp_ge_u32 s48, {33 if 'slow' in exp else 32}")
        A("s_cselect_b32 s43, s43, s49")
        A("s_mov_b64 exec, 1")
        A(f"v_mov_b32 v4, {LDS_ROLE}")
        A("v_mov_b32 v5, s43")
        A("ds_write_b32 v4, v5")
        A("s_waitcnt lgkmcnt(0)")
        A("s_mov_b64 exec, -1")
        A.label(Lw0)
        A("s_barrier")
        A(f"v_mov_b32 v4, {LDS_ROLE}")
        A("ds_read_b32 v5, v4")
        A("s_waitcnt lgkmcnt(0)")
        A(f"v_readfirstlane_b32 s{sKR}, v5")
        A("s_nop 3")
        A("s_barrier")
        if force_jump:
            A(f"s_branch {Lentry}")
        else:
            A(f"s_bitcmp1_b32 s{sKR}, 8")
            A(f"s_cbranch_scc0 {Lskip}")
            A(f"s_branch {Lentry}")
        A.label(Lskip)

    Lhave = A.newlabel("Lhave")
    A(f"s_mov_b32 s{sCnt}, s{sKR}")
    A(f"s_cmp_lg_u32 s{sKR}, 0")
    A(f"s_cbranch_scc1 {Lhave}")
    A(f"s_getreg_b32 s{sKX}, hwreg(HW_REG_XCC_ID)")
    A(f"s_and_b32 s{sKX}, s{sKX}, 7")
    Lel_done = A.newlabel("Lel")
    A(f"s_cmp_lg_u32 s{sWave}, 0")
    A(f"s_cbranch_scc1 {Lel_done}")
    A(f"s_lshl_b32 s{sTmp}, s{sKX}, 8")
    A(f"s_add_u32 s{sTmp}, s{sTmp}, {WS_CNT:#x}")
    A(f"v_mov_b32 {v(vT0)}, s{sTmp}")
    A(f"v_mov_b32 {v(vT1)}, 1")
    A("s_mov_b64 exec, 1")
    A(f"buffer_atomic_add {v(vT1)}, {v(vT0)}, {WSR}, 0 offen sc0")
    A(f"v_mov_b32 {v(vT0)}, {LDS_ROLE}")
    A("s_waitcnt vmcnt(0)")
    A(f"ds_write_b32 {v(vT0)}, {v(vT1)}")
    A("s_waitcnt lgkmcnt(0)")
    A("s_mov_b64 exec, -1")
    A.label(Lel_done)
    A("s_barrier")
    A(f"v_mov_b32 {v(vT0)}, {LDS_ROLE}")
    A(f"ds_read_b32 {v(vT1)}, {v(vT0)}")
    A("s_waitcnt lgkmcnt(0)")
    A(f"v_readfirstlane_b32 s{sKT}, {v(vT1)}")
    A("s_nop 3")
    A("s_barrier")
    Lsp = A.newlabel("Lsp")
    A(f"s_cmp_lt_u32 s{sKT}, 32")
    A(f"s_cbranch_scc1 {Lsp}")
    confirm(sWave, force_jump=True)
    A.label(Lsp)
    A(f"s_lshl_b32 s{sCnt}, s{sKX}, 5")
    A(f"s_add_u32 s{sCnt}, s{sCnt}, s{sKT}")
    A.label(Lhave)
    A(f"s_bfe_u32 s{sMode}, s{sCnt}, 0x10008")
    A(f"s_and_b32 s{sCnt}, s{sCnt}, 255")
    Lw = A.newlabel("Lwrole")
    Lr = A.newlabel("Lrrole")
    A(f"s_cmp_ge_u32 s{sCnt}, 128")
    if wrole:
        A(f"s_cbranch_scc0 {Lr}")
        A(f"s_branch {Lw}")
        A.label(Lr)
    else:
        A(f"s_cbranch_scc0 {Lr}")
        confirm(sWave)
        A(f"s_branch {Lend}")
        A.label(Lr)
    A(f"s_lshr_b32 s{sGrp}, s{sCnt}, 4")
    A(f"s_and_b32 s{sMemb}, s{sCnt}, 15")
    A(f"s_lshl_b32 s71, s{sCnt}, 8")
    A(f"s_add_u32 s71, s71, {WS_PROF:#x}")
    if "tl" in exp:
        A("s_mov_b64 exec, 1")
        A(f"v_mov_b32 {v(vT0)}, s68")
        A(f"v_mov_b32 {v(vT1)}, 0")
        A(f"buffer_store_dword {v(vT0)}, {v(vT1)}, {WSR}, s71 offen")
        A("s_mov_b64 exec, -1")
        A("s_add_u32 s71, s71, 4")
    rtl()

    A(f"s_mov_b32 s{sMaskG}, -1")
    A(f"s_mov_b32 s{sMaskG+1}, 0")
    A(f"s_mov_b32 s{sC}, {f32bits(SCALE*LOG2E):#x}")
    A(f"v_mov_b32 {v(vNinf)}, 0xff800000")
    for i in range(4):
        A(f"v_mov_b32 {v(vOnes+i)}, 0x3f803f80")
        A(f"v_mov_b32 {v(vSent+i)}, -1")

    A(f"s_lshr_b32 s{sTmp}, s{sMemb}, 2")
    A(f"s_lshl_b32 s{sH}, s{sGrp}, 2")
    A(f"s_add_u32 s{sH}, s{sH}, s{sTmp}")
    A(f"s_and_b32 s{sTmp}, s{sMemb}, 3")
    A(f"s_lshl_b32 s{sTmp2}, s{sH}, 8")
    A(f"s_lshl_b32 s{sCnt}, s{sTmp}, 6")
    A(f"s_add_u32 s{sTmp2}, s{sTmp2}, s{sCnt}")
    A(f"s_mul_i32 s{sCnt}, s{sWave}, {160*8192}")
    A(f"s_add_u32 s{sTmp2}, s{sTmp2}, s{sCnt}")
    A(f"v_lshrrev_b32 {v(vT0)}, 2, {v(vLane)}")
    A(f"v_lshlrev_b32 {v(vT0)}, 13, {v(vT0)}")
    A(f"v_and_b32 {v(vT1)}, 3, {v(vLane)}")
    A(f"v_lshl_add_u32 {v(vT0)}, {v(vT1)}, 4, {v(vT0)}")
    A(f"v_add_u32 {v(vT0)}, s{sTmp2}, {v(vT0)}")
    for m in range(3):
        if m:
            make_srd(A, sW, 18 + 2 * m, 640 * 4096 * 2)
        for i in range(10):
            A(f"s_mov_b32 s{sCnt}, {i*131072}")
            A(f"buffer_load_dwordx4 {v(TMP+(m*10+i)*4,4)}, {v(vT0)}, s[{sW}:{sW+3}], s{sCnt} offen")
    make_srd(A, sW, 24, 4096 * 640 * 2)
    A(f"s_lshl_b32 s{sTmp2}, s{sGrp}, 2")
    A(f"s_add_u32 s{sTmp2}, s{sTmp2}, s{sWave}")
    A(f"s_mul_i32 s{sTmp2}, s{sTmp2}, {128*1280}")
    A(f"s_mul_i32 s{sCnt}, s{sMemb}, 80")
    A(f"s_add_u32 s{sTmp2}, s{sTmp2}, s{sCnt}")
    A(f"v_lshrrev_b32 {v(vT1)}, 3, {v(vLane)}")
    A(f"v_mul_u32_u24 {v(vT1)}, 1280, {v(vT1)}")
    A(f"v_and_b32 {v(vT2)}, 7, {v(vLane)}")
    A(f"v_lshl_add_u32 {v(vT1)}, {v(vT2)}, 4, {v(vT1)}")
    A(f"v_add_u32 {v(vT1)}, s{sTmp2}, {v(vT1)}")
    for i in range(16):
        A(f"s_mov_b32 s{sCnt}, {i*8*1280}")
        A(f"buffer_load_dwordx4 {v(TMP+120+i*4,4)}, {v(vT1)}, s[{sW}:{sW+3}], s{sCnt} offen")
    A(f"s_lshl_b32 s{sTmp2}, s{sWave}, 14")
    A(f"v_lshlrev_b32 {v(vT0)}, 4, {v(vLane)}")
    A(f"v_add_u32 {v(vT0)}, s{sTmp2}, {v(vT0)}")
    A(f"v_lshrrev_b32 {v(vT1)}, 2, {v(vN)}")
    A(f"v_lshl_add_u32 {v(vT2)}, {v(vG)}, 3, {v(vT1)}")
    A(f"v_lshlrev_b32 {v(vT2)}, 6, {v(vT2)}")
    A(f"v_and_b32 {v(vT3)}, 3, {v(vN)}")
    A(f"v_lshl_add_u32 {v(vT2)}, {v(vT3)}, 3, {v(vT2)}")
    A(f"v_add_u32 {v(vT2)}, s{sTmp2}, {v(vT2)}")
    for m in range(3):
        A(f"s_waitcnt vmcnt({(2-m)*10+16})")
        for i in range(10):
            A(f"ds_write_b128 {v(vT0)}, {v(TMP+(m*10+i)*4,4)} offset:{i*1024}")
        for tt in range(2):
            for ks in range(5):
                r0 = aWA + ((m * 2 + tt) * 5 + ks) * 4
                A(f"ds_read_b64_tr_b16 {a(r0,2)}, {v(vT2)} offset:{ks*2048+tt*32}")
                A(f"ds_read_b64_tr_b16 {a(r0+2,2)}, {v(vT2)} offset:{ks*2048+tt*32+256}")
            A("s_waitcnt lgkmcnt(0)")
    A(f"v_lshl_add_u32 {v(vT2)}, {v(vG)}, 2, {v(vT1)}")
    A(f"v_lshlrev_b32 {v(vT2)}, 7, {v(vT2)}")
    A(f"v_lshl_add_u32 {v(vT2)}, {v(vT3)}, 3, {v(vT2)}")
    A(f"v_add_u32 {v(vT2)}, s{sTmp2}, {v(vT2)}")
    A("s_waitcnt vmcnt(0)")
    for i in range(16):
        A(f"ds_write_b128 {v(vT0)}, {v(TMP+120+i*4,4)} offset:{i*1024}")
        if i % 8 == 7:
            A("s_waitcnt lgkmcnt(0)")
    for tt in range(3):
        for s_ in range(4):
            r0 = aWC + (tt * 4 + s_) * 4
            A(f"ds_read_b64_tr_b16 {a(r0,2)}, {v(vT2)} offset:{s_*4096+tt*32}")
            A(f"ds_read_b64_tr_b16 {a(r0+2,2)}, {v(vT2)} offset:{s_*4096+tt*32+2048}")
        A("s_waitcnt lgkmcnt(0)")

    confirm(sWave)
    A(f"v_and_b32 {v(vN8)}, 7, v0")
    if wrole:
        import parta
        A("s_load_dwordx4 s[24:27], s[0:1], 8")
        A(f"s_lshl_b32 s{sEnd}, s{sGrp}, 4")
        A(f"s_add_u32 s{sEnd}, s{sEnd}, s{sMemb}")
        A("s_waitcnt lgkmcnt(0)")
        Lcu = A.newlabel("Lcu")
        A.label(Lcu)
        parta.const_unit(A, sEnd)
        A(f"s_add_u32 s{sEnd}, s{sEnd}, 128")
        A(f"s_cmp_lt_u32 s{sEnd}, {parta.NB_CONST}")
        A(f"s_cbranch_scc1 {Lcu}")
        A("s_waitcnt vmcnt(0)")
        A("s_barrier")
        A("s_mov_b64 exec, 1")
        A("v_mov_b32 v1, 1")
        A("v_mov_b32 v2, 0")
        A(f"s_mov_b32 s{sTmp}, {WS_CNT + CNT_CONST:#x}")
        A(f"buffer_atomic_add v1, v2, {WSR}, s{sTmp} offen")
        A("s_mov_b64 exec, -1")
        A("s_load_dwordx2 s[16:17], s[0:1], 32")
        A(f"v_and_b32 {v(vLane)}, 63, v0")
        A(f"v_and_b32 {v(vN)}, 15, v0")
        A(f"v_bfe_u32 {v(vG)}, v0, 4, 2")
        A(f"v_and_b32 {v(vN8)}, 7, v0")
        A(f"v_mov_b32 {v(vNinf)}, 0xff800000")
        for i in range(4):
            A(f"v_mov_b32 {v(vOnes+i)}, 0x3f803f80")
            A(f"v_mov_b32 {v(vSent+i)}, -1")
        A("s_waitcnt lgkmcnt(0)")
        make_srd(A, sM0, 16, 10240)
    A(f"v_mul_u32_u24 {v(vT0)}, 1280, {v(vN8)}")
    A(f"v_lshl_add_u32 {v(vT0)}, {v(vG)}, 4, {v(vT0)}")
    A(f"s_mul_i32 s{sTmp}, s{sWave}, 320")
    A(f"v_add_u32 {v(vT0)}, s{sTmp}, {v(vT0)}")
    A(f"v_add_u32 {v(Cg+1)}, 256, {v(vT0)}")
    A(f"v_lshrrev_b32 {v(vT1)}, 3, {v(vN)}")
    A(f"v_lshl_add_u32 {v(Cg)}, {v(vT1)}, 6, {v(vT0)}")
    A(f"s_mul_i32 s{sTmp}, s{sWave}, 2560")
    A(f"v_lshlrev_b32 {v(vT0)}, 4, {v(vLane)}")
    A(f"v_add_u32 {v(vD0)}, s{sTmp}, {v(vT0)}")
    A(f"v_lshl_add_u32 {v(vT1)}, {v(vG)}, 3, {v(vN8)}")
    A(f"v_lshlrev_b32 {v(vT1)}, 4, {v(vT1)}")
    A(f"s_add_u32 s{sTmp}, s{sTmp}, 2048")
    A(f"v_add_u32 {v(vD2)}, s{sTmp}, {v(vT1)}")
    A(f"s_lshl_b32 s{sTmp2}, s{sGrp}, 2")
    A(f"s_add_u32 s{sTmp2}, s{sTmp2}, s{sWave}")
    A(f"s_mul_i32 s{sTmp}, s{sTmp2}, 6144")
    A(f"v_add_u32 {v(vQo)}, s{sTmp}, {v(vT0)}")
    A(f"v_add_u32 {v(vKo)}, 2048, {v(vQo)}")
    A(f"s_lshl_b32 s{sTmp}, s{sTmp2}, 13")
    A(f"v_add_u32 {v(vK0)}, s{sTmp}, {v(vT0)}")
    A(f"v_add_u32 {v(vK1)}, 4096, {v(vK0)}")
    A(f"s_mul_i32 s{sTmp}, s{sTmp2}, 40960")
    A(f"s_mul_i32 s{sCnt}, s{sMemb}, 2560")
    A(f"s_add_u32 s{sTmp}, s{sTmp}, s{sCnt}")
    A(f"v_lshrrev_b32 {v(vT2)}, 3, {v(vN)}")
    A(f"v_lshl_add_u32 {v(vU)}, {v(vT2)}, 9, {v(vT1)}")
    A(f"v_add_u32 {v(vU)}, s{sTmp}, {v(vU)}")
    A(f"v_mov_b32 {v(vU2)}, {OOB:#x}")
    A(f"v_cmp_gt_u32 vcc, 8, {v(vN)}")
    A("s_nop 1")
    A(f"v_cndmask_b32 {v(vU2)}, {v(vU2)}, {v(vU)}, vcc")
    A(f"s_mul_i32 s{sTmp}, s{sWave}, 3072")
    A(f"s_add_u32 s{sCnt}, s{sTmp}, {LDS_RA}")
    A(f"v_add_u32 {v(vRAw)}, s{sCnt}, {v(vT0)}")
    A(f"s_add_u32 s{sCnt}, s{sTmp}, {LDS_RC}")
    A(f"v_add_u32 {v(vRCw)}, s{sCnt}, {v(vT0)}")
    def reader(ubase_mul, ubase_add, nl, rdst, adst, pdst, pbase):
        A(f"s_mul_i32 s{sTmp}, s{sWave}, {ubase_mul}")
        A(f"s_add_u32 s{sTmp}, s{sTmp}, {ubase_add}")
        A(f"v_add_u32 {v(vT0)}, s{sTmp}, {v(vLane)}")
        A(f"v_lshrrev_b32 {v(vT1)}, 6, {v(vT0)}")
        A(f"v_bfe_u32 {v(vT2)}, {v(vT0)}, 1, 3")
        A(f"v_bfe_u32 {v(vT3)}, {v(vT0)}, 4, 2")
        A(f"v_and_b32 {v(vT0)}, 1, {v(vT0)}")
        A(f"v_lshl_add_u32 {v(rdst)}, {v(vT3)}, 4, {v(vT2)}")
        A(f"v_lshlrev_b32 {v(adst)}, 4, {v(rdst)}")
        A(f"v_lshl_add_u32 {v(rdst)}, {v(vT0)}, 3, {v(rdst)}")
        A(f"v_lshlrev_b32 {v(rdst)}, 4, {v(rdst)}")
        A(f"v_lshl_add_u32 {v(rdst)}, {v(vT1)}, 10, {v(rdst)}")
        A(f"v_add_u32 {v(rdst)}, {LDS_RA}, {v(rdst)}")
        A(f"s_and_b32 s{sTmp}, s{sMemb}, 3")
        A(f"s_lshr_b32 s{sTmp2}, s{sTmp}, 1")
        A(f"s_lshl_b32 s{sTmp2}, s{sTmp2}, 10")
        A(f"s_and_b32 s{sCnt}, s{sTmp}, 1")
        A(f"s_lshl_b32 s{sCnt}, s{sCnt}, 7")
        A(f"s_add_u32 s{sTmp2}, s{sTmp2}, s{sCnt}")
        A(f"s_mul_i32 s{sCnt}, s{sH}, 6144")
        A(f"s_add_u32 s{sTmp2}, s{sTmp2}, s{sCnt}")
        A(f"v_add_u32 {v(adst)}, s{sTmp2}, {v(adst)}")
        A(f"v_lshl_add_u32 {v(adst)}, {v(vT0)}, 3, {v(adst)}")
        A(f"v_lshl_add_u32 {v(adst)}, {v(vT1)}, 11, {v(adst)}")
        A(f"s_lshl_b32 s{sTmp2}, s{sTmp}, 9")
        A(f"s_lshl_b32 s{sCnt}, s{sH}, 11")
        A(f"s_add_u32 s{sTmp2}, s{sTmp2}, s{sCnt}")
        A(f"s_add_u32 s{sTmp2}, s{sTmp2}, {pbase:#x}")
        A(f"v_lshl_add_u32 {v(vT2)}, {v(vT3)}, 3, {v(vT2)}")
        A(f"v_lshlrev_b32 {v(vT2)}, 4, {v(vT2)}")
        A(f"v_lshl_add_u32 {v(vT2)}, {v(vT0)}, 3, {v(vT2)}")
        A(f"v_add_u32 {v(pdst)}, s{sTmp2}, {v(vT2)}")
        A(f"v_mov_b32 {v(vT3)}, {OOB:#x}")
        A(f"v_cmp_eq_u32 vcc, 0, {v(vT1)}")
        A("s_nop 1")
        A(f"v_cndmask_b32 {v(pdst)}, {v(pdst)}, {v(vT3)}, vcc")
        A(f"v_cmp_gt_u32 vcc, {nl}, {v(vLane)}")
        A("s_nop 1")
        A(f"v_cndmask_b32 {v(pdst)}, {v(vT3)}, {v(pdst)}, vcc")
        A(f"v_cndmask_b32 {v(adst)}, {v(vT3)}, {v(adst)}, vcc")
        A(f"v_cndmask_b32 {v(rdst)}, {v(vRAw)}, {v(rdst)}, vcc")
    reader(32, 0, 32, vRAr, vAst, vKMst, 0)
    reader(16, 128, 16, vRAr2, vAst2, vVMst, WS_VM - WS_KM)
    A(f"s_and_b32 s{sTmp}, s{sGrp}, 1")
    A(f"s_cmp_lt_u32 s{sWave}, 2")
    A(f"s_cselect_b32 s{sTmp}, s{sWave}, s{sTmp}")
    A(f"v_lshrrev_b32 {v(vT1)}, 3, {v(vLane)}")
    A(f"v_and_b32 {v(vT2)}, 1, {v(vLane)}")
    A(f"v_lshl_add_u32 {v(vT0)}, {v(vT1)}, 1, {v(vT2)}")
    A(f"v_bfe_u32 {v(vT2)}, {v(vLane)}, 1, 2")
    A(f"s_lshl_b32 s{sTmp2}, s{sTmp}, 2")
    A(f"v_add_u32 {v(vT2)}, s{sTmp2}, {v(vT2)}")
    A(f"v_and_b32 {v(vT3)}, 3, {v(vT0)}")
    A(f"v_lshl_add_u32 {v(vT3)}, {v(vT3)}, 4, {v(vT2)}")
    A(f"v_lshlrev_b32 {v(vT3)}, 4, {v(vT3)}")
    A(f"v_lshrrev_b32 {v(vT0)}, 2, {v(vT0)}")
    A(f"v_lshl_add_u32 {v(vT3)}, {v(vT0)}, 10, {v(vT3)}")
    A(f"v_add_u32 {v(vRCr)}, {LDS_RC}, {v(vT3)}")
    A(f"s_mul_i32 s{sTmp2}, s{sMemb}, 1280")
    A(f"s_mul_i32 s{sTmp}, s{sTmp}, 640")
    A(f"s_add_u32 s{sTmp}, s{sTmp}, s{sTmp2}")
    A(f"v_lshlrev_b32 {v(vT0)}, 4, {v(vLane)}")
    A(f"v_add_u32 {v(vCst)}, s{sTmp}, {v(vT0)}")
    for r in range(1, 8):
        A(f"s_xor_b32 s{sTmp2}, s{sGrp}, {r}")
        A(f"s_mul_i32 s{sTmp2}, s{sTmp2}, 20480")
        A(f"v_add_u32 {v(vCg+r)}, s{sTmp2}, {v(vCst)}")
    A(f"s_mul_i32 s{sTmp}, s{sMemb}, 5")
    A(f"v_add_u32 {v(vT1)}, s{sTmp}, {v(vT1)}")
    A(f"v_lshlrev_b32 {v(vDst)}, 4, {v(vT2)}")
    A(f"v_and_b32 {v(vT2)}, 1, {v(vLane)}")
    A(f"v_lshl_add_u32 {v(vDst)}, {v(vT2)}, 3, {v(vDst)}")
    A(f"v_mul_u32_u24 {v(vT2)}, 205, {v(vT1)}")
    A(f"v_lshrrev_b32 {v(vT2)}, 12, {v(vT2)}")
    A(f"v_mul_u32_u24 {v(vT3)}, 20, {v(vT2)}")
    A(f"v_sub_u32 {v(vT1)}, {v(vT1)}, {v(vT3)}")
    A(f"v_mul_u32_u24 {v(vT2)}, 2560, {v(vT2)}")
    A(f"v_add_u32 {v(vDst)}, {v(vDst)}, {v(vT2)}")
    A(f"v_and_b32 {v(vT2)}, 3, {v(vT1)}")
    A(f"v_lshrrev_b32 {v(vT1)}, 2, {v(vT1)}")
    A(f"v_lshrrev_b32 {v(vT3)}, 1, {v(vT1)}")
    A(f"v_lshl_add_u32 {v(vDst)}, {v(vT3)}, 10, {v(vDst)}")
    A(f"v_and_b32 {v(vT3)}, 1, {v(vT1)}")
    A(f"v_lshl_add_u32 {v(vDst)}, {v(vT3)}, 7, {v(vDst)}")
    A(f"v_lshlrev_b32 {v(vT3)}, 8, {v(vT2)}")
    A(f"v_lshlrev_b32 {v(vT2)}, 7, {v(vT2)}")
    A(f"v_cmp_gt_u32 vcc, 4, {v(vT1)}")
    A("s_nop 1")
    A(f"v_cndmask_b32 {v(vT2)}, {v(vT2)}, {v(vT3)}, vcc")
    A(f"v_add_u32 {v(vDst)}, {v(vDst)}, {v(vT2)}")
    A(f"s_lshl_b32 s{sTmp}, s{sMemb}, 1")
    A(f"s_and_b32 s{sTmp2}, s{sWave}, 1")
    A(f"s_add_u32 s{sTmp}, s{sTmp}, s{sTmp2}")
    A(f"s_lshl_b32 s{sTmp}, s{sTmp}, 10")
    A(f"s_lshl_b32 s{sTmp2}, s{sGrp}, 15")
    A(f"s_add_u32 s{sTmp}, s{sTmp}, s{sTmp2}")
    A(f"v_lshlrev_b32 {v(vWarm)}, 4, {v(vLane)}")
    A(f"v_add_u32 {v(vWarm)}, s{sTmp}, {v(vWarm)}")

    A(f"s_lshl_b32 s{sTmp}, s{sGrp}, 9")
    A(f"v_and_b32 {v(vT0)}, 3, {v(vLane)}")
    A(f"v_lshlrev_b32 {v(vT0)}, 7, {v(vT0)}")
    A(f"v_add_u32 {v(vFlag)}, s{sTmp}, {v(vT0)}")
    A(f"v_bfe_u32 {v(vT0)}, {v(vLane)}, 2, 1")
    A(f"v_mul_u32_u24 {v(vT0)}, {CNT_VU - CNT_KVU:#x}, {v(vT0)}")
    A(f"v_add_u32 {v(vFlag)}, {v(vFlag)}, {v(vT0)}")
    A(f"s_lshl_b32 s{sTmp}, s{sH}, 7")
    A(f"v_mov_b32 {v(vSig)}, s{sTmp}")
    A(f"v_mov_b32 {v(vT0)}, {OOB:#x}")
    A(f"v_cmp_eq_u32 vcc, 0, {v(vLane)}")
    A("s_nop 1")
    A(f"v_cndmask_b32 {v(vSig)}, {v(vT0)}, {v(vSig)}, vcc")
    A(f"v_mov_b32 {v(vOne)}, 1")

    def wait_kvu(srb):
        Lp_ = A.newlabel("Lkf")
        Ld_ = A.newlabel("Lkfd")
        A(f"s_lshl_b32 s{sTmp2}, s{srb}, 12")
        A(f"s_add_u32 s{sTmp2}, s{sTmp2}, {WS_CNT + CNT_KVU:#x}")
        A(f"s_mov_b32 s{sCnt}, 0")
        A.label(Lp_)
        A(f"buffer_load_dword {v(vT0)}, {v(vFlag)}, {WSR}, s{sTmp2} offen sc1")
        A("s_waitcnt vmcnt(0)")
        A(f"v_cmp_eq_u32 vcc, 0, {v(vT0)}")
        A(f"s_cbranch_vccz {Ld_}")
        A("s_sleep 4")
        A(f"s_add_u32 s{sCnt}, s{sCnt}, 1")
        A(f"s_cmp_lt_u32 s{sCnt}, {SPIN_MAX}")
        A(f"s_cbranch_scc1 {Lp_}")
        A(f"s_mov_b32 s{sTmp}, 5")
        A(f"s_branch {Lfail}")
        A.label(Ld_)

    def signal_mem(srb):
        A(f"s_lshl_b32 s{sTmp2}, s{srb}, 12")
        A(f"s_add_u32 s{sTmp2}, s{sTmp2}, {WS_CNT + CNT_MEM:#x}")
        A(f"buffer_atomic_add {v(vOne)}, {v(vSig)}, {WSR}, s{sTmp2} offen")

    A(f"s_mov_b32 s{sStep}, 0")
    rtl()
    if wrole:
        wait_kvu(sStep)
    A(f"s_mov_b32 s{sOffKM}, {WS_KM:#x}")
    A(f"s_mov_b32 s{sOffK}, {WS_KX:#x}")
    A(f"s_mov_b32 s{sOffU}, {WS_U:#x}")

    def k_load(f):
        vo = vK0 if f < 4 else vK1
        return f"buffer_load_dwordx4 {a(aK+f*4,4)}, {v(vo)}, {WSR}, s{sOffK} offen offset:{(f%4)*1024}"

    def u_load(t, dst):
        return f"buffer_load_dwordx4 {a(dst+t*4,4)}, {v(vU if t < 2 else vU2)}, {WSR}, s{sOffU} offen offset:{t*1024}"

    def check_sentinel(regs, tmp):
        regs = list(regs)
        A(f"v_max3_u32 {v(tmp)}, {v(regs[0])}, {v(regs[1])}, {v(regs[2])}")
        rest = regs[3:]
        while rest:
            if len(rest) >= 2:
                A(f"v_max3_u32 {v(tmp)}, {v(tmp)}, {v(rest[0])}, {v(rest[1])}")
                rest = rest[2:]
            else:
                A(f"v_max_u32 {v(tmp)}, {v(tmp)}, {v(rest[0])}")
                rest = []
        A(f"v_cmp_eq_u32 vcc, -1, {v(tmp)}")

    def poll(issue, regs, code):
        Lp_ = A.newlabel("Lpoll")
        Ld_ = A.newlabel("Lpd")
        A(f"s_mov_b32 s{sCnt}, 0")
        A.label(Lp_)
        issue()
        A("s_waitcnt vmcnt(0)")
        check_sentinel(regs, vT0)
        A(f"s_cbranch_vccz {Ld_}")
        A(f"s_add_u32 s{sCnt}, s{sCnt}, 1")
        A(f"s_cmp_lt_u32 s{sCnt}, {SPIN_MAX}")
        A(f"s_cbranch_scc1 {Lp_}")
        A(f"s_mov_b32 s{sTmp}, {code}")
        A(f"s_branch {Lfail}")
        A.label(Ld_)
        if prof:
            r = {4: 97, 1: 98, 3: 100}[code]
            A(f"s_add_u32 s{r}, s{r}, s{sCnt}")

    def store_local(instr):
        L1 = A.newlabel("Lsl")
        L2 = A.newlabel("Lsl")
        A(f"s_cmp_lg_u32 s{sMode}, 0")
        A(f"s_cbranch_scc1 {L1}")
        A(instr)
        A(f"s_branch {L2}")
        A.label(L1)
        A(instr + " sc1")
        A.label(L2)

    for f in range(8):
        A(k_load(f))
    for t in range(3):
        A(u_load(t, aUn))
    if prof:
        for i in range(16):
            A(f"s_mov_b32 s{sPr+i}, 0")
        for i in range(97, 101):
            A(f"s_mov_b32 s{i}, 0")
        A("s_memtime s[86:87]")
        A("s_waitcnt lgkmcnt(0)")

    ring = []
    ring += [f"s_and_b32 s{sTmp}, s{sStep}, 3",
             f"s_add_u32 s{sTmp2}, s{sStep}, 3",
             f"s_and_b32 s{sTmp2}, s{sTmp2}, 3",
             f"s_mul_i32 s{sRA}, s{sTmp}, {32*6144}",
             f"s_add_u32 s{sRA}, s{sRA}, {WS_RA:#x}",
             f"s_mul_i32 s{sRAp}, s{sTmp2}, {32*6144}",
             f"s_add_u32 s{sRAp}, s{sRAp}, {WS_RA:#x}",
             f"s_mul_i32 s{sRC}, s{sTmp}, {KC*8*20480}",
             f"s_add_u32 s{sRC}, s{sRC}, {WS_RC:#x}",
             f"s_add_u32 s{sRCp}, s{sStep}, 2",
             f"s_and_b32 s{sRCp}, s{sRCp}, 3",
             f"s_mul_i32 s{sRCp}, s{sRCp}, {KC*8*20480}",
             f"s_add_u32 s{sRCp}, s{sRCp}, {WS_RC:#x}",
             f"s_mul_i32 s{sCnt}, s{sGrp}, 20480",
             f"s_add_u32 s{sRCp}, s{sRCp}, s{sCnt}",
             f"s_add_u32 s{sOffC}, s{sRC}, s{sCnt}",
             f"s_lshr_b32 s{sCnt}, s{sGrp}, 1",
             f"s_mul_i32 s{sCnt}, s{sCnt}, 10240",
             f"s_add_u32 s{sCnt}, s{sCnt}, {WS_RD:#x}",
             f"s_mul_i32 s{sRDp}, s{sTmp2}, {8*10240}",
             f"s_add_u32 s{sRDp}, s{sRDp}, s{sCnt}",
             f"s_add_u32 s{sTmp}, s{sStep}, 1",
             f"s_and_b32 s{sTmp}, s{sTmp}, 3",
             f"s_mul_i32 s{sRD}, s{sTmp}, {8*10240}",
             f"s_add_u32 s{sRD}, s{sRD}, s{sCnt}",
             f"s_add_u32 s{sOffK}, s{sOffK}, {32*8192}",
             f"s_add_u32 s{sOffU}, s{sOffU}, {32*40960}",
             f"s_add_u32 s{sWarm}, s{sOffK}, {WARM*32*8192}",
             f"s_min_u32 s{sWarm}, s{sWarm}, {WS_KX+63*32*8192}"]

    for ins in ring:
        A(ins)
    A(f"buffer_load_dwordx4 {v(M,4)}, {v(Cg)}, s[{sM0}:{sM0+3}], 0 offen")
    A(f"buffer_load_dwordx4 {v(M+4,4)}, {v(Cg)}, s[{sM0}:{sM0+3}], 0 offen offset:128")
    A(f"buffer_load_dwordx4 {v(M+8,4)}, {v(Cg+1)}, s[{sM0}:{sM0+3}], 0 offen")
    A("s_waitcnt vmcnt(0)")
    Lloop = A.newlabel("Lloop")
    A.label(Lloop)
    rtl(True)
    stamp(0)
    Bks = [M, Mr, M + 4, Mr + 4, M + 8]
    fill = [f"v_mov_b32_dpp {v(Mr+i)}, {v(M+i)} row_ror:8 row_mask:0xf bank_mask:0xf" for i in range(8)]
    fill += [f"v_accvgpr_mov_b32 {a(aU+i)}, {a(aUn+i)}" for i in range(12)]
    order = [(ks, t) for ks in (0, 2, 1) for t in range(4)]
    order += [(ks, t) for t in range(4) for ks in (3, 4)]
    for idx, (ks, t) in enumerate(order):
        c = "0" if ks == 0 else v(accA + t * 4, 4)
        A(f"v_mfma_f32_16x16x32_bf16 {v(accA+t*4,4)}, {WA(t,ks)}, {v(Bks[ks],4)}, {c}")
        for _ in range(2):
            if fill:
                A(fill.pop(0))
    assert not fill

    def merge_write(p):
        for i in range(4):
            A(f"v_mov_b32_dpp {v(accA+8*p+i)}, {v(accA+8*p+4+i)} row_ror:8 row_mask:0xf bank_mask:0xc")
        A(f"ds_write_b128 {v(vRAw)}, {v(accA+8*p,4)} offset:{p*1024}")

    def reduce_pub(raddr, pub, T):
        for w in range(4):
            A(f"ds_read_b128 {v(T+w*4,4)}, {v(raddr)} offset:{w*3072}")
        A("s_waitcnt lgkmcnt(2)")
        A(f"v_pk_add_f32 {v(T,2)}, {v(T,2)}, {v(T+4,2)}")
        A(f"v_pk_add_f32 {v(T+2,2)}, {v(T+2,2)}, {v(T+6,2)}")
        A("s_waitcnt lgkmcnt(0)")
        A(f"v_pk_add_f32 {v(T+8,2)}, {v(T+8,2)}, {v(T+12,2)}")
        A(f"v_pk_add_f32 {v(T+10,2)}, {v(T+10,2)}, {v(T+14,2)}")
        A(f"v_pk_add_f32 {v(T,2)}, {v(T,2)}, {v(T+8,2)}")
        A(f"v_pk_add_f32 {v(T+2,2)}, {v(T+2,2)}, {v(T+10,2)}")
        A(f"v_cvt_pk_bf16_f32 {v(pub)}, {v(T)}, {v(T+1)}")
        A(f"v_cvt_pk_bf16_f32 {v(pub+1)}, {v(T+2)}, {v(T+3)}")
        A(f"v_min_u32 {v(pub)}, 0xfffffffe, {v(pub)}")
        A(f"v_min_u32 {v(pub+1)}, 0xfffffffe, {v(pub+1)}")
    A.nop(4)
    merge_write(0)
    merge_write(1)
    stamp(6)
    A("s_waitcnt lgkmcnt(0)")
    stamp(7)
    A("s_barrier")
    stamp(8)
    reduce_pub(vRAr, vPub, Cg)
    store_local(f"buffer_store_dwordx2 {v(vPub,2)}, {v(vAst)}, {WSR}, s{sRA} offen")
    stamp(1)
    def issue_q():
        A(f"buffer_load_dwordx4 {v(Q,4)}, {v(vQo)}, {WSR}, s{sRA} offen sc1")
        A(f"buffer_load_dwordx4 {v(Q+4,4)}, {v(vQo)}, {WSR}, s{sRA} offen offset:1024 sc1")

    def issue_k():
        for c in range(2):
            A(f"buffer_load_dwordx4 {v(KM+c*8,4)}, {v(vKo)}, {WSR}, s{sRA} offen offset:{c*1024} sc1")

    def issue_v():
        for c in range(2):
            A(f"buffer_load_dwordx4 {v(VM+c*8,4)}, {v(vKo)}, {WSR}, s{sRA} offen offset:{2048+c*1024} sc1")
    for ks in range(5):
        for t in (4, 5):
            c = "0" if ks == 0 else v(accA + t * 4, 4)
            A(f"v_mfma_f32_16x16x32_bf16 {v(accA+t*4,4)}, {WA(t,ks)}, {v(Bks[ks],4)}, {c}")
    A.nop(8)
    merge_write(2)
    if EARLY == 1:
        issue_q()
        issue_k()
    A("s_waitcnt lgkmcnt(0)")
    A("s_barrier")
    if EARLY == 2:
        issue_q()
        issue_k()
    reduce_pub(vRAr2, vPub2, Cg)
    A(f"s_cmp_eq_u32 s{sStep}, {nsteps-1}")
    Lfin = A.newlabel("Lfin")
    A(f"s_cbranch_scc1 {Lfin}")
    store_local(f"buffer_store_dwordx2 {v(vPub2,2)}, {v(vAst2)}, {WSR}, s{sRA} offen")

    if ADELAY:
        A(f"s_sleep {ADELAY}")
    Lp_, Ld_ = A.newlabel("Lpa"), A.newlabel("Lpad")
    A(f"s_mov_b32 s{sCnt}, 0")
    if EARLY:
        A("s_waitcnt vmcnt(3)")
        check_sentinel(range(Q, Q + 8), vT0)
        A(f"s_cbranch_vccz {Ld_}")
    A.label(Lp_)
    issue_q()
    issue_k()
    A("s_waitcnt vmcnt(2)")
    check_sentinel(range(Q, Q + 8), vT0)
    A(f"s_cbranch_vccz {Ld_}")
    A(f"s_add_u32 s{sCnt}, s{sCnt}, 1")
    A(f"s_cmp_lt_u32 s{sCnt}, {SPIN_MAX}")
    A(f"s_cbranch_scc1 {Lp_}")
    A(f"s_mov_b32 s{sTmp}, 1")
    A(f"s_branch {Lfail}")
    A.label(Ld_)
    if prof:
        A(f"s_add_u32 s98, s98, s{sCnt}")
    stamp(2)
    Qks = [Q, Qr, Q + 4, Qr + 4]
    A(f"v_mfma_f32_16x16x32_bf16 {v(acc1,4)}, {a(aK+0,4)}, {v(Q,4)}, 0")
    for i in range(4):
        A(f"v_mov_b32_dpp {v(Qr+i)}, {v(Q+i)} row_ror:8 row_mask:0xf bank_mask:0xf")
    A(f"v_mfma_f32_16x16x32_bf16 {v(acc2,4)}, {a(aK+16,4)}, {v(Q,4)}, 0")
    for i in range(4, 8):
        A(f"v_mov_b32_dpp {v(Qr+i)}, {v(Q+i)} row_ror:8 row_mask:0xf bank_mask:0xf")
    Lkv = A.newlabel("Lkv")
    Lkvd = A.newlabel("Lkvd")
    A(f"s_mov_b32 s{sCnt}, 0")
    A.label(Lkv)
    A("s_waitcnt vmcnt(0)")
    check_sentinel(list(range(KM, KM + 4)) + list(range(KM + 8, KM + 12)), vT0)
    A(f"s_cbranch_vccz {Lkvd}")
    issue_k()
    A(f"s_add_u32 s{sCnt}, s{sCnt}, 1")
    A(f"s_cmp_lt_u32 s{sCnt}, {SPIN_MAX}")
    A(f"s_cbranch_scc1 {Lkv}")
    A(f"s_mov_b32 s{sTmp}, 2")
    A(f"s_branch {Lfail}")
    A.label(Lkvd)
    A(f"v_mfma_f32_16x16x32_bf16 {v(acc0,4)}, {v(KM,4)}, {v(Qks[0],4)}, 0")
    for i in range(4):
        A(f"v_mov_b32_dpp {v(KM+4+i)}, {v(KM+i)} row_ror:8 row_mask:0xf bank_mask:0xf")
    A(f"v_mfma_f32_16x16x32_bf16 {v(acc1,4)}, {a(aK+8,4)}, {v(Qks[2],4)}, {v(acc1,4)}")
    A(f"v_mfma_f32_16x16x32_bf16 {v(acc2,4)}, {a(aK+24,4)}, {v(Qks[2],4)}, {v(acc2,4)}")
    A(f"v_mfma_f32_16x16x32_bf16 {v(acc0,4)}, {v(KM+8,4)}, {v(Qks[2],4)}, {v(acc0,4)}")
    for i in range(4):
        A(f"v_mov_b32_dpp {v(KM+12+i)}, {v(KM+8+i)} row_ror:8 row_mask:0xf bank_mask:0xf")
    for ks in (1, 3):
        A(f"v_mfma_f32_16x16x32_bf16 {v(acc1,4)}, {a(aK+ks*4,4)}, {v(Qks[ks],4)}, {v(acc1,4)}")
        A(f"v_mfma_f32_16x16x32_bf16 {v(acc2,4)}, {a(aK+16+ks*4,4)}, {v(Qks[ks],4)}, {v(acc2,4)}")
        A(f"v_mfma_f32_16x16x32_bf16 {v(acc0,4)}, {v(KM+ks*4,4)}, {v(Qks[ks],4)}, {v(acc0,4)}")
    issue_v()
    A.nop(5)
    stamp(9)
    S = [acc1 + i for i in range(4)] + [acc2 + i for i in range(4)] + [acc0 + i for i in range(4)]
    sm = [f"v_max3_f32 {v(vMx)}, {v(S[0])}, {v(S[1])}, {v(S[2])}",
          f"v_max3_f32 {v(vMx)}, {v(vMx)}, {v(S[3])}, {v(S[4])}",
          f"v_max3_f32 {v(vMx)}, {v(vMx)}, {v(S[5])}, {v(S[6])}"]
    for i in range(4):
        sm.append(f"v_cndmask_b32 {v(acc0+i)}, {v(vNinf)}, {v(acc0+i)}, s[{sMaskG}:{sMaskG+1}]")
    sm += [f"v_max3_f32 {v(vMx)}, {v(vMx)}, {v(S[7])}, {v(S[8])}",
           f"v_max3_f32 {v(vMx)}, {v(vMx)}, {v(S[9])}, {v(S[10])}",
           f"v_max_f32 {v(vMx)}, {v(vMx)}, {v(S[11])}",
           f"v_mov_b32 {v(vMx2)}, {v(vMx)}",
           "s_nop 1",
           f"v_permlane16_swap_b32 {v(vMx)}, {v(vMx2)}",
           "s_nop 0",
           f"v_max_f32 {v(vMx)}, {v(vMx)}, {v(vMx2)}",
           f"v_mov_b32 {v(vMx2)}, {v(vMx)}",
           "s_nop 1",
           f"v_permlane32_swap_b32 {v(vMx)}, {v(vMx2)}",
           "s_nop 0",
           f"v_max_f32 {v(vMx)}, {v(vMx)}, {v(vMx2)}",
           f"v_mul_f32 {v(vMx)}, s{sC}, {v(vMx)}"]
    for r in S:
        sm.append(f"v_fma_f32 {v(r)}, {v(r)}, s{sC}, -{v(vMx)}")
    for r in S[:VSPLIT]:
        sm.append(f"v_exp_f32 {v(r)}, {v(r)}")
    for ins in sm:
        A(ins)
    Lv, Lvd = A.newlabel("Lv"), A.newlabel("Lvd")
    A(f"s_mov_b32 s{sCnt}, 0")
    A.label(Lv)
    A("s_waitcnt vmcnt(0)")
    check_sentinel(list(range(VM, VM + 4)) + list(range(VM + 8, VM + 12)), vT0)
    A(f"s_cbranch_vccz {Lvd}")
    issue_v()
    A(f"s_add_u32 s{sCnt}, s{sCnt}, 1")
    A(f"s_cmp_lt_u32 s{sCnt}, {SPIN_MAX}")
    A(f"s_cbranch_scc1 {Lv}")
    A(f"s_mov_b32 s{sTmp}, 2")
    A(f"s_branch {Lfail}")
    A.label(Lvd)
    if prof:
        A(f"s_add_u32 s99, s99, s{sCnt}")
    um = []
    for s_ in (0, 2, 1, 3):
        for t in range(3):
            c = "0" if s_ == 0 else v(accU + t * 4, 4)
            um.append(f"v_mfma_f32_16x16x32_bf16 {v(accU+t*4,4)}, {v(VM+s_*4,4)}, {WC(t,s_)}, {c}")
    sm = [f"v_mov_b32_dpp {v(VM+4+i)}, {v(VM+i)} row_ror:8 row_mask:0xf bank_mask:0xf" for i in range(4)]
    sm += [f"v_mov_b32_dpp {v(VM+12+i)}, {v(VM+8+i)} row_ror:8 row_mask:0xf bank_mask:0xf" for i in range(4)]
    for r in S[VSPLIT:]:
        sm.append(f"v_exp_f32 {v(r)}, {v(r)}")
    sm.append("s_nop 0")
    for i in range(4):
        sm.append(f"v_cvt_pk_bf16_f32 {v(P0+i)}, {v(S[2*i])}, {v(S[2*i+1])}")
    sm.append(f"v_cvt_pk_bf16_f32 {v(Blo)}, {v(S[8])}, {v(S[9])}")
    sm.append(f"v_cvt_pk_bf16_f32 {v(Blo+1)}, {v(S[10])}, {v(S[11])}")
    for idx in range(max(len(sm) // 2 + 1, len(um))):
        if um:
            A(um.pop(0))
        for _ in range(2):
            if sm:
                A(sm.pop(0))
    assert not um and not sm
    pre = [u_load(t, aUn) for t in range(3)] + [k_load(f) for f in range(8)]
    if "nokv" in exp:
        pre = []
    stamp(3)
    def pl(n=1):
        for _ in range(n):
            if pre:
                A(pre.pop(0))
    A(f"v_mfma_f32_16x16x32_bf16 {v(accZ,4)}, {v(vOnes,4)}, {v(P0,4)}, 0")
    for t in range(3):
        A(f"v_mfma_f32_16x16x32_bf16 {v(accC+t*4,4)}, {a(aU+t*4,4)}, {v(P0,4)}, 0")
        pl()
    A(f"v_mfma_f32_16x16x16_bf16 {v(accZ,4)}, {v(vOnes,2)}, {v(Blo,2)}, {v(accZ,4)}")
    pl(2)
    for t in range(3):
        A(f"v_cvt_pk_bf16_f32 {v(UA+t*2)}, {v(accU+t*4)}, {v(accU+t*4+1)}")
        A(f"v_cvt_pk_bf16_f32 {v(UA+t*2+1)}, {v(accU+t*4+2)}, {v(accU+t*4+3)}")
    pl(1)
    A(f"v_rcp_f32 {v(vRz)}, {v(accZ)}")
    for t in range(3):
        A(f"v_mfma_f32_16x16x16_bf16 {v(accC+t*4,4)}, {v(UA+t*2,2)}, {v(Blo,2)}, {v(accC+t*4,4)}")
    A(f"v_mov_b32 {v(vRz+1)}, {v(vRz)}")
    pl(5)
    A.nop(1)
    stamp(10)
    for t in range(3):
        A(f"v_pk_mul_f32 {v(accC+t*4,2)}, {v(accC+t*4,2)}, {v(vRz,2)}")
        A(f"v_pk_mul_f32 {v(accC+t*4+2,2)}, {v(accC+t*4+2,2)}, {v(vRz,2)}")
        A(f"ds_write_b128 {v(vRCw)}, {v(accC+t*4,4)} offset:{t*1024}")
    assert not pre
    A("s_waitcnt lgkmcnt(0)")
    stamp(11)
    A("s_barrier")
    stamp(12)
    A("s_mov_b32 exec_hi, 0xff")
    for w in range(4):
        A(f"ds_read_b128 {v(Cg+w*4,4)}, {v(vRCr)} offset:{w*3072}")
    A("s_waitcnt lgkmcnt(2)")
    for i in range(4):
        A(f"v_add_f32 {v(Cg+i)}, {v(Cg+i)}, {v(Cg+4+i)}")
    A("s_waitcnt lgkmcnt(0)")
    for i in range(4):
        A(f"v_add_f32 {v(Cg+8+i)}, {v(Cg+8+i)}, {v(Cg+12+i)}")
    for i in range(4):
        A(f"v_add_f32 {v(Cg+i)}, {v(Cg+i)}, {v(Cg+8+i)}")

    def persist(final=False):
        A("s_mov_b64 exec, -1")
        A(f"buffer_store_dwordx2 {v(vPub,2)}, {v(vKMst)}, {WSR}, s{sOffKM} offen" + (" sc1" if wrole else ""))
        A(f"buffer_store_dwordx2 {v(vPub2,2)}, {v(vVMst)}, {WSR}, s{sOffKM} offen" + (" sc1" if wrole else ""))
        if wrole and not final:
            Lns = A.newlabel("Lns")
            A(f"s_and_b32 s{sTmp}, s{sStep}, 3")
            A(f"s_cmp_lg_u32 s{sTmp}, 0")
            A(f"s_cbranch_scc1 {Lns}")
            A(f"s_cmp_eq_u32 s{sStep}, 0")
            A(f"s_cbranch_scc1 {Lns}")
            A(f"s_lshr_b32 s{sTmp}, s{sStep}, 2")
            A(f"s_sub_u32 s{sTmp}, s{sTmp}, 1")
            signal_mem(sTmp)
            A.label(Lns)

    def background(storer):
        persist()
        store_local(f"buffer_store_dwordx2 {v(vSent,2)}, {v(vAst)}, {WSR}, s{sRAp} offen"); store_local(f"buffer_store_dwordx2 {v(vSent,2)}, {v(vAst2)}, {WSR}, s{sRAp} offen")
        A("s_mov_b32 exec_hi, 0xff")
        if storer:
            for kc in range(KC):
                A(f"buffer_store_dwordx4 {v(vSent,4)}, {v(vCst)}, {WSR}, s{sRCp} offen sc1")
                if kc < KC - 1:
                    A(f"s_add_u32 s{sRCp}, s{sRCp}, {8*20480}")
            if "nokv" not in exp:
                A("s_mov_b64 exec, -1")
                A(f"buffer_load_dwordx4 {v(vDummy,4)}, {v(vWarm)}, {WSR}, s{sWarm} offen")
        else:
            store_local(f"buffer_store_dwordx2 {v(vSent,2)}, {v(vDst)}, {WSR}, s{sRDp} offen")

    Lpw = A.newlabel("Lpw")
    Lcdone = A.newlabel("Lcdone")
    A(f"s_cmp_ge_u32 s{sWave}, 2")
    A(f"s_cbranch_scc1 {Lpw}")
    for i in range(4):
        A(f"v_min_u32 {v(Cg+i)}, 0xfffffffe, {v(Cg+i)}")
    for kc in range(KC):
        A(f"buffer_store_dwordx4 {v(Cg,4)}, {v(vCst)}, {WSR}, s{sOffC} offen sc1")
        if kc < KC - 1:
            A(f"s_add_u32 s{sOffC}, s{sOffC}, {8*20480}")
    stamp(4)
    background(True)
    if DSLEEP:
        A(f"s_sleep {DSLEEP}")
    A(f"s_branch {Lcdone}")
    A.label(Lpw)
    stamp(4)
    Lw3 = A.newlabel("Lw3")
    A(f"s_cmp_eq_u32 s{sWave}, 3")
    A(f"s_cbranch_scc1 {Lw3}")
    background(False)
    A(f"s_mov_b32 s{sEnd}, s{sRC}")

    def advance():
        A(f"s_add_u32 s{sStep}, s{sStep}, 1")
        A(f"s_add_u32 s{sOffKM}, s{sOffKM}, {32*2048}")
        A(f"s_mov_b32 s{sOffD}, s{sRD}")
        for ins in ring:
            A(ins)
    advance()
    if CDELAY:
        A(f"s_sleep {CDELAY}")

    def issue_c():
        for r in range(1, 8):
            A(f"buffer_load_dwordx4 {v(CR+(r-1)*4,4)}, {v(vCg+r)}, {WSR}, s{sEnd} offen sc1")
    poll(issue_c, range(CR, CR + 28), 3)
    stamp(5)
    c = CR
    for i in (0, 2):
        A(f"v_pk_add_f32 {v(Cg+i,2)}, {v(Cg+i,2)}, {v(c+i,2)}")
        A(f"v_pk_add_f32 {v(Cg+4+i,2)}, {v(c+4+i,2)}, {v(c+8+i,2)}")
        A(f"v_pk_add_f32 {v(Cg+8+i,2)}, {v(c+12+i,2)}, {v(c+16+i,2)}")
        A(f"v_pk_add_f32 {v(Cg+12+i,2)}, {v(c+20+i,2)}, {v(c+24+i,2)}")
    for i in (0, 2):
        A(f"v_pk_add_f32 {v(Cg+i,2)}, {v(Cg+i,2)}, {v(Cg+4+i,2)}")
        A(f"v_pk_add_f32 {v(Cg+8+i,2)}, {v(Cg+8+i,2)}, {v(Cg+12+i,2)}")
    for i in (0, 2):
        A(f"v_pk_add_f32 {v(Cg+i,2)}, {v(Cg+i,2)}, {v(Cg+8+i,2)}")
    A(f"v_cvt_pk_bf16_f32 {v(Cg+4)}, {v(Cg)}, {v(Cg+1)}")
    A(f"v_cvt_pk_bf16_f32 {v(Cg+5)}, {v(Cg+2)}, {v(Cg+3)}")
    A(f"v_min_u32 {v(Cg+4)}, 0xfffffffe, {v(Cg+4)}")
    A(f"v_min_u32 {v(Cg+5)}, 0xfffffffe, {v(Cg+5)}")
    store_local(f"buffer_store_dwordx2 {v(Cg+4,2)}, {v(vDst)}, {WSR}, s{sOffD} offen")
    A("s_mov_b64 exec, -1")
    Ldp = A.newlabel("Ldp")
    A(f"s_branch {Ldp}")
    A.label(Lw3)
    persist()
    store_local(f"buffer_store_dwordx2 {v(vSent,2)}, {v(vAst)}, {WSR}, s{sRAp} offen"); store_local(f"buffer_store_dwordx2 {v(vSent,2)}, {v(vAst2)}, {WSR}, s{sRAp} offen")
    Lnf = A.newlabel("Lnf")
    if wrole:
        A("s_mov_b64 exec, -1")
        A(f"s_and_b32 s{sTmp}, s{sStep}, 3")
        A(f"s_cmp_lg_u32 s{sTmp}, 1")
        A(f"s_cbranch_scc1 {Lnf}")
        A(f"s_add_u32 s{sEnd}, s{sStep}, 3")
        A(f"s_lshr_b32 s{sEnd}, s{sEnd}, 2")
        A(f"s_cmp_gt_u32 s{sEnd}, 15")
        A(f"s_cbranch_scc1 {Lnf}")
        wait_kvu(sEnd)
        A(f"s_branch {Lcdone}")
    A.label(Lnf)
    if DSLEEP:
        A(f"s_sleep {DSLEEP}")
    A.label(Lcdone)
    A("s_mov_b64 exec, -1")
    advance()
    A.label(Ldp)
    stamp(13)

    if PDELAY:
        Lpd = A.newlabel("Lpdl")
        A(f"s_cmp_lg_u32 s{sWave}, 2")
        A(f"s_cbranch_scc1 {Lpd}")
        A(f"s_sleep {PDELAY}")
        A.label(Lpd)

    def issue_d():
        A(f"buffer_load_dwordx4 {v(M,4)}, {v(vD0)}, {WSR}, s{sOffD} offen sc1")
        A(f"buffer_load_dwordx4 {v(M+4,4)}, {v(vD0)}, {WSR}, s{sOffD} offen offset:1024 sc1")
        A(f"buffer_load_dwordx4 {v(M+8,4)}, {v(vD2)}, {WSR}, s{sOffD} offen sc1")
    poll(issue_d, range(M, M + 12), 4)
    A(f"s_branch {Lloop}")

    A.label(Lfin)
    persist(True)
    A("s_mov_b64 exec, -1")
    rtl()
    if wrole:
        A("s_waitcnt vmcnt(0)")
        A(f"s_mov_b32 s{sTmp}, 15")
        signal_mem(sTmp)
    if prof:
        A(f"s_lshl_b32 s{sTmp}, s{sGrp}, 4")
        A(f"s_add_u32 s{sTmp}, s{sTmp}, s{sMemb}")
        A(f"s_lshl_b32 s{sTmp}, s{sTmp}, 2")
        A(f"s_add_u32 s{sTmp}, s{sTmp}, s{sWave}")
        A(f"s_lshl_b32 s{sTmp}, s{sTmp}, 6")
        A(f"s_add_u32 s{sTmp}, s{sTmp}, {WS_PROF:#x}")
        A("s_mov_b64 exec, 1")
        A(f"s_lshl_b32 s97, s97, 16")
        A(f"s_or_b32 s{sPr+14}, s97, s98")
        A(f"s_lshl_b32 s99, s99, 16")
        A(f"s_or_b32 s{sPr+15}, s99, s100")
        for i in range(16):
            A(f"v_mov_b32 {v(vT0)}, s{sPr+i}")
            A(f"v_mov_b32 {v(vT1)}, {i*4}")
            A(f"buffer_store_dword {v(vT0)}, {v(vT1)}, {WSR}, s{sTmp} offen")
    A(f"s_branch {Lend}")
    A.label(Lfail)
    A("s_mov_b64 exec, 1")
    A(f"v_mov_b32 {v(vT0)}, s{sTmp}")
    A(f"v_mov_b32 {v(vT1)}, 0")
    A(f"v_or_b32 {v(vT0)}, 0x100, {v(vT0)}")
    A(f"buffer_store_dword {v(vT0)}, {v(vT1)}, s[{sDBG}:{sDBG+3}], 0 offen")
    A.label(Lend)
    A("s_endpgm")
    if wrole:
        A.label(Lw)
        A(f"s_sub_u32 s54, s{sCnt}, 128")
        wrole(A, 54, confirm)
        A("s_endpgm")
    return kernel_desc(name, 512, 102, 256)
```

```python
from asmlib import *
from layout import *
from wside import *
import parta

SPIN = 4000000
sW, sJ, sHead, sRnd, sPoll = 70, 71, 72, 73, 74


TL = False
A3_AT = 9
NRM = 6
STAG = 3
SC = " sc1"


def wrole(A, sIdx, confirm):
    Lq = A.newlabel("Lwq")

    def tl():
        if not TL:
            return
        Ls = A.newlabel("Ltl")
        A(f"s_cmp_lg_u32 s{sWave}, 0")
        A(f"s_cbranch_scc1 {Ls}")
        A("s_memrealtime s[78:79]")
        A("s_waitcnt lgkmcnt(0)")
        A("s_mov_b64 exec, 1")
        A("v_mov_b32 v4, s78")
        A("v_mov_b32 v5, 0")
        A(f"buffer_store_dword v4, v5, {srd(sWS)}, s80 offen")
        A("s_mov_b64 exec, -1")
        A("s_add_u32 s80, s80, 4")
        A.label(Ls)
        return 1
    A(f"s_mov_b32 s{sW}, s{sIdx}")
    A("s_load_dwordx4 s[24:27], s[0:1], 24")
    A("s_load_dwordx8 s[28:35], s[0:1], 40")
    A("s_load_dwordx2 s[36:37], s[0:1], 96")
    A("s_load_dwordx2 s[38:39], s[0:1], 80")
    A("s_load_dwordx2 s[76:77], s[0:1], 0")
    A("v_and_b32 v1, 63, v0")
    A("v_lshrrev_b32 v5, 6, v0")
    A("v_and_b32 v2, 15, v0")
    A(f"v_readfirstlane_b32 s{sWave}, v5")
    A("v_bfe_u32 v3, v0, 4, 2")
    A("s_waitcnt lgkmcnt(0)")
    make_srd(A, sWS, 36, WS_BYTES)
    A(f"s_lshr_b32 s{sHead}, s{sW}, 5")
    A(f"s_lshl_b32 s{sHead}, s{sHead}, 3")
    A(f"s_and_b32 s{sTmp}, s{sW}, 7")
    A(f"s_add_u32 s{sHead}, s{sHead}, s{sTmp}")
    A(f"s_bfe_u32 s{sJ}, s{sW}, 0x20003")
    A(f"s_lshl_b32 s80, s{sW}, 8")
    A(f"s_add_u32 s80, s80, {WS_PROF + 65536:#x}")
    tl()

    def signal(off_sreg, n=1, stride=0):
        Ls = A.newlabel("Lsig")
        A("s_waitcnt vmcnt(0)")
        A("s_barrier")
        A(f"s_cmp_lg_u32 s{sWave}, 0")
        A(f"s_cbranch_scc1 {Ls}")
        A("s_mov_b64 exec, 1")
        A("v_mov_b32 v4, 1")
        A("v_mov_b32 v5, 0")
        for i in range(n):
            A(f"buffer_atomic_add v4, v5, {srd(sWS)}, s{off_sreg} offen")
            if i < n - 1:
                A(f"s_add_u32 s{off_sreg}, s{off_sreg}, {stride}")
        A("s_mov_b64 exec, -1")
        A.label(Ls)
        tl()

    def wait(off_sreg, target):
        Lp, Ld = A.newlabel("Lwt"), A.newlabel("Lwtd")
        A(f"s_cmp_lg_u32 s{sWave}, 0")
        A(f"s_cbranch_scc1 {Ld}")
        A("v_mov_b32 v5, 0")
        A(f"s_mov_b32 s{sPoll}, 0")
        A.label(Lp)
        A(f"buffer_load_dword v4, v5, {srd(sWS)}, s{off_sreg} offen sc1")
        A("s_waitcnt vmcnt(0)")
        A(f"v_cmp_gt_u32 vcc, {target:#x}, v4")
        A(f"s_cbranch_vccz {Ld}")
        A("s_sleep 8")
        A(f"s_add_u32 s{sPoll}, s{sPoll}, 1")
        A(f"s_cmp_lt_u32 s{sPoll}, {SPIN}")
        A(f"s_cbranch_scc1 {Lp}")
        A.label(Ld)
        A("s_barrier")
        tl()

    def cnt_rbh(base):
        A(f"s_lshl_b32 s75, s{sRB}, 12")
        A(f"s_lshl_b32 s{sTmp}, s{sH}, 7")
        A(f"s_add_u32 s75, s75, s{sTmp}")
        A(f"s_add_u32 s75, s75, {WS_CNT + base:#x}")

    def cond_block(cmps, body):
        Lskip = A.newlabel("Lcs")
        for c in cmps:
            Lgo = A.newlabel("Lcg")
            A(c)
            A(f"s_cbranch_scc1 {Lgo}")
            A(f"s_branch {Lskip}")
            A.label(Lgo)
        body()
        A.label(Lskip)

    def confirm_lds():
        confirm(sWave)

    def do_vu():
        A(f"s_mov_b32 s{sRB}, s{sJ}")
        A(f"s_mov_b32 s{sH}, s{sHead}")
        kvu_body(A, 2, SC, tl=tl, mode="vu")
        cnt_rbh(CNT_VU)
        signal(75)
    cond_block([f"s_cmp_lt_u32 s{sJ}, 2"], do_vu)

    def do_k():
        A(f"s_mov_b32 s{sRB}, 0")
        A(f"s_mov_b32 s{sH}, s{sHead}")
        kvu_body(A, 4, SC, tl=tl, mode="k")
        cnt_rbh(CNT_KVU)
        signal(75, 2, 4096)
    cond_block([f"s_cmp_eq_u32 s{sJ}, 2"], do_k)
    A(f"s_add_u32 s{sRnd}, s{sJ}, 4")
    A(f"s_sub_u32 s86, 5, s{sJ}")
    A(f"s_cmp_lt_u32 s{sJ}, 2")
    A(f"s_cselect_b32 s{sRnd}, s{sRnd}, s86")
    Lk = A.newlabel("Lkvu")
    A.label(Lk)
    A(f"s_mov_b32 s{sRB}, s{sRnd}")
    A(f"s_mov_b32 s{sH}, s{sHead}")
    kvu_body(A, 2, SC, tl=tl)
    cnt_rbh(CNT_KVU)
    signal(75, 2, CNT_VU - CNT_KVU)
    confirm_lds()
    A(f"s_add_u32 s{sRnd}, s{sRnd}, 4")
    A(f"s_cmp_lt_u32 s{sRnd}, 8")
    Lk2 = A.newlabel("Lkvu2")
    A(f"s_cbranch_scc0 {Lk2}")
    A(f"s_branch {Lk}")
    A.label(Lk2)
    def idx40(dst, ja, jb):
        A(f"s_add_u32 s{dst}, s{sHead}, 32")
        A(f"s_cmp_eq_u32 s{sJ}, {jb}")
        A(f"s_cselect_b32 s{dst}, s{dst}, 99")
        A(f"s_cmp_eq_u32 s{sJ}, {ja}")
        A(f"s_cselect_b32 s{dst}, s{sHead}, s{dst}")

    def do_a1():
        A(f"s_mov_b32 s75, {WS_CNT + CNT_CONST:#x}")
        wait(75, 512)
        A(f"s_and_b32 s{sRB}, s85, 7")
        A(f"s_lshr_b32 s{sH}, s85, 3")
        parta.a1_body(A, 76, " sc1")
        A(f"s_mov_b32 s75, {WS_CNT + CNT_A1:#x}")
        signal(75)
    idx40(85, 1, 2)
    cond_block(["s_cmp_lt_u32 s85, 40"], do_a1)
    A(f"s_mov_b32 s{sRB}, s{sJ}")
    A(f"s_mov_b32 s{sH}, s{sHead}")
    kvu_body(A, 4, SC, seg_base=32, tl=tl)
    A(f"s_lshl_b32 s{sRB}, s{sJ}, 1")
    A(f"s_add_u32 s{sRB}, s{sRB}, 8")
    cnt_rbh(CNT_KVU)
    signal(75, 2, 4096)
    cnt_rbh(CNT_VU)
    signal(75, 2, 4096)

    def do_a2():
        A(f"s_mov_b32 s75, {WS_CNT + CNT_A1:#x}")
        wait(75, 40)
        La = A.newlabel("La2l")
        A.label(La)
        A(f"s_lshl_b32 s{sH}, s85, 2")
        A(f"s_add_u32 s{sH}, s{sH}, s{sWave}")
        cond_block([f"s_cmp_le_u32 s{sH}, 320"], lambda: parta.a2_body(A, " sc1"))
        A(f"s_mov_b32 s75, {WS_CNT + CNT_A2:#x}")
        signal(75)
        A("s_add_u32 s85, s85, 32")
        A("s_cmp_lt_u32 s85, 64")
        Lb = A.newlabel("La2e")
        A(f"s_cbranch_scc0 {Lb}")
        A(f"s_branch {La}")
        A.label(Lb)
    A(f"s_add_u32 s85, s{sHead}, 56")
    A(f"s_cmp_lt_u32 s{sHead}, 8")
    A(f"s_cselect_b32 s85, 99, s85")
    A(f"s_cmp_lt_u32 s{sJ}, 2")
    A(f"s_cselect_b32 s85, 99, s85")
    A(f"s_cmp_eq_u32 s{sJ}, 3")
    A(f"s_cselect_b32 s85, s{sHead}, s85")
    cond_block(["s_cmp_lt_u32 s85, 81"], do_a2)

    def do_a3():
        A(f"s_mov_b32 s75, {WS_CNT + CNT_A2:#x}")
        wait(75, 81)
        A(f"s_and_b32 s{sRB}, s{sHead}, 1")
        A(f"s_lshr_b32 s{sH}, s{sHead}, 1")
        parta.a3_body(A)
        A("s_barrier")
        tl()
    cond_block([f"s_cmp_eq_u32 s{sJ}, 3"], do_a3)
    def do_q():
        A(f"s_mov_b32 s{sRnd}, s{sJ}")
        Lq1 = A.newlabel("Lq")
        A.label(Lq1)
        A(f"s_mov_b32 s{sRB}, s{sRnd}")
        A(f"s_mov_b32 s{sH}, s{sHead}")
        q_body(A, " sc1")
        cnt_rbh(CNT_Q)
        signal(75)
        A(f"s_add_u32 s{sRnd}, s{sRnd}, 2")
        A(f"s_cmp_eq_u32 s{sRnd}, 3")
        Lq2 = A.newlabel("Lq")
        A(f"s_cbranch_scc0 {Lq2}")
        A(f"s_branch {Lq1}")
        A.label(Lq2)
    cond_block([f"s_cmp_lt_u32 s{sJ}, 3"], do_q)

    def do_att():
        A(f"s_mov_b32 s{sRnd}, 0")
        Lt = A.newlabel("Latt")
        A.label(Lt)
        A(f"s_mov_b32 s{sH}, s{sHead}")
        A(f"s_lshr_b32 s{sRB}, s{sRnd}, 2")
        cnt_rbh(CNT_Q)
        wait(75, 1)
        A(f"s_mov_b32 s{sRB}, s{sRnd}")
        cnt_rbh(CNT_KVU)
        wait(75, 1)
        cnt_rbh(CNT_VU)
        wait(75, 1)

        def hook():
            cnt_rbh(CNT_MEM)
            wait(75, 16)
        att_body(A, 2, " sc1", hook, rm_below=NRM, light=True)
        A(f"s_lshl_b32 s75, s{sRB}, 7")
        A(f"s_add_u32 s75, s75, {WS_CNT + CNT_ATT:#x}")
        signal(75)
        A(f"s_add_u32 s{sRnd}, s{sRnd}, 1")
        A(f"s_cmp_lt_u32 s{sRnd}, 16")
        Le = A.newlabel("Latte")
        A(f"s_cbranch_scc0 {Le}")
        A(f"s_branch {Lt}")
        A.label(Le)
        A("s_endpgm")
    cond_block([f"s_cmp_eq_u32 s{sJ}, 0"], do_att)

    def do_outp():
        A(f"s_mul_i32 s{sRB}, s85, 52")
        A(f"s_lshr_b32 s{sRB}, s{sRB}, 8")
        A(f"s_mul_i32 s{sTmp}, s{sRB}, 5")
        A(f"s_sub_u32 s{sH}, s85, s{sTmp}")
        A(f"s_lshl_b32 s75, s{sRB}, 7")
        A(f"s_add_u32 s75, s75, {WS_CNT + CNT_ATT:#x}")
        wait(75, 32)
        outp2_body(A)
        A("s_barrier")
        tl()
    assert all((c * 52) >> 8 == c // 5 for c in range(40))
    idx40(85, 2, 1)
    cond_block([f"s_cmp_lt_u32 s85, {5*NRM}"], do_outp)
    sF = 84
    A(f"s_sub_u32 s{sF}, s{sJ}, 2")
    A(f"s_lshl_b32 s{sF}, s{sF}, 5")
    A(f"s_cmp_eq_u32 s{sJ}, 1")
    A(f"s_cselect_b32 s{sF}, 64, s{sF}")
    A(f"s_add_u32 s{sF}, s{sF}, s{sHead}")

    def hook2(sBlk):
        A(f"s_lshl_b32 s75, s{sBlk}, 7")
        A(f"s_add_u32 s75, s75, {WS_CNT + CNT_ATT + NRM*128:#x}")
        wait(75, 32)
    outp_fast_body(A, sF, 8*NRM, hook2, nblk=16-NRM)
    tl()
```

```python
import struct
from asmlib import *
from layout import *


def f32bits(x):
    return struct.unpack("<I", struct.pack("<f", x))[0]


class Q:
    def __init__(self, A, name, maxn):
        self.A, self.name, self.maxn = A, name, maxn
        self.q = []

    def issue(self, tag):
        self.q.append(tag)

    def need(self, tag):
        idx = max((i for i, t in enumerate(self.q) if t == tag), default=-1)
        if idx < 0:
            return
        n = len(self.q) - 1 - idx
        self.A(f"s_waitcnt {self.name}({min(n, self.maxn)})")
        self.q = self.q[idx + 1:] if n <= self.maxn else self.q[len(self.q) - self.maxn:]

    def drain(self):
        self.A(f"s_waitcnt {self.name}(0)")
        self.q = []


sWS, sXS, sWA, sWB, sWO = 4, 8, 12, 16, 20
sRB, sH, sWave, sIt, sTmp, sTmp2, sKoffW, sKoffX, sOut = 40, 41, 42, 43, 44, 45, 46, 47, 48
STAGE = 32768
LDS_MAX = 163840
EXPF = set()


def srd(b):
    return f"s[{b}:{b+3}]"


def w_prologue(A, Lend, ntasks):
    A(f"s_cmp_ge_u32 s2, {ntasks}")
    A(f"s_cbranch_scc1 {Lend}")
    A("s_load_dwordx4 s[24:27], s[0:1], 24")
    A("s_load_dwordx8 s[28:35], s[0:1], 40")
    A("s_load_dwordx2 s[36:37], s[0:1], 96")
    A("s_load_dwordx2 s[38:39], s[0:1], 80")
    A("v_and_b32 v1, 63, v0")
    A("v_lshrrev_b32 v5, 6, v0")
    A("v_and_b32 v2, 15, v0")
    A(f"v_readfirstlane_b32 s{sWave}, v5")
    A("v_bfe_u32 v3, v0, 4, 2")
    A("s_waitcnt lgkmcnt(0)")


vLane, vN, vG = 1, 2, 3


def proj_gemm(A, NM, wsrds, acc_of, R, vq, RTW=4, swap=False, niter=5, w_pitch=8192, w_base=None,
              xsrd=None, x_base=0, x_pitch=1280, x_mode="std", w_wrap=None, NST=4):
    xsrd = sXS if xsrd is None else xsrd
    w_base = w_base or [0] * NM
    T0, T1, T2 = R.alloc(), R.alloc(), R.alloc()
    vWoff, vXoff = R.alloc(), R.alloc()
    SG = NM * 8192 + 4 * RTW * 1024
    NSET = (NST * SG + 65535) // 65536
    assert NST * SG <= LDS_MAX
    nsteps = niter * 4
    UNR = NST if NST % 2 == 0 else 2 * NST
    assert nsteps % UNR == 0
    vWa = [R.alloc(8) for _ in range(NSET)]
    vXa = [R.alloc() for _ in range(NSET)]
    XF = [R.alloc(4 * RTW), R.alloc(4 * RTW)]
    WF = R.alloc(16)
    NT = NM * 8
    XB = NM * 8192
    A(f"s_and_b32 s{sTmp}, s{sWave}, 1")
    A(f"s_lshl_b32 s{sTmp}, s{sTmp}, 2")
    A(f"v_or_b32 {v(T0)}, s{sTmp}, {v(vG)}")
    A(f"v_lshrrev_b32 {v(T1)}, 1, {v(vN)}")
    A(f"v_xor_b32 {v(T1)}, {v(T1)}, {v(T0)}")
    A(f"v_and_b32 {v(T2)}, 1, {v(vN)}")
    A(f"v_lshl_add_u32 {v(T1)}, {v(T1)}, 1, {v(T2)}")
    A(f"v_lshlrev_b32 {v(T1)}, 4, {v(T1)}")
    A(f"v_mul_u32_u24 {v(T2)}, {w_pitch}, {v(vG)}")
    A(f"v_add_u32 {v(T1)}, {v(T1)}, {v(T2)}")
    A(f"s_mul_i32 s{sTmp}, s{sWave}, {8*w_pitch}")
    A(f"s_lshl_b32 s{sTmp2}, s{sH}, 8")
    A(f"s_add_u32 s{sTmp}, s{sTmp}, s{sTmp2}")
    A(f"v_add_u32 {v(vWoff)}, s{sTmp}, {v(T1)}")
    if x_mode == "std":
        rowstride, wavestride = x_pitch, RTW * 16 * x_pitch
        e_off = [e * 16 * x_pitch for e in range(RTW)]
    else:
        rowstride, wavestride = 64 * x_pitch, 2 * x_pitch
        e_off = [(e % 2) * 16 * 64 * x_pitch + (e // 2) * x_pitch for e in range(4)]
    A(f"v_lshrrev_b32 {v(T0)}, 2, {v(vLane)}")
    A(f"v_mul_u32_u24 {v(T0)}, {rowstride}, {v(T0)}")
    A(f"v_and_b32 {v(T1)}, 3, {v(vLane)}")
    A(f"v_xor_b32 {v(T1)}, {v(T1)}, {v(vG)}")
    A(f"v_lshl_add_u32 {v(T0)}, {v(T1)}, 4, {v(T0)}")
    A(f"s_lshl_b32 s{sTmp}, s{sRB}, 2")
    A(f"s_add_u32 s{sTmp}, s{sTmp}, s{sWave}")
    A(f"s_mul_i32 s{sTmp}, s{sTmp}, {wavestride}")
    A(f"v_add_u32 {v(vXoff)}, s{sTmp}, {v(T0)}")
    A(f"v_lshrrev_b32 {v(T0)}, 2, {v(vN)}")
    A(f"v_and_b32 {v(T1)}, 1, {v(vG)}")
    A(f"v_lshl_or_b32 {v(T1)}, {v(T1)}, 2, {v(T0)}")
    A(f"v_lshl_add_u32 {v(T0)}, {v(vG)}, 3, {v(T0)}")
    A(f"v_lshlrev_b32 {v(T0)}, 8, {v(T0)}")
    A(f"v_and_b32 {v(T2)}, 3, {v(vN)}")
    A(f"v_lshl_add_u32 {v(T0)}, {v(T2)}, 3, {v(T0)}")
    for t in range(8):
        A(f"v_xor_b32 {v(T2)}, {t}, {v(T1)}")
        A(f"v_lshl_add_u32 {v(vWa[0]+t)}, {v(T2)}, 5, {v(T0)}")
        for k in range(1, NSET):
            A(f"v_add_u32 {v(vWa[k]+t)}, {k*0x10000:#x}, {v(vWa[0]+t)}")
    A(f"v_lshrrev_b32 {v(T0)}, 2, {v(vN)}")
    A(f"v_xor_b32 {v(T0)}, {v(T0)}, {v(vG)}")
    A(f"v_lshlrev_b32 {v(T0)}, 4, {v(T0)}")
    A(f"v_lshl_add_u32 {v(T0)}, {v(vN)}, 6, {v(T0)}")
    A(f"s_mul_i32 s{sTmp}, s{sWave}, {RTW*1024}")
    A(f"s_add_u32 s{sTmp}, s{sTmp}, {XB}")
    A(f"v_add_u32 {v(vXa[0])}, s{sTmp}, {v(T0)}")
    for k in range(1, NSET):
        A(f"v_add_u32 {v(vXa[k])}, {k*0x10000:#x}, {v(vXa[0])}")
    sM0W, sM0X, sKW2, sKc = 50, 51, 52, 53
    A(f"s_lshl_b32 s{sM0W}, s{sWave}, 11")
    A(f"s_mov_b32 s{sM0X}, s{sTmp}")
    A(f"s_mov_b32 s{sKoffW}, 0")
    A(f"s_mov_b32 s{sKoffX}, {x_base:#x}")
    A(f"s_mov_b32 s{sKc}, 0")

    def dma_list(st):
        g = []
        for m in range(NM):
            for e in range(2):
                g.append([f"s_add_u32 m0, s{sM0W}, {st*SG + m*8192 + e*1024}",
                          f"s_add_u32 s{sKW2}, s{sKoffW}, {w_base[m] + e*4*w_pitch:#x}",
                          f"buffer_load_dwordx4 {v(vWoff)}, {srd(wsrds[m])}, s{sKW2} offen lds"])
        for e in range(RTW):
            g.append([f"s_add_u32 m0, s{sM0X}, {st*SG + e*1024}",
                      f"s_add_u32 s{sKW2}, s{sKoffX}, {e_off[e]}",
                      f"buffer_load_dwordx4 {v(vXoff)}, {srd(xsrd)}, s{sKW2} offen lds"])
        last = [f"s_add_u32 s{sKoffW}, s{sKoffW}, {32*w_pitch}", f"s_add_u32 s{sKoffX}, s{sKoffX}, 64"]
        if w_wrap is not None:
            last += [f"s_add_u32 s{sKc}, s{sKc}, 1", f"s_cmp_eq_u32 s{sKc}, {w_wrap}",
                     f"s_cselect_b32 s{sKoffW}, 0, s{sKoffW}"]
        g.append(last)
        return g
    D = 2 * NM + RTW
    lq = Q(A, "lgkmcnt", 15)

    def rd_w(st, tile):
        m, t = tile // 8, tile % 8
        r = WF + (tile % 4) * 4
        for h2 in range(2):
            off = st * SG + m * 8192 + h2 * 1024
            if "nolds" in EXPF:
                continue
            A(f"ds_read_b64_tr_b16 {v(r+2*h2,2)}, {v(vWa[off >> 16]+t)} offset:{off & 0xffff}")
        lq.issue(("w", tile % 4))
        lq.issue(("w", tile % 4))

    def rd_x(st, par, rt):
        off = st * SG + rt * 1024
        A(f"ds_read_b128 {v(XF[par]+rt*4,4)}, {v(vXa[off >> 16])} offset:{off & 0xffff}")
        lq.issue(("x", par))

    for st in range(NST - 1):
        for grp in dma_list(st):
            for ins in grp:
                A(ins)
    seen = set()
    for m in range(NM):
        for t in range(8):
            for rt in range(RTW):
                reg = acc_of(m, t, rt)
                if reg in seen:
                    continue
                seen.add(reg)
                base = int(reg[2:reg.index(":")])
                for i in range(4):
                    A(f"v_accvgpr_write_b32 a{base+i}, 0" if reg[0] == "a" else f"v_mov_b32 v{base+i}, 0")
    A(f"s_waitcnt vmcnt({min(63, (NST-2)*D)})")
    A("s_barrier")
    for rt in range(RTW):
        rd_x(0, 0, rt)
    rd_w(0, 0)
    rd_w(0, 1)
    A(f"s_mov_b32 s{sIt}, 0")
    Lloop = A.newlabel("Lpg")
    A.label(Lloop)
    q_at_entry = list(lq.q)
    for stp in range(UNR):
        st = stp % NST
        par = stp % 2
        dmas = []
        for tile in range(NT):
            if tile == NT // 2:
                A(f"s_waitcnt vmcnt({min(63, (NST-3)*D)})")
                A("s_barrier")
                dmas = dma_list((st + NST - 1) % NST) if "nodma" not in EXPF else []
            nt = tile + 2
            if nt < NT:
                rd_w(st, nt)
            else:
                if nt == NT:
                    for rt in range(RTW):
                        rd_x((st + 1) % NST, 1 - par, rt)
                rd_w((st + 1) % NST, nt - NT)
            if tile == 0:
                lq.need(("x", par))
            lq.need(("w", tile % 4))
            m, t = tile // 8, tile % 8
            for rt in range(RTW):
                acc = acc_of(m, t, rt)
                wf, xf = v(WF + (tile % 4) * 4, 4), v(XF[par] + rt * 4, 4)
                if swap:
                    A(f"v_mfma_f32_16x16x32_bf16 {acc}, {xf}, {wf}, {acc}")
                else:
                    A(f"v_mfma_f32_16x16x32_bf16 {acc}, {wf}, {xf}, {acc}")
                if dmas and rt % 2 == 1 and (NM == 1 or rt == 1):
                    for ins in dmas.pop(0):
                        A(ins)
        for grp in dmas:
            for ins in grp:
                A(ins)
    assert [t for t in lq.q] == q_at_entry, (lq.q, q_at_entry)
    A(f"s_add_u32 s{sIt}, s{sIt}, 1")
    A(f"s_cmp_lt_u32 s{sIt}, {nsteps // UNR}")
    A(f"s_cbranch_scc1 {Lloop}")
    A("s_waitcnt vmcnt(0) lgkmcnt(0)")
    A("s_barrier")
    A.nop(4)


def w_srds(A):
    make_srd(A, sWS, 36, WS_BYTES)


def gen_kvu(A, name="kvu_kernel", RTW=4):
    kernel_header(A, name)
    Lend = A.newlabel("Lend")
    w_prologue(A, Lend, 32 * 32 // RTW)
    make_srd(A, sWS, 36, WS_BYTES)
    A(f"s_and_b32 s{sH}, s2, 31")
    A(f"s_lshr_b32 s{sRB}, s2, 5")
    kvu_body(A, RTW, "")
    A.label(Lend)
    A("s_endpgm")
    return kernel_desc(name, 512, 102, 256)


def kvu_body(A, RTW, sc, seg_base=0, tl=lambda: None, u_hook=None, mode="kvu"):
    make_srd(A, sXS, 24, 2048 * 1280)
    make_srd(A, sWA, 30, 640 * 8192)
    make_srd(A, sWB, 32, 640 * 8192)
    make_srd(A, sWO, 34, 4096 * 1280)
    R = RegAlloc(6, 128 if RTW > 4 else 256)
    NSG = RTW // 2

    def acc_idx(m, t, rt):
        return (((1 - m) * 8 + t) * RTW + rt) * 4

    def acc_of(m, t, rt):
        i = acc_idx(m, t, rt)
        return a(i, 4) if i < 256 else v(128 + i - 256, 4)
    vq = Q(A, "vmcnt", 63)
    if mode == "kvu":
        proj_gemm(A, 2, [sWA, sWB], acc_of, R, vq, RTW=RTW, NST=(5 if RTW == 2 else 4), x_base=seg_base * 32 * 1280)
    else:
        mm = 0 if mode == "k" else 1
        proj_gemm(A, 1, [sWA if mm == 0 else sWB], lambda m, t, rt: acc_of(mm, t, rt), R, vq, RTW=RTW, NST=5,
                  x_base=seg_base * 32 * 1280)
    tl()
    R.next = 6
    R.limit = 256
    T0, T1, T2 = R.alloc(), R.alloc(), R.alloc()
    vOo = [R.alloc(), R.alloc()]
    vOa = [R.alloc(8), R.alloc(8)]
    vSt, vUst = R.alloc(), R.alloc()
    TMP = R.alloc(8)
    OF = R.alloc(32)
    assert R.next <= 128
    VA = R.alloc(16 * RTW)
    aU = [R.alloc(4 * RTW), R.alloc(4 * RTW)]
    UO = [R.alloc(4 * NSG), R.alloc(4 * NSG)]
    for par in range(2):
        A(f"v_or_b32 {v(T0)}, {par*4}, {v(vG)}")
        A(f"v_lshrrev_b32 {v(T1)}, 1, {v(vN)}")
        A(f"v_xor_b32 {v(T1)}, {v(T1)}, {v(T0)}")
        A(f"v_and_b32 {v(T2)}, 1, {v(vN)}")
        A(f"v_lshl_add_u32 {v(T1)}, {v(T1)}, 1, {v(T2)}")
        A(f"v_lshlrev_b32 {v(T1)}, 4, {v(T1)}")
        A(f"v_mul_u32_u24 {v(T2)}, 1280, {v(vG)}")
        A(f"v_add_u32 {v(T1)}, {v(T1)}, {v(T2)}")
        A(f"s_lshl_b32 s{sTmp}, s{sH}, 7")
        A(f"s_lshl_b32 s{sTmp2}, s{sWave}, 5")
        A(f"s_add_u32 s{sTmp}, s{sTmp}, s{sTmp2}")
        A(f"s_mul_i32 s{sTmp}, s{sTmp}, 1280")
        A(f"v_add_u32 {v(vOo[par])}, s{sTmp}, {v(T1)}")
    A(f"s_lshl_b32 s50, s{sWave}, 13")

    def dma_wo(ch):
        for e in range(8):
            A(f"s_add_u32 m0, s50, {(ch%4)*STAGE + e*1024}")
            A(f"s_mov_b32 s52, {e*4*1280 + ch*256}")
            A(f"buffer_load_dwordx4 {v(vOo[e%2])}, {srd(sWO)}, s52 offen lds")
            vq.issue(("wo", ch))
    for ch in range(4 if mode != "k" else 0):
        dma_wo(ch)
    A(f"v_lshrrev_b32 {v(T0)}, 2, {v(vN)}")
    A(f"v_lshl_add_u32 {v(T0)}, {v(vG)}, 2, {v(T0)}")
    A(f"v_and_b32 {v(T1)}, 7, {v(T0)}")
    A(f"v_lshlrev_b32 {v(T0)}, 8, {v(T0)}")
    A(f"v_and_b32 {v(T2)}, 3, {v(vN)}")
    A(f"v_lshl_add_u32 {v(T0)}, {v(T2)}, 3, {v(T0)}")
    for t in range(8):
        A(f"v_xor_b32 {v(T2)}, {t}, {v(T1)}")
        A(f"v_lshl_add_u32 {v(vOa[0]+t)}, {v(T2)}, 5, {v(T0)}")
        A(f"v_add_u32 {v(vOa[1]+t)}, 0x10000, {v(vOa[0]+t)}")
    A(f"s_lshl_b32 s{sTmp}, s{sRB}, 2")
    A(f"s_add_u32 s{sTmp}, s{sTmp}, s{sWave}")
    A(f"s_mul_i32 s{sTmp}, s{sTmp}, {NSG*32}")
    A(f"s_add_u32 s{sTmp}, s{sTmp}, s{sH}")
    if seg_base:
        A(f"s_add_u32 s{sTmp}, s{sTmp}, {seg_base*32}")
    A(f"s_lshl_b32 s{sOut}, s{sTmp}, 13")
    A(f"v_lshlrev_b32 {v(vSt)}, 4, {v(vLane)}")
    A(f"v_add_u32 {v(vSt)}, s{sOut}, {v(vSt)}")
    A(f"s_mul_i32 s{sOut}, s{sTmp}, 40960")
    A(f"v_and_b32 {v(T0)}, 7, {v(vN)}")
    A(f"v_lshl_add_u32 {v(T0)}, {v(vG)}, 3, {v(T0)}")
    A(f"v_lshlrev_b32 {v(T0)}, 4, {v(T0)}")
    A(f"v_lshrrev_b32 {v(T1)}, 3, {v(vN)}")
    A(f"v_lshl_add_u32 {v(T0)}, {v(T1)}, 9, {v(T0)}")
    A(f"v_add_u32 {v(vUst)}, s{sOut}, {v(T0)}")
    for m in {"kvu": (0, 1), "k": (0,), "vu": (1,)}[mode]:
        for rt in range(RTW):
            for s_ in range(4):
                dst = (VA + (rt * 4 + s_) * 4) if m == 1 else (OF + ((rt * 4 + s_) % 8) * 4)
                for half in range(2):
                    ab = acc_idx(m, 2 * s_ + half, rt)
                    if ab < 256:
                        for i in range(4):
                            A(f"v_accvgpr_read_b32 {v(TMP+half*4+i)}, a{ab+i}")
                        src = TMP + half * 4
                    else:
                        src = 128 + ab - 256
                    for j in range(2):
                        A(f"v_cvt_pk_bf16_f32 {v(dst+half*2+j)}, {v(src+2*j)}, {v(src+2*j+1)}")
                so = (WS_KX if m == 0 else WS_VX) + (rt // 2) * 32 * 8192 + ((rt % 2) * 4 + s_) * 1024
                A(f"s_mov_b32 s{sTmp2}, {so:#x}")
                A(f"buffer_store_dwordx4 {v(dst,4)}, {v(vSt)}, {srd(sWS)}, s{sTmp2} offen{sc}")
                vq.issue("st")
    if mode == "k":
        return
    lq = Q(A, "lgkmcnt", 15)
    sUo, sCh = 53, 54

    def rd_o(t):
        for s_ in range(4):
            r = OF + (t % 2) * 16 + s_ * 4
            A(f"ds_read_b64_tr_b16 {v(r,2)}, {v(vOa[0]+t)} offset:{s_*8192}")
            A(f"ds_read_b64_tr_b16 {v(r+2,2)}, {v(vOa[0]+t)} offset:{s_*8192 + 4096}")
            lq.issue(("o", t % 2))
            lq.issue(("o", t % 2))
        A(f"v_add_u32 {v(vOa[0]+t)}, {STAGE:#x}, {v(vOa[0]+t)}")
        A(f"v_and_b32 {v(vOa[0]+t)}, 0x1ffff, {v(vOa[0]+t)}")

    def u_out(p):
        for sg in range(NSG):
            for half in range(2):
                ab = aU[p] + (sg * 2 + half) * 4
                A(f"v_cvt_pk_bf16_f32 {v(UO[p]+sg*4+half*2)}, {v(ab)}, {v(ab+1)}")
                A(f"v_cvt_pk_bf16_f32 {v(UO[p]+sg*4+half*2+1)}, {v(ab+2)}, {v(ab+3)}")
            A(f"s_add_u32 s{sTmp2}, s{sUo}, {sg*32*40960:#x}")
            A(f"buffer_store_dwordx4 {v(UO[p]+sg*4,4)}, {v(vUst)}, {srd(sWS)}, s{sTmp2} offen{sc}")
        A(f"s_add_u32 s{sUo}, s{sUo}, 1024")

    vq.need(("wo", 0))
    A("s_barrier")
    if u_hook:
        u_hook()
    tl()
    A(f"s_mov_b32 s{sUo}, {WS_U:#x}")
    A(f"s_mov_b32 s{sCh}, 0")
    rd_o(0)
    Lu = A.newlabel("Lu")
    A.label(Lu)
    q0 = list(lq.q)
    for t in range(8):
        if t == 7:
            A(f"s_waitcnt vmcnt({min(63, 6*NSG)})")
            A("s_barrier")
            Lnd = A.newlabel("Lnd")
            A(f"s_cmp_lg_u32 s{sCh}, 1")
            A(f"s_cbranch_scc1 {Lnd}")
            dma_wo(4)
            A.label(Lnd)
        rd_o((t + 1) % 8)
        lq.need(("o", t % 2))
        for s_ in range(4):
            for rt in range(RTW):
                acc = v(aU[t % 2] + rt * 4, 4)
                c = "0" if s_ == 0 else acc
                A(f"v_mfma_f32_16x16x32_bf16 {acc}, {v(VA+(rt*4+s_)*4,4)}, {v(OF+(t%2)*16+s_*4,4)}, {c}")
            if s_ == (2 if RTW >= 4 else 3):
                if t == 0:
                    Lsk = A.newlabel("Lsk")
                    A(f"s_cmp_eq_u32 s{sCh}, 0")
                    A(f"s_cbranch_scc1 {Lsk}")
                    u_out(1)
                    A.label(Lsk)
                else:
                    u_out((t - 1) % 2)
    assert lq.q == q0
    A(f"s_add_u32 s{sCh}, s{sCh}, 1")
    A(f"s_cmp_lt_u32 s{sCh}, 5")
    A(f"s_cbranch_scc1 {Lu}")
    A.nop(8)
    u_out(1)
    A("s_waitcnt lgkmcnt(0)")


def gen_att(A, name="att_kernel", RTW=4):
    kernel_header(A, name)
    Lend = A.newlabel("Lend")
    w_prologue(A, Lend, 32 * 32 // RTW)
    make_srd(A, sWS, 36, WS_BYTES)
    A(f"s_and_b32 s{sH}, s2, 31")
    A(f"s_lshr_b32 s{sRB}, s2, 5")
    att_body(A, RTW, "", None)
    A.label(Lend)
    A("s_endpgm")
    return kernel_desc(name, 512, 102, 256)


def att_body(A, RTW, sc, wait_hook, rm_below=None, light=False):
    if not light:
        make_srd(A, sXS, 24, 2048 * 1280)
        make_srd(A, sWA, 28, 640 * 8192)
    R = RegAlloc(6, 256)
    NSG = RTW // 2

    def acc_of(m, t, rt):
        return a((t * RTW + rt) * 4, 4)
    if not light:
        proj_gemm(A, 1, [sWA], acc_of, R, None, RTW=RTW, NST=5)
    R.next = 6
    T0, T1, T2 = R.alloc(), R.alloc(), R.alloc()
    vL16, vKm, vVa, vVm, vNinf = R.alloc(), R.alloc(), R.alloc(), R.alloc(), R.alloc()
    vMx, vMx2, vSum = R.alloc(), R.alloc(), R.alloc()
    QB = R.alloc(64)
    TMP = R.alloc(8)
    KM = R.alloc(16)
    S = R.alloc(20)
    P = R.alloc(12)
    VF = R.alloc(32)
    VMF = R.alloc(16)
    accO = R.alloc(32)
    OB = R.alloc(16)
    aK = 128
    sMask = 56
    sC, sSeg, sL = 66, 67, 68
    A(f"s_mov_b32 s{sC}, {f32bits(SCALE*LOG2E):#x}")
    A(f"v_mov_b32 {v(vNinf)}, 0xff800000")
    A("s_mov_b32 s64, -1")
    A("s_mov_b32 s65, 0")
    A(f"v_lshlrev_b32 {v(vL16)}, 4, {v(vLane)}")
    for r in range(4):
        A(f"v_lshl_add_u32 {v(T0)}, {v(vG)}, 2, {r}")
        A(f"v_cmp_le_u32 s[{sMask+2*r}:{sMask+2*r+1}], {v(T0)}, {v(vN)}")
    A(f"v_and_b32 {v(T0)}, 7, {v(vN)}")
    A(f"v_lshl_add_u32 {v(T0)}, {v(vG)}, 3, {v(T0)}")
    A(f"v_lshlrev_b32 {v(vKm)}, 4, {v(T0)}")
    A(f"s_lshl_b32 s{sL}, s{sWave}, 15")
    A(f"v_lshrrev_b32 {v(T0)}, 2, {v(vN)}")
    A(f"v_lshl_add_u32 {v(T0)}, {v(vG)}, 2, {v(T0)}")
    A(f"v_and_b32 {v(T1)}, 3, {v(vN)}")
    A(f"v_lshl_add_u32 {v(T2)}, {v(T1)}, 4, {v(T0)}")
    A(f"v_lshlrev_b32 {v(T2)}, 4, {v(T2)}")
    A(f"v_add_u32 {v(vVa)}, s{sL}, {v(T2)}")
    A(f"v_and_b32 {v(T0)}, 7, {v(T0)}")
    A(f"v_lshl_add_u32 {v(T2)}, {v(T1)}, 3, {v(T0)}")
    A(f"v_lshlrev_b32 {v(T2)}, 4, {v(T2)}")
    A(f"v_add_u32 {v(vVm)}, s{sL}, {v(T2)}")
    A(f"s_lshl_b32 s{sTmp}, s{sRB}, 2")
    A(f"s_add_u32 s{sTmp}, s{sTmp}, s{sWave}")
    A(f"s_mul_i32 s{sTmp}, s{sTmp}, {NSG*32}")
    A(f"s_add_u32 s{sSeg}, s{sTmp}, s{sH}")
    for sg in range(NSG):
        A(f"s_add_u32 s{sTmp}, s{sSeg}, {sg*32}")
        A(f"s_lshl_b32 s{sTmp}, s{sTmp}, 13")
        for f in range(8):
            A(f"s_add_u32 s{sTmp2}, s{sTmp}, {WS_KX + f*1024:#x}")
            A(f"buffer_load_dwordx4 {a(aK+sg*32+f*4,4)}, {v(vL16)}, {srd(sWS)}, s{sTmp2} offen")
        for f in range(8):
            A(f"s_add_u32 m0, s{sL}, {sg*16384 + f*1024}")
            A(f"s_add_u32 s{sTmp2}, s{sTmp}, {WS_VX + f*1024:#x}")
            A(f"buffer_load_dwordx4 {v(vL16)}, {srd(sWS)}, s{sTmp2} offen lds")
        if light:
            for f in range(8):
                A(f"s_add_u32 s{sTmp2}, s{sTmp}, {WS_QX + f*1024:#x}")
                A(f"buffer_load_dwordx4 {v(QB+(sg*8+f)*4,4)}, {v(vL16)}, {srd(sWS)}, s{sTmp2} offen")
    for rt in range(0 if light else RTW):
        for s_ in range(4):
            for half in range(2):
                ab = ((2 * s_ + half) * RTW + rt) * 4
                for i in range(4):
                    A(f"v_accvgpr_read_b32 {v(TMP+half*4+i)}, a{ab+i}")
            for j in range(4):
                A(f"v_cvt_pk_bf16_f32 {v(QB+(rt*4+s_)*4+j)}, {v(TMP+2*j)}, {v(TMP+2*j+1)}")

    def xlane(op, reg):
        for sw in ("v_permlane16_swap_b32", "v_permlane32_swap_b32"):
            A(f"v_mov_b32 {v(vMx2)}, {v(reg)}")
            A.nop(2)
            A(f"{sw} {v(reg)}, {v(vMx2)}")
            A.nop(1)
            A(f"{op} {v(reg)}, {v(reg)}, {v(vMx2)}")

    if wait_hook:
        wait_hook()
    for sg in range(NSG):
        A(f"s_add_u32 s{sTmp}, s{sSeg}, {sg*32}")
        A(f"s_lshl_b32 s{sTmp}, s{sTmp}, 11")
        for f in range(2):
            A(f"s_add_u32 m0, s{sL}, {sg*16384 + 8192 + f*1024}")
            A(f"s_add_u32 s{sTmp2}, s{sTmp}, {WS_VM + f*1024:#x}")
            A(f"buffer_load_dwordx4 {v(vL16)}, {srd(sWS)}, s{sTmp2} offen lds")
    for sg in range(NSG):
        A(f"s_add_u32 s{sTmp}, s{sSeg}, {sg*32}")
        A(f"s_lshl_b32 s{sTmp}, s{sTmp}, 11")
        A(f"s_add_u32 s{sTmp}, s{sTmp}, {WS_KM:#x}")
        for s_ in range(4):
            A(f"buffer_load_dwordx4 {v(KM+s_*4,4)}, {v(vKm)}, {srd(sWS)}, s{sTmp} offen offset:{s_*512}")
        A("s_waitcnt vmcnt(0)")
        for t in range(8):
            for T in range(2):
                A(f"ds_read_b64_tr_b16 {v(VF+t*4+T*2,2)}, {v(vVa)} offset:{sg*16384 + (T*4+t//2)*1024 + (t%2)*8}")
            A(f"ds_read_b64_tr_b16 {v(VMF+t*2,2)}, {v(vVm)} offset:{sg*16384 + 8192 + (t//2)*512 + (t%2)*8}")
            if t % 4 == 3:
                A("s_waitcnt lgkmcnt(0)")
        combos = [(0, 0, S), (0, 1, S + 4), (1, 0, S + 8), (1, 1, S + 12), (1, 2, S + 16)]
        for s_ in range(4):
            for qt, T, acc in combos:
                aop = v(KM + s_ * 4, 4) if T == 0 else a(aK + sg * 32 + ((T - 1) * 4 + s_) * 4, 4)
                c = "0" if s_ == 0 else v(acc, 4)
                A(f"v_mfma_f32_16x16x32_bf16 {v(acc,4)}, {aop}, {v(QB+((sg*2+qt)*4+s_)*4,4)}, {c}")
        A.nop(8)
        for qt in range(2):
            base = S if qt == 0 else S + 8
            nv = 8 if qt == 0 else 12
            dg = base + nv - 4
            for i in range(4):
                A(f"v_cndmask_b32 {v(base+i)}, {v(vNinf)}, {v(base+i)}, s[64:65]")
                A(f"v_cndmask_b32 {v(dg+i)}, {v(vNinf)}, {v(dg+i)}, s[{sMask+2*i}:{sMask+2*i+1}]")
            A(f"v_max3_f32 {v(vMx)}, {v(base)}, {v(base+1)}, {v(base+2)}")
            for i in range(3, nv - 1, 2):
                A(f"v_max3_f32 {v(vMx)}, {v(vMx)}, {v(base+i)}, {v(base+i+1)}")
            A(f"v_max_f32 {v(vMx)}, {v(vMx)}, {v(base+nv-1)}")
            xlane("v_max_f32", vMx)
            A(f"v_mul_f32 {v(vMx)}, s{sC}, {v(vMx)}")
            for i in range(nv):
                A(f"v_fma_f32 {v(base+i)}, {v(base+i)}, s{sC}, -{v(vMx)}")
            for i in range(nv):
                A(f"v_exp_f32 {v(base+i)}, {v(base+i)}")
            A.nop(1)
            A(f"v_add_f32 {v(vSum)}, {v(base)}, {v(base+1)}")
            for i in range(2, nv):
                A(f"v_add_f32 {v(vSum)}, {v(vSum)}, {v(base+i)}")
            xlane("v_add_f32", vSum)
            A(f"v_rcp_f32 {v(vSum)}, {v(vSum)}")
            A.nop(1)
            for i in range(nv):
                A(f"v_mul_f32 {v(base+i)}, {v(base+i)}, {v(vSum)}")
            pq = P + qt * 6
            A(f"v_cvt_pk_bf16_f32 {v(pq+4)}, {v(base)}, {v(base+1)}")
            A(f"v_cvt_pk_bf16_f32 {v(pq+5)}, {v(base+2)}, {v(base+3)}")
            A(f"v_cvt_pk_bf16_f32 {v(TMP)}, {v(base+4)}, {v(base+5)}")
            A(f"v_cvt_pk_bf16_f32 {v(TMP+1)}, {v(base+6)}, {v(base+7)}")
            if qt == 0:
                A(f"v_mov_b32 {v(TMP+2)}, 0")
                A(f"v_mov_b32 {v(TMP+3)}, 0")
            else:
                A(f"v_cvt_pk_bf16_f32 {v(TMP+2)}, {v(base+8)}, {v(base+9)}")
                A(f"v_cvt_pk_bf16_f32 {v(TMP+3)}, {v(base+10)}, {v(base+11)}")
            A.nop(2)
            for t in range(8):
                A(f"v_mfma_f32_16x16x32_bf16 {v(accO+t*4,4)}, {v(VF+t*4,4)}, {v(TMP,4)}, 0")
            for t in range(8):
                A(f"v_mfma_f32_16x16x16_bf16 {v(accO+t*4,4)}, {v(VMF+t*2,2)}, {v(pq+4,2)}, {v(accO+t*4,4)}")
            A.nop(8)
            A(f"s_add_u32 s{sTmp}, s{sSeg}, {sg*32}")
            A(f"s_lshl_b32 s{sTmp}, s{sTmp}, 1")
            A(f"s_sub_u32 s{sTmp}, s{sTmp}, s{sH}")
            A(f"s_add_u32 s{sTmp}, s{sTmp}, {qt*32}")
            A(f"s_lshl_b32 s{sTmp}, s{sTmp}, 12")
            A(f"s_add_u32 s{sTmp}, s{sTmp}, {WS_O:#x}")
            for s_ in range(4):
                for j in range(4):
                    A(f"v_cvt_pk_bf16_f32 {v(OB+s_*4+j)}, {v(accO+s_*8+2*j)}, {v(accO+s_*8+2*j+1)}")
            Lrm, Lrd = A.newlabel("Lrm"), A.newlabel("Lrd")
            if rm_below is not None:
                A(f"s_cmp_lt_u32 s{sRB}, {rm_below}")
                A(f"s_cbranch_scc1 {Lrm}")
            for s_ in range(4):
                A(f"buffer_store_dwordx4 {v(OB+s_*4,4)}, {v(vL16)}, {srd(sWS)}, s{sTmp} offen offset:{s_*1024}{sc}")
            if rm_below is not None:
                A(f"s_branch {Lrd}")
                A.label(Lrm)
                A(f"s_add_u32 s{sTmp}, s{sSeg}, {sg*32}")
                A(f"s_sub_u32 s{sTmp}, s{sTmp}, s{sH}")
                A(f"s_add_u32 s{sTmp}, s{sTmp}, {qt*16}")
                A(f"s_lshl_b32 s{sTmp}, s{sTmp}, 13")
                A(f"s_lshl_b32 s{sTmp2}, s{sH}, 8")
                A(f"s_add_u32 s{sTmp}, s{sTmp}, s{sTmp2}")
                A(f"s_add_u32 s{sTmp}, s{sTmp}, {WS_O:#x}")
                A(f"v_lshlrev_b32 {v(T0)}, 13, {v(vN)}")
                A(f"v_lshl_add_u32 {v(T0)}, {v(vG)}, 3, {v(T0)}")
                for t in range(8):
                    A(f"buffer_store_dwordx2 {v(OB+t*2,2)}, {v(T0)}, {srd(sWS)}, s{sTmp} offen offset:{t*32}{sc}")
                A.label(Lrd)
            A.nop(2)


def gen_outp(A, name="outp_kernel", RT=4):
    kernel_header(A, name)
    Lend = A.newlabel("Lend")
    ntask = (128 // RT) * 8
    w_prologue(A, Lend, ntask)
    make_srd(A, sWS, 36, WS_BYTES)
    sCB = sH
    A(f"s_and_b32 s{sCB}, s2, 7")
    A(f"s_lshr_b32 s{sRB}, s2, 3")
    outp_body(A, RT, sCB)
    A.label(Lend)
    A("s_endpgm")
    return kernel_desc(name, 512, 102, 256)


def outp_body(A, RT, sCB):
    make_srd(A, sWO, 34, 4096 * 1280)
    make_srd(A, sXS, 38, 2048 * 2560)
    R = RegAlloc(6, 256)
    T0, T1, T2 = R.alloc(), R.alloc(), R.alloc()
    vWo = R.alloc(5)
    vOf, vTr, vLw, vOut = R.alloc(), R.alloc(), R.alloc(), R.alloc()
    OF = [R.alloc(4 * RT) for _ in range(4)]
    WF = [R.alloc(20) for _ in range(2)]
    TMP = R.alloc(16)
    sL, sKo, sKw = 50, 51, 52
    A(f"s_mul_i32 s{sTmp}, s{sCB}, 160")
    A(f"s_mul_i32 s{sTmp2}, s{sWave}, {1024*1280}")
    A(f"s_add_u32 s{sTmp}, s{sTmp}, s{sTmp2}")
    for i in range(5):
        A(f"v_add_u32 {v(T0)}, {64*i}, {v(vLane)}")
        A(f"v_mul_u32_u24 {v(T1)}, 205, {v(T0)}")
        A(f"v_lshrrev_b32 {v(T1)}, 11, {v(T1)}")
        A(f"v_mul_u32_u24 {v(T2)}, 10, {v(T1)}")
        A(f"v_sub_u32 {v(T0)}, {v(T0)}, {v(T2)}")
        A(f"v_mul_u32_u24 {v(T1)}, 1280, {v(T1)}")
        A(f"v_lshl_add_u32 {v(T0)}, {v(T0)}, 4, {v(T1)}")
        A(f"v_add_u32 {v(vWo+i)}, s{sTmp}, {v(T0)}")
    assert all((i * 205) >> 11 == i // 10 for i in range(320))
    A(f"s_mul_i32 s{sTmp}, s{sRB}, {RT*131072}")
    A(f"s_lshl_b32 s{sTmp2}, s{sWave}, 15")
    A(f"s_add_u32 s{sTmp}, s{sTmp}, s{sTmp2}")
    A(f"s_add_u32 s{sTmp}, s{sTmp}, {WS_O:#x}")
    A(f"v_lshlrev_b32 {v(T0)}, 4, {v(vLane)}")
    A(f"v_add_u32 {v(vOf)}, s{sTmp}, {v(T0)}")
    A(f"s_mul_i32 s{sL}, s{sWave}, 20480")
    A(f"v_lshrrev_b32 {v(T1)}, 2, {v(vN)}")
    A(f"v_lshl_add_u32 {v(T1)}, {v(vG)}, 2, {v(T1)}")
    A(f"v_mul_u32_u24 {v(T1)}, 160, {v(T1)}")
    A(f"v_and_b32 {v(T2)}, 3, {v(vN)}")
    A(f"v_lshl_add_u32 {v(T1)}, {v(T2)}, 3, {v(T1)}")
    A(f"v_add_u32 {v(vTr)}, s{sL}, {v(T1)}")
    A(f"s_mov_b32 s{sKo}, 0")
    A(f"s_mov_b32 s{sKw}, 0")
    for i in range(RT * 20):
        A(f"v_accvgpr_write_b32 a{i}, 0")
    vq = Q(A, "vmcnt", 63)
    lq = Q(A, "lgkmcnt", 15)

    def load(slot):
        g = []
        for i in range(5):
            g.append([f"s_add_u32 m0, s{sL}, {slot*5120 + i*1024}", "s_nop 0",
                      f"buffer_load_dwordx4 {v(vWo+i)}, {srd(sWO)}, s{sKw} offen lds"])
        for rt in range(RT):
            g.append([f"s_add_u32 s{sTmp}, s{sKo}, {rt*131072}",
                      f"buffer_load_dwordx4 {v(OF[slot]+rt*4,4)}, {v(vOf)}, {srd(sWS)}, s{sTmp} offen"])
        g.append([f"s_add_u32 s{sKw}, s{sKw}, {32*1280}", f"s_add_u32 s{sKo}, s{sKo}, 1024"])
        return g

    def emit_load(slot):
        for grp in load(slot):
            for ins in grp:
                A(ins)
    D = 5 + RT

    def rd(slot, par):
        for t in range(5):
            A(f"ds_read_b64_tr_b16 {v(WF[par]+t*4,2)}, {v(vTr)} offset:{slot*5120 + t*32}")
            A(f"ds_read_b64_tr_b16 {v(WF[par]+t*4+2,2)}, {v(vTr)} offset:{slot*5120 + t*32 + 16*160}")
    for slot in range(3):
        emit_load(slot)
    A(f"s_waitcnt vmcnt({2*D})")
    rd(0, 0)
    A(f"s_mov_b32 s{sIt}, 0")
    Lloop = A.newlabel("Lop")
    A.label(Lloop)
    for slot in range(4):
        par = slot % 2
        A(f"s_waitcnt vmcnt({D}) lgkmcnt(0)")
        rd((slot + 1) % 4, 1 - par)
        grps = load((slot + 3) % 4)
        for t in range(5):
            for rt in range(RT):
                acc = a((t * RT + rt) * 4, 4)
                A(f"v_mfma_f32_16x16x32_bf16 {acc}, {v(WF[par]+t*4,4)}, {v(OF[slot]+rt*4,4)}, {acc}")
                if grps and rt % 2 == 1:
                    for ins in grps.pop(0):
                        A(ins)
        for grp in grps:
            for ins in grp:
                A(ins)
    A(f"s_add_u32 s{sIt}, s{sIt}, 1")
    A(f"s_cmp_lt_u32 s{sIt}, 8")
    A(f"s_cbranch_scc1 {Lloop}")
    A("s_waitcnt vmcnt(0) lgkmcnt(0)")
    A("s_barrier")
    NTL = 5 * RT
    A(f"s_mul_i32 s{sTmp}, s{sWave}, {NTL*1024}")
    A(f"v_lshlrev_b32 {v(T0)}, 4, {v(vLane)}")
    A(f"v_add_u32 {v(vLw)}, s{sTmp}, {v(T0)}")
    A.nop(4)
    for i in range(NTL):
        A(f"ds_write_b128 {v(vLw)}, {a(i*4,4)} offset:{i*1024}")
    A("s_waitcnt lgkmcnt(0)")
    A("s_barrier")
    RPW = RT // 4
    A(f"s_mul_i32 s{sTmp}, s{sWave}, {RPW*1024}")
    A(f"v_add_u32 {v(vLw)}, s{sTmp}, {v(T0)}")
    A(f"v_add_u32 {v(vTr)}, {2*NTL*1024}, {v(vLw)}")
    A(f"s_mul_i32 s{sTmp}, s{sRB}, {RT}")
    A(f"s_mul_i32 s{sTmp2}, s{sWave}, {RPW}")
    A(f"s_add_u32 s{sTmp}, s{sTmp}, s{sTmp2}")
    A(f"s_mul_i32 s{sTmp}, s{sTmp}, {16*2560}")
    A(f"s_mul_i32 s{sTmp2}, s{sCB}, 160")
    A(f"s_add_u32 s{sTmp}, s{sTmp}, s{sTmp2}")
    A(f"s_add_u32 s{sTmp}, s{sTmp}, 1280")
    A(f"v_mul_u32_u24 {v(T1)}, 2560, {v(vN)}")
    A(f"v_lshl_add_u32 {v(T1)}, {v(vG)}, 3, {v(T1)}")
    A(f"v_add_u32 {v(vOut)}, s{sTmp}, {v(T1)}")
    for j in range(RPW):
        for t in range(5):
            for w in range(4):
                ad = vLw if w < 2 else vTr
                A(f"ds_read_b128 {v(TMP+w*4,4)}, {v(ad)} offset:{(w%2)*NTL*1024 + (t*RT+j)*1024}")
            A("s_waitcnt lgkmcnt(0)")
            for i in range(4):
                A(f"v_add_f32 {v(TMP+i)}, {v(TMP+i)}, {v(TMP+4+i)}")
                A(f"v_add_f32 {v(TMP+8+i)}, {v(TMP+8+i)}, {v(TMP+12+i)}")
            for i in range(4):
                A(f"v_add_f32 {v(TMP+i)}, {v(TMP+i)}, {v(TMP+8+i)}")
            o = OF[0] + (t % 2) * 2
            A(f"v_cvt_pk_bf16_f32 {v(o)}, {v(TMP)}, {v(TMP+1)}")
            A(f"v_cvt_pk_bf16_f32 {v(o+1)}, {v(TMP+2)}, {v(TMP+3)}")
            A(f"s_mov_b32 s{sTmp}, {j*16*2560}")
            A(f"buffer_store_dwordx2 {v(o,2)}, {v(vOut)}, {srd(sXS)}, s{sTmp} offen offset:{t*32}")


def outp_fast_body(A, sIdx, rowtile0, wait_hook, nblk=2):
    make_srd(A, sWO, 34, 4096 * 1280)
    make_srd(A, sXS, 38, 2048 * 2560)
    R = RegAlloc(6, 256)
    T0, T1, T2 = R.alloc(), R.alloc(), R.alloc()
    vWo, vTr, vOf, vLw, vOut = R.alloc(), R.alloc(), R.alloc(), R.alloc(), R.alloc()
    acc = R.alloc(12)
    TMP = R.alloc(16)
    WJ = R.alloc(48)
    assert R.next <= 96
    WV = 96
    OFR = 128
    sL, sCb, sRt = 50, 51, 52

    def wreg(hh, t, s_):
        i = (hh * 12 + t * 4 + s_) * 4
        return a(i, 4) if i < 256 else v(WV + i - 256, 4)

    def wreg2(hh, t, s_, half):
        i = (hh * 12 + t * 4 + s_) * 4 + half * 2
        return a(i, 2) if i < 256 else v(WV + i - 256, 2)
    A(f"s_and_b32 s{sCb}, s{sIdx}, 15")
    sRtEnd = 53
    A(f"s_lshr_b32 s{sRt}, s{sIdx}, 4")
    A(f"s_add_u32 s{sRtEnd}, s{sRt}, 1")
    A(f"s_cmp_eq_u32 s{sRt}, 4")
    A(f"s_cselect_b32 s{sRtEnd}, 6, s{sRtEnd}")
    A(f"s_cmp_eq_u32 s{sRt}, 5")
    A(f"s_cselect_b32 s{sRtEnd}, 8, s{sRtEnd}")
    A(f"s_cselect_b32 s{sRt}, 6, s{sRt}")
    A(f"s_lshl_b32 s{sL}, s{sWave}, 15")
    A(f"s_mul_i32 s{sTmp}, s{sWave}, {1024*1280}")
    A(f"s_mul_i32 s{sTmp2}, s{sCb}, 80")
    A(f"s_add_u32 s{sTmp}, s{sTmp}, s{sTmp2}")
    A(f"v_lshrrev_b32 {v(T0)}, 3, {v(vLane)}")
    A(f"v_mul_u32_u24 {v(T0)}, 1280, {v(T0)}")
    A(f"v_and_b32 {v(T1)}, 7, {v(vLane)}")
    A(f"v_lshl_add_u32 {v(T0)}, {v(T1)}, 4, {v(T0)}")
    A(f"v_add_u32 {v(vWo)}, s{sTmp}, {v(T0)}")
    A(f"v_lshrrev_b32 {v(T0)}, 2, {v(vN)}")
    A(f"v_lshl_add_u32 {v(T0)}, {v(vG)}, 2, {v(T0)}")
    A(f"v_lshlrev_b32 {v(T0)}, 7, {v(T0)}")
    A(f"v_and_b32 {v(T1)}, 3, {v(vN)}")
    A(f"v_lshl_add_u32 {v(T0)}, {v(T1)}, 3, {v(T0)}")
    A(f"v_add_u32 {v(vTr)}, s{sL}, {v(T0)}")

    def dma(hh):
        for i in range(16):
            A(f"s_add_u32 m0, s{sL}, {(hh%2)*16384 + i*1024}")
            A(f"s_mov_b32 s{sTmp}, {(hh*128 + i*8)*1280}")
            A(f"buffer_load_dwordx4 {v(vWo)}, {srd(sWO)}, s{sTmp} offen lds")

    def trs(hh, dst):
        for t in range(3):
            for s_ in range(4):
                for half in range(2):
                    A(f"ds_read_b64_tr_b16 {dst(t,s_,half)}, {v(vTr)} offset:{(hh%2)*16384 + s_*4096 + t*32 + half*2048}")
            A("s_waitcnt lgkmcnt(0)")
    dma(0)
    dma(1)
    for hh in range(6):
        A("s_waitcnt vmcnt(16)")
        trs(hh, lambda t, s_, half, hh=hh: wreg2(hh, t, s_, half))
        dma(hh + 2)
    A("s_waitcnt vmcnt(0)")
    sBlk, sRt0 = 54, 55
    A(f"s_mov_b32 s{sRt0}, s{sRt}")
    A(f"s_mov_b32 s{sBlk}, 0")
    Lblk = A.newlabel("Lofb")
    A.label(Lblk)
    wait_hook(sBlk)
    Lrt = A.newlabel("Lofl")
    A.label(Lrt)
    A(f"s_add_u32 s{sTmp}, s{sRt}, {rowtile0}")
    A(f"s_lshl_b32 s{sTmp}, s{sTmp}, 17")
    A(f"s_lshl_b32 s{sTmp2}, s{sWave}, 15")
    A(f"s_add_u32 s{sTmp}, s{sTmp}, s{sTmp2}")
    A(f"s_add_u32 s{sTmp}, s{sTmp}, {WS_O:#x}")
    A(f"v_lshlrev_b32 {v(T0)}, 4, {v(vLane)}")
    A(f"v_add_u32 {v(vOf)}, s{sTmp}, {v(T0)}")
    order = [6, 0, 1, 2, 3, 4, 5, 7]
    for hh in order:
        for s_ in range(4):
            k = hh * 4 + s_
            A(f"s_mov_b32 s{sTmp}, {(k//4)*4096}")
            A(f"buffer_load_dwordx4 {v(OFR+k*4,4)}, {v(vOf)}, {srd(sWS)}, s{sTmp} offen offset:{(k%4)*1024}")
    trs(6, lambda t, s_, half: v(WJ + (t * 4 + s_) * 4 + half * 2, 2))
    first = True
    for idx, hh in enumerate(order):
        A(f"s_waitcnt vmcnt({(7-idx)*4})")
        if hh == 7:
            A("s_waitcnt lgkmcnt(0)")
        for s_ in range(4):
            for t in range(3):
                w = v(WJ + (t * 4 + s_) * 4, 4) if hh >= 6 else wreg(hh, t, s_)
                c = "0" if first and s_ == 0 else v(acc + t * 4, 4)
                A(f"v_mfma_f32_16x16x32_bf16 {v(acc+t*4,4)}, {w}, {v(OFR+(hh*4+s_)*4,4)}, {c}")
        first = False
        if idx == 1:
            for t in range(3):
                for s_ in range(4):
                    for half in range(2):
                        A(f"ds_read_b64_tr_b16 {v(WJ+(t*4+s_)*4+half*2,2)}, {v(vTr)} offset:{16384 + s_*4096 + t*32 + half*2048}")
                if t < 2:
                    A("s_waitcnt lgkmcnt(8)")
    A("s_barrier")
    A(f"s_mul_i32 s{sTmp}, s{sWave}, 3072")
    A(f"s_add_u32 s{sTmp}, s{sTmp}, 0x20000")
    A(f"v_add_u32 {v(vLw)}, s{sTmp}, {v(T0)}")
    A.nop(6)
    for t in range(3):
        A(f"ds_write_b128 {v(vLw)}, {v(acc+t*4,4)} offset:{t*1024}")
    A("s_waitcnt lgkmcnt(0)")
    A("s_barrier")
    Lx = A.newlabel("Lofx")
    A(f"s_cmp_eq_u32 s{sWave}, 3")
    A(f"s_cbranch_scc1 {Lx}")
    A(f"s_lshl_b32 s{sTmp}, s{sWave}, 10")
    A(f"s_add_u32 s{sTmp}, s{sTmp}, 0x20000")
    A(f"v_add_u32 {v(vLw)}, s{sTmp}, {v(T0)}")
    for w in range(4):
        A(f"ds_read_b128 {v(TMP+w*4,4)}, {v(vLw)} offset:{w*3072}")
    A(f"s_add_u32 s{sTmp}, s{sRt}, {rowtile0}")
    A(f"s_mul_i32 s{sTmp}, s{sTmp}, {16*2560}")
    A(f"s_mul_i32 s{sTmp2}, s{sCb}, 80")
    A(f"s_add_u32 s{sTmp}, s{sTmp}, s{sTmp2}")
    A(f"s_lshl_b32 s{sTmp2}, s{sWave}, 5")
    A(f"s_add_u32 s{sTmp}, s{sTmp}, s{sTmp2}")
    A(f"s_add_u32 s{sTmp}, s{sTmp}, 1280")
    A(f"v_mul_u32_u24 {v(T1)}, 2560, {v(vN)}")
    A(f"v_lshl_add_u32 {v(T1)}, {v(vG)}, 3, {v(T1)}")
    A(f"v_add_u32 {v(vOut)}, s{sTmp}, {v(T1)}")
    A(f"s_cmp_eq_u32 s{sWave}, 2")
    A("s_cselect_b32 exec_hi, 0, -1")
    A("s_waitcnt lgkmcnt(0)")
    for i in range(4):
        A(f"v_add_f32 {v(TMP+i)}, {v(TMP+i)}, {v(TMP+4+i)}")
        A(f"v_add_f32 {v(TMP+8+i)}, {v(TMP+8+i)}, {v(TMP+12+i)}")
    for i in range(4):
        A(f"v_add_f32 {v(TMP+i)}, {v(TMP+i)}, {v(TMP+8+i)}")
    A(f"v_cvt_pk_bf16_f32 {v(TMP+4)}, {v(TMP)}, {v(TMP+1)}")
    A(f"v_cvt_pk_bf16_f32 {v(TMP+5)}, {v(TMP+2)}, {v(TMP+3)}")
    A(f"buffer_store_dwordx2 {v(TMP+4,2)}, {v(vOut)}, {srd(sXS)}, 0 offen")
    A("s_mov_b64 exec, -1")
    A.label(Lx)
    A("s_waitcnt vmcnt(0)")
    A(f"s_add_u32 s{sRt}, s{sRt}, 1")
    A(f"s_cmp_lt_u32 s{sRt}, s{sRtEnd}")
    A(f"s_cbranch_scc1 {Lrt}")
    A(f"s_add_u32 s{sRt0}, s{sRt0}, 8")
    A(f"s_add_u32 s{sRtEnd}, s{sRtEnd}, 8")
    A(f"s_mov_b32 s{sRt}, s{sRt0}")
    A(f"s_add_u32 s{sBlk}, s{sBlk}, 1")
    A(f"s_cmp_lt_u32 s{sBlk}, {nblk}")
    A(f"s_cbranch_scc1 {Lblk}")


def outp2_body(A):
    make_srd(A, sWO, 34, 4096 * 1280)
    make_srd(A, sWA, 38, 2048 * 2560)
    R = RegAlloc(6, 256)

    def acc_of(m, t, rt):
        return a((t * 2 + rt) * 4, 4)
    proj_gemm(A, 1, [sWO], acc_of, R, None, RTW=2, niter=32, w_pitch=1280, xsrd=sWS, x_base=WS_O, x_pitch=8192, NST=8)
    R.next = 6
    T0, vSt = R.alloc(), R.alloc()
    TMP = R.alloc(4)
    O = [R.alloc(2) for _ in range(4)]
    A(f"s_lshl_b32 s{sTmp}, s{sRB}, 2")
    A(f"s_add_u32 s{sTmp}, s{sTmp}, s{sWave}")
    A(f"s_mul_i32 s{sTmp}, s{sTmp}, {32*2560}")
    A(f"s_lshl_b32 s{sTmp2}, s{sH}, 8")
    A(f"s_add_u32 s{sTmp}, s{sTmp}, s{sTmp2}")
    A(f"s_add_u32 s{sTmp}, s{sTmp}, 1280")
    A(f"v_mul_u32_u24 {v(T0)}, 2560, {v(vN)}")
    A(f"v_lshl_add_u32 {v(T0)}, {v(vG)}, 3, {v(T0)}")
    A(f"v_add_u32 {v(vSt)}, s{sTmp}, {v(T0)}")
    i = 0
    for rt in range(2):
        A(f"s_mov_b32 s{sTmp}, {rt*16*2560}")
        for t in range(8):
            o = O[i % 4]
            i += 1
            ab = (t * 2 + rt) * 4
            for r in range(4):
                A(f"v_accvgpr_read_b32 {v(TMP+r)}, a{ab+r}")
            A(f"v_cvt_pk_bf16_f32 {v(o)}, {v(TMP)}, {v(TMP+1)}")
            A(f"v_cvt_pk_bf16_f32 {v(o+1)}, {v(TMP+2)}, {v(TMP+3)}")
            A(f"buffer_store_dwordx2 {v(o,2)}, {v(vSt)}, {srd(sWA)}, s{sTmp} offen offset:{t*32}")


def q_body(A, sc):
    RTW = 8
    make_srd(A, sXS, 24, 2048 * 1280)
    make_srd(A, sWA, 28, 640 * 8192)
    R = RegAlloc(6, 256)

    def acc_of(m, t, rt):
        return a((t * RTW + rt) * 4, 4)
    proj_gemm(A, 1, [sWA], acc_of, R, None, RTW=RTW, NST=4)
    R.next = 6
    vSt = R.alloc()
    TMP = R.alloc(8)
    O = [R.alloc(4) for _ in range(4)]
    A(f"s_lshl_b32 s{sTmp}, s{sRB}, 2")
    A(f"s_add_u32 s{sTmp}, s{sTmp}, s{sWave}")
    A(f"s_mul_i32 s{sTmp}, s{sTmp}, {4*32}")
    A(f"s_add_u32 s{sTmp}, s{sTmp}, s{sH}")
    A(f"s_lshl_b32 s{sTmp}, s{sTmp}, 13")
    A(f"v_lshlrev_b32 {v(vSt)}, 4, {v(vLane)}")
    A(f"v_add_u32 {v(vSt)}, s{sTmp}, {v(vSt)}")
    i = 0
    for rt in range(RTW):
        for s_ in range(4):
            o = O[i % 4]
            i += 1
            for half in range(2):
                ab = ((2 * s_ + half) * RTW + rt) * 4
                for k in range(4):
                    A(f"v_accvgpr_read_b32 {v(TMP+half*4+k)}, a{ab+k}")
            for j in range(4):
                A(f"v_cvt_pk_bf16_f32 {v(o+j)}, {v(TMP+2*j)}, {v(TMP+2*j+1)}")
            A(f"s_mov_b32 s{sTmp2}, {WS_QX + (rt//2)*32*8192 + ((rt%2)*4+s_)*1024:#x}")
            A(f"buffer_store_dwordx4 {v(o,4)}, {v(vSt)}, {srd(sWS)}, s{sTmp2} offen{sc}")


def gen_gtest(A, name, RTW):
    kernel_header(A, name)
    Lend = A.newlabel("Lend")
    w_prologue(A, Lend, 128)
    make_srd(A, sWS, 36, WS_BYTES)
    A(f"s_and_b32 s{sH}, s2, 31")
    A(f"s_lshr_b32 s{sRB}, s2, 5")
    make_srd(A, sXS, 24, 2048 * 1280)
    make_srd(A, sWA, 30, 640 * 8192)
    make_srd(A, sWB, 32, 640 * 8192)
    R = RegAlloc(6, 128)

    def acc_of(m, t, rt):
        i = (((1 - m) * 8 + t) * RTW + rt) * 4
        return a(i, 4) if i < 256 else v(128 + i - 256, 4)
    proj_gemm(A, 2, [sWA, sWB], acc_of, R, None, RTW=RTW, NST=4, niter=50)
    A.label(Lend)
    A("s_endpgm")
    return kernel_desc(name, 512, 102, 256)
```

```python
from asmlib import *
from layout import *
from wside import *
import parta

SPIN = 4000000
sW, sJ, sHead, sRnd, sPoll = 70, 71, 72, 73, 74


TL = False
A3_AT = 9
NRM = 6
STAG = 3
SC = " sc1"


def wrole(A, sIdx, confirm):
    Lq = A.newlabel("Lwq")

    def tl():
        if not TL:
            return
        Ls = A.newlabel("Ltl")
        A(f"s_cmp_lg_u32 s{sWave}, 0")
        A(f"s_cbranch_scc1 {Ls}")
        A("s_memrealtime s[78:79]")
        A("s_waitcnt lgkmcnt(0)")
        A("s_mov_b64 exec, 1")
        A("v_mov_b32 v4, s78")
        A("v_mov_b32 v5, 0")
        A(f"buffer_store_dword v4, v5, {srd(sWS)}, s80 offen")
        A("s_mov_b64 exec, -1")
        A("s_add_u32 s80, s80, 4")
        A.label(Ls)
        return 1
    A(f"s_mov_b32 s{sW}, s{sIdx}")
    A("s_load_dwordx4 s[24:27], s[0:1], 24")
    A("s_load_dwordx8 s[28:35], s[0:1], 40")
    A("s_load_dwordx2 s[36:37], s[0:1], 96")
    A("s_load_dwordx2 s[38:39], s[0:1], 80")
    A("s_load_dwordx2 s[76:77], s[0:1], 0")
    A("v_and_b32 v1, 63, v0")
    A("v_lshrrev_b32 v5, 6, v0")
    A("v_and_b32 v2, 15, v0")
    A(f"v_readfirstlane_b32 s{sWave}, v5")
    A("v_bfe_u32 v3, v0, 4, 2")
    A("s_waitcnt lgkmcnt(0)")
    make_srd(A, sWS, 36, WS_BYTES)
    A(f"s_lshr_b32 s{sHead}, s{sW}, 5")
    A(f"s_lshl_b32 s{sHead}, s{sHead}, 3")
    A(f"s_and_b32 s{sTmp}, s{sW}, 7")
    A(f"s_add_u32 s{sHead}, s{sHead}, s{sTmp}")
    A(f"s_bfe_u32 s{sJ}, s{sW}, 0x20003")
    A(f"s_lshl_b32 s80, s{sW}, 8")
    A(f"s_add_u32 s80, s80, {WS_PROF + 65536:#x}")
    tl()

    def signal(off_sreg, n=1, stride=0):
        Ls = A.newlabel("Lsig")
        A("s_waitcnt vmcnt(0)")
        A("s_barrier")
        A(f"s_cmp_lg_u32 s{sWave}, 0")
        A(f"s_cbranch_scc1 {Ls}")
        A("s_mov_b64 exec, 1")
        A("v_mov_b32 v4, 1")
        A("v_mov_b32 v5, 0")
        for i in range(n):
            A(f"buffer_atomic_add v4, v5, {srd(sWS)}, s{off_sreg} offen")
            if i < n - 1:
                A(f"s_add_u32 s{off_sreg}, s{off_sreg}, {stride}")
        A("s_mov_b64 exec, -1")
        A.label(Ls)
        tl()

    def wait(off_sreg, target):
        Lp, Ld = A.newlabel("Lwt"), A.newlabel("Lwtd")
        A(f"s_cmp_lg_u32 s{sWave}, 0")
        A(f"s_cbranch_scc1 {Ld}")
        A("v_mov_b32 v5, 0")
        A(f"s_mov_b32 s{sPoll}, 0")
        A.label(Lp)
        A(f"buffer_load_dword v4, v5, {srd(sWS)}, s{off_sreg} offen sc1")
        A("s_waitcnt vmcnt(0)")
        A(f"v_cmp_gt_u32 vcc, {target:#x}, v4")
        A(f"s_cbranch_vccz {Ld}")
        A("s_sleep 8")
        A(f"s_add_u32 s{sPoll}, s{sPoll}, 1")
        A(f"s_cmp_lt_u32 s{sPoll}, {SPIN}")
        A(f"s_cbranch_scc1 {Lp}")
        A.label(Ld)
        A("s_barrier")
        tl()

    def cnt_rbh(base):
        A(f"s_lshl_b32 s75, s{sRB}, 12")
        A(f"s_lshl_b32 s{sTmp}, s{sH}, 7")
        A(f"s_add_u32 s75, s75, s{sTmp}")
        A(f"s_add_u32 s75, s75, {WS_CNT + base:#x}")

    def cond_block(cmps, body):
        Lskip = A.newlabel("Lcs")
        for c in cmps:
            Lgo = A.newlabel("Lcg")
            A(c)
            A(f"s_cbranch_scc1 {Lgo}")
            A(f"s_branch {Lskip}")
            A.label(Lgo)
        body()
        A.label(Lskip)

    def confirm_lds():
        confirm(sWave)

    def do_vu():
        A(f"s_mov_b32 s{sRB}, s{sJ}")
        A(f"s_mov_b32 s{sH}, s{sHead}")
        kvu_body(A, 2, SC, tl=tl, mode="vu", u_hook=confirm_lds)
        cnt_rbh(CNT_VU)
        signal(75)
    cond_block([f"s_cmp_lt_u32 s{sJ}, 2"], do_vu)

    def do_k():
        A(f"s_mov_b32 s{sRB}, 0")
        A(f"s_mov_b32 s{sH}, s{sHead}")
        kvu_body(A, 4, SC, tl=tl, mode="k")
        confirm_lds()
        cnt_rbh(CNT_KVU)
        signal(75, 2, 4096)
    cond_block([f"s_cmp_eq_u32 s{sJ}, 2"], do_k)
    A(f"s_add_u32 s{sRnd}, s{sJ}, 4")
    A(f"s_sub_u32 s86, 5, s{sJ}")
    A(f"s_cmp_lt_u32 s{sJ}, 2")
    A(f"s_cselect_b32 s{sRnd}, s{sRnd}, s86")
    Lk = A.newlabel("Lkvu")
    A.label(Lk)
    A(f"s_mov_b32 s{sRB}, s{sRnd}")
    A(f"s_mov_b32 s{sH}, s{sHead}")
    kvu_body(A, 2, SC, tl=tl, u_hook=confirm_lds)
    cnt_rbh(CNT_KVU)
    signal(75, 2, CNT_VU - CNT_KVU)
    A(f"s_add_u32 s{sRnd}, s{sRnd}, 4")
    A(f"s_cmp_lt_u32 s{sRnd}, 8")
    Lk2 = A.newlabel("Lkvu2")
    A(f"s_cbranch_scc0 {Lk2}")
    A(f"s_branch {Lk}")
    A.label(Lk2)
    def idx40(dst, ja, jb):
        A(f"s_add_u32 s{dst}, s{sHead}, 32")
        A(f"s_cmp_eq_u32 s{sJ}, {jb}")
        A(f"s_cselect_b32 s{dst}, s{dst}, 99")
        A(f"s_cmp_eq_u32 s{sJ}, {ja}")
        A(f"s_cselect_b32 s{dst}, s{sHead}, s{dst}")

    def do_a1():
        A(f"s_mov_b32 s75, {WS_CNT + CNT_CONST:#x}")
        wait(75, 512)
        A(f"s_and_b32 s{sRB}, s85, 7")
        A(f"s_lshr_b32 s{sH}, s85, 3")
        parta.a1_body(A, 76, " sc1")
        A(f"s_mov_b32 s75, {WS_CNT + CNT_A1:#x}")
        signal(75)
    idx40(85, 1, 2)
    cond_block(["s_cmp_lt_u32 s85, 40"], do_a1)
    A(f"s_mov_b32 s{sRB}, s{sJ}")
    A(f"s_mov_b32 s{sH}, s{sHead}")
    kvu_body(A, 4, SC, seg_base=32, tl=tl)
    A(f"s_lshl_b32 s{sRB}, s{sJ}, 1")
    A(f"s_add_u32 s{sRB}, s{sRB}, 8")
    cnt_rbh(CNT_KVU)
    signal(75, 2, 4096)
    cnt_rbh(CNT_VU)
    signal(75, 2, 4096)

    def do_a2():
        A(f"s_mov_b32 s75, {WS_CNT + CNT_A1:#x}")
        wait(75, 40)
        La = A.newlabel("La2l")
        A.label(La)
        A(f"s_lshl_b32 s{sH}, s85, 2")
        A(f"s_add_u32 s{sH}, s{sH}, s{sWave}")
        cond_block([f"s_cmp_le_u32 s{sH}, 320"], lambda: parta.a2_body(A, " sc1"))
        A(f"s_mov_b32 s75, {WS_CNT + CNT_A2:#x}")
        signal(75)
        A("s_add_u32 s85, s85, 32")
        A("s_cmp_lt_u32 s85, 64")
        Lb = A.newlabel("La2e")
        A(f"s_cbranch_scc0 {Lb}")
        A(f"s_branch {La}")
        A.label(Lb)
    A(f"s_add_u32 s85, s{sHead}, 56")
    A(f"s_cmp_lt_u32 s{sHead}, 8")
    A(f"s_cselect_b32 s85, 99, s85")
    A(f"s_cmp_lt_u32 s{sJ}, 2")
    A(f"s_cselect_b32 s85, 99, s85")
    A(f"s_cmp_eq_u32 s{sJ}, 3")
    A(f"s_cselect_b32 s85, s{sHead}, s85")
    cond_block(["s_cmp_lt_u32 s85, 81"], do_a2)

    def do_a3():
        A(f"s_mov_b32 s75, {WS_CNT + CNT_A2:#x}")
        wait(75, 81)
        A(f"s_and_b32 s{sRB}, s{sHead}, 1")
        A(f"s_lshr_b32 s{sH}, s{sHead}, 1")
        parta.a3_body(A)
        A("s_barrier")
        tl()
    cond_block([f"s_cmp_eq_u32 s{sJ}, 3"], do_a3)
    def do_q():
        A(f"s_mov_b32 s{sRnd}, s{sJ}")
        Lq1 = A.newlabel("Lq")
        A.label(Lq1)
        A(f"s_mov_b32 s{sRB}, s{sRnd}")
        A(f"s_mov_b32 s{sH}, s{sHead}")
        q_body(A, " sc1")
        cnt_rbh(CNT_Q)
        signal(75)
        A(f"s_add_u32 s{sRnd}, s{sRnd}, 2")
        A(f"s_cmp_eq_u32 s{sRnd}, 3")
        Lq2 = A.newlabel("Lq")
        A(f"s_cbranch_scc0 {Lq2}")
        A(f"s_branch {Lq1}")
        A.label(Lq2)
    cond_block([f"s_cmp_lt_u32 s{sJ}, 3"], do_q)

    def do_att():
        A(f"s_mov_b32 s{sRnd}, 0")
        Lt = A.newlabel("Latt")
        A.label(Lt)
        A(f"s_mov_b32 s{sH}, s{sHead}")

        def wq():
            A(f"s_lshr_b32 s{sRB}, s{sRnd}, 2")
            cnt_rbh(CNT_Q)
            wait(75, 1)
        A(f"s_and_b32 s86, s{sRnd}, 3")
        cond_block(["s_cmp_eq_u32 s86, 0", f"s_cmp_lt_u32 s{sRnd}, 16"], wq)
        A(f"s_min_u32 s{sRB}, s{sRnd}, 15")
        A(f"s_lshr_b32 s86, s{sWave}, 1")
        A(f"s_add_u32 s86, s86, 15")
        A(f"s_cmp_lg_u32 s86, s{sRnd}")
        A("s_cselect_b32 s87, 1, 0")
        A(f"s_cmp_lt_u32 s{sRnd}, 15")
        A("s_cselect_b32 s87, 0, s87")

        def wkv():
            cnt_rbh(CNT_KVU)
            wait(75, 1)
            cnt_rbh(CNT_VU)
            wait(75, 1)
        cond_block([f"s_cmp_eq_u32 s{sRnd}, 0"], wkv)

        def hook():
            cnt_rbh(CNT_MEM)
            A(f"s_cmp_eq_u32 s{sRnd}, 15")
            A("s_cselect_b32 s86, 4096, 0")
            A("s_add_u32 s75, s75, s86")
            wait(75, 16)
        att_body(A, 2, " sc1", hook, rm_below=NRM, light=True, skip_sreg=87)
        A(f"s_lshl_b32 s75, s{sRnd}, 7")
        A(f"s_add_u32 s75, s75, {WS_CNT + CNT_ATT:#x}")
        signal(75)
        A(f"s_add_u32 s{sRnd}, s{sRnd}, 1")
        A(f"s_cmp_lt_u32 s{sRnd}, 17")
        Le = A.newlabel("Latte")
        A(f"s_cbranch_scc0 {Le}")
        A(f"s_branch {Lt}")
        A.label(Le)
        A("s_endpgm")
    cond_block([f"s_cmp_eq_u32 s{sJ}, 0"], do_att)

    def do_outp():
        A(f"s_mul_i32 s{sRB}, s85, 52")
        A(f"s_lshr_b32 s{sRB}, s{sRB}, 8")
        A(f"s_mul_i32 s{sTmp}, s{sRB}, 5")
        A(f"s_sub_u32 s{sH}, s85, s{sTmp}")
        A(f"s_lshl_b32 s75, s{sRB}, 7")
        A(f"s_add_u32 s75, s75, {WS_CNT + CNT_ATT:#x}")
        wait(75, 32)
        outp2_body(A)
        A("s_barrier")
        tl()
    assert all((c * 52) >> 8 == c // 5 for c in range(40))
    idx40(85, 2, 1)
    cond_block([f"s_cmp_lt_u32 s85, {5*NRM}"], do_outp)
    sF = 84
    A(f"s_sub_u32 s{sF}, s{sJ}, 2")
    A(f"s_lshl_b32 s{sF}, s{sF}, 5")
    A(f"s_cmp_eq_u32 s{sJ}, 1")
    A(f"s_cselect_b32 s{sF}, 64, s{sF}")
    A(f"s_add_u32 s{sF}, s{sF}, s{sHead}")

    def hook2(sBlk):
        A(f"s_cmp_ge_u32 s52, {8*(16-NRM) - 4}")
        A(f"s_cselect_b32 s86, 1, 0")
        A(f"s_add_u32 s75, s{sBlk}, s86")
        A(f"s_lshl_b32 s75, s75, 7")
        A(f"s_add_u32 s75, s75, {WS_CNT + CNT_ATT + NRM*128:#x}")
        wait(75, 32)
    outp_fast_body(A, sF, 8*NRM, hook2, nblk=16-NRM)
    tl()
```

```python
MB = 1 << 20
WS_BYTES = 256 * MB
WS_KX = 0 * MB
WS_VX = 16 * MB
WS_U = 32 * MB
WS_KM = 114 * MB
WS_VM = 118 * MB
WS_O = 122 * MB
WS_CNT = 140 * MB
WS_PROF = 141 * MB
WS_RA = 142 * MB
WS_RD = 143 * MB
WS_RC = 144 * MB
RING_FILL_OFF = 142 * MB
RING_FILL_BYTES = 6 * MB
WS_NEXT = 152 * MB

SCALE = 128 ** -0.5
LOG2E = 1.4426950408889634
WS_FH = 152 * MB
WS_FL = 153 * MB
WS_G = 154 * MB
WS_C32 = 157 * MB
WS_C64 = WS_C32 + 8192
WS_TW1 = WS_C64 + 32768
WS_TW3 = WS_TW1 + 16384
WS_WT = 158 * MB
WS_Y = 162 * MB
WS_Z = 168 * MB
WS_QX = 176 * MB
WS_END = 192 * MB
CNT_ELECT = 0
CNT_KVU = 4096
CNT_MEM = CNT_KVU + 65536
CNT_ATT = CNT_MEM + 65536 + 4096
CNT_A1 = CNT_ATT + 4096
CNT_A2 = CNT_A1 + 128
CNT_Q = CNT_A2 + 128
CNT_CONST = CNT_Q + 16384
CNT_VU = CNT_CONST + 128
CNT_POL = CNT_VU + 65536
CNT_FT = CNT_POL + 128
CNT_BYTES = CNT_FT + 2048
RC_GRP = 3 * 16384
RC_SLOT = 8 * RC_GRP
RC_SPAN = 4 * RC_SLOT
RC_PROBE = 0x1c0000
```

```python
HI1, HI2, HI3 = 0, 0, 0
import struct
from asmlib import *
from layout import *
from wside import *


def split_pack(A, x0, x1, hi, lo, t0, t1):
    A(f"v_cvt_pk_bf16_f32 {v(hi)}, {v(x0)}, {v(x1)}")
    A(f"v_lshlrev_b32 {v(t0)}, 16, {v(hi)}")
    A(f"v_and_b32 {v(t1)}, 0xffff0000, {v(hi)}")
    A(f"v_sub_f32 {v(t0)}, {v(x0)}, {v(t0)}")
    A(f"v_sub_f32 {v(t1)}, {v(x1)}, {v(t1)}")
    A(f"v_cvt_pk_bf16_f32 {v(lo)}, {v(t0)}, {v(t1)}")


NB_FG, NB_WT = 200, 642
NB_CONST = NB_FG + 1 + NB_WT
FILL_RANGES = [(WS_RA, 4 * 32 * 6144), (WS_RD, 4 * 8 * 10240), (WS_RC, RC_SPAN)]
NB_ZERO = (CNT_BYTES + 4095) // 4096
NB_INIT = sum(n // 4096 for _, n in FILL_RANGES) + NB_ZERO


def gen_init(A, name="init_kernel"):
    kernel_header(A, name)
    Lend = A.newlabel("Lend")
    A(f"s_cmp_ge_u32 s2, {NB_INIT}")
    A(f"s_cbranch_scc1 {Lend}")
    A("s_load_dwordx2 s[36:37], s[0:1], 96")
    A("v_lshlrev_b32 v1, 4, v0")
    A("s_lshl_b32 s3, s2, 12")
    A(f"s_add_u32 s8, s3, {WS_CNT:#x}")
    A("s_mov_b32 s9, 0")
    base = NB_ZERO
    A("s_waitcnt lgkmcnt(0)")
    A(f"s_add_u32 s11, s36, {WS_RC + 0x1fffff:#x}")
    A("s_and_b32 s11, s11, 0xffe00000")
    A("s_sub_u32 s11, s11, s36")
    A(f"s_sub_u32 s11, s11, {WS_RC:#x}")
    for off, n in FILL_RANGES:
        A(f"s_add_u32 s10, s3, {off - base*4096:#x}")
        if off == WS_RC:
            A("s_add_u32 s10, s10, s11")
        A(f"s_cmp_ge_u32 s2, {base}")
        A("s_cselect_b32 s8, s10, s8")
        A("s_cselect_b32 s9, -1, s9")
        base += n // 4096
    for i in range(4):
        A(f"v_mov_b32 v{4+i}, s9")
    A("s_waitcnt lgkmcnt(0)")
    make_srd(A, sWS, 36, WS_BYTES)
    A(f"buffer_store_dwordx4 v[4:7], v1, {srd(sWS)}, s8 offen")
    A.label(Lend)
    A("s_endpgm")
    return kernel_desc(name, 8, 102, 8)


def const_unit(A, sU):
    Lend = A.newlabel("Lcend")
    Lsm, Lwt = A.newlabel("Lsm"), A.newlabel("Lwt")
    A(f"s_cmp_eq_u32 s{sU}, {NB_FG}")
    A(f"s_cbranch_scc1 {Lsm}")
    A(f"s_cmp_gt_u32 s{sU}, {NB_FG}")
    A(f"s_cbranch_scc1 {Lwt}")
    A(f"s_lshl_b32 s3, s{sU}, 8")
    A("v_add_u32 v1, s3, v0")
    A("s_mov_b32 s8, 53687092")
    A("v_mul_hi_u32 v2, v1, s8")
    A("v_mul_u32_u24 v3, 80, v2")
    A("v_sub_u32 v3, v1, v3")
    A("v_lshlrev_b32 v3, 3, v3")
    A("s_mov_b32 s9, 6710887")
    A(f"s_mov_b32 s10, {f32bits(1.0/640):#x}")
    A(f"s_mov_b32 s11, {f32bits(1.0/(2048*640)):#x}")
    A(f"s_mov_b32 s12, {f32bits(2.0/(2048*640)):#x}")
    for e in range(8):
        A(f"v_add_u32 v4, {e}, v3")
        A("v_subrev_u32 v5, 320, v4")
        A("v_cmp_lt_u32 vcc, 320, v4")
        A("s_nop 1")
        A("v_cndmask_b32 v5, v4, v5, vcc")
        A("v_mul_u32_u24 v6, v5, v2")
        A("v_mul_hi_u32 v7, v6, s9")
        A("v_mul_u32_u24 v7, 640, v7")
        A("v_sub_u32 v6, v6, v7")
        A("v_cvt_f32_u32 v6, v6")
        A("v_mul_f32 v6, s10, v6")
        A("v_cos_f32 v7, v6")
        A("v_sin_f32 v8, v6")
        A("s_nop 1")
        A(f"v_cndmask_b32 v{16+e}, v7, -v8, vcc")
        A("v_cmp_eq_u32 vcc, 0, v4")
        A("v_cmp_eq_u32 s[14:15], 320, v4") if False else None
        A("v_mov_b32 v9, 320")
        A("v_cmp_eq_u32 s[14:15], v9, v4")
        A("s_nop 1")
        A("s_or_b64 vcc, vcc, s[14:15]")
        A("v_mov_b32 v9, s12")
        A("v_mov_b32 v10, s11")
        A("v_cndmask_b32 v9, v9, v10, vcc")
        A(f"v_mul_f32 v{24+e}, v{16+e}, v9")
    for j in range(4):
        split_pack(A, 16 + 2 * j, 17 + 2 * j, 32 + j, 36 + j, 4, 5)
        split_pack(A, 24 + 2 * j, 25 + 2 * j, 40 + j, 44 + j, 4, 5)
    A("v_mul_u32_u24 v4, 1280, v2")
    A("v_lshl_add_u32 v4, v3, 1, v4")
    A("v_mul_u32_u24 v5, 3840, v2")
    A("v_lshl_add_u32 v5, v3, 1, v5")
    A(f"s_mov_b32 s8, {WS_FH:#x}")
    A(f"s_mov_b32 s9, {WS_FL:#x}")
    A(f"s_mov_b32 s10, {WS_G:#x}")
    A(f"buffer_store_dwordx4 v[32:35], v4, {srd(sWS)}, s8 offen sc1")
    A(f"buffer_store_dwordx4 v[36:39], v4, {srd(sWS)}, s9 offen sc1")
    A(f"buffer_store_dwordx4 v[44:47], v5, {srd(sWS)}, s10 offen sc1")
    A(f"buffer_store_dwordx4 v[40:43], v5, {srd(sWS)}, s10 offen offset:1280 sc1")
    A(f"buffer_store_dwordx4 v[40:43], v5, {srd(sWS)}, s10 offen offset:2560 sc1")
    A(f"s_branch {Lend}")
    A.label(Lsm)
    A("v_and_b32 v1, 63, v0")
    A("v_and_b32 v2, 15, v0")
    A("v_bfe_u32 v3, v0, 4, 2")
    A("v_lshrrev_b32 v4, 6, v0")
    A("v_lshlrev_b32 v5, 4, v1")

    def dft_frag(N, a_expr_tile, ks, base_off):
        pass
    A("v_lshl_add_u32 v7, v4, 4, v2")
    for ks in range(2):
        for e in range(8):
            boff = 32 * ks + (e if e < 4 else 16 + e - 4)
            A(f"v_lshl_add_u32 v8, v3, 2, {boff}")
            A("v_mul_u32_u24 v8, v8, v7")
            A("v_and_b32 v8, 63, v8")
            A("v_cvt_f32_u32 v8, v8")
            A(f"v_mul_f32 v8, {f32bits(1/64):#x}, v8")
            A(f"v_cos_f32 v{16+e}, v8")
            A(f"v_sin_f32 v{24+e}, v8")
        A("s_nop 1")
        for j in range(4):
            split_pack(A, 16 + 2 * j, 17 + 2 * j, 32 + j, 36 + j, 9, 10)
            split_pack(A, 24 + 2 * j, 25 + 2 * j, 40 + j, 44 + j, 9, 10)
        A("v_lshl_add_u32 v8, v4, 11, v5")
        for cs in range(2):
            for hl in range(2):
                A(f"s_mov_b32 s8, {WS_C64 + (cs*2+hl)*8192 + ks*1024:#x}")
                r = 32 + cs * 8 + hl * 4
                A(f"buffer_store_dwordx4 v[{r}:{r+3}], v8, {srd(sWS)}, s8 offen sc1")
        A("s_nop 1")
    A("v_and_b32 v11, 1, v4")
    A("v_lshl_add_u32 v7, v11, 4, v2")
    for e in range(8):
        boff = (e if e < 4 else 16 + e - 4)
        A(f"v_lshl_add_u32 v8, v3, 2, {boff}")
        A("v_mul_u32_u24 v8, v8, v7")
        A("v_and_b32 v8, 31, v8")
        A("v_cvt_f32_u32 v8, v8")
        A(f"v_mul_f32 v8, {f32bits(1/32):#x}, v8")
        A(f"v_cos_f32 v{16+e}, v8")
        A(f"v_sin_f32 v{24+e}, v8")
    A("s_nop 1")
    for j in range(4):
        split_pack(A, 16 + 2 * j, 17 + 2 * j, 32 + j, 36 + j, 9, 10)
        split_pack(A, 24 + 2 * j, 25 + 2 * j, 40 + j, 44 + j, 9, 10)
    A("v_lshl_add_u32 v8, v11, 10, v5")
    for cs in range(2):
        for hl in range(2):
            A(f"s_mov_b32 s8, {WS_C32 + (cs*2+hl)*2048:#x}")
            r = 32 + cs * 8 + hl * 4
            A(f"buffer_store_dwordx4 v[{r}:{r+3}], v8, {srd(sWS)}, s8 offen sc1")
    A("s_nop 1")
    for which in range(2):
        for tf in range(2):
            for r in range(4):
                if which == 0:
                    A(f"v_lshl_add_u32 v8, v3, 2, {r}")
                    A("v_lshl_add_u32 v8, v4, 4, v8")
                    A(f"v_add_u32 v9, {16*tf}, v2")
                else:
                    A("v_lshl_add_u32 v8, v4, 4, v2")
                    A(f"v_lshl_add_u32 v9, v3, 2, {16*tf + r}")
                A("v_mul_u32_u24 v8, v8, v9")
                A("v_cvt_f32_u32 v8, v8")
                A(f"v_mul_f32 v8, {f32bits(1/2048):#x}, v8")
                A(f"v_cos_f32 v{16+r}, v8")
                A(f"v_sin_f32 v{20+r}, v8")
            if which == 0:
                A("v_lshl_add_u32 v8, v4, 11, v5")
                off = WS_TW1 + tf * 1024
            else:
                A("v_lshl_add_u32 v8, v4, 10, v5")
                off = WS_TW3 + tf * 4096
            A(f"s_mov_b32 s8, {off:#x}")
            A(f"s_mov_b32 s9, {off + 8192:#x}")
            A(f"buffer_store_dwordx4 v[16:19], v8, {srd(sWS)}, s8 offen sc1")
            A(f"buffer_store_dwordx4 v[20:23], v8, {srd(sWS)}, s9 offen sc1")
            A("s_nop 1")
    A(f"s_branch {Lend}")
    A.label(Lwt)
    A(f"s_sub_u32 s3, s{sU}, {NB_FG+1}")
    A("v_lshrrev_b32 v4, 6, v0")
    A("v_and_b32 v1, 63, v0")
    A("v_readfirstlane_b32 s8, v4")
    A("s_lshl_b32 s3, s3, 2")
    A("s_add_u32 s3, s3, s8")
    A("s_and_b32 s9, s3, 511")
    A("s_lshr_b32 s10, s3, 9")
    A("s_lshl_b32 s10, s10, 6")
    A("v_add_u32 v2, s10, v1")
    A("v_mov_b32 v3, s9")
    A("s_sub_u32 s11, s3, 2560")
    A("s_lshl_b32 s11, s11, 6")
    A("v_add_u32 v5, s11, v1")
    A("s_cmp_ge_u32 s3, 2560")
    A("s_cselect_b64 vcc, -1, 0")
    A("v_mov_b32 v6, 320")
    A("v_cndmask_b32 v2, v2, v6, vcc")
    A("v_cndmask_b32 v3, v3, v5, vcc")
    A("v_and_b32 v5, 15, v3")
    A("v_bfe_u32 v6, v3, 4, 4")
    A("v_lshl_add_u32 v5, v6, 7, v5")
    A("v_mul_u32_u24 v5, 642, v5")
    A("v_lshl_add_u32 v5, v2, 1, v5")
    A("v_lshrrev_b32 v6, 8, v3")
    make_srd(A, 8, 24, 2048 * 642)
    make_srd(A, 12, 26, 2048 * 642)
    A("v_cmp_eq_u32 vcc, 0, v6")
    A("s_mov_b64 s[16:17], exec")
    for ri in range(2):
        Lskip = A.newlabel("Lwts")
        A("s_and_b64 exec, s[16:17], vcc" if ri == 0 else "s_andn2_b64 exec, s[16:17], vcc")
        A(f"s_cbranch_execz {Lskip}")
        for tf1 in range(2):
            for r in range(4):
                A(f"s_mov_b32 s18, {(16*tf1 + 32*r)*642}")
                A(f"buffer_load_ushort v{16+tf1*4+r}, v5, s[{8+4*ri}:{11+4*ri}], s18 offen")
        A.label(Lskip)
    A("s_mov_b64 exec, s[16:17]")
    A("s_waitcnt vmcnt(0)")
    for j in range(4):
        A(f"v_lshl_or_b32 v{24+j}, v{17+2*j}, 16, v{16+2*j}")
    A("v_lshlrev_b32 v5, 13, v2")
    A("v_lshl_add_u32 v5, v3, 4, v5")
    A(f"s_mov_b32 s18, {WS_WT:#x}")
    A(f"buffer_store_dwordx4 v[24:27], v5, {srd(sWS)}, s18 offen sc1")
    A(f"s_branch {Lend}")
    A.label(Lend)
    A("s_nop 1")


def a_prologue(A, Lend, ntasks):
    A(f"s_cmp_ge_u32 s2, {ntasks}")
    A(f"s_cbranch_scc1 {Lend}")
    A("s_load_dwordx2 s[24:25], s[0:1], 0")
    A("s_load_dwordx2 s[36:37], s[0:1], 96")
    A("s_load_dwordx2 s[38:39], s[0:1], 80")
    A("v_and_b32 v1, 63, v0")
    A("v_lshrrev_b32 v5, 6, v0")
    A("v_and_b32 v2, 15, v0")
    A(f"v_readfirstlane_b32 s{sWave}, v5")
    A("v_bfe_u32 v3, v0, 4, 2")
    A("s_waitcnt lgkmcnt(0)")
    make_srd(A, sWS, 36, WS_BYTES)


def gen_a1(A, name="a1_kernel"):
    kernel_header(A, name)
    Lend = A.newlabel("Lend")
    a_prologue(A, Lend, 40)
    A(f"s_and_b32 s{sRB}, s2, 7")
    A(f"s_lshr_b32 s{sH}, s2, 3")
    a1_body(A, 24, "")
    A.label(Lend)
    A("s_endpgm")
    return kernel_desc(name, 512, 102, 256)


def a1_body(A, xptr, sc):
    make_srd(A, sXS, xptr, 2048 * 1280)
    R = RegAlloc(6, 256)

    def acc_of(m, t, rt):
        return a((t * 4 + rt) * 4, 4)
    if HI1:
        proj_gemm(A, 1, [sWS], acc_of, R, None, swap=True, w_pitch=1280, w_base=[WS_FH], x_mode="fft", NST=5)
    else:
        proj_gemm(A, 2, [sWS, sWS], acc_of, R, None, swap=True, w_pitch=1280, w_base=[WS_FH, WS_FL], x_mode="fft")
    R.next = 6
    T0, T1, vSt, vLw = R.alloc(), R.alloc(), R.alloc(), R.alloc()
    vLr = [R.alloc(), R.alloc()]
    TMP = R.alloc(8)
    HI = [R.alloc(4), R.alloc(4)]
    LO = [R.alloc(4), R.alloc(4)]
    OB = [R.alloc(4) for _ in range(8)]
    A(f"v_lshlrev_b32 {v(T0)}, 9, {v(vN)}")
    A(f"v_lshl_add_u32 {v(T0)}, {v(vG)}, 7, {v(T0)}")
    A(f"s_lshl_b32 s{sTmp}, s{sWave}, 5")
    A(f"v_add_u32 {v(vLw)}, s{sTmp}, {v(T0)}")
    A(f"v_add_u32 {v(vLr[1])}, 0x10000, {v(vLw)}")
    i = 0
    for t in range(8):
        for j in range(2):
            p = i % 2
            i += 1
            for half in range(2):
                ab = (t * 4 + j * 2 + half) * 4
                for r in range(4):
                    A(f"v_accvgpr_read_b32 {v(TMP+half*4+r)}, a{ab+r}")
            for q in range(4):
                split_pack(A, TMP + 2 * q, TMP + 2 * q + 1, HI[p] + q, LO[p] + q, T0, T1)
            A(f"ds_write_b128 {v(vLw)}, {v(HI[p],4)} offset:{t*8192 + j*16}")
            A(f"ds_write_b128 {v(vLr[1])}, {v(LO[p],4)} offset:{t*8192 + j*16}")
    A("s_waitcnt lgkmcnt(0)")
    A("s_barrier")
    A(f"v_lshlrev_b32 {v(T0)}, 4, {v(vLane)}")
    A(f"s_lshl_b32 s{sTmp}, s{sWave}, 14")
    A(f"v_add_u32 {v(vLr[0])}, s{sTmp}, {v(T0)}")
    A(f"v_add_u32 {v(vLr[1])}, 0x10000, {v(vLr[0])}")
    A(f"s_lshr_b32 s{sTmp2}, s{sRB}, 1")
    A(f"s_lshl_b32 s{sTmp2}, s{sTmp2}, 10")
    A(f"s_and_b32 s{sTmp}, s{sRB}, 1")
    A(f"s_lshl_b32 s{sTmp}, s{sTmp}, 7")
    A(f"s_add_u32 s{sTmp}, s{sTmp}, s{sTmp2}")
    A(f"s_lshl_b32 s{sTmp2}, s{sH}, 20")
    A(f"s_add_u32 s{sTmp}, s{sTmp}, s{sTmp2}")
    A(f"s_lshl_b32 s{sTmp2}, s{sWave}, 18")
    A(f"s_add_u32 s{sTmp}, s{sTmp}, s{sTmp2}")
    A(f"v_lshrrev_b32 {v(T0)}, 5, {v(vLane)}")
    A(f"v_lshlrev_b32 {v(T0)}, 13, {v(T0)}")
    A(f"v_bfe_u32 {v(T1)}, {v(vLane)}, 3, 2")
    A(f"v_lshl_add_u32 {v(T0)}, {v(T1)}, 8, {v(T0)}")
    A(f"v_and_b32 {v(T1)}, 7, {v(vLane)}")
    A(f"v_lshl_add_u32 {v(T0)}, {v(T1)}, 4, {v(T0)}")
    A(f"v_add_u32 {v(vSt)}, s{sTmp}, {v(T0)}")
    for hl in range(2):
        for k0 in range(0, 16, 8):
            for k in range(8):
                A(f"ds_read_b128 {v(OB[k],4)}, {v(vLr[hl])} offset:{(k0+k)*1024}")
            for k in range(8):
                A(f"s_waitcnt lgkmcnt({7-k})")
                A(f"s_mov_b32 s{sTmp}, {WS_Y + (k0+k)*16384 + hl*4096:#x}")
                A(f"buffer_store_dwordx4 {v(OB[k],4)}, {v(vSt)}, {srd(sWS)}, s{sTmp} offen{sc}")
            A.nop(2)


def gen_a3(A, name="a3_kernel"):
    kernel_header(A, name)
    Lend = A.newlabel("Lend")
    a_prologue(A, Lend, 32)
    A(f"s_and_b32 s{sRB}, s2, 1")
    A(f"s_lshr_b32 s{sH}, s2, 1")
    a3_body(A)
    A.label(Lend)
    A("s_endpgm")
    return kernel_desc(name, 512, 102, 256)


def a3_body(A):
    make_srd(A, sWO, 38, 2048 * 2560)
    R = RegAlloc(6, 256)

    def acc_of(m, t, rt):
        return a((t * 5 + rt) * 4, 4)
    if HI3:
        proj_gemm(A, 1, [sWS], acc_of, R, None, RTW=5, swap=True, niter=10, w_pitch=4096, w_base=[WS_Z],
                  xsrd=sWS, x_base=WS_G + 1280, x_pitch=3840, NST=5)
    else:
        proj_gemm(A, 1, [sWS], acc_of, R, None, RTW=5, swap=True, niter=15, w_pitch=4096, w_base=[WS_Z],
                  xsrd=sWS, x_base=WS_G, x_pitch=3840, w_wrap=20, NST=5)
    R.next = 6
    T0, vSt = R.alloc(), R.alloc()
    TMP = R.alloc(4)
    O = [R.alloc(2) for _ in range(4)]
    A(f"s_lshl_b32 s{sTmp}, s{sRB}, 2")
    A(f"s_add_u32 s{sTmp}, s{sTmp}, s{sWave}")
    A(f"s_mul_i32 s{sTmp}, s{sTmp}, 160")
    A(f"s_mul_i32 s{sTmp2}, s{sH}, {128*2560}")
    A(f"s_add_u32 s{sTmp}, s{sTmp}, s{sTmp2}")
    A(f"v_mul_u32_u24 {v(T0)}, 2560, {v(vN)}")
    A(f"v_lshl_add_u32 {v(T0)}, {v(vG)}, 3, {v(T0)}")
    A(f"v_add_u32 {v(vSt)}, s{sTmp}, {v(T0)}")
    i = 0
    for t in range(8):
        A(f"s_mov_b32 s{sTmp}, {t*16*2560}")
        for rt in range(5):
            o = O[i % 4]
            i += 1
            ab = (t * 5 + rt) * 4
            for r in range(4):
                A(f"v_accvgpr_read_b32 {v(TMP+r)}, a{ab+r}")
            A(f"v_cvt_pk_bf16_f32 {v(o)}, {v(TMP)}, {v(TMP+1)}")
            A(f"v_cvt_pk_bf16_f32 {v(o+1)}, {v(TMP+2)}, {v(TMP+3)}")
            A(f"buffer_store_dwordx2 {v(o,2)}, {v(vSt)}, {srd(sWO)}, s{sTmp} offen offset:{rt*32}")


def gen_a2(A, name="a2_kernel"):
    kernel_header(A, name)
    Lend = A.newlabel("Lend")
    a_prologue(A, Lend, 81)
    A("s_lshl_b32 s3, s2, 2")
    A(f"s_add_u32 s{sH}, s3, s{sWave}")
    A(f"s_cmp_gt_u32 s{sH}, 320")
    A(f"s_cbranch_scc1 {Lend}")
    a2_body(A, "")
    A.label(Lend)
    A("s_endpgm")
    return kernel_desc(name, 512, 102, 256)


def a2_body(A, sc):
    OOB = 0x7ff00000
    R = RegAlloc(6, 256)
    T0, T1, vL16, vYi, vZ = R.alloc(), R.alloc(), R.alloc(), R.alloc(), R.alloc()
    DAT = R.alloc(96)
    ACC = R.alloc(64)
    TW = R.alloc(64)
    TMP = R.alloc(8)
    sIm = 50

    def dat(part, hl, idx):
        return DAT + ((part * 2 + hl) * 4 + idx) * 4

    def c64(cs, hl, tile, ks):
        return a((((cs * 2 + hl) * 4 + tile) * 2 + ks) * 4, 4)

    def c32(cs, hl, tile):
        return a(128 + ((cs * 2 + hl) * 2 + tile) * 4, 4)

    def acc(ri, i):
        return ACC + (ri * 8 + i) * 4
    A(f"v_lshlrev_b32 {v(vL16)}, 4, {v(vLane)}")
    A(f"s_sub_u32 s{sTmp}, s{sH}, 1")
    A(f"s_cmp_lt_u32 s{sTmp}, 319")
    A(f"s_cselect_b32 s{sIm}, 0, {OOB:#x}")
    A(f"v_add_u32 {v(vYi)}, s{sIm}, {v(vL16)}")
    A(f"s_lshl_b32 s{sTmp}, s{sH}, 13")
    A(f"s_add_u32 s{sTmp}, s{sTmp}, {WS_Y:#x}")
    A(f"s_add_u32 s{sTmp2}, s{sTmp}, {320*8192}")
    for hl in range(2):
        for i in range(4):
            A(f"s_add_u32 s51, s{sTmp}, {hl*4096}")
            A(f"buffer_load_dwordx4 {v(dat(0,hl,i),4)}, {v(vL16)}, {srd(sWS)}, s51 offen offset:{i*1024}")
            A(f"s_add_u32 s51, s{sTmp2}, {hl*4096}")
            A(f"buffer_load_dwordx4 {v(dat(1,hl,i),4)}, {v(vYi)}, {srd(sWS)}, s51 offen offset:{i*1024}")
    for i in range(8):
        A(f"s_mov_b32 s51, {WS_C32 + i*1024:#x}")
        A(f"buffer_load_dwordx4 {a(128+i*4,4)}, {v(vL16)}, {srd(sWS)}, s51 offen")

    def load_tw(base):
        for i in range(16):
            A(f"s_mov_b32 s51, {base + i*1024:#x}")
            A(f"buffer_load_dwordx4 {v(TW+i*4,4)}, {v(vL16)}, {srd(sWS)}, s51 offen")
    load_tw(WS_TW1)
    for i in range(32):
        A(f"s_mov_b32 s51, {WS_C64 + i*1024:#x}")
        A(f"buffer_load_dwordx4 {a(i*4,4)}, {v(vL16)}, {srd(sWS)}, s51 offen")

    def negate(part):
        for hl in range(2):
            for i in range(16):
                A(f"v_xor_b32 {v(dat(2,hl,0)+i)}, 0x80008000, {v(dat(part,hl,0)+i)}")

    def cmm(tiles, data_first, fwd):
        A.nop(2)
        terms = {0: [(0, 0), (1 if fwd else 2, 1)], 1: [(1, 0), (2 if fwd else 0, 1)]}
        seqs = []
        for ai, ksl in tiles:
            for ri in range(2):
                sq = []
                for didx, cf in ksl:
                    for part, cs in terms[ri]:
                        for dh, ch in (((0, 0), (1, 0)) if HI2 else ((0, 0), (1, 0), (0, 1))):
                            sq.append((acc(ri, ai), dat(part, dh, didx), cf(cs, ch)))
                seqs.append(sq)
        n = len(seqs[0])
        for j in range(n):
            for sq in seqs:
                ac, d, c = sq[j]
                cc = "0" if j == 0 else v(ac, 4)
                if data_first:
                    A(f"v_mfma_f32_16x16x32_bf16 {v(ac,4)}, {v(d,4)}, {c}, {cc}")
                else:
                    A(f"v_mfma_f32_16x16x32_bf16 {v(ac,4)}, {c}, {v(d,4)}, {cc}")
        A.nop(8)

    def twiddle(conj):
        for i in range(8):
            for r in range(4):
                xr, xi, c, s_ = acc(0, i) + r, acc(1, i) + r, TW + i * 4 + r, TW + 32 + i * 4 + r
                A(f"v_mul_f32 {v(T0)}, {v(xr)}, {v(c)}")
                A(f"v_mul_f32 {v(T1)}, {v(xi)}, {v(c)}")
                if not conj:
                    A(f"v_fma_f32 {v(T0)}, {v(xi)}, {v(s_)}, {v(T0)}")
                    A(f"v_fma_f32 {v(xi)}, -{v(xr)}, {v(s_)}, {v(T1)}")
                else:
                    A(f"v_fma_f32 {v(T0)}, -{v(xi)}, {v(s_)}, {v(T0)}")
                    A(f"v_fma_f32 {v(xi)}, {v(xr)}, {v(s_)}, {v(T1)}")
                A(f"v_mov_b32 {v(xr)}, {v(T0)}")

    def to_frags(pairs):
        for ri in range(2):
            for didx, ta, tb in pairs:
                for h, tt in enumerate((ta, tb)):
                    for q in range(2):
                        x = acc(ri, tt) + 2 * q
                        split_pack(A, x, x + 1, dat(ri, 0, didx) + h * 2 + q, dat(ri, 1, didx) + h * 2 + q, T0, T1)

    A("s_waitcnt vmcnt(48)")
    negate(0)
    cmm([(ts * 2 + tf, [(ts, lambda cs, hl, tf=tf: c32(cs, hl, tf))]) for ts in range(4) for tf in range(2)], True, True)
    A("s_waitcnt vmcnt(32)")
    twiddle(False)
    A(f"s_lshl_b32 s{sTmp}, s{sH}, 13")
    A(f"s_add_u32 s{sTmp}, s{sTmp}, {WS_WT:#x}")
    A(f"s_add_u32 s{sTmp2}, s{sTmp}, 4096")
    for i in range(8):
        A(f"buffer_load_dwordx4 {v(TW+i*4,4)}, {v(vL16)}, {srd(sWS)}, s{sTmp if i < 4 else sTmp2} offen offset:{(i%4)*1024}")
    to_frags([(tf * 2 + ks, (2 * ks) * 2 + tf, (2 * ks + 1) * 2 + tf) for tf in range(2) for ks in range(2)])
    negate(0)
    A("s_waitcnt vmcnt(8)")
    cmm([(t2 * 2 + tf, [(tf * 2 + ks, lambda cs, hl, t2=t2, ks=ks: c64(cs, hl, t2, ks)) for ks in range(2)])
         for t2 in range(4) for tf in range(2)], False, True)
    A("s_waitcnt vmcnt(0)")
    for t2 in range(4):
        for tf in range(2):
            for r in range(4):
                xr, xi = acc(0, t2 * 2 + tf) + r, acc(1, t2 * 2 + tf) + r
                wrp, wip = TW + t2 * 4 + tf * 2 + r // 2, TW + 16 + t2 * 4 + tf * 2 + r // 2
                if r % 2 == 0:
                    A(f"v_lshlrev_b32 {v(TMP)}, 16, {v(wrp)}")
                    A(f"v_lshlrev_b32 {v(TMP+1)}, 16, {v(wip)}")
                else:
                    A(f"v_and_b32 {v(TMP)}, 0xffff0000, {v(wrp)}")
                    A(f"v_and_b32 {v(TMP+1)}, 0xffff0000, {v(wip)}")
                A(f"v_mul_f32 {v(T0)}, {v(xr)}, {v(TMP)}")
                A(f"v_mul_f32 {v(T1)}, {v(xr)}, {v(TMP+1)}")
                A(f"v_fma_f32 {v(xr)}, -{v(xi)}, {v(TMP+1)}, {v(T0)}")
                A(f"v_fma_f32 {v(xi)}, {v(xi)}, {v(TMP)}, {v(T1)}")
    load_tw(WS_TW3)
    to_frags([(tf * 2 + ks, (2 * ks) * 2 + tf, (2 * ks + 1) * 2 + tf) for tf in range(2) for ks in range(2)])
    negate(1)
    cmm([(tf * 4 + ts, [(tf * 2 + ks, lambda cs, hl, ts=ts, ks=ks: c64(cs, hl, ts, ks)) for ks in range(2)])
         for tf in range(2) for ts in range(4)], True, False)
    A("s_waitcnt vmcnt(0)")
    twiddle(True)
    to_frags([(ts, ts, 4 + ts) for ts in range(4)])
    negate(1)
    cmm([(ts * 2 + t1, [(ts, lambda cs, hl, t1=t1: c32(cs, hl, t1))]) for ts in range(4) for t1 in range(2)], True, False)
    A(f"s_lshl_b32 s52, s{sWave}, 14")
    A(f"v_lshlrev_b32 {v(vZ)}, 7, {v(vN)}")
    A(f"v_lshl_add_u32 {v(vZ)}, {v(vG)}, 3, {v(vZ)}")
    A(f"v_add_u32 {v(vZ)}, s52, {v(vZ)}")
    i = 0
    for ri in range(2):
        for ts in range(4):
            for t1 in range(2):
                o = DAT + (i % 8) * 4
                i += 1
                x = acc(ri, ts * 2 + t1)
                split_pack(A, x, x + 1, o, o + 2, T0, T1)
                split_pack(A, x + 2, x + 3, o + 1, o + 3, T0, T1)
                for hl in range(2):
                    A(f"ds_write_b64 {v(vZ)}, {v(o+hl*2,2)} offset:{(ri*2+hl)*4096 + t1*2048 + ts*32}")
    A(f"v_add_u32 {v(vZ)}, s52, {v(vL16)}")
    A(f"s_lshl_b32 s{sTmp}, s{sH}, 12")
    A(f"s_add_u32 s{sTmp}, s{sTmp}, {WS_Z:#x}")
    A("s_waitcnt lgkmcnt(0)")
    for k in range(16):
        A(f"ds_read_b128 {v(ACC+k*4,4)}, {v(vZ)} offset:{k*1024}")
        if k == 11:
            A("s_waitcnt lgkmcnt(4)")
    A("s_waitcnt lgkmcnt(0)")
    for k in range(16):
        ri, hl, q = k // 8, (k // 4) % 2, k % 4
        A(f"s_add_u32 s51, s{sTmp}, {ri*320*4096 + hl*640*4096}")
        A(f"buffer_store_dwordx4 {v(ACC+k*4,4)}, {v(vL16 if ri == 0 else vYi)}, {srd(sWS)}, s51 offen offset:{q*1024}{sc}")
```

```python
import struct
from asmlib import *
from layout import *


def f32bits(x):
    return struct.unpack("<I", struct.pack("<f", x))[0]


SPIN_MAX = 400000
WARM = 1
NST = 64
CDELAY = 7
KC = 1
DSLEEP = 24
AALL = 1
ADELAY = 0
VSPLIT = 4
EARLY = 1
PDELAY = 0
OOB = 0x7ff00000


def gen_rec(A, name="rec_kernel", prof=False, nsteps=64, exp=(), wrole=None):
    kernel_header(A, name)
    sWS, sM0, sW, sDBG = 4, 8, 12, 32
    sX, sT, sGrp, sMemb, sWave, sStep, sMode, sCnt = 36, 37, 38, 39, 40, 41, 42, 43
    sOffKM, sOffC, sOffD, sOffK, sTmp, sTmp2, sH, sOffU = 44, 45, 46, 47, 48, 49, 50, 51
    sRA, sRC, sRD, sRAp, sRCp, sRDp, sWarm, sOffUM = 90, 91, 92, 93, 94, 95, 96, 101
    sRCB = 101
    sMaskG = 54
    sC = 58
    sEnd = 59
    sCnts = 60
    sPr = 70
    R = RegAlloc(1, 256)
    vLane, vN, vG, vN8 = R.alloc(), R.alloc(), R.alloc(), R.alloc()
    vT0, vT1, vT2, vT3 = R.alloc(), R.alloc(), R.alloc(), R.alloc()
    vD0, vD2 = R.alloc(), R.alloc()
    vRAw, vRAr, vAst, vKMst = R.alloc(), R.alloc(), R.alloc(), R.alloc()
    vRAr2, vAst2, vVMst = R.alloc(), R.alloc(), R.alloc()
    vQo, vKo = R.alloc(), R.alloc()
    vRCw, vRCr, vCst = R.alloc(), R.alloc(), R.alloc()
    vCg = R.alloc(8)
    vDst = R.alloc()
    vK0, vK1, vU = R.alloc(), R.alloc(), R.alloc()
    vWarm = R.alloc()
    vNinf = R.alloc()
    vFlag, vSig, vOne = R.alloc(), R.alloc(), R.alloc()
    vU2 = R.alloc()
    vOnes = R.alloc(4)
    vSent = R.alloc(4)
    vDummy = R.alloc(4)
    vPub = R.alloc(2)
    vPub2 = R.alloc(2)
    assert R.next <= 64
    M = R.alloc(12)
    Mr = R.alloc(8)
    accA = R.alloc(24)
    Q = R.alloc(8)
    Qr = R.alloc(8)
    KM = R.alloc(16)
    VM = R.alloc(16)
    acc1, acc2, acc0 = R.alloc(4), R.alloc(4), R.alloc(4)
    accU = R.alloc(12)
    UA = R.alloc(6)
    P0 = R.alloc(4)
    PM, Blo = R.alloc(2), R.alloc(2)
    vMx, vMx2 = R.alloc(), R.alloc()
    vRz = R.alloc(2)
    accZ = R.alloc(4)
    accC = R.alloc(12)
    Cg = R.alloc(16)
    CR = KM
    TMP = 64
    aWA, aWC, aK, aU, aUn = 0, 120, 168, 200, 212

    def WA(t, ks):
        return a(aWA + (t * 5 + ks) * 4, 4)

    def WC(t, s_):
        return a(aWC + (t * 4 + s_) * 4, 4)

    LDS_RA = 65536
    LDS_RC = 65536 + 12288
    LDS_ROLE = 163840 - 16

    Lend = A.newlabel("Lend")
    Lfail = A.newlabel("Lfail")
    WSR = f"s[{sWS}:{sWS+3}]"

    def rtl(cond8=False):
        if "tl" not in exp:
            return
        Ls = A.newlabel("Lrtl")
        A(f"s_cmp_lg_u32 s{sWave}, 3")
        A(f"s_cbranch_scc1 {Ls}")
        if cond8:
            A(f"s_and_b32 s70, s{sStep}, 7")
            A(f"s_cmp_lg_u32 s70, 0")
            A(f"s_cbranch_scc1 {Ls}")
        A("s_memrealtime s[72:73]")
        A("s_waitcnt lgkmcnt(0)")
        A("s_mov_b64 exec, 1")
        A(f"v_mov_b32 {v(vT0)}, s72")
        A(f"v_mov_b32 {v(vT1)}, 0")
        A(f"buffer_store_dword {v(vT0)}, {v(vT1)}, {WSR}, s71 offen")
        A("s_mov_b64 exec, -1")
        A("s_add_u32 s71, s71, 4")
        A.label(Ls)

    def stamp(i):
        if not prof:
            return
        if "rt" in exp:
            Ls = A.newlabel("Lst")
            A(f"s_cmp_lg_u32 s{sStep}, {30 if i != 13 else 31}")
            A(f"s_cbranch_scc1 {Ls}")
            A(f"s_memrealtime s[88:89]")
            A("s_waitcnt lgkmcnt(0)")
            A(f"s_mov_b32 s{sPr+i}, s88")
            A.label(Ls)
            return
        A(f"s_memtime s[88:89]")
        A("s_waitcnt lgkmcnt(0)")
        A(f"s_sub_u32 s{sTmp2}, s88, s86")
        A(f"s_add_u32 s{sPr+i}, s{sPr+i}, s{sTmp2}")
        A("s_mov_b32 s86, s88")

    sKX, sKT, sKR = 98, 99, 97
    assert not prof or not wrole
    A("s_cmp_ge_u32 s2, 256")
    A(f"s_cbranch_scc1 {Lend}")
    if "tl" in exp:
        A("s_memrealtime s[68:69]")
    A(f"s_mov_b32 s{sKR}, 0")
    Lentry = A.newlabel("Lentry")
    A.label(Lentry)
    A("s_waitcnt vmcnt(0) lgkmcnt(0)")
    A("s_load_dwordx8 s[16:23], s[0:1], 32")
    A("s_load_dwordx2 s[24:25], s[0:1], 64")
    A("s_load_dwordx4 s[28:31], s[0:1], 88")
    A(f"v_and_b32 {v(vLane)}, 63, v0")
    A(f"v_lshrrev_b32 {v(vT0)}, 6, v0")
    A(f"v_and_b32 {v(vN)}, 15, v0")
    A(f"v_readfirstlane_b32 s{sWave}, {v(vT0)}")
    A(f"v_bfe_u32 {v(vG)}, v0, 4, 2")
    A(f"v_and_b32 {v(vN8)}, 7, v0")
    A("s_waitcnt lgkmcnt(0)")
    make_srd(A, sWS, 30, WS_BYTES)
    make_srd(A, sM0, 16, 10240)
    make_srd(A, sDBG, 28, 256)
    make_srd(A, sW, 18, 640 * 4096 * 2)

    def confirm(swave, force_jump=False):
        Lskip, Lw0, Lp = A.newlabel("Lcf"), A.newlabel("Lcf0"), A.newlabel("Lcfp")
        A(f"s_cmp_lg_u32 s{sKR}, 0")
        A(f"s_cbranch_scc1 {Lskip}")
        A(f"s_cmp_lg_u32 s{swave}, 0")
        A(f"s_cbranch_scc1 {Lw0}")
        A("v_and_b32 v4, 63, v0")
        A("v_lshlrev_b32 v4, 8, v4")
        A(f"v_add_u32 v4, {WS_CNT:#x}, v4")
        A("s_mov_b64 exec, 0xff")
        A("s_mov_b32 s43, 0")
        A.label(Lp)
        A("buffer_load_dword v5, v4, s[4:7], 0 offen sc1")
        A("s_waitcnt vmcnt(0)")
        for i in range(8):
            A(f"v_readlane_b32 s{sCnts+i}, v5, {i}")
        A("s_nop 3")
        A(f"s_add_u32 s48, s{sCnts}, s{sCnts+1}")
        for i in range(2, 8):
            A(f"s_add_u32 s48, s48, s{sCnts+i}")
        A("s_add_u32 s43, s43, 1")
        A(f"s_cmp_gt_u32 s43, {SPIN_MAX}")
        Lok = A.newlabel("Lcfo")
        A(f"s_cbranch_scc0 {Lok}")
        A("s_endpgm")
        A.label(Lok)
        A("s_cmp_lt_u32 s48, 256")
        A(f"s_cbranch_scc1 {Lp}")
        A(f"s_min_u32 s48, s{sCnts}, s{sCnts+1}")
        for i in range(2, 8):
            A(f"s_min_u32 s48, s48, s{sCnts+i}")
        A(f"s_mov_b32 s49, s{sKT}")
        for i in range(7):
            A(f"s_cmp_gt_u32 s{sKX}, {i}")
            A(f"s_cselect_b32 s43, s{sCnts+i}, 0")
            A("s_add_u32 s49, s49, s43")
        A("s_or_b32 s49, s49, 0x300")
        A(f"s_lshl_b32 s43, s{sKX}, 5")
        A(f"s_add_u32 s43, s43, s{sKT}")
        A("s_or_b32 s43, s43, 0x200")
        A(f"s_cmp_ge_u32 s48, {33 if 'slow' in exp else 32}")
        A("s_cselect_b32 s43, s43, s49")
        A("s_mov_b64 exec, 1")
        A(f"v_mov_b32 v4, {LDS_ROLE}")
        A("v_mov_b32 v5, s43")
        A("ds_write_b32 v4, v5")
        A("s_waitcnt lgkmcnt(0)")
        A("s_mov_b64 exec, -1")
        A.label(Lw0)
        A("s_barrier")
        A(f"v_mov_b32 v4, {LDS_ROLE}")
        A("ds_read_b32 v5, v4")
        A("s_waitcnt lgkmcnt(0)")
        A(f"v_readfirstlane_b32 s{sKR}, v5")
        A("s_nop 3")
        A("s_barrier")
        if force_jump:
            A(f"s_branch {Lentry}")
        else:
            A(f"s_bitcmp1_b32 s{sKR}, 8")
            A(f"s_cbranch_scc0 {Lskip}")
            A(f"s_branch {Lentry}")
        A.label(Lskip)

    Lhave = A.newlabel("Lhave")
    A(f"s_mov_b32 s{sCnt}, s{sKR}")
    A(f"s_cmp_lg_u32 s{sKR}, 0")
    A(f"s_cbranch_scc1 {Lhave}")
    A(f"s_getreg_b32 s{sKX}, hwreg(HW_REG_XCC_ID)")
    A(f"s_and_b32 s{sKX}, s{sKX}, 7")
    Lel_done = A.newlabel("Lel")
    A(f"s_cmp_lg_u32 s{sWave}, 0")
    A(f"s_cbranch_scc1 {Lel_done}")
    A(f"s_lshl_b32 s{sTmp}, s{sKX}, 8")
    A(f"s_add_u32 s{sTmp}, s{sTmp}, {WS_CNT:#x}")
    A(f"v_mov_b32 {v(vT0)}, s{sTmp}")
    A(f"v_mov_b32 {v(vT1)}, 1")
    A("s_mov_b64 exec, 1")
    A(f"buffer_atomic_add {v(vT1)}, {v(vT0)}, {WSR}, 0 offen sc0")
    A(f"v_mov_b32 {v(vT0)}, {LDS_ROLE}")
    A("s_waitcnt vmcnt(0)")
    A(f"ds_write_b32 {v(vT0)}, {v(vT1)}")
    A("s_waitcnt lgkmcnt(0)")
    A("s_mov_b64 exec, -1")
    A.label(Lel_done)
    A("s_barrier")
    A(f"v_mov_b32 {v(vT0)}, {LDS_ROLE}")
    A(f"ds_read_b32 {v(vT1)}, {v(vT0)}")
    A("s_waitcnt lgkmcnt(0)")
    A(f"v_readfirstlane_b32 s{sKT}, {v(vT1)}")
    A("s_nop 3")
    A("s_barrier")
    Lsp = A.newlabel("Lsp")
    A(f"s_cmp_lt_u32 s{sKT}, 32")
    A(f"s_cbranch_scc1 {Lsp}")
    confirm(sWave, force_jump=True)
    A.label(Lsp)
    A(f"s_lshl_b32 s{sCnt}, s{sKX}, 5")
    A(f"s_add_u32 s{sCnt}, s{sCnt}, s{sKT}")
    A.label(Lhave)
    A(f"s_bfe_u32 s{sMode}, s{sCnt}, 0x10008")
    A(f"s_and_b32 s{sCnt}, s{sCnt}, 255")
    Lw = A.newlabel("Lwrole")
    Lr = A.newlabel("Lrrole")
    A(f"s_cmp_ge_u32 s{sCnt}, 128")
    if wrole:
        A(f"s_cbranch_scc0 {Lr}")
        A(f"s_branch {Lw}")
        A.label(Lr)
    else:
        A(f"s_cbranch_scc0 {Lr}")
        confirm(sWave)
        A(f"s_branch {Lend}")
        A.label(Lr)
    A(f"s_lshr_b32 s{sGrp}, s{sCnt}, 4")
    A(f"s_and_b32 s{sMemb}, s{sCnt}, 15")
    A(f"s_lshl_b32 s71, s{sCnt}, 8")
    A(f"s_add_u32 s71, s71, {WS_PROF:#x}")
    if "tl" in exp:
        A("s_mov_b64 exec, 1")
        A(f"v_mov_b32 {v(vT0)}, s68")
        A(f"v_mov_b32 {v(vT1)}, 0")
        A(f"buffer_store_dword {v(vT0)}, {v(vT1)}, {WSR}, s71 offen")
        A("s_mov_b64 exec, -1")
        A("s_add_u32 s71, s71, 4")
    rtl()

    A(f"s_mov_b32 s{sMaskG}, -1")
    A(f"s_mov_b32 s{sMaskG+1}, 0")
    A(f"s_mov_b32 s{sC}, {f32bits(SCALE*LOG2E):#x}")
    A(f"v_mov_b32 {v(vNinf)}, 0xff800000")
    for i in range(4):
        A(f"v_mov_b32 {v(vOnes+i)}, 0x3f803f80")
        A(f"v_mov_b32 {v(vSent+i)}, -1")

    A(f"s_lshr_b32 s{sTmp}, s{sMemb}, 2")
    A(f"s_lshl_b32 s{sH}, s{sGrp}, 2")
    A(f"s_add_u32 s{sH}, s{sH}, s{sTmp}")
    A(f"s_and_b32 s{sTmp}, s{sMemb}, 3")
    A(f"s_lshl_b32 s{sTmp2}, s{sH}, 8")
    A(f"s_lshl_b32 s{sCnt}, s{sTmp}, 6")
    A(f"s_add_u32 s{sTmp2}, s{sTmp2}, s{sCnt}")
    A(f"s_mul_i32 s{sCnt}, s{sWave}, {160*8192}")
    A(f"s_add_u32 s{sTmp2}, s{sTmp2}, s{sCnt}")
    A(f"v_lshrrev_b32 {v(vT0)}, 2, {v(vLane)}")
    A(f"v_lshlrev_b32 {v(vT0)}, 13, {v(vT0)}")
    A(f"v_and_b32 {v(vT1)}, 3, {v(vLane)}")
    A(f"v_lshl_add_u32 {v(vT0)}, {v(vT1)}, 4, {v(vT0)}")
    A(f"v_add_u32 {v(vT0)}, s{sTmp2}, {v(vT0)}")
    for m in range(3):
        if m:
            make_srd(A, sW, 18 + 2 * m, 640 * 4096 * 2)
        for i in range(10):
            A(f"s_mov_b32 s{sCnt}, {i*131072}")
            A(f"buffer_load_dwordx4 {v(TMP+(m*10+i)*4,4)}, {v(vT0)}, s[{sW}:{sW+3}], s{sCnt} offen")
    make_srd(A, sW, 24, 4096 * 640 * 2)
    A(f"s_lshl_b32 s{sTmp2}, s{sGrp}, 2")
    A(f"s_add_u32 s{sTmp2}, s{sTmp2}, s{sWave}")
    A(f"s_mul_i32 s{sTmp2}, s{sTmp2}, {128*1280}")
    A(f"s_mul_i32 s{sCnt}, s{sMemb}, 80")
    A(f"s_add_u32 s{sTmp2}, s{sTmp2}, s{sCnt}")
    A(f"v_lshrrev_b32 {v(vT1)}, 3, {v(vLane)}")
    A(f"v_mul_u32_u24 {v(vT1)}, 1280, {v(vT1)}")
    A(f"v_and_b32 {v(vT2)}, 7, {v(vLane)}")
    A(f"v_lshl_add_u32 {v(vT1)}, {v(vT2)}, 4, {v(vT1)}")
    A(f"v_add_u32 {v(vT1)}, s{sTmp2}, {v(vT1)}")
    for i in range(16):
        A(f"s_mov_b32 s{sCnt}, {i*8*1280}")
        A(f"buffer_load_dwordx4 {v(TMP+120+i*4,4)}, {v(vT1)}, s[{sW}:{sW+3}], s{sCnt} offen")
    A(f"s_lshl_b32 s{sTmp2}, s{sWave}, 14")
    A(f"v_lshlrev_b32 {v(vT0)}, 4, {v(vLane)}")
    A(f"v_add_u32 {v(vT0)}, s{sTmp2}, {v(vT0)}")
    A(f"v_lshrrev_b32 {v(vT1)}, 2, {v(vN)}")
    A(f"v_lshl_add_u32 {v(vT2)}, {v(vG)}, 3, {v(vT1)}")
    A(f"v_lshlrev_b32 {v(vT2)}, 6, {v(vT2)}")
    A(f"v_and_b32 {v(vT3)}, 3, {v(vN)}")
    A(f"v_lshl_add_u32 {v(vT2)}, {v(vT3)}, 3, {v(vT2)}")
    A(f"v_add_u32 {v(vT2)}, s{sTmp2}, {v(vT2)}")
    for m in range(3):
        A(f"s_waitcnt vmcnt({(2-m)*10+16})")
        for i in range(10):
            A(f"ds_write_b128 {v(vT0)}, {v(TMP+(m*10+i)*4,4)} offset:{i*1024}")
        for tt in range(2):
            for ks in range(5):
                r0 = aWA + ((m * 2 + tt) * 5 + ks) * 4
                A(f"ds_read_b64_tr_b16 {a(r0,2)}, {v(vT2)} offset:{ks*2048+tt*32}")
                A(f"ds_read_b64_tr_b16 {a(r0+2,2)}, {v(vT2)} offset:{ks*2048+tt*32+256}")
            A("s_waitcnt lgkmcnt(0)")
    A(f"v_lshl_add_u32 {v(vT2)}, {v(vG)}, 2, {v(vT1)}")
    A(f"v_lshlrev_b32 {v(vT2)}, 7, {v(vT2)}")
    A(f"v_lshl_add_u32 {v(vT2)}, {v(vT3)}, 3, {v(vT2)}")
    A(f"v_add_u32 {v(vT2)}, s{sTmp2}, {v(vT2)}")
    A("s_waitcnt vmcnt(0)")
    for i in range(16):
        A(f"ds_write_b128 {v(vT0)}, {v(TMP+120+i*4,4)} offset:{i*1024}")
        if i % 8 == 7:
            A("s_waitcnt lgkmcnt(0)")
    for tt in range(3):
        for s_ in range(4):
            r0 = aWC + (tt * 4 + s_) * 4
            A(f"ds_read_b64_tr_b16 {a(r0,2)}, {v(vT2)} offset:{s_*4096+tt*32}")
            A(f"ds_read_b64_tr_b16 {a(r0+2,2)}, {v(vT2)} offset:{s_*4096+tt*32+2048}")
        A("s_waitcnt lgkmcnt(0)")

    confirm(sWave)
    A(f"v_and_b32 {v(vN8)}, 7, v0")
    if wrole:
        import parta
        A("s_load_dwordx4 s[24:27], s[0:1], 8")
        A(f"s_lshl_b32 s{sEnd}, s{sGrp}, 4")
        A(f"s_add_u32 s{sEnd}, s{sEnd}, s{sMemb}")
        A("s_waitcnt lgkmcnt(0)")
        Lcu, Lcx, Lcy = A.newlabel("Lcu"), A.newlabel("Lcx"), A.newlabel("Lcy")
        A(f"s_cmp_lg_u32 s{sEnd}, 0")
        A(f"s_cbranch_scc1 {Lcy}")
        A(f"s_branch {Lcx}")
        A.label(Lcy)
        A(f"s_sub_u32 s{sEnd}, s{sEnd}, 1")
        A.label(Lcu)
        parta.const_unit(A, sEnd)
        A(f"s_add_u32 s{sEnd}, s{sEnd}, 127")
        A(f"s_cmp_lt_u32 s{sEnd}, {parta.NB_CONST}")
        A(f"s_cbranch_scc1 {Lcu}")
        A.label(Lcx)
        A("s_waitcnt vmcnt(0)")
        A("s_barrier")
        A("s_mov_b64 exec, 1")
        A("v_mov_b32 v1, 1")
        A("v_mov_b32 v2, 0")
        A(f"s_mov_b32 s{sTmp}, {WS_CNT + CNT_CONST:#x}")
        A(f"buffer_atomic_add v1, v2, {WSR}, s{sTmp} offen")
        A("s_mov_b64 exec, -1")
        A("s_load_dwordx2 s[16:17], s[0:1], 32")
        A(f"v_and_b32 {v(vLane)}, 63, v0")
        A(f"v_and_b32 {v(vN)}, 15, v0")
        A(f"v_bfe_u32 {v(vG)}, v0, 4, 2")
        A(f"v_and_b32 {v(vN8)}, 7, v0")
        A(f"v_mov_b32 {v(vNinf)}, 0xff800000")
        for i in range(4):
            A(f"v_mov_b32 {v(vOnes+i)}, 0x3f803f80")
            A(f"v_mov_b32 {v(vSent+i)}, -1")
        A("s_waitcnt lgkmcnt(0)")
        make_srd(A, sM0, 16, 10240)
    A(f"v_mul_u32_u24 {v(vT0)}, 1280, {v(vN8)}")
    A(f"v_lshl_add_u32 {v(vT0)}, {v(vG)}, 4, {v(vT0)}")
    A(f"s_mul_i32 s{sTmp}, s{sWave}, 320")
    A(f"v_add_u32 {v(vT0)}, s{sTmp}, {v(vT0)}")
    A(f"v_add_u32 {v(Cg+1)}, 256, {v(vT0)}")
    A(f"v_lshrrev_b32 {v(vT1)}, 3, {v(vN)}")
    A(f"v_lshl_add_u32 {v(Cg)}, {v(vT1)}, 6, {v(vT0)}")
    A(f"s_mul_i32 s{sTmp}, s{sWave}, 2560")
    A(f"v_lshlrev_b32 {v(vT0)}, 4, {v(vLane)}")
    A(f"v_add_u32 {v(vD0)}, s{sTmp}, {v(vT0)}")
    A(f"v_lshl_add_u32 {v(vT1)}, {v(vG)}, 3, {v(vN8)}")
    A(f"v_lshlrev_b32 {v(vT1)}, 4, {v(vT1)}")
    A(f"s_add_u32 s{sTmp}, s{sTmp}, 2048")
    A(f"v_add_u32 {v(vD2)}, s{sTmp}, {v(vT1)}")
    A(f"s_lshl_b32 s{sTmp2}, s{sGrp}, 2")
    A(f"s_add_u32 s{sTmp2}, s{sTmp2}, s{sWave}")
    A(f"s_mul_i32 s{sTmp}, s{sTmp2}, 6144")
    A(f"v_add_u32 {v(vQo)}, s{sTmp}, {v(vT0)}")
    A(f"v_add_u32 {v(vKo)}, 2048, {v(vQo)}")
    A(f"s_lshl_b32 s{sTmp}, s{sTmp2}, 13")
    A(f"v_add_u32 {v(vK0)}, s{sTmp}, {v(vT0)}")
    A(f"v_add_u32 {v(vK1)}, 4096, {v(vK0)}")
    A(f"s_mul_i32 s{sTmp}, s{sTmp2}, 40960")
    A(f"s_mul_i32 s{sCnt}, s{sMemb}, 2560")
    A(f"s_add_u32 s{sTmp}, s{sTmp}, s{sCnt}")
    A(f"v_lshrrev_b32 {v(vT2)}, 3, {v(vN)}")
    A(f"v_lshl_add_u32 {v(vU)}, {v(vT2)}, 9, {v(vT1)}")
    A(f"v_add_u32 {v(vU)}, s{sTmp}, {v(vU)}")
    A(f"v_mov_b32 {v(vU2)}, {OOB:#x}")
    A(f"v_cmp_gt_u32 vcc, 8, {v(vN)}")
    A("s_nop 1")
    A(f"v_cndmask_b32 {v(vU2)}, {v(vU2)}, {v(vU)}, vcc")
    A(f"s_mul_i32 s{sTmp}, s{sWave}, 3072")
    A(f"s_add_u32 s{sCnt}, s{sTmp}, {LDS_RA}")
    A(f"v_add_u32 {v(vRAw)}, s{sCnt}, {v(vT0)}")
    A(f"s_add_u32 s{sCnt}, s{sTmp}, {LDS_RC}")
    A(f"v_add_u32 {v(vRCw)}, s{sCnt}, {v(vT0)}")
    def reader(ubase_mul, ubase_add, nl, rdst, adst, pdst, pbase):
        A(f"s_mul_i32 s{sTmp}, s{sWave}, {ubase_mul}")
        A(f"s_add_u32 s{sTmp}, s{sTmp}, {ubase_add}")
        A(f"v_add_u32 {v(vT0)}, s{sTmp}, {v(vLane)}")
        A(f"v_lshrrev_b32 {v(vT1)}, 6, {v(vT0)}")
        A(f"v_bfe_u32 {v(vT2)}, {v(vT0)}, 1, 3")
        A(f"v_bfe_u32 {v(vT3)}, {v(vT0)}, 4, 2")
        A(f"v_and_b32 {v(vT0)}, 1, {v(vT0)}")
        A(f"v_lshl_add_u32 {v(rdst)}, {v(vT3)}, 4, {v(vT2)}")
        A(f"v_lshlrev_b32 {v(adst)}, 4, {v(rdst)}")
        A(f"v_lshl_add_u32 {v(rdst)}, {v(vT0)}, 3, {v(rdst)}")
        A(f"v_lshlrev_b32 {v(rdst)}, 4, {v(rdst)}")
        A(f"v_lshl_add_u32 {v(rdst)}, {v(vT1)}, 10, {v(rdst)}")
        A(f"v_add_u32 {v(rdst)}, {LDS_RA}, {v(rdst)}")
        A(f"s_and_b32 s{sTmp}, s{sMemb}, 3")
        A(f"s_lshr_b32 s{sTmp2}, s{sTmp}, 1")
        A(f"s_lshl_b32 s{sTmp2}, s{sTmp2}, 10")
        A(f"s_and_b32 s{sCnt}, s{sTmp}, 1")
        A(f"s_lshl_b32 s{sCnt}, s{sCnt}, 7")
        A(f"s_add_u32 s{sTmp2}, s{sTmp2}, s{sCnt}")
        A(f"s_mul_i32 s{sCnt}, s{sH}, 6144")
        A(f"s_add_u32 s{sTmp2}, s{sTmp2}, s{sCnt}")
        A(f"v_add_u32 {v(adst)}, s{sTmp2}, {v(adst)}")
        A(f"v_lshl_add_u32 {v(adst)}, {v(vT0)}, 3, {v(adst)}")
        A(f"v_lshl_add_u32 {v(adst)}, {v(vT1)}, 11, {v(adst)}")
        A(f"s_lshl_b32 s{sTmp2}, s{sTmp}, 9")
        A(f"s_lshl_b32 s{sCnt}, s{sH}, 11")
        A(f"s_add_u32 s{sTmp2}, s{sTmp2}, s{sCnt}")
        A(f"s_add_u32 s{sTmp2}, s{sTmp2}, {pbase:#x}")
        A(f"v_lshl_add_u32 {v(vT2)}, {v(vT3)}, 3, {v(vT2)}")
        A(f"v_lshlrev_b32 {v(vT2)}, 4, {v(vT2)}")
        A(f"v_lshl_add_u32 {v(vT2)}, {v(vT0)}, 3, {v(vT2)}")
        A(f"v_add_u32 {v(pdst)}, s{sTmp2}, {v(vT2)}")
        A(f"v_mov_b32 {v(vT3)}, {OOB:#x}")
        A(f"v_cmp_eq_u32 vcc, 0, {v(vT1)}")
        A("s_nop 1")
        A(f"v_cndmask_b32 {v(pdst)}, {v(pdst)}, {v(vT3)}, vcc")
        A(f"v_cmp_gt_u32 vcc, {nl}, {v(vLane)}")
        A("s_nop 1")
        A(f"v_cndmask_b32 {v(pdst)}, {v(vT3)}, {v(pdst)}, vcc")
        A(f"v_cndmask_b32 {v(adst)}, {v(vT3)}, {v(adst)}, vcc")
        A(f"v_cndmask_b32 {v(rdst)}, {v(vRAw)}, {v(rdst)}, vcc")
    reader(32, 0, 32, vRAr, vAst, vKMst, 0)
    reader(16, 128, 16, vRAr2, vAst2, vVMst, WS_VM - WS_KM)
    A(f"s_and_b32 s{sTmp}, s{sGrp}, 1")
    A(f"s_cmp_lt_u32 s{sWave}, 2")
    A(f"s_cselect_b32 s{sTmp}, s{sWave}, s{sTmp}")
    A(f"v_lshrrev_b32 {v(vT1)}, 3, {v(vLane)}")
    A(f"v_and_b32 {v(vT2)}, 1, {v(vLane)}")
    A(f"v_lshl_add_u32 {v(vT0)}, {v(vT1)}, 1, {v(vT2)}")
    A(f"v_bfe_u32 {v(vT2)}, {v(vLane)}, 1, 2")
    A(f"s_lshl_b32 s{sTmp2}, s{sTmp}, 2")
    A(f"v_add_u32 {v(vT2)}, s{sTmp2}, {v(vT2)}")
    A(f"v_and_b32 {v(vT3)}, 3, {v(vT0)}")
    A(f"v_lshl_add_u32 {v(vT3)}, {v(vT3)}, 4, {v(vT2)}")
    A(f"v_lshlrev_b32 {v(vT3)}, 4, {v(vT3)}")
    A(f"v_lshrrev_b32 {v(vT0)}, 2, {v(vT0)}")
    A(f"v_lshl_add_u32 {v(vT3)}, {v(vT0)}, 10, {v(vT3)}")
    A(f"v_add_u32 {v(vRCr)}, {LDS_RC}, {v(vT3)}")
    A(f"s_mul_i32 s{sCnt}, s{sMemb}, 43")
    A(f"s_lshr_b32 s{sCnt}, s{sCnt}, 8")
    A(f"s_mul_i32 s{sTmp2}, s{sMemb}, 1280")
    A(f"s_mul_i32 s{sCnt}, s{sCnt}, {16384 - 6*1280}")
    A(f"s_add_u32 s{sTmp2}, s{sTmp2}, s{sCnt}")
    A(f"s_mul_i32 s{sTmp}, s{sTmp}, 640")
    A(f"s_add_u32 s{sTmp}, s{sTmp}, s{sTmp2}")
    A(f"v_lshlrev_b32 {v(vT0)}, 4, {v(vLane)}")
    A(f"v_add_u32 {v(vCst)}, s{sTmp}, {v(vT0)}")
    for r in range(1, 8):
        A(f"s_xor_b32 s{sTmp2}, s{sGrp}, {r}")
        A(f"s_mul_i32 s{sTmp2}, s{sTmp2}, {RC_GRP}")
        A(f"v_add_u32 {v(vCg+r)}, s{sTmp2}, {v(vCst)}")
    A(f"s_mul_i32 s{sTmp}, s{sMemb}, 5")
    A(f"v_add_u32 {v(vT1)}, s{sTmp}, {v(vT1)}")
    A(f"v_lshlrev_b32 {v(vDst)}, 4, {v(vT2)}")
    A(f"v_and_b32 {v(vT2)}, 1, {v(vLane)}")
    A(f"v_lshl_add_u32 {v(vDst)}, {v(vT2)}, 3, {v(vDst)}")
    A(f"v_mul_u32_u24 {v(vT2)}, 205, {v(vT1)}")
    A(f"v_lshrrev_b32 {v(vT2)}, 12, {v(vT2)}")
    A(f"v_mul_u32_u24 {v(vT3)}, 20, {v(vT2)}")
    A(f"v_sub_u32 {v(vT1)}, {v(vT1)}, {v(vT3)}")
    A(f"v_mul_u32_u24 {v(vT2)}, 2560, {v(vT2)}")
    A(f"v_add_u32 {v(vDst)}, {v(vDst)}, {v(vT2)}")
    A(f"v_and_b32 {v(vT2)}, 3, {v(vT1)}")
    A(f"v_lshrrev_b32 {v(vT1)}, 2, {v(vT1)}")
    A(f"v_lshrrev_b32 {v(vT3)}, 1, {v(vT1)}")
    A(f"v_lshl_add_u32 {v(vDst)}, {v(vT3)}, 10, {v(vDst)}")
    A(f"v_and_b32 {v(vT3)}, 1, {v(vT1)}")
    A(f"v_lshl_add_u32 {v(vDst)}, {v(vT3)}, 7, {v(vDst)}")
    A(f"v_lshlrev_b32 {v(vT3)}, 8, {v(vT2)}")
    A(f"v_lshlrev_b32 {v(vT2)}, 7, {v(vT2)}")
    A(f"v_cmp_gt_u32 vcc, 4, {v(vT1)}")
    A("s_nop 1")
    A(f"v_cndmask_b32 {v(vT2)}, {v(vT2)}, {v(vT3)}, vcc")
    A(f"v_add_u32 {v(vDst)}, {v(vDst)}, {v(vT2)}")
    A(f"s_lshl_b32 s{sTmp}, s{sMemb}, 1")
    A(f"s_and_b32 s{sTmp2}, s{sWave}, 1")
    A(f"s_add_u32 s{sTmp}, s{sTmp}, s{sTmp2}")
    A(f"s_lshl_b32 s{sTmp}, s{sTmp}, 10")
    A(f"s_lshl_b32 s{sTmp2}, s{sGrp}, 15")
    A(f"s_add_u32 s{sTmp}, s{sTmp}, s{sTmp2}")
    A(f"v_lshlrev_b32 {v(vWarm)}, 4, {v(vLane)}")
    A(f"v_add_u32 {v(vWarm)}, s{sTmp}, {v(vWarm)}")

    A(f"s_lshl_b32 s{sTmp}, s{sGrp}, 9")
    A(f"v_and_b32 {v(vT0)}, 3, {v(vLane)}")
    A(f"v_lshlrev_b32 {v(vT0)}, 7, {v(vT0)}")
    A(f"v_add_u32 {v(vFlag)}, s{sTmp}, {v(vT0)}")
    A(f"v_bfe_u32 {v(vT0)}, {v(vLane)}, 2, 1")
    A(f"v_mul_u32_u24 {v(vT0)}, {CNT_VU - CNT_KVU:#x}, {v(vT0)}")
    A(f"v_add_u32 {v(vFlag)}, {v(vFlag)}, {v(vT0)}")
    A(f"s_lshl_b32 s{sTmp}, s{sH}, 7")
    A(f"v_mov_b32 {v(vSig)}, s{sTmp}")
    A(f"v_mov_b32 {v(vT0)}, {OOB:#x}")
    A(f"v_cmp_eq_u32 vcc, 0, {v(vLane)}")
    A("s_nop 1")
    A(f"v_cndmask_b32 {v(vSig)}, {v(vT0)}, {v(vSig)}, vcc")
    A(f"v_mov_b32 {v(vOne)}, 1")

    A(f"s_add_u32 s{sRCB}, s{sWS}, {WS_RC + 0x1fffff:#x}")
    A(f"s_and_b32 s{sRCB}, s{sRCB}, 0xffe00000")
    A(f"s_sub_u32 s{sRCB}, s{sRCB}, s{sWS}")
    Lnc = A.newlabel("Lncal")
    A(f"s_lshl_b32 s{sTmp}, s{sGrp}, 4")
    A(f"s_add_u32 s{sTmp}, s{sTmp}, s{sMemb}")
    A(f"s_add_u32 s{sTmp}, s{sTmp}, s{sWave}")
    A(f"s_cmp_lg_u32 s{sTmp}, 0")
    A(f"s_cbranch_scc1 {Lnc}")
    A("s_mov_b64 exec, 1")
    A(f"v_mov_b32 {v(vT0)}, 0")
    for c in range(2):
        A(f"s_mov_b32 s{60+c}, 0x7fffffff")
    for it in range(6):
        for c in range(2):
            A(f"s_add_u32 s{sTmp}, s{sRCB}, {RC_PROBE + c*8192:#x}")
            A(f"buffer_store_dword {v(vT0)}, {v(vT0)}, {WSR}, s{sTmp} offen sc1")
            A("s_waitcnt vmcnt(0)")
            A("s_memtime s[62:63]")
            A("s_waitcnt lgkmcnt(0)")
            A(f"buffer_load_dword {v(vT1)}, {v(vT0)}, {WSR}, s{sTmp} offen sc1")
            A("s_waitcnt vmcnt(0)")
            A("s_memtime s[64:65]")
            A("s_waitcnt lgkmcnt(0)")
            A("s_sub_u32 s64, s64, s62")
            A(f"s_min_u32 s{60+c}, s{60+c}, s64")
    A("s_cmp_le_u32 s60, s61")
    A(f"s_cselect_b32 s{sTmp}, {2 if 'badpol' in exp else 1}, {1 if 'badpol' in exp else 2}")
    A(f"v_mov_b32 {v(vT1)}, s{sTmp}")
    A(f"s_mov_b32 s{sTmp}, {WS_CNT + CNT_POL:#x}")
    A(f"buffer_store_dword {v(vT1)}, {v(vT0)}, {WSR}, s{sTmp} offen sc1")
    A("s_mov_b64 exec, -1")
    A.label(Lnc)
    Lpp, Lpd = A.newlabel("Lpp"), A.newlabel("Lppd")
    A(f"v_mov_b32 {v(vT0)}, 0")
    A(f"s_mov_b32 s{sTmp2}, {WS_CNT + CNT_POL:#x}")
    A(f"s_mov_b32 s{sCnt}, 0")
    A.label(Lpp)
    A(f"buffer_load_dword {v(vT1)}, {v(vT0)}, {WSR}, s{sTmp2} offen sc1")
    A("s_waitcnt vmcnt(0)")
    A(f"v_cmp_eq_u32 vcc, 0, {v(vT1)}")
    A(f"s_cbranch_vccz {Lpd}")
    A("s_sleep 4")
    A(f"s_add_u32 s{sCnt}, s{sCnt}, 1")
    A(f"s_cmp_lt_u32 s{sCnt}, {SPIN_MAX}")
    A(f"s_cbranch_scc1 {Lpp}")
    A(f"s_mov_b32 s{sTmp}, 6")
    A(f"s_branch {Lfail}")
    A.label(Lpd)
    A(f"v_cmp_eq_u32 vcc, 2, {v(vT1)}")
    A("s_cmp_lg_u64 vcc, 0")
    A(f"s_cselect_b32 s{sTmp}, 8192, 0")
    A(f"s_add_u32 s{sRCB}, s{sRCB}, s{sTmp}")

    def wait_kvu(srb):
        Lp_ = A.newlabel("Lkf")
        Ld_ = A.newlabel("Lkfd")
        A(f"s_lshl_b32 s{sTmp2}, s{srb}, 12")
        A(f"s_add_u32 s{sTmp2}, s{sTmp2}, {WS_CNT + CNT_KVU:#x}")
        A(f"s_mov_b32 s{sCnt}, 0")
        A.label(Lp_)
        A(f"buffer_load_dword {v(vT0)}, {v(vFlag)}, {WSR}, s{sTmp2} offen sc1")
        A("s_waitcnt vmcnt(0)")
        A(f"v_cmp_eq_u32 vcc, 0, {v(vT0)}")
        A(f"s_cbranch_vccz {Ld_}")
        A("s_sleep 4")
        A(f"s_add_u32 s{sCnt}, s{sCnt}, 1")
        A(f"s_cmp_lt_u32 s{sCnt}, {SPIN_MAX}")
        A(f"s_cbranch_scc1 {Lp_}")
        A(f"s_mov_b32 s{sTmp}, 5")
        A(f"s_branch {Lfail}")
        A.label(Ld_)

    def signal_mem(srb):
        A(f"s_lshl_b32 s{sTmp2}, s{srb}, 12")
        A(f"s_add_u32 s{sTmp2}, s{sTmp2}, {WS_CNT + CNT_MEM:#x}")
        A(f"buffer_atomic_add {v(vOne)}, {v(vSig)}, {WSR}, s{sTmp2} offen")

    A(f"s_mov_b32 s{sStep}, 0")
    rtl()
    if wrole:
        wait_kvu(sStep)
    A(f"s_mov_b32 s{sOffKM}, {WS_KM:#x}")
    A(f"s_mov_b32 s{sOffK}, {WS_KX:#x}")
    A(f"s_mov_b32 s{sOffU}, {WS_U:#x}")

    def k_load(f):
        vo = vK0 if f < 4 else vK1
        return f"buffer_load_dwordx4 {a(aK+f*4,4)}, {v(vo)}, {WSR}, s{sOffK} offen offset:{(f%4)*1024}"

    def u_load(t, dst):
        return f"buffer_load_dwordx4 {a(dst+t*4,4)}, {v(vU if t < 2 else vU2)}, {WSR}, s{sOffU} offen offset:{t*1024}"

    def check_sentinel(regs, tmp):
        regs = list(regs)
        A(f"v_max3_u32 {v(tmp)}, {v(regs[0])}, {v(regs[1])}, {v(regs[2])}")
        rest = regs[3:]
        while rest:
            if len(rest) >= 2:
                A(f"v_max3_u32 {v(tmp)}, {v(tmp)}, {v(rest[0])}, {v(rest[1])}")
                rest = rest[2:]
            else:
                A(f"v_max_u32 {v(tmp)}, {v(tmp)}, {v(rest[0])}")
                rest = []
        A(f"v_cmp_eq_u32 vcc, -1, {v(tmp)}")

    def poll(issue, regs, code):
        Lp_ = A.newlabel("Lpoll")
        Ld_ = A.newlabel("Lpd")
        A(f"s_mov_b32 s{sCnt}, 0")
        A.label(Lp_)
        issue()
        A("s_waitcnt vmcnt(0)")
        check_sentinel(regs, vT0)
        A(f"s_cbranch_vccz {Ld_}")
        A(f"s_add_u32 s{sCnt}, s{sCnt}, 1")
        A(f"s_cmp_lt_u32 s{sCnt}, {SPIN_MAX}")
        A(f"s_cbranch_scc1 {Lp_}")
        A(f"s_mov_b32 s{sTmp}, {code}")
        A(f"s_branch {Lfail}")
        A.label(Ld_)
        if prof:
            r = {4: 97, 1: 98, 3: 100}[code]
            A(f"s_add_u32 s{r}, s{r}, s{sCnt}")

    def store_local(instr):
        L1 = A.newlabel("Lsl")
        L2 = A.newlabel("Lsl")
        A(f"s_cmp_lg_u32 s{sMode}, 0")
        A(f"s_cbranch_scc1 {L1}")
        A(instr)
        A(f"s_branch {L2}")
        A.label(L1)
        A(instr + " sc1")
        A.label(L2)

    for f in range(8):
        A(k_load(f))
    for t in range(3):
        A(u_load(t, aUn))
    if prof:
        for i in range(16):
            A(f"s_mov_b32 s{sPr+i}, 0")
        for i in range(97, 101):
            A(f"s_mov_b32 s{i}, 0")
        A("s_memtime s[86:87]")
        A("s_waitcnt lgkmcnt(0)")

    ring = []
    ring += [f"s_and_b32 s{sTmp}, s{sStep}, 3",
             f"s_add_u32 s{sTmp2}, s{sStep}, 3",
             f"s_and_b32 s{sTmp2}, s{sTmp2}, 3",
             f"s_mul_i32 s{sRA}, s{sTmp}, {32*6144}",
             f"s_add_u32 s{sRA}, s{sRA}, {WS_RA:#x}",
             f"s_mul_i32 s{sRAp}, s{sTmp2}, {32*6144}",
             f"s_add_u32 s{sRAp}, s{sRAp}, {WS_RA:#x}",
             f"s_mul_i32 s{sRC}, s{sTmp}, {RC_SLOT}",
             f"s_add_u32 s{sRC}, s{sRC}, s{sRCB}",
             f"s_add_u32 s{sRCp}, s{sStep}, 2",
             f"s_and_b32 s{sRCp}, s{sRCp}, 3",
             f"s_mul_i32 s{sRCp}, s{sRCp}, {RC_SLOT}",
             f"s_add_u32 s{sRCp}, s{sRCp}, s{sRCB}",
             f"s_mul_i32 s{sCnt}, s{sGrp}, {RC_GRP}",
             f"s_add_u32 s{sRCp}, s{sRCp}, s{sCnt}",
             f"s_add_u32 s{sOffC}, s{sRC}, s{sCnt}",
             f"s_lshr_b32 s{sCnt}, s{sGrp}, 1",
             f"s_mul_i32 s{sCnt}, s{sCnt}, 10240",
             f"s_add_u32 s{sCnt}, s{sCnt}, {WS_RD:#x}",
             f"s_mul_i32 s{sRDp}, s{sTmp2}, {8*10240}",
             f"s_add_u32 s{sRDp}, s{sRDp}, s{sCnt}",
             f"s_add_u32 s{sTmp}, s{sStep}, 1",
             f"s_and_b32 s{sTmp}, s{sTmp}, 3",
             f"s_mul_i32 s{sRD}, s{sTmp}, {8*10240}",
             f"s_add_u32 s{sRD}, s{sRD}, s{sCnt}",
             f"s_add_u32 s{sOffK}, s{sOffK}, {32*8192}",
             f"s_add_u32 s{sOffU}, s{sOffU}, {32*40960}",
             f"s_add_u32 s{sWarm}, s{sOffK}, {WARM*32*8192}",
             f"s_min_u32 s{sWarm}, s{sWarm}, {WS_KX+63*32*8192}"]

    for ins in ring:
        A(ins)
    A(f"buffer_load_dwordx4 {v(M,4)}, {v(Cg)}, s[{sM0}:{sM0+3}], 0 offen")
    A(f"buffer_load_dwordx4 {v(M+4,4)}, {v(Cg)}, s[{sM0}:{sM0+3}], 0 offen offset:128")
    A(f"buffer_load_dwordx4 {v(M+8,4)}, {v(Cg+1)}, s[{sM0}:{sM0+3}], 0 offen")
    A("s_waitcnt vmcnt(0)")
    Lloop = A.newlabel("Lloop")
    A.label(Lloop)
    rtl(True)
    stamp(0)
    Bks = [M, Mr, M + 4, Mr + 4, M + 8]
    fill = [f"v_mov_b32_dpp {v(Mr+i)}, {v(M+i)} row_ror:8 row_mask:0xf bank_mask:0xf" for i in range(8)]
    fill += [f"v_accvgpr_mov_b32 {a(aU+i)}, {a(aUn+i)}" for i in range(12)]
    order = [(ks, t) for ks in (0, 2, 1) for t in range(4)]
    order += [(ks, t) for t in range(4) for ks in (3, 4)]
    for idx, (ks, t) in enumerate(order):
        c = "0" if ks == 0 else v(accA + t * 4, 4)
        A(f"v_mfma_f32_16x16x32_bf16 {v(accA+t*4,4)}, {WA(t,ks)}, {v(Bks[ks],4)}, {c}")
        for _ in range(2):
            if fill:
                A(fill.pop(0))
    assert not fill

    def merge_write(p):
        for i in range(4):
            A(f"v_mov_b32_dpp {v(accA+8*p+i)}, {v(accA+8*p+4+i)} row_ror:8 row_mask:0xf bank_mask:0xc")
        A(f"ds_write_b128 {v(vRAw)}, {v(accA+8*p,4)} offset:{p*1024}")

    def reduce_pub(raddr, pub, T):
        for w in range(4):
            A(f"ds_read_b128 {v(T+w*4,4)}, {v(raddr)} offset:{w*3072}")
        A("s_waitcnt lgkmcnt(2)")
        A(f"v_pk_add_f32 {v(T,2)}, {v(T,2)}, {v(T+4,2)}")
        A(f"v_pk_add_f32 {v(T+2,2)}, {v(T+2,2)}, {v(T+6,2)}")
        A("s_waitcnt lgkmcnt(0)")
        A(f"v_pk_add_f32 {v(T+8,2)}, {v(T+8,2)}, {v(T+12,2)}")
        A(f"v_pk_add_f32 {v(T+10,2)}, {v(T+10,2)}, {v(T+14,2)}")
        A(f"v_pk_add_f32 {v(T,2)}, {v(T,2)}, {v(T+8,2)}")
        A(f"v_pk_add_f32 {v(T+2,2)}, {v(T+2,2)}, {v(T+10,2)}")
        A(f"v_cvt_pk_bf16_f32 {v(pub)}, {v(T)}, {v(T+1)}")
        A(f"v_cvt_pk_bf16_f32 {v(pub+1)}, {v(T+2)}, {v(T+3)}")
        A(f"v_min_u32 {v(pub)}, 0xfffffffe, {v(pub)}")
        A(f"v_min_u32 {v(pub+1)}, 0xfffffffe, {v(pub+1)}")
    A.nop(4)
    merge_write(0)
    merge_write(1)
    stamp(6)
    A("s_waitcnt lgkmcnt(0)")
    stamp(7)
    A("s_barrier")
    stamp(8)
    reduce_pub(vRAr, vPub, Cg)
    store_local(f"buffer_store_dwordx2 {v(vPub,2)}, {v(vAst)}, {WSR}, s{sRA} offen")
    stamp(1)
    def issue_q():
        A(f"buffer_load_dwordx4 {v(Q,4)}, {v(vQo)}, {WSR}, s{sRA} offen sc1")
        A(f"buffer_load_dwordx4 {v(Q+4,4)}, {v(vQo)}, {WSR}, s{sRA} offen offset:1024 sc1")

    def issue_k():
        for c in range(2):
            A(f"buffer_load_dwordx4 {v(KM+c*8,4)}, {v(vKo)}, {WSR}, s{sRA} offen offset:{c*1024} sc1")

    def issue_v():
        for c in range(2):
            A(f"buffer_load_dwordx4 {v(VM+c*8,4)}, {v(vKo)}, {WSR}, s{sRA} offen offset:{2048+c*1024} sc1")
    for ks in range(5):
        for t in (4, 5):
            c = "0" if ks == 0 else v(accA + t * 4, 4)
            A(f"v_mfma_f32_16x16x32_bf16 {v(accA+t*4,4)}, {WA(t,ks)}, {v(Bks[ks],4)}, {c}")
    A.nop(8)
    merge_write(2)
    if EARLY == 1:
        issue_q()
        issue_k()
    A("s_waitcnt lgkmcnt(0)")
    A("s_barrier")
    if EARLY == 2:
        issue_q()
        issue_k()
    reduce_pub(vRAr2, vPub2, Cg)
    A(f"s_cmp_eq_u32 s{sStep}, {nsteps-1}")
    Lfin = A.newlabel("Lfin")
    A(f"s_cbranch_scc1 {Lfin}")
    store_local(f"buffer_store_dwordx2 {v(vPub2,2)}, {v(vAst2)}, {WSR}, s{sRA} offen")

    if ADELAY:
        A(f"s_sleep {ADELAY}")
    Lp_, Ld_ = A.newlabel("Lpa"), A.newlabel("Lpad")
    A(f"s_mov_b32 s{sCnt}, 0")
    if EARLY:
        A("s_waitcnt vmcnt(3)")
        check_sentinel(range(Q, Q + 8), vT0)
        A(f"s_cbranch_vccz {Ld_}")
    A.label(Lp_)
    issue_q()
    issue_k()
    A("s_waitcnt vmcnt(2)")
    check_sentinel(range(Q, Q + 8), vT0)
    A(f"s_cbranch_vccz {Ld_}")
    A(f"s_add_u32 s{sCnt}, s{sCnt}, 1")
    A(f"s_cmp_lt_u32 s{sCnt}, {SPIN_MAX}")
    A(f"s_cbranch_scc1 {Lp_}")
    A(f"s_mov_b32 s{sTmp}, 1")
    A(f"s_branch {Lfail}")
    A.label(Ld_)
    if prof:
        A(f"s_add_u32 s98, s98, s{sCnt}")
    stamp(2)
    Qks = [Q, Qr, Q + 4, Qr + 4]
    A(f"v_mfma_f32_16x16x32_bf16 {v(acc1,4)}, {a(aK+0,4)}, {v(Q,4)}, 0")
    for i in range(4):
        A(f"v_mov_b32_dpp {v(Qr+i)}, {v(Q+i)} row_ror:8 row_mask:0xf bank_mask:0xf")
    A(f"v_mfma_f32_16x16x32_bf16 {v(acc2,4)}, {a(aK+16,4)}, {v(Q,4)}, 0")
    for i in range(4, 8):
        A(f"v_mov_b32_dpp {v(Qr+i)}, {v(Q+i)} row_ror:8 row_mask:0xf bank_mask:0xf")
    Lkv = A.newlabel("Lkv")
    Lkvd = A.newlabel("Lkvd")
    A(f"s_mov_b32 s{sCnt}, 0")
    A.label(Lkv)
    A("s_waitcnt vmcnt(0)")
    check_sentinel(list(range(KM, KM + 4)) + list(range(KM + 8, KM + 12)), vT0)
    A(f"s_cbranch_vccz {Lkvd}")
    issue_k()
    A(f"s_add_u32 s{sCnt}, s{sCnt}, 1")
    A(f"s_cmp_lt_u32 s{sCnt}, {SPIN_MAX}")
    A(f"s_cbranch_scc1 {Lkv}")
    A(f"s_mov_b32 s{sTmp}, 2")
    A(f"s_branch {Lfail}")
    A.label(Lkvd)
    A(f"v_mfma_f32_16x16x32_bf16 {v(acc0,4)}, {v(KM,4)}, {v(Qks[0],4)}, 0")
    for i in range(4):
        A(f"v_mov_b32_dpp {v(KM+4+i)}, {v(KM+i)} row_ror:8 row_mask:0xf bank_mask:0xf")
    A(f"v_mfma_f32_16x16x32_bf16 {v(acc1,4)}, {a(aK+8,4)}, {v(Qks[2],4)}, {v(acc1,4)}")
    A(f"v_mfma_f32_16x16x32_bf16 {v(acc2,4)}, {a(aK+24,4)}, {v(Qks[2],4)}, {v(acc2,4)}")
    A(f"v_mfma_f32_16x16x32_bf16 {v(acc0,4)}, {v(KM+8,4)}, {v(Qks[2],4)}, {v(acc0,4)}")
    for i in range(4):
        A(f"v_mov_b32_dpp {v(KM+12+i)}, {v(KM+8+i)} row_ror:8 row_mask:0xf bank_mask:0xf")
    for ks in (1, 3):
        A(f"v_mfma_f32_16x16x32_bf16 {v(acc1,4)}, {a(aK+ks*4,4)}, {v(Qks[ks],4)}, {v(acc1,4)}")
        A(f"v_mfma_f32_16x16x32_bf16 {v(acc2,4)}, {a(aK+16+ks*4,4)}, {v(Qks[ks],4)}, {v(acc2,4)}")
        A(f"v_mfma_f32_16x16x32_bf16 {v(acc0,4)}, {v(KM+ks*4,4)}, {v(Qks[ks],4)}, {v(acc0,4)}")
    issue_v()
    A.nop(5)
    stamp(9)
    S = [acc1 + i for i in range(4)] + [acc2 + i for i in range(4)] + [acc0 + i for i in range(4)]
    sm = [f"v_max3_f32 {v(vMx)}, {v(S[0])}, {v(S[1])}, {v(S[2])}",
          f"v_max3_f32 {v(vMx)}, {v(vMx)}, {v(S[3])}, {v(S[4])}",
          f"v_max3_f32 {v(vMx)}, {v(vMx)}, {v(S[5])}, {v(S[6])}"]
    for i in range(4):
        sm.append(f"v_cndmask_b32 {v(acc0+i)}, {v(vNinf)}, {v(acc0+i)}, s[{sMaskG}:{sMaskG+1}]")
    sm += [f"v_max3_f32 {v(vMx)}, {v(vMx)}, {v(S[7])}, {v(S[8])}",
           f"v_max3_f32 {v(vMx)}, {v(vMx)}, {v(S[9])}, {v(S[10])}",
           f"v_max_f32 {v(vMx)}, {v(vMx)}, {v(S[11])}",
           f"v_mov_b32 {v(vMx2)}, {v(vMx)}",
           "s_nop 1",
           f"v_permlane16_swap_b32 {v(vMx)}, {v(vMx2)}",
           "s_nop 0",
           f"v_max_f32 {v(vMx)}, {v(vMx)}, {v(vMx2)}",
           f"v_mov_b32 {v(vMx2)}, {v(vMx)}",
           "s_nop 1",
           f"v_permlane32_swap_b32 {v(vMx)}, {v(vMx2)}",
           "s_nop 0",
           f"v_max_f32 {v(vMx)}, {v(vMx)}, {v(vMx2)}",
           f"v_mul_f32 {v(vMx)}, s{sC}, {v(vMx)}"]
    for r in S:
        sm.append(f"v_fma_f32 {v(r)}, {v(r)}, s{sC}, -{v(vMx)}")
    for r in S[:VSPLIT]:
        sm.append(f"v_exp_f32 {v(r)}, {v(r)}")
    for ins in sm:
        A(ins)
    Lv, Lvd = A.newlabel("Lv"), A.newlabel("Lvd")
    A(f"s_mov_b32 s{sCnt}, 0")
    A.label(Lv)
    A("s_waitcnt vmcnt(0)")
    check_sentinel(list(range(VM, VM + 4)) + list(range(VM + 8, VM + 12)), vT0)
    A(f"s_cbranch_vccz {Lvd}")
    issue_v()
    A(f"s_add_u32 s{sCnt}, s{sCnt}, 1")
    A(f"s_cmp_lt_u32 s{sCnt}, {SPIN_MAX}")
    A(f"s_cbranch_scc1 {Lv}")
    A(f"s_mov_b32 s{sTmp}, 2")
    A(f"s_branch {Lfail}")
    A.label(Lvd)
    if prof:
        A(f"s_add_u32 s99, s99, s{sCnt}")
    um = []
    for s_ in (0, 2, 1, 3):
        for t in range(3):
            c = "0" if s_ == 0 else v(accU + t * 4, 4)
            um.append(f"v_mfma_f32_16x16x32_bf16 {v(accU+t*4,4)}, {v(VM+s_*4,4)}, {WC(t,s_)}, {c}")
    sm = [f"v_mov_b32_dpp {v(VM+4+i)}, {v(VM+i)} row_ror:8 row_mask:0xf bank_mask:0xf" for i in range(4)]
    sm += [f"v_mov_b32_dpp {v(VM+12+i)}, {v(VM+8+i)} row_ror:8 row_mask:0xf bank_mask:0xf" for i in range(4)]
    for r in S[VSPLIT:]:
        sm.append(f"v_exp_f32 {v(r)}, {v(r)}")
    sm.append("s_nop 0")
    for i in range(4):
        sm.append(f"v_cvt_pk_bf16_f32 {v(P0+i)}, {v(S[2*i])}, {v(S[2*i+1])}")
    sm.append(f"v_cvt_pk_bf16_f32 {v(Blo)}, {v(S[8])}, {v(S[9])}")
    sm.append(f"v_cvt_pk_bf16_f32 {v(Blo+1)}, {v(S[10])}, {v(S[11])}")
    for idx in range(max(len(sm) // 2 + 1, len(um))):
        if um:
            A(um.pop(0))
        for _ in range(2):
            if sm:
                A(sm.pop(0))
    assert not um and not sm
    pre = [u_load(t, aUn) for t in range(3)] + [k_load(f) for f in range(8)]
    if "nokv" in exp:
        pre = []
    stamp(3)
    def pl(n=1):
        for _ in range(n):
            if pre:
                A(pre.pop(0))
    A(f"v_mfma_f32_16x16x32_bf16 {v(accZ,4)}, {v(vOnes,4)}, {v(P0,4)}, 0")
    for t in range(3):
        A(f"v_mfma_f32_16x16x32_bf16 {v(accC+t*4,4)}, {a(aU+t*4,4)}, {v(P0,4)}, 0")
        pl()
    A(f"v_mfma_f32_16x16x16_bf16 {v(accZ,4)}, {v(vOnes,2)}, {v(Blo,2)}, {v(accZ,4)}")
    pl(2)
    for t in range(3):
        A(f"v_cvt_pk_bf16_f32 {v(UA+t*2)}, {v(accU+t*4)}, {v(accU+t*4+1)}")
        A(f"v_cvt_pk_bf16_f32 {v(UA+t*2+1)}, {v(accU+t*4+2)}, {v(accU+t*4+3)}")
    pl(1)
    A(f"v_rcp_f32 {v(vRz)}, {v(accZ)}")
    for t in range(3):
        A(f"v_mfma_f32_16x16x16_bf16 {v(accC+t*4,4)}, {v(UA+t*2,2)}, {v(Blo,2)}, {v(accC+t*4,4)}")
    A(f"v_mov_b32 {v(vRz+1)}, {v(vRz)}")
    pl(5)
    A.nop(1)
    stamp(10)
    for t in range(3):
        A(f"v_pk_mul_f32 {v(accC+t*4,2)}, {v(accC+t*4,2)}, {v(vRz,2)}")
        A(f"v_pk_mul_f32 {v(accC+t*4+2,2)}, {v(accC+t*4+2,2)}, {v(vRz,2)}")
        A(f"ds_write_b128 {v(vRCw)}, {v(accC+t*4,4)} offset:{t*1024}")
    assert not pre
    A("s_waitcnt lgkmcnt(0)")
    stamp(11)
    A("s_barrier")
    stamp(12)
    A("s_mov_b32 exec_hi, 0xff")
    for w in range(4):
        A(f"ds_read_b128 {v(Cg+w*4,4)}, {v(vRCr)} offset:{w*3072}")
    A("s_waitcnt lgkmcnt(2)")
    for i in range(4):
        A(f"v_add_f32 {v(Cg+i)}, {v(Cg+i)}, {v(Cg+4+i)}")
    A("s_waitcnt lgkmcnt(0)")
    for i in range(4):
        A(f"v_add_f32 {v(Cg+8+i)}, {v(Cg+8+i)}, {v(Cg+12+i)}")
    for i in range(4):
        A(f"v_add_f32 {v(Cg+i)}, {v(Cg+i)}, {v(Cg+8+i)}")

    def persist(final=False):
        A("s_mov_b64 exec, -1")
        A(f"buffer_store_dwordx2 {v(vPub,2)}, {v(vKMst)}, {WSR}, s{sOffKM} offen" + (" sc1" if wrole else ""))
        A(f"buffer_store_dwordx2 {v(vPub2,2)}, {v(vVMst)}, {WSR}, s{sOffKM} offen" + (" sc1" if wrole else ""))
        if wrole and not final:
            Lns = A.newlabel("Lns")
            A(f"s_and_b32 s{sTmp}, s{sStep}, 3")
            A(f"s_cmp_lg_u32 s{sTmp}, 0")
            A(f"s_cbranch_scc1 {Lns}")
            A(f"s_cmp_eq_u32 s{sStep}, 0")
            A(f"s_cbranch_scc1 {Lns}")
            A(f"s_lshr_b32 s{sTmp}, s{sStep}, 2")
            A(f"s_sub_u32 s{sTmp}, s{sTmp}, 1")
            signal_mem(sTmp)
            A.label(Lns)
            Lns2 = A.newlabel("Lns")
            A(f"s_cmp_lg_u32 s{sStep}, 62")
            A(f"s_cbranch_scc1 {Lns2}")
            A(f"s_mov_b32 s{sTmp}, 16")
            signal_mem(sTmp)
            A.label(Lns2)

    def background(storer):
        persist()
        store_local(f"buffer_store_dwordx2 {v(vSent,2)}, {v(vAst)}, {WSR}, s{sRAp} offen"); store_local(f"buffer_store_dwordx2 {v(vSent,2)}, {v(vAst2)}, {WSR}, s{sRAp} offen")
        A("s_mov_b32 exec_hi, 0xff")
        if storer:
            for kc in range(KC):
                A(f"buffer_store_dwordx4 {v(vSent,4)}, {v(vCst)}, {WSR}, s{sRCp} offen sc1")
                if kc < KC - 1:
                    A(f"s_add_u32 s{sRCp}, s{sRCp}, {8*20480}")
            if "nokv" not in exp:
                A("s_mov_b64 exec, -1")
                A(f"buffer_load_dwordx4 {v(vDummy,4)}, {v(vWarm)}, {WSR}, s{sWarm} offen")
        else:
            store_local(f"buffer_store_dwordx2 {v(vSent,2)}, {v(vDst)}, {WSR}, s{sRDp} offen")

    Lpw = A.newlabel("Lpw")
    Lcdone = A.newlabel("Lcdone")
    A(f"s_cmp_ge_u32 s{sWave}, 2")
    A(f"s_cbranch_scc1 {Lpw}")
    for i in range(4):
        A(f"v_min_u32 {v(Cg+i)}, 0xfffffffe, {v(Cg+i)}")
    for kc in range(KC):
        A(f"buffer_store_dwordx4 {v(Cg,4)}, {v(vCst)}, {WSR}, s{sOffC} offen sc1")
        if kc < KC - 1:
            A(f"s_add_u32 s{sOffC}, s{sOffC}, {8*20480}")
    stamp(4)
    background(True)
    if DSLEEP:
        A(f"s_sleep {DSLEEP}")
    A(f"s_branch {Lcdone}")
    A.label(Lpw)
    stamp(4)
    Lw3 = A.newlabel("Lw3")
    A(f"s_cmp_eq_u32 s{sWave}, 3")
    A(f"s_cbranch_scc1 {Lw3}")
    background(False)
    A(f"s_mov_b32 s{sEnd}, s{sRC}")

    def advance():
        A(f"s_add_u32 s{sStep}, s{sStep}, 1")
        A(f"s_add_u32 s{sOffKM}, s{sOffKM}, {32*2048}")
        A(f"s_mov_b32 s{sOffD}, s{sRD}")
        for ins in ring:
            A(ins)
    advance()
    if CDELAY:
        A(f"s_sleep {CDELAY}")

    def issue_c():
        for r in range(1, 8):
            A(f"buffer_load_dwordx4 {v(CR+(r-1)*4,4)}, {v(vCg+r)}, {WSR}, s{sEnd} offen sc1")
    poll(issue_c, range(CR, CR + 28), 3)
    stamp(5)
    c = CR
    for i in (0, 2):
        A(f"v_pk_add_f32 {v(Cg+i,2)}, {v(Cg+i,2)}, {v(c+i,2)}")
        A(f"v_pk_add_f32 {v(Cg+4+i,2)}, {v(c+4+i,2)}, {v(c+8+i,2)}")
        A(f"v_pk_add_f32 {v(Cg+8+i,2)}, {v(c+12+i,2)}, {v(c+16+i,2)}")
        A(f"v_pk_add_f32 {v(Cg+12+i,2)}, {v(c+20+i,2)}, {v(c+24+i,2)}")
    for i in (0, 2):
        A(f"v_pk_add_f32 {v(Cg+i,2)}, {v(Cg+i,2)}, {v(Cg+4+i,2)}")
        A(f"v_pk_add_f32 {v(Cg+8+i,2)}, {v(Cg+8+i,2)}, {v(Cg+12+i,2)}")
    for i in (0, 2):
        A(f"v_pk_add_f32 {v(Cg+i,2)}, {v(Cg+i,2)}, {v(Cg+8+i,2)}")
    A(f"v_cvt_pk_bf16_f32 {v(Cg+4)}, {v(Cg)}, {v(Cg+1)}")
    A(f"v_cvt_pk_bf16_f32 {v(Cg+5)}, {v(Cg+2)}, {v(Cg+3)}")
    A(f"v_min_u32 {v(Cg+4)}, 0xfffffffe, {v(Cg+4)}")
    A(f"v_min_u32 {v(Cg+5)}, 0xfffffffe, {v(Cg+5)}")
    store_local(f"buffer_store_dwordx2 {v(Cg+4,2)}, {v(vDst)}, {WSR}, s{sOffD} offen")
    A("s_mov_b64 exec, -1")
    Ldp = A.newlabel("Ldp")
    A(f"s_branch {Ldp}")
    A.label(Lw3)
    persist()
    store_local(f"buffer_store_dwordx2 {v(vSent,2)}, {v(vAst)}, {WSR}, s{sRAp} offen"); store_local(f"buffer_store_dwordx2 {v(vSent,2)}, {v(vAst2)}, {WSR}, s{sRAp} offen")
    Lnf = A.newlabel("Lnf")
    if wrole:
        A("s_mov_b64 exec, -1")
        A(f"s_and_b32 s{sTmp}, s{sStep}, 3")
        A(f"s_cmp_lg_u32 s{sTmp}, 1")
        A(f"s_cbranch_scc1 {Lnf}")
        A(f"s_add_u32 s{sEnd}, s{sStep}, 3")
        A(f"s_lshr_b32 s{sEnd}, s{sEnd}, 2")
        A(f"s_cmp_gt_u32 s{sEnd}, 15")
        A(f"s_cbranch_scc1 {Lnf}")
        wait_kvu(sEnd)
        A(f"s_branch {Lcdone}")
    A.label(Lnf)
    if DSLEEP:
        A(f"s_sleep {DSLEEP}")
    A.label(Lcdone)
    A("s_mov_b64 exec, -1")
    advance()
    A.label(Ldp)
    stamp(13)

    if PDELAY:
        Lpd = A.newlabel("Lpdl")
        A(f"s_cmp_lg_u32 s{sWave}, 2")
        A(f"s_cbranch_scc1 {Lpd}")
        A(f"s_sleep {PDELAY}")
        A.label(Lpd)

    def issue_d():
        A(f"buffer_load_dwordx4 {v(M,4)}, {v(vD0)}, {WSR}, s{sOffD} offen sc1")
        A(f"buffer_load_dwordx4 {v(M+4,4)}, {v(vD0)}, {WSR}, s{sOffD} offen offset:1024 sc1")
        A(f"buffer_load_dwordx4 {v(M+8,4)}, {v(vD2)}, {WSR}, s{sOffD} offen sc1")
    poll(issue_d, range(M, M + 12), 4)
    A(f"s_branch {Lloop}")

    A.label(Lfin)
    persist(True)
    A("s_mov_b64 exec, -1")
    rtl()
    if wrole:
        A("s_waitcnt vmcnt(0)")
        A(f"s_mov_b32 s{sTmp}, 15")
        signal_mem(sTmp)
    if prof:
        A(f"s_lshl_b32 s{sTmp}, s{sGrp}, 4")
        A(f"s_add_u32 s{sTmp}, s{sTmp}, s{sMemb}")
        A(f"s_lshl_b32 s{sTmp}, s{sTmp}, 2")
        A(f"s_add_u32 s{sTmp}, s{sTmp}, s{sWave}")
        A(f"s_lshl_b32 s{sTmp}, s{sTmp}, 6")
        A(f"s_add_u32 s{sTmp}, s{sTmp}, {WS_PROF:#x}")
        A("s_mov_b64 exec, 1")
        A(f"s_lshl_b32 s97, s97, 16")
        A(f"s_or_b32 s{sPr+14}, s97, s98")
        A(f"s_lshl_b32 s99, s99, 16")
        A(f"s_or_b32 s{sPr+15}, s99, s100")
        for i in range(16):
            A(f"v_mov_b32 {v(vT0)}, s{sPr+i}")
            A(f"v_mov_b32 {v(vT1)}, {i*4}")
            A(f"buffer_store_dword {v(vT0)}, {v(vT1)}, {WSR}, s{sTmp} offen")
    A(f"s_branch {Lend}")
    A.label(Lfail)
    A("s_mov_b64 exec, 1")
    A(f"v_mov_b32 {v(vT0)}, s{sTmp}")
    A(f"v_mov_b32 {v(vT1)}, 0")
    A(f"v_or_b32 {v(vT0)}, 0x100, {v(vT0)}")
    A(f"buffer_store_dword {v(vT0)}, {v(vT1)}, s[{sDBG}:{sDBG+3}], 0 offen")
    A.label(Lend)
    A("s_endpgm")
    if wrole:
        A.label(Lw)
        A(f"s_sub_u32 s54, s{sCnt}, 128")
        wrole(A, 54, confirm)
        A("s_endpgm")
    return kernel_desc(name, 512, 102, 256)
```

```python
import struct
from asmlib import *
from layout import *


def f32bits(x):
    return struct.unpack("<I", struct.pack("<f", x))[0]


class Q:
    def __init__(self, A, name, maxn):
        self.A, self.name, self.maxn = A, name, maxn
        self.q = []

    def issue(self, tag):
        self.q.append(tag)

    def need(self, tag):
        idx = max((i for i, t in enumerate(self.q) if t == tag), default=-1)
        if idx < 0:
            return
        n = len(self.q) - 1 - idx
        self.A(f"s_waitcnt {self.name}({min(n, self.maxn)})")
        self.q = self.q[idx + 1:] if n <= self.maxn else self.q[len(self.q) - self.maxn:]

    def drain(self):
        self.A(f"s_waitcnt {self.name}(0)")
        self.q = []


sWS, sXS, sWA, sWB, sWO = 4, 8, 12, 16, 20
sRB, sH, sWave, sIt, sTmp, sTmp2, sKoffW, sKoffX, sOut = 40, 41, 42, 43, 44, 45, 46, 47, 48
STAGE = 32768
LDS_MAX = 163840
EXPF = set()


def srd(b):
    return f"s[{b}:{b+3}]"


def w_prologue(A, Lend, ntasks):
    A(f"s_cmp_ge_u32 s2, {ntasks}")
    A(f"s_cbranch_scc1 {Lend}")
    A("s_load_dwordx4 s[24:27], s[0:1], 24")
    A("s_load_dwordx8 s[28:35], s[0:1], 40")
    A("s_load_dwordx2 s[36:37], s[0:1], 96")
    A("s_load_dwordx2 s[38:39], s[0:1], 80")
    A("v_and_b32 v1, 63, v0")
    A("v_lshrrev_b32 v5, 6, v0")
    A("v_and_b32 v2, 15, v0")
    A(f"v_readfirstlane_b32 s{sWave}, v5")
    A("v_bfe_u32 v3, v0, 4, 2")
    A("s_waitcnt lgkmcnt(0)")


vLane, vN, vG = 1, 2, 3


def proj_gemm(A, NM, wsrds, acc_of, R, vq, RTW=4, swap=False, niter=5, w_pitch=8192, w_base=None,
              xsrd=None, x_base=0, x_pitch=1280, x_mode="std", w_wrap=None, NST=4):
    xsrd = sXS if xsrd is None else xsrd
    w_base = w_base or [0] * NM
    T0, T1, T2 = R.alloc(), R.alloc(), R.alloc()
    vWoff, vXoff = R.alloc(), R.alloc()
    SG = NM * 8192 + 4 * RTW * 1024
    NSET = (NST * SG + 65535) // 65536
    assert NST * SG <= LDS_MAX
    nsteps = niter * 4
    UNR = NST if NST % 2 == 0 else 2 * NST
    assert nsteps % UNR == 0
    vWa = [R.alloc(8) for _ in range(NSET)]
    vXa = [R.alloc() for _ in range(NSET)]
    XF = [R.alloc(4 * RTW), R.alloc(4 * RTW)]
    WF = R.alloc(16)
    NT = NM * 8
    XB = NM * 8192
    A(f"s_and_b32 s{sTmp}, s{sWave}, 1")
    A(f"s_lshl_b32 s{sTmp}, s{sTmp}, 2")
    A(f"v_or_b32 {v(T0)}, s{sTmp}, {v(vG)}")
    A(f"v_lshrrev_b32 {v(T1)}, 1, {v(vN)}")
    A(f"v_xor_b32 {v(T1)}, {v(T1)}, {v(T0)}")
    A(f"v_and_b32 {v(T2)}, 1, {v(vN)}")
    A(f"v_lshl_add_u32 {v(T1)}, {v(T1)}, 1, {v(T2)}")
    A(f"v_lshlrev_b32 {v(T1)}, 4, {v(T1)}")
    A(f"v_mul_u32_u24 {v(T2)}, {w_pitch}, {v(vG)}")
    A(f"v_add_u32 {v(T1)}, {v(T1)}, {v(T2)}")
    A(f"s_mul_i32 s{sTmp}, s{sWave}, {8*w_pitch}")
    A(f"s_lshl_b32 s{sTmp2}, s{sH}, 8")
    A(f"s_add_u32 s{sTmp}, s{sTmp}, s{sTmp2}")
    A(f"v_add_u32 {v(vWoff)}, s{sTmp}, {v(T1)}")
    if x_mode == "std":
        rowstride, wavestride = x_pitch, RTW * 16 * x_pitch
        e_off = [e * 16 * x_pitch for e in range(RTW)]
    else:
        rowstride, wavestride = 64 * x_pitch, 2 * x_pitch
        e_off = [(e % 2) * 16 * 64 * x_pitch + (e // 2) * x_pitch for e in range(4)]
    A(f"v_lshrrev_b32 {v(T0)}, 2, {v(vLane)}")
    A(f"v_mul_u32_u24 {v(T0)}, {rowstride}, {v(T0)}")
    A(f"v_and_b32 {v(T1)}, 3, {v(vLane)}")
    A(f"v_xor_b32 {v(T1)}, {v(T1)}, {v(vG)}")
    A(f"v_lshl_add_u32 {v(T0)}, {v(T1)}, 4, {v(T0)}")
    A(f"s_lshl_b32 s{sTmp}, s{sRB}, 2")
    A(f"s_add_u32 s{sTmp}, s{sTmp}, s{sWave}")
    A(f"s_mul_i32 s{sTmp}, s{sTmp}, {wavestride}")
    A(f"v_add_u32 {v(vXoff)}, s{sTmp}, {v(T0)}")
    A(f"v_lshrrev_b32 {v(T0)}, 2, {v(vN)}")
    A(f"v_and_b32 {v(T1)}, 1, {v(vG)}")
    A(f"v_lshl_or_b32 {v(T1)}, {v(T1)}, 2, {v(T0)}")
    A(f"v_lshl_add_u32 {v(T0)}, {v(vG)}, 3, {v(T0)}")
    A(f"v_lshlrev_b32 {v(T0)}, 8, {v(T0)}")
    A(f"v_and_b32 {v(T2)}, 3, {v(vN)}")
    A(f"v_lshl_add_u32 {v(T0)}, {v(T2)}, 3, {v(T0)}")
    for t in range(8):
        A(f"v_xor_b32 {v(T2)}, {t}, {v(T1)}")
        A(f"v_lshl_add_u32 {v(vWa[0]+t)}, {v(T2)}, 5, {v(T0)}")
        for k in range(1, NSET):
            A(f"v_add_u32 {v(vWa[k]+t)}, {k*0x10000:#x}, {v(vWa[0]+t)}")
    A(f"v_lshrrev_b32 {v(T0)}, 2, {v(vN)}")
    A(f"v_xor_b32 {v(T0)}, {v(T0)}, {v(vG)}")
    A(f"v_lshlrev_b32 {v(T0)}, 4, {v(T0)}")
    A(f"v_lshl_add_u32 {v(T0)}, {v(vN)}, 6, {v(T0)}")
    A(f"s_mul_i32 s{sTmp}, s{sWave}, {RTW*1024}")
    A(f"s_add_u32 s{sTmp}, s{sTmp}, {XB}")
    A(f"v_add_u32 {v(vXa[0])}, s{sTmp}, {v(T0)}")
    for k in range(1, NSET):
        A(f"v_add_u32 {v(vXa[k])}, {k*0x10000:#x}, {v(vXa[0])}")
    sM0W, sM0X, sKW2, sKc = 50, 51, 52, 53
    A(f"s_lshl_b32 s{sM0W}, s{sWave}, 11")
    A(f"s_mov_b32 s{sM0X}, s{sTmp}")
    A(f"s_mov_b32 s{sKoffW}, 0")
    A(f"s_mov_b32 s{sKoffX}, {x_base:#x}")
    A(f"s_mov_b32 s{sKc}, 0")

    def dma_list(st):
        g = []
        for m in range(NM):
            for e in range(2):
                g.append([f"s_add_u32 m0, s{sM0W}, {st*SG + m*8192 + e*1024}",
                          f"s_add_u32 s{sKW2}, s{sKoffW}, {w_base[m] + e*4*w_pitch:#x}",
                          f"buffer_load_dwordx4 {v(vWoff)}, {srd(wsrds[m])}, s{sKW2} offen lds"])
        for e in range(RTW):
            g.append([f"s_add_u32 m0, s{sM0X}, {st*SG + e*1024}",
                      f"s_add_u32 s{sKW2}, s{sKoffX}, {e_off[e]}",
                      f"buffer_load_dwordx4 {v(vXoff)}, {srd(xsrd)}, s{sKW2} offen lds"])
        last = [f"s_add_u32 s{sKoffW}, s{sKoffW}, {32*w_pitch}", f"s_add_u32 s{sKoffX}, s{sKoffX}, 64"]
        if w_wrap is not None:
            last += [f"s_add_u32 s{sKc}, s{sKc}, 1", f"s_cmp_eq_u32 s{sKc}, {w_wrap}",
                     f"s_cselect_b32 s{sKoffW}, 0, s{sKoffW}"]
        g.append(last)
        return g
    D = 2 * NM + RTW
    lq = Q(A, "lgkmcnt", 15)

    def rd_w(st, tile):
        m, t = tile // 8, tile % 8
        r = WF + (tile % 4) * 4
        for h2 in range(2):
            off = st * SG + m * 8192 + h2 * 1024
            if "nolds" in EXPF:
                continue
            A(f"ds_read_b64_tr_b16 {v(r+2*h2,2)}, {v(vWa[off >> 16]+t)} offset:{off & 0xffff}")
        lq.issue(("w", tile % 4))
        lq.issue(("w", tile % 4))

    def rd_x(st, par, rt):
        off = st * SG + rt * 1024
        A(f"ds_read_b128 {v(XF[par]+rt*4,4)}, {v(vXa[off >> 16])} offset:{off & 0xffff}")
        lq.issue(("x", par))

    for st in range(NST - 1):
        for grp in dma_list(st):
            for ins in grp:
                A(ins)
    seen = set()
    for m in range(NM):
        for t in range(8):
            for rt in range(RTW):
                reg = acc_of(m, t, rt)
                if reg in seen:
                    continue
                seen.add(reg)
                base = int(reg[2:reg.index(":")])
                for i in range(4):
                    A(f"v_accvgpr_write_b32 a{base+i}, 0" if reg[0] == "a" else f"v_mov_b32 v{base+i}, 0")
    A(f"s_waitcnt vmcnt({min(63, (NST-2)*D)})")
    A("s_barrier")
    for rt in range(RTW):
        rd_x(0, 0, rt)
    rd_w(0, 0)
    rd_w(0, 1)
    A(f"s_mov_b32 s{sIt}, 0")
    Lloop = A.newlabel("Lpg")
    A.label(Lloop)
    q_at_entry = list(lq.q)
    for stp in range(UNR):
        st = stp % NST
        par = stp % 2
        dmas = []
        for tile in range(NT):
            if tile == NT // 2:
                A(f"s_waitcnt vmcnt({min(63, (NST-3)*D)})")
                A("s_barrier")
                dmas = dma_list((st + NST - 1) % NST) if "nodma" not in EXPF else []
            nt = tile + 2
            if nt < NT:
                rd_w(st, nt)
            else:
                if nt == NT:
                    for rt in range(RTW):
                        rd_x((st + 1) % NST, 1 - par, rt)
                rd_w((st + 1) % NST, nt - NT)
            if tile == 0:
                lq.need(("x", par))
            lq.need(("w", tile % 4))
            m, t = tile // 8, tile % 8
            for rt in range(RTW):
                acc = acc_of(m, t, rt)
                wf, xf = v(WF + (tile % 4) * 4, 4), v(XF[par] + rt * 4, 4)
                if swap:
                    A(f"v_mfma_f32_16x16x32_bf16 {acc}, {xf}, {wf}, {acc}")
                else:
                    A(f"v_mfma_f32_16x16x32_bf16 {acc}, {wf}, {xf}, {acc}")
                if dmas and rt % 2 == 1 and (NM == 1 or rt == 1):
                    for ins in dmas.pop(0):
                        A(ins)
        for grp in dmas:
            for ins in grp:
                A(ins)
    assert [t for t in lq.q] == q_at_entry, (lq.q, q_at_entry)
    A(f"s_add_u32 s{sIt}, s{sIt}, 1")
    A(f"s_cmp_lt_u32 s{sIt}, {nsteps // UNR}")
    A(f"s_cbranch_scc1 {Lloop}")
    A("s_waitcnt vmcnt(0) lgkmcnt(0)")
    A("s_barrier")
    A.nop(4)


def w_srds(A):
    make_srd(A, sWS, 36, WS_BYTES)


def gen_kvu(A, name="kvu_kernel", RTW=4):
    kernel_header(A, name)
    Lend = A.newlabel("Lend")
    w_prologue(A, Lend, 32 * 32 // RTW)
    make_srd(A, sWS, 36, WS_BYTES)
    A(f"s_and_b32 s{sH}, s2, 31")
    A(f"s_lshr_b32 s{sRB}, s2, 5")
    kvu_body(A, RTW, "")
    A.label(Lend)
    A("s_endpgm")
    return kernel_desc(name, 512, 102, 256)


def kvu_body(A, RTW, sc, seg_base=0, tl=lambda: None, u_hook=None, mode="kvu"):
    make_srd(A, sXS, 24, 2048 * 1280)
    make_srd(A, sWA, 30, 640 * 8192)
    make_srd(A, sWB, 32, 640 * 8192)
    make_srd(A, sWO, 34, 4096 * 1280)
    R = RegAlloc(6, 128 if RTW > 4 else 256)
    NSG = RTW // 2

    def acc_idx(m, t, rt):
        return (((1 - m) * 8 + t) * RTW + rt) * 4

    def acc_of(m, t, rt):
        i = acc_idx(m, t, rt)
        return a(i, 4) if i < 256 else v(128 + i - 256, 4)
    vq = Q(A, "vmcnt", 63)
    if mode == "kvu":
        proj_gemm(A, 2, [sWA, sWB], acc_of, R, vq, RTW=RTW, NST=(5 if RTW == 2 else 4), x_base=seg_base * 32 * 1280)
    else:
        mm = 0 if mode == "k" else 1
        proj_gemm(A, 1, [sWA if mm == 0 else sWB], lambda m, t, rt: acc_of(mm, t, rt), R, vq, RTW=RTW, NST=5,
                  x_base=seg_base * 32 * 1280)
    tl()
    R.next = 6
    R.limit = 256
    T0, T1, T2 = R.alloc(), R.alloc(), R.alloc()
    vOo = [R.alloc(), R.alloc()]
    vOa = [R.alloc(8), R.alloc(8)]
    vSt, vUst = R.alloc(), R.alloc()
    TMP = R.alloc(8)
    OF = R.alloc(32)
    assert R.next <= 128
    VA = R.alloc(16 * RTW)
    aU = [R.alloc(4 * RTW), R.alloc(4 * RTW)]
    UO = [R.alloc(4 * NSG), R.alloc(4 * NSG)]
    for par in range(2):
        A(f"v_or_b32 {v(T0)}, {par*4}, {v(vG)}")
        A(f"v_lshrrev_b32 {v(T1)}, 1, {v(vN)}")
        A(f"v_xor_b32 {v(T1)}, {v(T1)}, {v(T0)}")
        A(f"v_and_b32 {v(T2)}, 1, {v(vN)}")
        A(f"v_lshl_add_u32 {v(T1)}, {v(T1)}, 1, {v(T2)}")
        A(f"v_lshlrev_b32 {v(T1)}, 4, {v(T1)}")
        A(f"v_mul_u32_u24 {v(T2)}, 1280, {v(vG)}")
        A(f"v_add_u32 {v(T1)}, {v(T1)}, {v(T2)}")
        A(f"s_lshl_b32 s{sTmp}, s{sH}, 7")
        A(f"s_lshl_b32 s{sTmp2}, s{sWave}, 5")
        A(f"s_add_u32 s{sTmp}, s{sTmp}, s{sTmp2}")
        A(f"s_mul_i32 s{sTmp}, s{sTmp}, 1280")
        A(f"v_add_u32 {v(vOo[par])}, s{sTmp}, {v(T1)}")
    A(f"s_lshl_b32 s50, s{sWave}, 13")

    def dma_wo(ch):
        for e in range(8):
            A(f"s_add_u32 m0, s50, {(ch%4)*STAGE + e*1024}")
            A(f"s_mov_b32 s52, {e*4*1280 + ch*256}")
            A(f"buffer_load_dwordx4 {v(vOo[e%2])}, {srd(sWO)}, s52 offen lds")
            vq.issue(("wo", ch))
    for ch in range(4 if mode != "k" else 0):
        dma_wo(ch)
    A(f"v_lshrrev_b32 {v(T0)}, 2, {v(vN)}")
    A(f"v_lshl_add_u32 {v(T0)}, {v(vG)}, 2, {v(T0)}")
    A(f"v_and_b32 {v(T1)}, 7, {v(T0)}")
    A(f"v_lshlrev_b32 {v(T0)}, 8, {v(T0)}")
    A(f"v_and_b32 {v(T2)}, 3, {v(vN)}")
    A(f"v_lshl_add_u32 {v(T0)}, {v(T2)}, 3, {v(T0)}")
    for t in range(8):
        A(f"v_xor_b32 {v(T2)}, {t}, {v(T1)}")
        A(f"v_lshl_add_u32 {v(vOa[0]+t)}, {v(T2)}, 5, {v(T0)}")
        A(f"v_add_u32 {v(vOa[1]+t)}, 0x10000, {v(vOa[0]+t)}")
    A(f"s_lshl_b32 s{sTmp}, s{sRB}, 2")
    A(f"s_add_u32 s{sTmp}, s{sTmp}, s{sWave}")
    A(f"s_mul_i32 s{sTmp}, s{sTmp}, {NSG*32}")
    A(f"s_add_u32 s{sTmp}, s{sTmp}, s{sH}")
    if seg_base:
        A(f"s_add_u32 s{sTmp}, s{sTmp}, {seg_base*32}")
    A(f"s_lshl_b32 s{sOut}, s{sTmp}, 13")
    A(f"v_lshlrev_b32 {v(vSt)}, 4, {v(vLane)}")
    A(f"v_add_u32 {v(vSt)}, s{sOut}, {v(vSt)}")
    A(f"s_mul_i32 s{sOut}, s{sTmp}, 40960")
    A(f"v_and_b32 {v(T0)}, 7, {v(vN)}")
    A(f"v_lshl_add_u32 {v(T0)}, {v(vG)}, 3, {v(T0)}")
    A(f"v_lshlrev_b32 {v(T0)}, 4, {v(T0)}")
    A(f"v_lshrrev_b32 {v(T1)}, 3, {v(vN)}")
    A(f"v_lshl_add_u32 {v(T0)}, {v(T1)}, 9, {v(T0)}")
    A(f"v_add_u32 {v(vUst)}, s{sOut}, {v(T0)}")
    for m in {"kvu": (0, 1), "k": (0,), "vu": (1,)}[mode]:
        for rt in range(RTW):
            for s_ in range(4):
                dst = (VA + (rt * 4 + s_) * 4) if m == 1 else (OF + ((rt * 4 + s_) % 8) * 4)
                for half in range(2):
                    ab = acc_idx(m, 2 * s_ + half, rt)
                    if ab < 256:
                        for i in range(4):
                            A(f"v_accvgpr_read_b32 {v(TMP+half*4+i)}, a{ab+i}")
                        src = TMP + half * 4
                    else:
                        src = 128 + ab - 256
                    for j in range(2):
                        A(f"v_cvt_pk_bf16_f32 {v(dst+half*2+j)}, {v(src+2*j)}, {v(src+2*j+1)}")
                so = (WS_KX if m == 0 else WS_VX) + (rt // 2) * 32 * 8192 + ((rt % 2) * 4 + s_) * 1024
                A(f"s_mov_b32 s{sTmp2}, {so:#x}")
                A(f"buffer_store_dwordx4 {v(dst,4)}, {v(vSt)}, {srd(sWS)}, s{sTmp2} offen{sc}")
                vq.issue("st")
    if mode == "k":
        return
    lq = Q(A, "lgkmcnt", 15)
    sUo, sCh = 53, 54

    def rd_o(t):
        for s_ in range(4):
            r = OF + (t % 2) * 16 + s_ * 4
            A(f"ds_read_b64_tr_b16 {v(r,2)}, {v(vOa[0]+t)} offset:{s_*8192}")
            A(f"ds_read_b64_tr_b16 {v(r+2,2)}, {v(vOa[0]+t)} offset:{s_*8192 + 4096}")
            lq.issue(("o", t % 2))
            lq.issue(("o", t % 2))
        A(f"v_add_u32 {v(vOa[0]+t)}, {STAGE:#x}, {v(vOa[0]+t)}")
        A(f"v_and_b32 {v(vOa[0]+t)}, 0x1ffff, {v(vOa[0]+t)}")

    def u_out(p):
        for sg in range(NSG):
            for half in range(2):
                ab = aU[p] + (sg * 2 + half) * 4
                A(f"v_cvt_pk_bf16_f32 {v(UO[p]+sg*4+half*2)}, {v(ab)}, {v(ab+1)}")
                A(f"v_cvt_pk_bf16_f32 {v(UO[p]+sg*4+half*2+1)}, {v(ab+2)}, {v(ab+3)}")
            A(f"s_add_u32 s{sTmp2}, s{sUo}, {sg*32*40960:#x}")
            A(f"buffer_store_dwordx4 {v(UO[p]+sg*4,4)}, {v(vUst)}, {srd(sWS)}, s{sTmp2} offen{sc}")
        A(f"s_add_u32 s{sUo}, s{sUo}, 1024")

    vq.need(("wo", 0))
    A("s_barrier")
    if u_hook:
        u_hook()
    tl()
    A(f"s_mov_b32 s{sUo}, {WS_U:#x}")
    A(f"s_mov_b32 s{sCh}, 0")
    rd_o(0)
    Lu = A.newlabel("Lu")
    A.label(Lu)
    q0 = list(lq.q)
    for t in range(8):
        if t == 7:
            A(f"s_waitcnt vmcnt({min(63, 6*NSG)})")
            A("s_barrier")
            Lnd = A.newlabel("Lnd")
            A(f"s_cmp_lg_u32 s{sCh}, 1")
            A(f"s_cbranch_scc1 {Lnd}")
            dma_wo(4)
            A.label(Lnd)
        rd_o((t + 1) % 8)
        lq.need(("o", t % 2))
        for s_ in range(4):
            for rt in range(RTW):
                acc = v(aU[t % 2] + rt * 4, 4)
                c = "0" if s_ == 0 else acc
                A(f"v_mfma_f32_16x16x32_bf16 {acc}, {v(VA+(rt*4+s_)*4,4)}, {v(OF+(t%2)*16+s_*4,4)}, {c}")
            if s_ == (2 if RTW >= 4 else 3):
                if t == 0:
                    Lsk = A.newlabel("Lsk")
                    A(f"s_cmp_eq_u32 s{sCh}, 0")
                    A(f"s_cbranch_scc1 {Lsk}")
                    u_out(1)
                    A.label(Lsk)
                else:
                    u_out((t - 1) % 2)
    assert lq.q == q0
    A(f"s_add_u32 s{sCh}, s{sCh}, 1")
    A(f"s_cmp_lt_u32 s{sCh}, 5")
    A(f"s_cbranch_scc1 {Lu}")
    A.nop(8)
    u_out(1)
    A("s_waitcnt lgkmcnt(0)")


def gen_att(A, name="att_kernel", RTW=4):
    kernel_header(A, name)
    Lend = A.newlabel("Lend")
    w_prologue(A, Lend, 32 * 32 // RTW)
    make_srd(A, sWS, 36, WS_BYTES)
    A(f"s_and_b32 s{sH}, s2, 31")
    A(f"s_lshr_b32 s{sRB}, s2, 5")
    att_body(A, RTW, "", None)
    A.label(Lend)
    A("s_endpgm")
    return kernel_desc(name, 512, 102, 256)


def att_body(A, RTW, sc, wait_hook, rm_below=None, light=False, skip_sreg=None):
    if not light:
        make_srd(A, sXS, 24, 2048 * 1280)
        make_srd(A, sWA, 28, 640 * 8192)
    R = RegAlloc(6, 256)
    NSG = RTW // 2

    def acc_of(m, t, rt):
        return a((t * RTW + rt) * 4, 4)
    if not light:
        proj_gemm(A, 1, [sWA], acc_of, R, None, RTW=RTW, NST=5)
    R.next = 6
    T0, T1, T2 = R.alloc(), R.alloc(), R.alloc()
    vL16, vKm, vVa, vVm, vNinf = R.alloc(), R.alloc(), R.alloc(), R.alloc(), R.alloc()
    vMx, vMx2, vSum = R.alloc(), R.alloc(), R.alloc()
    QB = R.alloc(64)
    TMP = R.alloc(8)
    KM = R.alloc(16)
    S = R.alloc(20)
    P = R.alloc(12)
    VF = R.alloc(32)
    VMF = R.alloc(16)
    accO = R.alloc(32)
    OB = R.alloc(16)
    aK = 128
    sMask = 56
    sC, sSeg, sL = 66, 67, 68
    A(f"s_mov_b32 s{sC}, {f32bits(SCALE*LOG2E):#x}")
    A(f"v_mov_b32 {v(vNinf)}, 0xff800000")
    A("s_mov_b32 s64, -1")
    A("s_mov_b32 s65, 0")
    A(f"v_lshlrev_b32 {v(vL16)}, 4, {v(vLane)}")
    for r in range(4):
        A(f"v_lshl_add_u32 {v(T0)}, {v(vG)}, 2, {r}")
        A(f"v_cmp_le_u32 s[{sMask+2*r}:{sMask+2*r+1}], {v(T0)}, {v(vN)}")
    A(f"v_and_b32 {v(T0)}, 7, {v(vN)}")
    A(f"v_lshl_add_u32 {v(T0)}, {v(vG)}, 3, {v(T0)}")
    A(f"v_lshlrev_b32 {v(vKm)}, 4, {v(T0)}")
    A(f"s_lshl_b32 s{sL}, s{sWave}, 15")
    A(f"v_lshrrev_b32 {v(T0)}, 2, {v(vN)}")
    A(f"v_lshl_add_u32 {v(T0)}, {v(vG)}, 2, {v(T0)}")
    A(f"v_and_b32 {v(T1)}, 3, {v(vN)}")
    A(f"v_lshl_add_u32 {v(T2)}, {v(T1)}, 4, {v(T0)}")
    A(f"v_lshlrev_b32 {v(T2)}, 4, {v(T2)}")
    A(f"v_add_u32 {v(vVa)}, s{sL}, {v(T2)}")
    A(f"v_and_b32 {v(T0)}, 7, {v(T0)}")
    A(f"v_lshl_add_u32 {v(T2)}, {v(T1)}, 3, {v(T0)}")
    A(f"v_lshlrev_b32 {v(T2)}, 4, {v(T2)}")
    A(f"v_add_u32 {v(vVm)}, s{sL}, {v(T2)}")
    A(f"s_lshl_b32 s{sTmp}, s{sRB}, 2")
    A(f"s_add_u32 s{sTmp}, s{sTmp}, s{sWave}")
    A(f"s_mul_i32 s{sTmp}, s{sTmp}, {NSG*32}")
    A(f"s_add_u32 s{sSeg}, s{sTmp}, s{sH}")
    for sg in range(NSG):
        A(f"s_add_u32 s{sTmp}, s{sSeg}, {sg*32}")
        A(f"s_lshl_b32 s{sTmp}, s{sTmp}, 13")
        for f in range(8):
            A(f"s_add_u32 s{sTmp2}, s{sTmp}, {WS_KX + f*1024:#x}")
            A(f"buffer_load_dwordx4 {a(aK+sg*32+f*4,4)}, {v(vL16)}, {srd(sWS)}, s{sTmp2} offen")
        for f in range(8):
            A(f"s_add_u32 m0, s{sL}, {sg*16384 + f*1024}")
            A(f"s_add_u32 s{sTmp2}, s{sTmp}, {WS_VX + f*1024:#x}")
            A(f"buffer_load_dwordx4 {v(vL16)}, {srd(sWS)}, s{sTmp2} offen lds")
        if light:
            for f in range(8):
                A(f"s_add_u32 s{sTmp2}, s{sTmp}, {WS_QX + f*1024:#x}")
                A(f"buffer_load_dwordx4 {v(QB+(sg*8+f)*4,4)}, {v(vL16)}, {srd(sWS)}, s{sTmp2} offen")
    for rt in range(0 if light else RTW):
        for s_ in range(4):
            for half in range(2):
                ab = ((2 * s_ + half) * RTW + rt) * 4
                for i in range(4):
                    A(f"v_accvgpr_read_b32 {v(TMP+half*4+i)}, a{ab+i}")
            for j in range(4):
                A(f"v_cvt_pk_bf16_f32 {v(QB+(rt*4+s_)*4+j)}, {v(TMP+2*j)}, {v(TMP+2*j+1)}")

    def xlane(op, reg):
        for sw in ("v_permlane16_swap_b32", "v_permlane32_swap_b32"):
            A(f"v_mov_b32 {v(vMx2)}, {v(reg)}")
            A.nop(2)
            A(f"{sw} {v(reg)}, {v(vMx2)}")
            A.nop(1)
            A(f"{op} {v(reg)}, {v(reg)}, {v(vMx2)}")

    if wait_hook:
        wait_hook()
    Lattskip = A.newlabel("Lats")
    if skip_sreg is not None:
        Lgo = A.newlabel("Latg")
        A(f"s_cmp_eq_u32 s{skip_sreg}, 0")
        A(f"s_cbranch_scc1 {Lgo}")
        A(f"s_branch {Lattskip}")
        A.label(Lgo)
    for sg in range(NSG):
        A(f"s_add_u32 s{sTmp}, s{sSeg}, {sg*32}")
        A(f"s_lshl_b32 s{sTmp}, s{sTmp}, 11")
        for f in range(2):
            A(f"s_add_u32 m0, s{sL}, {sg*16384 + 8192 + f*1024}")
            A(f"s_add_u32 s{sTmp2}, s{sTmp}, {WS_VM + f*1024:#x}")
            A(f"buffer_load_dwordx4 {v(vL16)}, {srd(sWS)}, s{sTmp2} offen lds")
    for sg in range(NSG):
        A(f"s_add_u32 s{sTmp}, s{sSeg}, {sg*32}")
        A(f"s_lshl_b32 s{sTmp}, s{sTmp}, 11")
        A(f"s_add_u32 s{sTmp}, s{sTmp}, {WS_KM:#x}")
        for s_ in range(4):
            A(f"buffer_load_dwordx4 {v(KM+s_*4,4)}, {v(vKm)}, {srd(sWS)}, s{sTmp} offen offset:{s_*512}")
        A("s_waitcnt vmcnt(0)")
        for t in range(8):
            for T in range(2):
                A(f"ds_read_b64_tr_b16 {v(VF+t*4+T*2,2)}, {v(vVa)} offset:{sg*16384 + (T*4+t//2)*1024 + (t%2)*8}")
            A(f"ds_read_b64_tr_b16 {v(VMF+t*2,2)}, {v(vVm)} offset:{sg*16384 + 8192 + (t//2)*512 + (t%2)*8}")
            if t % 4 == 3:
                A("s_waitcnt lgkmcnt(0)")
        combos = [(0, 0, S), (0, 1, S + 4), (1, 0, S + 8), (1, 1, S + 12), (1, 2, S + 16)]
        for s_ in range(4):
            for qt, T, acc in combos:
                aop = v(KM + s_ * 4, 4) if T == 0 else a(aK + sg * 32 + ((T - 1) * 4 + s_) * 4, 4)
                c = "0" if s_ == 0 else v(acc, 4)
                A(f"v_mfma_f32_16x16x32_bf16 {v(acc,4)}, {aop}, {v(QB+((sg*2+qt)*4+s_)*4,4)}, {c}")
        A.nop(8)
        for qt in range(2):
            base = S if qt == 0 else S + 8
            nv = 8 if qt == 0 else 12
            dg = base + nv - 4
            for i in range(4):
                A(f"v_cndmask_b32 {v(base+i)}, {v(vNinf)}, {v(base+i)}, s[64:65]")
                A(f"v_cndmask_b32 {v(dg+i)}, {v(vNinf)}, {v(dg+i)}, s[{sMask+2*i}:{sMask+2*i+1}]")
            A(f"v_max3_f32 {v(vMx)}, {v(base)}, {v(base+1)}, {v(base+2)}")
            for i in range(3, nv - 1, 2):
                A(f"v_max3_f32 {v(vMx)}, {v(vMx)}, {v(base+i)}, {v(base+i+1)}")
            A(f"v_max_f32 {v(vMx)}, {v(vMx)}, {v(base+nv-1)}")
            xlane("v_max_f32", vMx)
            A(f"v_mul_f32 {v(vMx)}, s{sC}, {v(vMx)}")
            for i in range(nv):
                A(f"v_fma_f32 {v(base+i)}, {v(base+i)}, s{sC}, -{v(vMx)}")
            for i in range(nv):
                A(f"v_exp_f32 {v(base+i)}, {v(base+i)}")
            A.nop(1)
            A(f"v_add_f32 {v(vSum)}, {v(base)}, {v(base+1)}")
            for i in range(2, nv):
                A(f"v_add_f32 {v(vSum)}, {v(vSum)}, {v(base+i)}")
            xlane("v_add_f32", vSum)
            A(f"v_rcp_f32 {v(vSum)}, {v(vSum)}")
            A.nop(1)
            for i in range(nv):
                A(f"v_mul_f32 {v(base+i)}, {v(base+i)}, {v(vSum)}")
            pq = P + qt * 6
            A(f"v_cvt_pk_bf16_f32 {v(pq+4)}, {v(base)}, {v(base+1)}")
            A(f"v_cvt_pk_bf16_f32 {v(pq+5)}, {v(base+2)}, {v(base+3)}")
            A(f"v_cvt_pk_bf16_f32 {v(TMP)}, {v(base+4)}, {v(base+5)}")
            A(f"v_cvt_pk_bf16_f32 {v(TMP+1)}, {v(base+6)}, {v(base+7)}")
            if qt == 0:
                A(f"v_mov_b32 {v(TMP+2)}, 0")
                A(f"v_mov_b32 {v(TMP+3)}, 0")
            else:
                A(f"v_cvt_pk_bf16_f32 {v(TMP+2)}, {v(base+8)}, {v(base+9)}")
                A(f"v_cvt_pk_bf16_f32 {v(TMP+3)}, {v(base+10)}, {v(base+11)}")
            A.nop(2)
            for t in range(8):
                A(f"v_mfma_f32_16x16x32_bf16 {v(accO+t*4,4)}, {v(VF+t*4,4)}, {v(TMP,4)}, 0")
            for t in range(8):
                A(f"v_mfma_f32_16x16x16_bf16 {v(accO+t*4,4)}, {v(VMF+t*2,2)}, {v(pq+4,2)}, {v(accO+t*4,4)}")
            A.nop(8)
            A(f"s_add_u32 s{sTmp}, s{sSeg}, {sg*32}")
            A(f"s_lshl_b32 s{sTmp}, s{sTmp}, 1")
            A(f"s_sub_u32 s{sTmp}, s{sTmp}, s{sH}")
            A(f"s_add_u32 s{sTmp}, s{sTmp}, {qt*32}")
            A(f"s_lshl_b32 s{sTmp}, s{sTmp}, 12")
            A(f"s_add_u32 s{sTmp}, s{sTmp}, {WS_O:#x}")
            for s_ in range(4):
                for j in range(4):
                    A(f"v_cvt_pk_bf16_f32 {v(OB+s_*4+j)}, {v(accO+s_*8+2*j)}, {v(accO+s_*8+2*j+1)}")
            Lrm, Lrd = A.newlabel("Lrm"), A.newlabel("Lrd")
            if rm_below is not None:
                A(f"s_cmp_lt_u32 s{sRB}, {rm_below}")
                A(f"s_cbranch_scc1 {Lrm}")
            for s_ in range(4):
                A(f"buffer_store_dwordx4 {v(OB+s_*4,4)}, {v(vL16)}, {srd(sWS)}, s{sTmp} offen offset:{s_*1024}{sc}")
            if rm_below is not None:
                A(f"s_branch {Lrd}")
                A.label(Lrm)
                A(f"s_add_u32 s{sTmp}, s{sSeg}, {sg*32}")
                A(f"s_sub_u32 s{sTmp}, s{sTmp}, s{sH}")
                A(f"s_add_u32 s{sTmp}, s{sTmp}, {qt*16}")
                A(f"s_lshl_b32 s{sTmp}, s{sTmp}, 13")
                A(f"s_lshl_b32 s{sTmp2}, s{sH}, 8")
                A(f"s_add_u32 s{sTmp}, s{sTmp}, s{sTmp2}")
                A(f"s_add_u32 s{sTmp}, s{sTmp}, {WS_O:#x}")
                A(f"v_lshlrev_b32 {v(T0)}, 13, {v(vN)}")
                A(f"v_lshl_add_u32 {v(T0)}, {v(vG)}, 3, {v(T0)}")
                for t in range(8):
                    A(f"buffer_store_dwordx2 {v(OB+t*2,2)}, {v(T0)}, {srd(sWS)}, s{sTmp} offen offset:{t*32}{sc}")
                A.label(Lrd)
            A.nop(2)
    A.label(Lattskip)


def gen_outp(A, name="outp_kernel", RT=4):
    kernel_header(A, name)
    Lend = A.newlabel("Lend")
    ntask = (128 // RT) * 8
    w_prologue(A, Lend, ntask)
    make_srd(A, sWS, 36, WS_BYTES)
    sCB = sH
    A(f"s_and_b32 s{sCB}, s2, 7")
    A(f"s_lshr_b32 s{sRB}, s2, 3")
    outp_body(A, RT, sCB)
    A.label(Lend)
    A("s_endpgm")
    return kernel_desc(name, 512, 102, 256)


def outp_body(A, RT, sCB):
    make_srd(A, sWO, 34, 4096 * 1280)
    make_srd(A, sXS, 38, 2048 * 2560)
    R = RegAlloc(6, 256)
    T0, T1, T2 = R.alloc(), R.alloc(), R.alloc()
    vWo = R.alloc(5)
    vOf, vTr, vLw, vOut = R.alloc(), R.alloc(), R.alloc(), R.alloc()
    OF = [R.alloc(4 * RT) for _ in range(4)]
    WF = [R.alloc(20) for _ in range(2)]
    TMP = R.alloc(16)
    sL, sKo, sKw = 50, 51, 52
    A(f"s_mul_i32 s{sTmp}, s{sCB}, 160")
    A(f"s_mul_i32 s{sTmp2}, s{sWave}, {1024*1280}")
    A(f"s_add_u32 s{sTmp}, s{sTmp}, s{sTmp2}")
    for i in range(5):
        A(f"v_add_u32 {v(T0)}, {64*i}, {v(vLane)}")
        A(f"v_mul_u32_u24 {v(T1)}, 205, {v(T0)}")
        A(f"v_lshrrev_b32 {v(T1)}, 11, {v(T1)}")
        A(f"v_mul_u32_u24 {v(T2)}, 10, {v(T1)}")
        A(f"v_sub_u32 {v(T0)}, {v(T0)}, {v(T2)}")
        A(f"v_mul_u32_u24 {v(T1)}, 1280, {v(T1)}")
        A(f"v_lshl_add_u32 {v(T0)}, {v(T0)}, 4, {v(T1)}")
        A(f"v_add_u32 {v(vWo+i)}, s{sTmp}, {v(T0)}")
    assert all((i * 205) >> 11 == i // 10 for i in range(320))
    A(f"s_mul_i32 s{sTmp}, s{sRB}, {RT*131072}")
    A(f"s_lshl_b32 s{sTmp2}, s{sWave}, 15")
    A(f"s_add_u32 s{sTmp}, s{sTmp}, s{sTmp2}")
    A(f"s_add_u32 s{sTmp}, s{sTmp}, {WS_O:#x}")
    A(f"v_lshlrev_b32 {v(T0)}, 4, {v(vLane)}")
    A(f"v_add_u32 {v(vOf)}, s{sTmp}, {v(T0)}")
    A(f"s_mul_i32 s{sL}, s{sWave}, 20480")
    A(f"v_lshrrev_b32 {v(T1)}, 2, {v(vN)}")
    A(f"v_lshl_add_u32 {v(T1)}, {v(vG)}, 2, {v(T1)}")
    A(f"v_mul_u32_u24 {v(T1)}, 160, {v(T1)}")
    A(f"v_and_b32 {v(T2)}, 3, {v(vN)}")
    A(f"v_lshl_add_u32 {v(T1)}, {v(T2)}, 3, {v(T1)}")
    A(f"v_add_u32 {v(vTr)}, s{sL}, {v(T1)}")
    A(f"s_mov_b32 s{sKo}, 0")
    A(f"s_mov_b32 s{sKw}, 0")
    for i in range(RT * 20):
        A(f"v_accvgpr_write_b32 a{i}, 0")
    vq = Q(A, "vmcnt", 63)
    lq = Q(A, "lgkmcnt", 15)

    def load(slot):
        g = []
        for i in range(5):
            g.append([f"s_add_u32 m0, s{sL}, {slot*5120 + i*1024}", "s_nop 0",
                      f"buffer_load_dwordx4 {v(vWo+i)}, {srd(sWO)}, s{sKw} offen lds"])
        for rt in range(RT):
            g.append([f"s_add_u32 s{sTmp}, s{sKo}, {rt*131072}",
                      f"buffer_load_dwordx4 {v(OF[slot]+rt*4,4)}, {v(vOf)}, {srd(sWS)}, s{sTmp} offen"])
        g.append([f"s_add_u32 s{sKw}, s{sKw}, {32*1280}", f"s_add_u32 s{sKo}, s{sKo}, 1024"])
        return g

    def emit_load(slot):
        for grp in load(slot):
            for ins in grp:
                A(ins)
    D = 5 + RT

    def rd(slot, par):
        for t in range(5):
            A(f"ds_read_b64_tr_b16 {v(WF[par]+t*4,2)}, {v(vTr)} offset:{slot*5120 + t*32}")
            A(f"ds_read_b64_tr_b16 {v(WF[par]+t*4+2,2)}, {v(vTr)} offset:{slot*5120 + t*32 + 16*160}")
    for slot in range(3):
        emit_load(slot)
    A(f"s_waitcnt vmcnt({2*D})")
    rd(0, 0)
    A(f"s_mov_b32 s{sIt}, 0")
    Lloop = A.newlabel("Lop")
    A.label(Lloop)
    for slot in range(4):
        par = slot % 2
        A(f"s_waitcnt vmcnt({D}) lgkmcnt(0)")
        rd((slot + 1) % 4, 1 - par)
        grps = load((slot + 3) % 4)
        for t in range(5):
            for rt in range(RT):
                acc = a((t * RT + rt) * 4, 4)
                A(f"v_mfma_f32_16x16x32_bf16 {acc}, {v(WF[par]+t*4,4)}, {v(OF[slot]+rt*4,4)}, {acc}")
                if grps and rt % 2 == 1:
                    for ins in grps.pop(0):
                        A(ins)
        for grp in grps:
            for ins in grp:
                A(ins)
    A(f"s_add_u32 s{sIt}, s{sIt}, 1")
    A(f"s_cmp_lt_u32 s{sIt}, 8")
    A(f"s_cbranch_scc1 {Lloop}")
    A("s_waitcnt vmcnt(0) lgkmcnt(0)")
    A("s_barrier")
    NTL = 5 * RT
    A(f"s_mul_i32 s{sTmp}, s{sWave}, {NTL*1024}")
    A(f"v_lshlrev_b32 {v(T0)}, 4, {v(vLane)}")
    A(f"v_add_u32 {v(vLw)}, s{sTmp}, {v(T0)}")
    A.nop(4)
    for i in range(NTL):
        A(f"ds_write_b128 {v(vLw)}, {a(i*4,4)} offset:{i*1024}")
    A("s_waitcnt lgkmcnt(0)")
    A("s_barrier")
    RPW = RT // 4
    A(f"s_mul_i32 s{sTmp}, s{sWave}, {RPW*1024}")
    A(f"v_add_u32 {v(vLw)}, s{sTmp}, {v(T0)}")
    A(f"v_add_u32 {v(vTr)}, {2*NTL*1024}, {v(vLw)}")
    A(f"s_mul_i32 s{sTmp}, s{sRB}, {RT}")
    A(f"s_mul_i32 s{sTmp2}, s{sWave}, {RPW}")
    A(f"s_add_u32 s{sTmp}, s{sTmp}, s{sTmp2}")
    A(f"s_mul_i32 s{sTmp}, s{sTmp}, {16*2560}")
    A(f"s_mul_i32 s{sTmp2}, s{sCB}, 160")
    A(f"s_add_u32 s{sTmp}, s{sTmp}, s{sTmp2}")
    A(f"s_add_u32 s{sTmp}, s{sTmp}, 1280")
    A(f"v_mul_u32_u24 {v(T1)}, 2560, {v(vN)}")
    A(f"v_lshl_add_u32 {v(T1)}, {v(vG)}, 3, {v(T1)}")
    A(f"v_add_u32 {v(vOut)}, s{sTmp}, {v(T1)}")
    for j in range(RPW):
        for t in range(5):
            for w in range(4):
                ad = vLw if w < 2 else vTr
                A(f"ds_read_b128 {v(TMP+w*4,4)}, {v(ad)} offset:{(w%2)*NTL*1024 + (t*RT+j)*1024}")
            A("s_waitcnt lgkmcnt(0)")
            for i in range(4):
                A(f"v_add_f32 {v(TMP+i)}, {v(TMP+i)}, {v(TMP+4+i)}")
                A(f"v_add_f32 {v(TMP+8+i)}, {v(TMP+8+i)}, {v(TMP+12+i)}")
            for i in range(4):
                A(f"v_add_f32 {v(TMP+i)}, {v(TMP+i)}, {v(TMP+8+i)}")
            o = OF[0] + (t % 2) * 2
            A(f"v_cvt_pk_bf16_f32 {v(o)}, {v(TMP)}, {v(TMP+1)}")
            A(f"v_cvt_pk_bf16_f32 {v(o+1)}, {v(TMP+2)}, {v(TMP+3)}")
            A(f"s_mov_b32 s{sTmp}, {j*16*2560}")
            A(f"buffer_store_dwordx2 {v(o,2)}, {v(vOut)}, {srd(sXS)}, s{sTmp} offen offset:{t*32}")


def outp_fast_body(A, sIdx, rowtile0, wait_hook, nblk=2):
    make_srd(A, sWO, 34, 4096 * 1280)
    make_srd(A, sXS, 38, 2048 * 2560)
    R = RegAlloc(6, 256)
    T0, T1, T2 = R.alloc(), R.alloc(), R.alloc()
    vWo, vTr, vOf, vLw, vOut = R.alloc(), R.alloc(), R.alloc(), R.alloc(), R.alloc()
    acc = R.alloc(12)
    TMP = R.alloc(16)
    WJ = R.alloc(48)
    assert R.next <= 96
    WV = 96
    OFR = 128
    sL, sCb, sRt = 50, 51, 52

    def wreg(hh, t, s_):
        i = (hh * 12 + t * 4 + s_) * 4
        return a(i, 4) if i < 256 else v(WV + i - 256, 4)

    def wreg2(hh, t, s_, half):
        i = (hh * 12 + t * 4 + s_) * 4 + half * 2
        return a(i, 2) if i < 256 else v(WV + i - 256, 2)
    A(f"s_and_b32 s{sCb}, s{sIdx}, 15")
    A(f"s_lshl_b32 s{sL}, s{sWave}, 15")
    A(f"s_mul_i32 s{sTmp}, s{sWave}, {1024*1280}")
    A(f"s_mul_i32 s{sTmp2}, s{sCb}, 80")
    A(f"s_add_u32 s{sTmp}, s{sTmp}, s{sTmp2}")
    A(f"v_lshrrev_b32 {v(T0)}, 3, {v(vLane)}")
    A(f"v_mul_u32_u24 {v(T0)}, 1280, {v(T0)}")
    A(f"v_and_b32 {v(T1)}, 7, {v(vLane)}")
    A(f"v_lshl_add_u32 {v(T0)}, {v(T1)}, 4, {v(T0)}")
    A(f"v_add_u32 {v(vWo)}, s{sTmp}, {v(T0)}")
    A(f"v_lshrrev_b32 {v(T0)}, 2, {v(vN)}")
    A(f"v_lshl_add_u32 {v(T0)}, {v(vG)}, 2, {v(T0)}")
    A(f"v_lshlrev_b32 {v(T0)}, 7, {v(T0)}")
    A(f"v_and_b32 {v(T1)}, 3, {v(vN)}")
    A(f"v_lshl_add_u32 {v(T0)}, {v(T1)}, 3, {v(T0)}")
    A(f"v_add_u32 {v(vTr)}, s{sL}, {v(T0)}")

    def dma(hh):
        for i in range(16):
            A(f"s_add_u32 m0, s{sL}, {(hh%2)*16384 + i*1024}")
            A(f"s_mov_b32 s{sTmp}, {(hh*128 + i*8)*1280}")
            A(f"buffer_load_dwordx4 {v(vWo)}, {srd(sWO)}, s{sTmp} offen lds")

    def trs(hh, dst):
        for t in range(3):
            for s_ in range(4):
                for half in range(2):
                    A(f"ds_read_b64_tr_b16 {dst(t,s_,half)}, {v(vTr)} offset:{(hh%2)*16384 + s_*4096 + t*32 + half*2048}")
            A("s_waitcnt lgkmcnt(0)")
    dma(0)
    dma(1)
    for hh in range(6):
        A("s_waitcnt vmcnt(16)")
        trs(hh, lambda t, s_, half, hh=hh: wreg2(hh, t, s_, half))
        dma(hh + 2)
    A("s_waitcnt vmcnt(0)")
    sBlk, sCl = 54, 55
    LDS_CL = 0x20000 + 12288
    A(f"s_lshl_b32 s{sCl}, s{sCb}, 7")
    A(f"s_add_u32 s{sCl}, s{sCl}, {WS_CNT + CNT_FT:#x}")

    def claim():
        A("s_mov_b64 exec, 1")
        A(f"v_mov_b32 {v(T1)}, 1")
        A(f"v_mov_b32 {v(T2)}, 0")
        A(f"buffer_atomic_add {v(T1)}, {v(T2)}, {srd(sWS)}, s{sCl} offen sc0")
        A(f"v_mov_b32 {v(T2)}, {LDS_CL:#x}")
        A("s_waitcnt vmcnt(0)")
        A(f"ds_write_b32 {v(T2)}, {v(T1)}")
        A("s_waitcnt lgkmcnt(0)")
        A("s_mov_b64 exec, -1")
    Lc0 = A.newlabel("Lofc")
    A(f"s_cmp_lg_u32 s{sWave}, 3")
    A(f"s_cbranch_scc1 {Lc0}")
    claim()
    A.label(Lc0)
    Lrt = A.newlabel("Lofl")
    Lfe = A.newlabel("Lofe")
    A.label(Lrt)
    A("s_barrier")
    A(f"v_mov_b32 {v(T2)}, {LDS_CL:#x}")
    A(f"ds_read_b32 {v(T1)}, {v(T2)}")
    A("s_waitcnt lgkmcnt(0)")
    A(f"v_readfirstlane_b32 s{sRt}, {v(T1)}")
    A("s_nop 3")
    A(f"s_cmp_ge_u32 s{sRt}, {8*nblk}")
    A(f"s_cbranch_scc1 {Lfe}")
    A(f"s_lshr_b32 s{sBlk}, s{sRt}, 3")
    wait_hook(sBlk)
    A(f"s_add_u32 s{sTmp}, s{sRt}, {rowtile0}")
    A(f"s_lshl_b32 s{sTmp}, s{sTmp}, 17")
    A(f"s_lshl_b32 s{sTmp2}, s{sWave}, 15")
    A(f"s_add_u32 s{sTmp}, s{sTmp}, s{sTmp2}")
    A(f"s_add_u32 s{sTmp}, s{sTmp}, {WS_O:#x}")
    A(f"v_lshlrev_b32 {v(T0)}, 4, {v(vLane)}")
    A(f"v_add_u32 {v(vOf)}, s{sTmp}, {v(T0)}")
    order = [6, 0, 1, 2, 3, 4, 5, 7]
    for hh in order:
        for s_ in range(4):
            k = hh * 4 + s_
            A(f"s_mov_b32 s{sTmp}, {(k//4)*4096}")
            A(f"buffer_load_dwordx4 {v(OFR+k*4,4)}, {v(vOf)}, {srd(sWS)}, s{sTmp} offen offset:{(k%4)*1024}")
    trs(6, lambda t, s_, half: v(WJ + (t * 4 + s_) * 4 + half * 2, 2))
    first = True
    for idx, hh in enumerate(order):
        A(f"s_waitcnt vmcnt({(7-idx)*4})")
        if hh == 7:
            A("s_waitcnt lgkmcnt(0)")
        for s_ in range(4):
            for t in range(3):
                w = v(WJ + (t * 4 + s_) * 4, 4) if hh >= 6 else wreg(hh, t, s_)
                c = "0" if first and s_ == 0 else v(acc + t * 4, 4)
                A(f"v_mfma_f32_16x16x32_bf16 {v(acc+t*4,4)}, {w}, {v(OFR+(hh*4+s_)*4,4)}, {c}")
        first = False
        if idx == 1:
            for t in range(3):
                for s_ in range(4):
                    for half in range(2):
                        A(f"ds_read_b64_tr_b16 {v(WJ+(t*4+s_)*4+half*2,2)}, {v(vTr)} offset:{16384 + s_*4096 + t*32 + half*2048}")
                if t < 2:
                    A("s_waitcnt lgkmcnt(8)")
    A("s_barrier")
    A(f"s_mul_i32 s{sTmp}, s{sWave}, 3072")
    A(f"s_add_u32 s{sTmp}, s{sTmp}, 0x20000")
    A(f"v_add_u32 {v(vLw)}, s{sTmp}, {v(T0)}")
    A.nop(6)
    for t in range(3):
        A(f"ds_write_b128 {v(vLw)}, {v(acc+t*4,4)} offset:{t*1024}")
    A("s_waitcnt lgkmcnt(0)")
    A("s_barrier")
    Lx = A.newlabel("Lofx")
    Lx3 = A.newlabel("Lofx3")
    A(f"s_cmp_lg_u32 s{sWave}, 3")
    A(f"s_cbranch_scc1 {Lx3}")
    claim()
    A(f"s_branch {Lx}")
    A.label(Lx3)
    A(f"s_lshl_b32 s{sTmp}, s{sWave}, 10")
    A(f"s_add_u32 s{sTmp}, s{sTmp}, 0x20000")
    A(f"v_add_u32 {v(vLw)}, s{sTmp}, {v(T0)}")
    for w in range(4):
        A(f"ds_read_b128 {v(TMP+w*4,4)}, {v(vLw)} offset:{w*3072}")
    A(f"s_add_u32 s{sTmp}, s{sRt}, {rowtile0}")
    A(f"s_mul_i32 s{sTmp}, s{sTmp}, {16*2560}")
    A(f"s_mul_i32 s{sTmp2}, s{sCb}, 80")
    A(f"s_add_u32 s{sTmp}, s{sTmp}, s{sTmp2}")
    A(f"s_lshl_b32 s{sTmp2}, s{sWave}, 5")
    A(f"s_add_u32 s{sTmp}, s{sTmp}, s{sTmp2}")
    A(f"s_add_u32 s{sTmp}, s{sTmp}, 1280")
    A(f"v_mul_u32_u24 {v(T1)}, 2560, {v(vN)}")
    A(f"v_lshl_add_u32 {v(T1)}, {v(vG)}, 3, {v(T1)}")
    A(f"v_add_u32 {v(vOut)}, s{sTmp}, {v(T1)}")
    A(f"s_cmp_eq_u32 s{sWave}, 2")
    A("s_cselect_b32 exec_hi, 0, -1")
    A("s_waitcnt lgkmcnt(0)")
    for i in range(4):
        A(f"v_add_f32 {v(TMP+i)}, {v(TMP+i)}, {v(TMP+4+i)}")
        A(f"v_add_f32 {v(TMP+8+i)}, {v(TMP+8+i)}, {v(TMP+12+i)}")
    for i in range(4):
        A(f"v_add_f32 {v(TMP+i)}, {v(TMP+i)}, {v(TMP+8+i)}")
    A(f"v_cvt_pk_bf16_f32 {v(TMP+4)}, {v(TMP)}, {v(TMP+1)}")
    A(f"v_cvt_pk_bf16_f32 {v(TMP+5)}, {v(TMP+2)}, {v(TMP+3)}")
    A(f"buffer_store_dwordx2 {v(TMP+4,2)}, {v(vOut)}, {srd(sXS)}, 0 offen")
    A("s_mov_b64 exec, -1")
    A.label(Lx)
    A("s_waitcnt vmcnt(0)")
    A(f"s_branch {Lrt}")
    A.label(Lfe)


def outp2_body(A):
    make_srd(A, sWO, 34, 4096 * 1280)
    make_srd(A, sWA, 38, 2048 * 2560)
    R = RegAlloc(6, 256)

    def acc_of(m, t, rt):
        return a((t * 2 + rt) * 4, 4)
    proj_gemm(A, 1, [sWO], acc_of, R, None, RTW=2, niter=32, w_pitch=1280, xsrd=sWS, x_base=WS_O, x_pitch=8192, NST=8)
    R.next = 6
    T0, vSt = R.alloc(), R.alloc()
    TMP = R.alloc(4)
    O = [R.alloc(2) for _ in range(4)]
    A(f"s_lshl_b32 s{sTmp}, s{sRB}, 2")
    A(f"s_add_u32 s{sTmp}, s{sTmp}, s{sWave}")
    A(f"s_mul_i32 s{sTmp}, s{sTmp}, {32*2560}")
    A(f"s_lshl_b32 s{sTmp2}, s{sH}, 8")
    A(f"s_add_u32 s{sTmp}, s{sTmp}, s{sTmp2}")
    A(f"s_add_u32 s{sTmp}, s{sTmp}, 1280")
    A(f"v_mul_u32_u24 {v(T0)}, 2560, {v(vN)}")
    A(f"v_lshl_add_u32 {v(T0)}, {v(vG)}, 3, {v(T0)}")
    A(f"v_add_u32 {v(vSt)}, s{sTmp}, {v(T0)}")
    i = 0
    for rt in range(2):
        A(f"s_mov_b32 s{sTmp}, {rt*16*2560}")
        for t in range(8):
            o = O[i % 4]
            i += 1
            ab = (t * 2 + rt) * 4
            for r in range(4):
                A(f"v_accvgpr_read_b32 {v(TMP+r)}, a{ab+r}")
            A(f"v_cvt_pk_bf16_f32 {v(o)}, {v(TMP)}, {v(TMP+1)}")
            A(f"v_cvt_pk_bf16_f32 {v(o+1)}, {v(TMP+2)}, {v(TMP+3)}")
            A(f"buffer_store_dwordx2 {v(o,2)}, {v(vSt)}, {srd(sWA)}, s{sTmp} offen offset:{t*32}")


def q_body(A, sc):
    RTW = 8
    make_srd(A, sXS, 24, 2048 * 1280)
    make_srd(A, sWA, 28, 640 * 8192)
    R = RegAlloc(6, 256)

    def acc_of(m, t, rt):
        return a((t * RTW + rt) * 4, 4)
    proj_gemm(A, 1, [sWA], acc_of, R, None, RTW=RTW, NST=4)
    R.next = 6
    vSt = R.alloc()
    TMP = R.alloc(8)
    O = [R.alloc(4) for _ in range(4)]
    A(f"s_lshl_b32 s{sTmp}, s{sRB}, 2")
    A(f"s_add_u32 s{sTmp}, s{sTmp}, s{sWave}")
    A(f"s_mul_i32 s{sTmp}, s{sTmp}, {4*32}")
    A(f"s_add_u32 s{sTmp}, s{sTmp}, s{sH}")
    A(f"s_lshl_b32 s{sTmp}, s{sTmp}, 13")
    A(f"v_lshlrev_b32 {v(vSt)}, 4, {v(vLane)}")
    A(f"v_add_u32 {v(vSt)}, s{sTmp}, {v(vSt)}")
    i = 0
    for rt in range(RTW):
        for s_ in range(4):
            o = O[i % 4]
            i += 1
            for half in range(2):
                ab = ((2 * s_ + half) * RTW + rt) * 4
                for k in range(4):
                    A(f"v_accvgpr_read_b32 {v(TMP+half*4+k)}, a{ab+k}")
            for j in range(4):
                A(f"v_cvt_pk_bf16_f32 {v(o+j)}, {v(TMP+2*j)}, {v(TMP+2*j+1)}")
            A(f"s_mov_b32 s{sTmp2}, {WS_QX + (rt//2)*32*8192 + ((rt%2)*4+s_)*1024:#x}")
            A(f"buffer_store_dwordx4 {v(o,4)}, {v(vSt)}, {srd(sWS)}, s{sTmp2} offen{sc}")


def gen_gtest(A, name, RTW):
    kernel_header(A, name)
    Lend = A.newlabel("Lend")
    w_prologue(A, Lend, 128)
    make_srd(A, sWS, 36, WS_BYTES)
    A(f"s_and_b32 s{sH}, s2, 31")
    A(f"s_lshr_b32 s{sRB}, s2, 5")
    make_srd(A, sXS, 24, 2048 * 1280)
    make_srd(A, sWA, 30, 640 * 8192)
    make_srd(A, sWB, 32, 640 * 8192)
    R = RegAlloc(6, 128)

    def acc_of(m, t, rt):
        i = (((1 - m) * 8 + t) * RTW + rt) * 4
        return a(i, 4) if i < 256 else v(128 + i - 256, 4)
    proj_gemm(A, 2, [sWA, sWB], acc_of, R, None, RTW=RTW, NST=4, niter=50)
    A.label(Lend)
    A("s_endpgm")
    return kernel_desc(name, 512, 102, 256)
```

```python
HI1, HI2, HI3 = 0, 0, 0
import struct
from asmlib import *
from layout import *
from wside import *


def split_pack(A, x0, x1, hi, lo, t0, t1):
    A(f"v_cvt_pk_bf16_f32 {v(hi)}, {v(x0)}, {v(x1)}")
    A(f"v_lshlrev_b32 {v(t0)}, 16, {v(hi)}")
    A(f"v_and_b32 {v(t1)}, 0xffff0000, {v(hi)}")
    A(f"v_sub_f32 {v(t0)}, {v(x0)}, {v(t0)}")
    A(f"v_sub_f32 {v(t1)}, {v(x1)}, {v(t1)}")
    A(f"v_cvt_pk_bf16_f32 {v(lo)}, {v(t0)}, {v(t1)}")


NB_FG, NB_WT = 200, 642
NB_CONST = NB_FG + 1 + NB_WT
FILL_RANGES = [(WS_RA, 4 * 32 * 6144), (WS_RD, 4 * 8 * 10240), (WS_RC, RC_SPAN)]
NB_ZERO = (CNT_BYTES + 4095) // 4096
NB_INIT = sum(n // 4096 for _, n in FILL_RANGES) + NB_ZERO


def gen_init(A, name="init_kernel"):
    kernel_header(A, name)
    Lend = A.newlabel("Lend")
    A(f"s_cmp_ge_u32 s2, {NB_INIT}")
    A(f"s_cbranch_scc1 {Lend}")
    A("s_load_dwordx2 s[36:37], s[0:1], 96")
    A("v_lshlrev_b32 v1, 4, v0")
    A("s_lshl_b32 s3, s2, 12")
    A(f"s_add_u32 s8, s3, {WS_CNT:#x}")
    A("s_mov_b32 s9, 0")
    base = NB_ZERO
    A("s_waitcnt lgkmcnt(0)")
    A(f"s_add_u32 s11, s36, {WS_RC + 0x1fffff:#x}")
    A("s_and_b32 s11, s11, 0xffe00000")
    A("s_sub_u32 s11, s11, s36")
    A(f"s_sub_u32 s11, s11, {WS_RC:#x}")
    for off, n in FILL_RANGES:
        A(f"s_add_u32 s10, s3, {off - base*4096:#x}")
        if off == WS_RC:
            A("s_add_u32 s10, s10, s11")
        A(f"s_cmp_ge_u32 s2, {base}")
        A("s_cselect_b32 s8, s10, s8")
        A("s_cselect_b32 s9, -1, s9")
        base += n // 4096
    for i in range(4):
        A(f"v_mov_b32 v{4+i}, s9")
    A("s_waitcnt lgkmcnt(0)")
    make_srd(A, sWS, 36, WS_BYTES)
    A(f"buffer_store_dwordx4 v[4:7], v1, {srd(sWS)}, s8 offen")
    A.label(Lend)
    A("s_endpgm")
    return kernel_desc(name, 8, 102, 8)


def const_unit(A, sU):
    Lend = A.newlabel("Lcend")
    Lsm, Lwt = A.newlabel("Lsm"), A.newlabel("Lwt")
    A(f"s_cmp_eq_u32 s{sU}, {NB_FG}")
    A(f"s_cbranch_scc1 {Lsm}")
    A(f"s_lshl_b32 s3, s{sU}, 8")
    A("v_add_u32 v1, s3, v0")
    A("s_mov_b32 s8, 53687092")
    A("v_mul_hi_u32 v2, v1, s8")
    A("v_mul_u32_u24 v3, 80, v2")
    A("v_sub_u32 v3, v1, v3")
    A("v_lshlrev_b32 v3, 3, v3")
    A("s_mov_b32 s9, 6710887")
    A(f"s_mov_b32 s10, {f32bits(1.0/640):#x}")
    A(f"s_mov_b32 s11, {f32bits(1.0/(2048*640)):#x}")
    A(f"s_mov_b32 s12, {f32bits(2.0/(2048*640)):#x}")
    for e in range(8):
        A(f"v_add_u32 v4, {e}, v3")
        A("v_subrev_u32 v5, 320, v4")
        A("v_cmp_lt_u32 vcc, 320, v4")
        A("s_nop 1")
        A("v_cndmask_b32 v5, v4, v5, vcc")
        A("v_mul_u32_u24 v6, v5, v2")
        A("v_mul_hi_u32 v7, v6, s9")
        A("v_mul_u32_u24 v7, 640, v7")
        A("v_sub_u32 v6, v6, v7")
        A("v_cvt_f32_u32 v6, v6")
        A("v_mul_f32 v6, s10, v6")
        A("v_cos_f32 v7, v6")
        A("v_sin_f32 v8, v6")
        A("s_nop 1")
        A(f"v_cndmask_b32 v{16+e}, v7, -v8, vcc")
        A("v_cmp_eq_u32 vcc, 0, v4")
        A("v_cmp_eq_u32 s[14:15], 320, v4") if False else None
        A("v_mov_b32 v9, 320")
        A("v_cmp_eq_u32 s[14:15], v9, v4")
        A("s_nop 1")
        A("s_or_b64 vcc, vcc, s[14:15]")
        A("v_mov_b32 v9, s12")
        A("v_mov_b32 v10, s11")
        A("v_cndmask_b32 v9, v9, v10, vcc")
        A(f"v_mul_f32 v{24+e}, v{16+e}, v9")
    for j in range(4):
        split_pack(A, 16 + 2 * j, 17 + 2 * j, 32 + j, 36 + j, 4, 5)
        split_pack(A, 24 + 2 * j, 25 + 2 * j, 40 + j, 44 + j, 4, 5)
    A("v_mul_u32_u24 v4, 1280, v2")
    A("v_lshl_add_u32 v4, v3, 1, v4")
    A("v_mul_u32_u24 v5, 3840, v2")
    A("v_lshl_add_u32 v5, v3, 1, v5")
    A(f"s_mov_b32 s8, {WS_FH:#x}")
    A(f"s_mov_b32 s9, {WS_FL:#x}")
    A(f"s_mov_b32 s10, {WS_G:#x}")
    A(f"buffer_store_dwordx4 v[32:35], v4, {srd(sWS)}, s8 offen sc1")
    A(f"buffer_store_dwordx4 v[36:39], v4, {srd(sWS)}, s9 offen sc1")
    A(f"buffer_store_dwordx4 v[44:47], v5, {srd(sWS)}, s10 offen sc1")
    A(f"buffer_store_dwordx4 v[40:43], v5, {srd(sWS)}, s10 offen offset:1280 sc1")
    A(f"buffer_store_dwordx4 v[40:43], v5, {srd(sWS)}, s10 offen offset:2560 sc1")
    A(f"s_branch {Lend}")
    A.label(Lsm)
    A("v_and_b32 v1, 63, v0")
    A("v_and_b32 v2, 15, v0")
    A("v_bfe_u32 v3, v0, 4, 2")
    A("v_lshrrev_b32 v4, 6, v0")
    A("v_lshlrev_b32 v5, 4, v1")

    def dft_frag(N, a_expr_tile, ks, base_off):
        pass
    A("v_lshl_add_u32 v7, v4, 4, v2")
    for ks in range(2):
        for e in range(8):
            boff = 32 * ks + (e if e < 4 else 16 + e - 4)
            A(f"v_lshl_add_u32 v8, v3, 2, {boff}")
            A("v_mul_u32_u24 v8, v8, v7")
            A("v_and_b32 v8, 63, v8")
            A("v_cvt_f32_u32 v8, v8")
            A(f"v_mul_f32 v8, {f32bits(1/64):#x}, v8")
            A(f"v_cos_f32 v{16+e}, v8")
            A(f"v_sin_f32 v{24+e}, v8")
        A("s_nop 1")
        for j in range(4):
            split_pack(A, 16 + 2 * j, 17 + 2 * j, 32 + j, 36 + j, 9, 10)
            split_pack(A, 24 + 2 * j, 25 + 2 * j, 40 + j, 44 + j, 9, 10)
        A("v_lshl_add_u32 v8, v4, 11, v5")
        for cs in range(2):
            for hl in range(2):
                A(f"s_mov_b32 s8, {WS_C64 + (cs*2+hl)*8192 + ks*1024:#x}")
                r = 32 + cs * 8 + hl * 4
                A(f"buffer_store_dwordx4 v[{r}:{r+3}], v8, {srd(sWS)}, s8 offen sc1")
        A("s_nop 1")
    A("v_and_b32 v11, 1, v4")
    A("v_lshl_add_u32 v7, v11, 4, v2")
    for e in range(8):
        boff = (e if e < 4 else 16 + e - 4)
        A(f"v_lshl_add_u32 v8, v3, 2, {boff}")
        A("v_mul_u32_u24 v8, v8, v7")
        A("v_and_b32 v8, 31, v8")
        A("v_cvt_f32_u32 v8, v8")
        A(f"v_mul_f32 v8, {f32bits(1/32):#x}, v8")
        A(f"v_cos_f32 v{16+e}, v8")
        A(f"v_sin_f32 v{24+e}, v8")
    A("s_nop 1")
    for j in range(4):
        split_pack(A, 16 + 2 * j, 17 + 2 * j, 32 + j, 36 + j, 9, 10)
        split_pack(A, 24 + 2 * j, 25 + 2 * j, 40 + j, 44 + j, 9, 10)
    A("v_lshl_add_u32 v8, v11, 10, v5")
    for cs in range(2):
        for hl in range(2):
            A(f"s_mov_b32 s8, {WS_C32 + (cs*2+hl)*2048:#x}")
            r = 32 + cs * 8 + hl * 4
            A(f"buffer_store_dwordx4 v[{r}:{r+3}], v8, {srd(sWS)}, s8 offen sc1")
    A("s_nop 1")
    for which in range(2):
        for tf in range(2):
            for r in range(4):
                if which == 0:
                    A(f"v_lshl_add_u32 v8, v3, 2, {r}")
                    A("v_lshl_add_u32 v8, v4, 4, v8")
                    A(f"v_add_u32 v9, {16*tf}, v2")
                else:
                    A("v_lshl_add_u32 v8, v4, 4, v2")
                    A(f"v_lshl_add_u32 v9, v3, 2, {16*tf + r}")
                A("v_mul_u32_u24 v8, v8, v9")
                A("v_cvt_f32_u32 v8, v8")
                A(f"v_mul_f32 v8, {f32bits(1/2048):#x}, v8")
                A(f"v_cos_f32 v{16+r}, v8")
                A(f"v_sin_f32 v{20+r}, v8")
            if which == 0:
                A("v_lshl_add_u32 v8, v4, 11, v5")
                off = WS_TW1 + tf * 1024
            else:
                A("v_lshl_add_u32 v8, v4, 10, v5")
                off = WS_TW3 + tf * 4096
            A(f"s_mov_b32 s8, {off:#x}")
            A(f"s_mov_b32 s9, {off + 8192:#x}")
            A(f"buffer_store_dwordx4 v[16:19], v8, {srd(sWS)}, s8 offen sc1")
            A(f"buffer_store_dwordx4 v[20:23], v8, {srd(sWS)}, s9 offen sc1")
            A("s_nop 1")
    A(f"s_branch {Lend}")
    A.label(Lend)
    A("s_nop 1")


def wt_batch(A, sR, sWv):
    make_srd(A, 8, 24, 2048 * 642)
    make_srd(A, 12, 26, 2048 * 642)
    A("v_and_b32 v1, 63, v0")
    for i in range(6):
        B = 64 + i * 12
        A(f"s_add_u32 s3, s{sR}, {127*i}")
        A("s_lshl_b32 s3, s3, 2")
        A(f"s_add_u32 s3, s3, s{sWv}")
        A("s_and_b32 s16, s3, 511")
        A("s_lshr_b32 s17, s3, 9")
        A("s_lshl_b32 s17, s17, 6")
        A("v_add_u32 v2, s17, v1")
        A("v_mov_b32 v3, s16")
        A("s_sub_u32 s17, s3, 2560")
        A("s_lshl_b32 s17, s17, 6")
        A("v_add_u32 v5, s17, v1")
        A("s_cmp_ge_u32 s3, 2560")
        A("s_cselect_b64 vcc, -1, 0")
        A("v_mov_b32 v6, 320")
        A("v_cndmask_b32 v2, v2, v6, vcc")
        A("v_cndmask_b32 v3, v3, v5, vcc")
        A("v_and_b32 v5, 15, v3")
        A("v_bfe_u32 v6, v3, 4, 4")
        A("v_lshl_add_u32 v5, v6, 7, v5")
        A("v_mul_u32_u24 v5, 642, v5")
        A("v_lshl_add_u32 v5, v2, 1, v5")
        A("v_lshlrev_b32 v7, 13, v2")
        A(f"v_lshl_add_u32 v{B+8}, v3, 4, v7")
        A("s_cmp_ge_u32 s3, 2568")
        A("s_cselect_b32 s17, 0x7ff00000, 0")
        A(f"v_or_b32 v{B+8}, s17, v{B+8}")
        A("v_or_b32 v5, s17, v5")
        A("v_lshrrev_b32 v6, 8, v3")
        A("v_cmp_eq_u32 vcc, 0, v6")
        A("v_mov_b32 v6, 0x7ff00000")
        A("s_nop 0")
        A("v_cndmask_b32 v7, v6, v5, vcc")
        A("v_cndmask_b32 v5, v5, v6, vcc")
        A("s_mov_b64 s[16:17], exec")
        for ri in range(2):
            A("s_and_b64 exec, s[16:17], vcc" if ri == 0 else "s_andn2_b64 exec, s[16:17], vcc")
            Lskip = A.newlabel("Lwts")
            A(f"s_cbranch_execz {Lskip}")
            for tf1 in range(2):
                for r in range(4):
                    A(f"s_mov_b32 s18, {(16*tf1 + 32*r)*642}")
                    A(f"buffer_load_ushort v{B+tf1*4+r}, v{7 if ri == 0 else 5}, s[{8+4*ri}:{11+4*ri}], s18 offen")
            A.label(Lskip)
        A("s_mov_b64 exec, s[16:17]")
    A("s_waitcnt vmcnt(0)")
    A(f"s_mov_b32 s18, {WS_WT:#x}")
    for i in range(6):
        B = 64 + i * 12
        for j in range(4):
            A(f"v_lshl_or_b32 v{B+j}, v{B+2*j+1}, 16, v{B+2*j}")
        A(f"buffer_store_dwordx4 v[{B}:{B+3}], v{B+8}, {srd(sWS)}, s18 offen sc1")


def a_prologue(A, Lend, ntasks):
    A(f"s_cmp_ge_u32 s2, {ntasks}")
    A(f"s_cbranch_scc1 {Lend}")
    A("s_load_dwordx2 s[24:25], s[0:1], 0")
    A("s_load_dwordx2 s[36:37], s[0:1], 96")
    A("s_load_dwordx2 s[38:39], s[0:1], 80")
    A("v_and_b32 v1, 63, v0")
    A("v_lshrrev_b32 v5, 6, v0")
    A("v_and_b32 v2, 15, v0")
    A(f"v_readfirstlane_b32 s{sWave}, v5")
    A("v_bfe_u32 v3, v0, 4, 2")
    A("s_waitcnt lgkmcnt(0)")
    make_srd(A, sWS, 36, WS_BYTES)


def gen_a1(A, name="a1_kernel"):
    kernel_header(A, name)
    Lend = A.newlabel("Lend")
    a_prologue(A, Lend, 40)
    A(f"s_and_b32 s{sRB}, s2, 7")
    A(f"s_lshr_b32 s{sH}, s2, 3")
    a1_body(A, 24, "")
    A.label(Lend)
    A("s_endpgm")
    return kernel_desc(name, 512, 102, 256)


def a1_body(A, xptr, sc):
    make_srd(A, sXS, xptr, 2048 * 1280)
    R = RegAlloc(6, 256)

    def acc_of(m, t, rt):
        return a((t * 4 + rt) * 4, 4)
    if HI1:
        proj_gemm(A, 1, [sWS], acc_of, R, None, swap=True, w_pitch=1280, w_base=[WS_FH], x_mode="fft", NST=5)
    else:
        proj_gemm(A, 2, [sWS, sWS], acc_of, R, None, swap=True, w_pitch=1280, w_base=[WS_FH, WS_FL], x_mode="fft")
    R.next = 6
    T0, T1, vSt, vLw = R.alloc(), R.alloc(), R.alloc(), R.alloc()
    vLr = [R.alloc(), R.alloc()]
    TMP = R.alloc(8)
    HI = [R.alloc(4), R.alloc(4)]
    LO = [R.alloc(4), R.alloc(4)]
    OB = [R.alloc(4) for _ in range(8)]
    A(f"v_lshlrev_b32 {v(T0)}, 9, {v(vN)}")
    A(f"v_lshl_add_u32 {v(T0)}, {v(vG)}, 7, {v(T0)}")
    A(f"s_lshl_b32 s{sTmp}, s{sWave}, 5")
    A(f"v_add_u32 {v(vLw)}, s{sTmp}, {v(T0)}")
    A(f"v_add_u32 {v(vLr[1])}, 0x10000, {v(vLw)}")
    i = 0
    for t in range(8):
        for j in range(2):
            p = i % 2
            i += 1
            for half in range(2):
                ab = (t * 4 + j * 2 + half) * 4
                for r in range(4):
                    A(f"v_accvgpr_read_b32 {v(TMP+half*4+r)}, a{ab+r}")
            for q in range(4):
                split_pack(A, TMP + 2 * q, TMP + 2 * q + 1, HI[p] + q, LO[p] + q, T0, T1)
            A(f"ds_write_b128 {v(vLw)}, {v(HI[p],4)} offset:{t*8192 + j*16}")
            A(f"ds_write_b128 {v(vLr[1])}, {v(LO[p],4)} offset:{t*8192 + j*16}")
    A("s_waitcnt lgkmcnt(0)")
    A("s_barrier")
    A(f"v_lshlrev_b32 {v(T0)}, 4, {v(vLane)}")
    A(f"s_lshl_b32 s{sTmp}, s{sWave}, 14")
    A(f"v_add_u32 {v(vLr[0])}, s{sTmp}, {v(T0)}")
    A(f"v_add_u32 {v(vLr[1])}, 0x10000, {v(vLr[0])}")
    A(f"s_lshr_b32 s{sTmp2}, s{sRB}, 1")
    A(f"s_lshl_b32 s{sTmp2}, s{sTmp2}, 10")
    A(f"s_and_b32 s{sTmp}, s{sRB}, 1")
    A(f"s_lshl_b32 s{sTmp}, s{sTmp}, 7")
    A(f"s_add_u32 s{sTmp}, s{sTmp}, s{sTmp2}")
    A(f"s_lshl_b32 s{sTmp2}, s{sH}, 20")
    A(f"s_add_u32 s{sTmp}, s{sTmp}, s{sTmp2}")
    A(f"s_lshl_b32 s{sTmp2}, s{sWave}, 18")
    A(f"s_add_u32 s{sTmp}, s{sTmp}, s{sTmp2}")
    A(f"v_lshrrev_b32 {v(T0)}, 5, {v(vLane)}")
    A(f"v_lshlrev_b32 {v(T0)}, 13, {v(T0)}")
    A(f"v_bfe_u32 {v(T1)}, {v(vLane)}, 3, 2")
    A(f"v_lshl_add_u32 {v(T0)}, {v(T1)}, 8, {v(T0)}")
    A(f"v_and_b32 {v(T1)}, 7, {v(vLane)}")
    A(f"v_lshl_add_u32 {v(T0)}, {v(T1)}, 4, {v(T0)}")
    A(f"v_add_u32 {v(vSt)}, s{sTmp}, {v(T0)}")
    for hl in range(2):
        for k0 in range(0, 16, 8):
            for k in range(8):
                A(f"ds_read_b128 {v(OB[k],4)}, {v(vLr[hl])} offset:{(k0+k)*1024}")
            for k in range(8):
                A(f"s_waitcnt lgkmcnt({7-k})")
                A(f"s_mov_b32 s{sTmp}, {WS_Y + (k0+k)*16384 + hl*4096:#x}")
                A(f"buffer_store_dwordx4 {v(OB[k],4)}, {v(vSt)}, {srd(sWS)}, s{sTmp} offen{sc}")
            A.nop(2)


def gen_a3(A, name="a3_kernel"):
    kernel_header(A, name)
    Lend = A.newlabel("Lend")
    a_prologue(A, Lend, 32)
    A(f"s_and_b32 s{sRB}, s2, 1")
    A(f"s_lshr_b32 s{sH}, s2, 1")
    a3_body(A)
    A.label(Lend)
    A("s_endpgm")
    return kernel_desc(name, 512, 102, 256)


def a3_body(A):
    make_srd(A, sWO, 38, 2048 * 2560)
    R = RegAlloc(6, 256)

    def acc_of(m, t, rt):
        return a((t * 5 + rt) * 4, 4)
    if HI3:
        proj_gemm(A, 1, [sWS], acc_of, R, None, RTW=5, swap=True, niter=10, w_pitch=4096, w_base=[WS_Z],
                  xsrd=sWS, x_base=WS_G + 1280, x_pitch=3840, NST=5)
    else:
        proj_gemm(A, 1, [sWS], acc_of, R, None, RTW=5, swap=True, niter=15, w_pitch=4096, w_base=[WS_Z],
                  xsrd=sWS, x_base=WS_G, x_pitch=3840, w_wrap=20, NST=5)
    R.next = 6
    T0, vSt = R.alloc(), R.alloc()
    TMP = R.alloc(4)
    O = [R.alloc(2) for _ in range(4)]
    A(f"s_lshl_b32 s{sTmp}, s{sRB}, 2")
    A(f"s_add_u32 s{sTmp}, s{sTmp}, s{sWave}")
    A(f"s_mul_i32 s{sTmp}, s{sTmp}, 160")
    A(f"s_mul_i32 s{sTmp2}, s{sH}, {128*2560}")
    A(f"s_add_u32 s{sTmp}, s{sTmp}, s{sTmp2}")
    A(f"v_mul_u32_u24 {v(T0)}, 2560, {v(vN)}")
    A(f"v_lshl_add_u32 {v(T0)}, {v(vG)}, 3, {v(T0)}")
    A(f"v_add_u32 {v(vSt)}, s{sTmp}, {v(T0)}")
    i = 0
    for t in range(8):
        A(f"s_mov_b32 s{sTmp}, {t*16*2560}")
        for rt in range(5):
            o = O[i % 4]
            i += 1
            ab = (t * 5 + rt) * 4
            for r in range(4):
                A(f"v_accvgpr_read_b32 {v(TMP+r)}, a{ab+r}")
            A(f"v_cvt_pk_bf16_f32 {v(o)}, {v(TMP)}, {v(TMP+1)}")
            A(f"v_cvt_pk_bf16_f32 {v(o+1)}, {v(TMP+2)}, {v(TMP+3)}")
            A(f"buffer_store_dwordx2 {v(o,2)}, {v(vSt)}, {srd(sWO)}, s{sTmp} offen offset:{rt*32}")


def gen_a2(A, name="a2_kernel"):
    kernel_header(A, name)
    Lend = A.newlabel("Lend")
    a_prologue(A, Lend, 81)
    A("s_lshl_b32 s3, s2, 2")
    A(f"s_add_u32 s{sH}, s3, s{sWave}")
    A(f"s_cmp_gt_u32 s{sH}, 320")
    A(f"s_cbranch_scc1 {Lend}")
    a2_body(A, "")
    A.label(Lend)
    A("s_endpgm")
    return kernel_desc(name, 512, 102, 256)


def a2_body(A, sc):
    OOB = 0x7ff00000
    R = RegAlloc(6, 256)
    T0, T1, vL16, vYi, vZ = R.alloc(), R.alloc(), R.alloc(), R.alloc(), R.alloc()
    DAT = R.alloc(96)
    ACC = R.alloc(64)
    TW = R.alloc(64)
    TMP = R.alloc(8)
    sIm = 50

    def dat(part, hl, idx):
        return DAT + ((part * 2 + hl) * 4 + idx) * 4

    def c64(cs, hl, tile, ks):
        return a((((cs * 2 + hl) * 4 + tile) * 2 + ks) * 4, 4)

    def c32(cs, hl, tile):
        return a(128 + ((cs * 2 + hl) * 2 + tile) * 4, 4)

    def acc(ri, i):
        return ACC + (ri * 8 + i) * 4
    A(f"v_lshlrev_b32 {v(vL16)}, 4, {v(vLane)}")
    A(f"s_sub_u32 s{sTmp}, s{sH}, 1")
    A(f"s_cmp_lt_u32 s{sTmp}, 319")
    A(f"s_cselect_b32 s{sIm}, 0, {OOB:#x}")
    A(f"v_add_u32 {v(vYi)}, s{sIm}, {v(vL16)}")
    A(f"s_lshl_b32 s{sTmp}, s{sH}, 13")
    A(f"s_add_u32 s{sTmp}, s{sTmp}, {WS_Y:#x}")
    A(f"s_add_u32 s{sTmp2}, s{sTmp}, {320*8192}")
    for hl in range(2):
        for i in range(4):
            A(f"s_add_u32 s51, s{sTmp}, {hl*4096}")
            A(f"buffer_load_dwordx4 {v(dat(0,hl,i),4)}, {v(vL16)}, {srd(sWS)}, s51 offen offset:{i*1024}")
            A(f"s_add_u32 s51, s{sTmp2}, {hl*4096}")
            A(f"buffer_load_dwordx4 {v(dat(1,hl,i),4)}, {v(vYi)}, {srd(sWS)}, s51 offen offset:{i*1024}")
    for i in range(8):
        A(f"s_mov_b32 s51, {WS_C32 + i*1024:#x}")
        A(f"buffer_load_dwordx4 {a(128+i*4,4)}, {v(vL16)}, {srd(sWS)}, s51 offen")

    def load_tw(base):
        for i in range(16):
            A(f"s_mov_b32 s51, {base + i*1024:#x}")
            A(f"buffer_load_dwordx4 {v(TW+i*4,4)}, {v(vL16)}, {srd(sWS)}, s51 offen")
    load_tw(WS_TW1)
    for i in range(32):
        A(f"s_mov_b32 s51, {WS_C64 + i*1024:#x}")
        A(f"buffer_load_dwordx4 {a(i*4,4)}, {v(vL16)}, {srd(sWS)}, s51 offen")

    def negate(part):
        for hl in range(2):
            for i in range(16):
                A(f"v_xor_b32 {v(dat(2,hl,0)+i)}, 0x80008000, {v(dat(part,hl,0)+i)}")

    def cmm(tiles, data_first, fwd):
        A.nop(2)
        terms = {0: [(0, 0), (1 if fwd else 2, 1)], 1: [(1, 0), (2 if fwd else 0, 1)]}
        seqs = []
        for ai, ksl in tiles:
            for ri in range(2):
                sq = []
                for didx, cf in ksl:
                    for part, cs in terms[ri]:
                        for dh, ch in (((0, 0), (1, 0)) if HI2 else ((0, 0), (1, 0), (0, 1))):
                            sq.append((acc(ri, ai), dat(part, dh, didx), cf(cs, ch)))
                seqs.append(sq)
        n = len(seqs[0])
        for j in range(n):
            for sq in seqs:
                ac, d, c = sq[j]
                cc = "0" if j == 0 else v(ac, 4)
                if data_first:
                    A(f"v_mfma_f32_16x16x32_bf16 {v(ac,4)}, {v(d,4)}, {c}, {cc}")
                else:
                    A(f"v_mfma_f32_16x16x32_bf16 {v(ac,4)}, {c}, {v(d,4)}, {cc}")
        A.nop(8)

    def twiddle(conj):
        for i in range(8):
            for r in range(4):
                xr, xi, c, s_ = acc(0, i) + r, acc(1, i) + r, TW + i * 4 + r, TW + 32 + i * 4 + r
                A(f"v_mul_f32 {v(T0)}, {v(xr)}, {v(c)}")
                A(f"v_mul_f32 {v(T1)}, {v(xi)}, {v(c)}")
                if not conj:
                    A(f"v_fma_f32 {v(T0)}, {v(xi)}, {v(s_)}, {v(T0)}")
                    A(f"v_fma_f32 {v(xi)}, -{v(xr)}, {v(s_)}, {v(T1)}")
                else:
                    A(f"v_fma_f32 {v(T0)}, -{v(xi)}, {v(s_)}, {v(T0)}")
                    A(f"v_fma_f32 {v(xi)}, {v(xr)}, {v(s_)}, {v(T1)}")
                A(f"v_mov_b32 {v(xr)}, {v(T0)}")

    def to_frags(pairs):
        for ri in range(2):
            for didx, ta, tb in pairs:
                for h, tt in enumerate((ta, tb)):
                    for q in range(2):
                        x = acc(ri, tt) + 2 * q
                        split_pack(A, x, x + 1, dat(ri, 0, didx) + h * 2 + q, dat(ri, 1, didx) + h * 2 + q, T0, T1)

    A("s_waitcnt vmcnt(48)")
    negate(0)
    cmm([(ts * 2 + tf, [(ts, lambda cs, hl, tf=tf: c32(cs, hl, tf))]) for ts in range(4) for tf in range(2)], True, True)
    A("s_waitcnt vmcnt(32)")
    twiddle(False)
    A(f"s_lshl_b32 s{sTmp}, s{sH}, 13")
    A(f"s_add_u32 s{sTmp}, s{sTmp}, {WS_WT:#x}")
    A(f"s_add_u32 s{sTmp2}, s{sTmp}, 4096")
    for i in range(8):
        A(f"buffer_load_dwordx4 {v(TW+i*4,4)}, {v(vL16)}, {srd(sWS)}, s{sTmp if i < 4 else sTmp2} offen offset:{(i%4)*1024}")
    to_frags([(tf * 2 + ks, (2 * ks) * 2 + tf, (2 * ks + 1) * 2 + tf) for tf in range(2) for ks in range(2)])
    negate(0)
    A("s_waitcnt vmcnt(8)")
    cmm([(t2 * 2 + tf, [(tf * 2 + ks, lambda cs, hl, t2=t2, ks=ks: c64(cs, hl, t2, ks)) for ks in range(2)])
         for t2 in range(4) for tf in range(2)], False, True)
    A("s_waitcnt vmcnt(0)")
    for t2 in range(4):
        for tf in range(2):
            for r in range(4):
                xr, xi = acc(0, t2 * 2 + tf) + r, acc(1, t2 * 2 + tf) + r
                wrp, wip = TW + t2 * 4 + tf * 2 + r // 2, TW + 16 + t2 * 4 + tf * 2 + r // 2
                if r % 2 == 0:
                    A(f"v_lshlrev_b32 {v(TMP)}, 16, {v(wrp)}")
                    A(f"v_lshlrev_b32 {v(TMP+1)}, 16, {v(wip)}")
                else:
                    A(f"v_and_b32 {v(TMP)}, 0xffff0000, {v(wrp)}")
                    A(f"v_and_b32 {v(TMP+1)}, 0xffff0000, {v(wip)}")
                A(f"v_mul_f32 {v(T0)}, {v(xr)}, {v(TMP)}")
                A(f"v_mul_f32 {v(T1)}, {v(xr)}, {v(TMP+1)}")
                A(f"v_fma_f32 {v(xr)}, -{v(xi)}, {v(TMP+1)}, {v(T0)}")
                A(f"v_fma_f32 {v(xi)}, {v(xi)}, {v(TMP)}, {v(T1)}")
    load_tw(WS_TW3)
    to_frags([(tf * 2 + ks, (2 * ks) * 2 + tf, (2 * ks + 1) * 2 + tf) for tf in range(2) for ks in range(2)])
    negate(1)
    cmm([(tf * 4 + ts, [(tf * 2 + ks, lambda cs, hl, ts=ts, ks=ks: c64(cs, hl, ts, ks)) for ks in range(2)])
         for tf in range(2) for ts in range(4)], True, False)
    A("s_waitcnt vmcnt(0)")
    twiddle(True)
    to_frags([(ts, ts, 4 + ts) for ts in range(4)])
    negate(1)
    cmm([(ts * 2 + t1, [(ts, lambda cs, hl, t1=t1: c32(cs, hl, t1))]) for ts in range(4) for t1 in range(2)], True, False)
    A(f"s_lshl_b32 s52, s{sWave}, 14")
    A(f"v_lshlrev_b32 {v(vZ)}, 7, {v(vN)}")
    A(f"v_lshl_add_u32 {v(vZ)}, {v(vG)}, 3, {v(vZ)}")
    A(f"v_add_u32 {v(vZ)}, s52, {v(vZ)}")
    i = 0
    for ri in range(2):
        for ts in range(4):
            for t1 in range(2):
                o = DAT + (i % 8) * 4
                i += 1
                x = acc(ri, ts * 2 + t1)
                split_pack(A, x, x + 1, o, o + 2, T0, T1)
                split_pack(A, x + 2, x + 3, o + 1, o + 3, T0, T1)
                for hl in range(2):
                    A(f"ds_write_b64 {v(vZ)}, {v(o+hl*2,2)} offset:{(ri*2+hl)*4096 + t1*2048 + ts*32}")
    A(f"v_add_u32 {v(vZ)}, s52, {v(vL16)}")
    A(f"s_lshl_b32 s{sTmp}, s{sH}, 12")
    A(f"s_add_u32 s{sTmp}, s{sTmp}, {WS_Z:#x}")
    A("s_waitcnt lgkmcnt(0)")
    for k in range(16):
        A(f"ds_read_b128 {v(ACC+k*4,4)}, {v(vZ)} offset:{k*1024}")
        if k == 11:
            A("s_waitcnt lgkmcnt(4)")
    A("s_waitcnt lgkmcnt(0)")
    for k in range(16):
        ri, hl, q = k // 8, (k // 4) % 2, k % 4
        A(f"s_add_u32 s51, s{sTmp}, {ri*320*4096 + hl*640*4096}")
        A(f"buffer_store_dwordx4 {v(ACC+k*4,4)}, {v(vL16 if ri == 0 else vYi)}, {srd(sWS)}, s51 offen offset:{q*1024}{sc}")
```

```python
import struct
from asmlib import *
from layout import *


def f32bits(x):
    return struct.unpack("<I", struct.pack("<f", x))[0]


SPIN_MAX = 400000
WARM = 1
NST = 64
CDELAY = 7
KC = 1
DSLEEP = 24
AALL = 1
ADELAY = 0
VSPLIT = 4
EARLY = 1
VM1 = 4
VM2 = 6
KLATE = 0
PDELAY = 0
OOB = 0x7ff00000


def gen_rec(A, name="rec_kernel", prof=False, nsteps=64, exp=(), wrole=None):
    kernel_header(A, name)
    sWS, sM0, sW, sDBG = 4, 8, 12, 32
    sX, sT, sGrp, sMemb, sWave, sStep, sMode, sCnt = 36, 37, 38, 39, 40, 41, 42, 43
    sOffKM, sOffC, sOffD, sOffK, sTmp, sTmp2, sH, sOffU = 44, 45, 46, 47, 48, 49, 50, 51
    sRA, sRC, sRD, sRAp, sRCp, sRDp, sWarm, sOffUM = 90, 91, 92, 93, 94, 95, 96, 101
    sRCB = 101
    sMaskG = 54
    sC = 58
    sEnd = 59
    sCnts = 60
    sPr = 70
    R = RegAlloc(1, 256)
    vLane, vN, vG, vN8 = R.alloc(), R.alloc(), R.alloc(), R.alloc()
    vT0, vT1, vT2, vT3 = R.alloc(), R.alloc(), R.alloc(), R.alloc()
    vD0, vD2 = R.alloc(), R.alloc()
    vRAw, vRAr, vAst, vKMst = R.alloc(), R.alloc(), R.alloc(), R.alloc()
    vRAr2, vAst2, vVMst = R.alloc(), R.alloc(), R.alloc()
    vQo, vKo = R.alloc(), R.alloc()
    vRCw, vRCr, vCst = R.alloc(), R.alloc(), R.alloc()
    vCg = R.alloc(8)
    vDst = R.alloc()
    vK0, vK1, vU = R.alloc(), R.alloc(), R.alloc()
    vWarm = R.alloc()
    vNinf = R.alloc()
    vFlag, vSig, vOne = R.alloc(), R.alloc(), R.alloc()
    vU2 = R.alloc()
    vOnes = R.alloc(4)
    vSent = R.alloc(4)
    vDummy = R.alloc(4)
    vPub = R.alloc(2)
    vPub2 = R.alloc(2)
    assert R.next <= 64
    M = R.alloc(12)
    Mr = R.alloc(8)
    accA = R.alloc(24)
    Q = R.alloc(8)
    Qr = R.alloc(8)
    KM = R.alloc(16)
    VM = R.alloc(16)
    acc1, acc2, acc0 = R.alloc(4), R.alloc(4), R.alloc(4)
    accU = R.alloc(12)
    UA = R.alloc(6)
    P0 = R.alloc(4)
    PM, Blo = R.alloc(2), R.alloc(2)
    vMx, vMx2 = R.alloc(), R.alloc()
    vRz = R.alloc(2)
    accZ = R.alloc(4)
    accC = R.alloc(12)
    Cg = R.alloc(16)
    CR = KM
    TMP = 64
    aWA, aWC, aK, aU, aUn = 0, 120, 168, 200, 212

    def WA(t, ks):
        return a(aWA + (t * 5 + ks) * 4, 4)

    def WC(t, s_):
        return a(aWC + (t * 4 + s_) * 4, 4)

    LDS_RA = 65536
    LDS_RC = 65536 + 12288
    LDS_ROLE = 163840 - 16

    Lend = A.newlabel("Lend")
    Lfail = A.newlabel("Lfail")
    WSR = f"s[{sWS}:{sWS+3}]"

    def rtl(cond8=False):
        if "tl" not in exp:
            return
        Ls = A.newlabel("Lrtl")
        A(f"s_cmp_lg_u32 s{sWave}, 3")
        A(f"s_cbranch_scc1 {Ls}")
        if cond8:
            A(f"s_and_b32 s70, s{sStep}, 7")
            A(f"s_cmp_lg_u32 s70, 0")
            A(f"s_cbranch_scc1 {Ls}")
        A("s_memrealtime s[72:73]")
        A("s_waitcnt lgkmcnt(0)")
        A("s_mov_b64 exec, 1")
        A(f"v_mov_b32 {v(vT0)}, s72")
        A(f"v_mov_b32 {v(vT1)}, 0")
        A(f"buffer_store_dword {v(vT0)}, {v(vT1)}, {WSR}, s71 offen")
        A("s_mov_b64 exec, -1")
        A("s_add_u32 s71, s71, 4")
        A.label(Ls)

    def stamp(i):
        if not prof:
            return
        if "rt" in exp:
            Ls = A.newlabel("Lst")
            A(f"s_cmp_lg_u32 s{sStep}, {30 if i != 13 else 31}")
            A(f"s_cbranch_scc1 {Ls}")
            A(f"s_memrealtime s[88:89]")
            A("s_waitcnt lgkmcnt(0)")
            A(f"s_mov_b32 s{sPr+i}, s88")
            A.label(Ls)
            return
        A(f"s_memtime s[88:89]")
        A("s_waitcnt lgkmcnt(0)")
        A(f"s_sub_u32 s{sTmp2}, s88, s86")
        A(f"s_add_u32 s{sPr+i}, s{sPr+i}, s{sTmp2}")
        A("s_mov_b32 s86, s88")

    sKX, sKT, sKR = 98, 99, 97
    assert not prof or not wrole
    A("s_cmp_ge_u32 s2, 256")
    A(f"s_cbranch_scc1 {Lend}")
    if "tl" in exp:
        A("s_memrealtime s[68:69]")
    A(f"s_mov_b32 s{sKR}, 0")
    Lentry = A.newlabel("Lentry")
    A.label(Lentry)
    A("s_waitcnt vmcnt(0) lgkmcnt(0)")
    A("s_load_dwordx8 s[16:23], s[0:1], 32")
    A("s_load_dwordx2 s[24:25], s[0:1], 64")
    A("s_load_dwordx4 s[28:31], s[0:1], 88")
    A(f"v_and_b32 {v(vLane)}, 63, v0")
    A(f"v_lshrrev_b32 {v(vT0)}, 6, v0")
    A(f"v_and_b32 {v(vN)}, 15, v0")
    A(f"v_readfirstlane_b32 s{sWave}, {v(vT0)}")
    A(f"v_bfe_u32 {v(vG)}, v0, 4, 2")
    A(f"v_and_b32 {v(vN8)}, 7, v0")
    A("s_waitcnt lgkmcnt(0)")
    make_srd(A, sWS, 30, WS_BYTES)
    make_srd(A, sM0, 16, 10240)
    make_srd(A, sDBG, 28, 256)
    make_srd(A, sW, 18, 640 * 4096 * 2)

    def confirm(swave, force_jump=False):
        Lskip, Lw0, Lp = A.newlabel("Lcf"), A.newlabel("Lcf0"), A.newlabel("Lcfp")
        A(f"s_cmp_lg_u32 s{sKR}, 0")
        A(f"s_cbranch_scc1 {Lskip}")
        A(f"s_cmp_lg_u32 s{swave}, 0")
        A(f"s_cbranch_scc1 {Lw0}")
        A("v_and_b32 v4, 63, v0")
        A("v_lshlrev_b32 v4, 8, v4")
        A(f"v_add_u32 v4, {WS_CNT:#x}, v4")
        A("s_mov_b64 exec, 0xff")
        A("s_mov_b32 s43, 0")
        A.label(Lp)
        A("buffer_load_dword v5, v4, s[4:7], 0 offen sc1")
        A("s_waitcnt vmcnt(0)")
        for i in range(8):
            A(f"v_readlane_b32 s{sCnts+i}, v5, {i}")
        A("s_nop 3")
        A(f"s_add_u32 s48, s{sCnts}, s{sCnts+1}")
        for i in range(2, 8):
            A(f"s_add_u32 s48, s48, s{sCnts+i}")
        A("s_add_u32 s43, s43, 1")
        A(f"s_cmp_gt_u32 s43, {SPIN_MAX}")
        Lok = A.newlabel("Lcfo")
        A(f"s_cbranch_scc0 {Lok}")
        A("s_endpgm")
        A.label(Lok)
        A("s_cmp_lt_u32 s48, 256")
        A(f"s_cbranch_scc1 {Lp}")
        A(f"s_min_u32 s48, s{sCnts}, s{sCnts+1}")
        for i in range(2, 8):
            A(f"s_min_u32 s48, s48, s{sCnts+i}")
        A(f"s_mov_b32 s49, s{sKT}")
        for i in range(7):
            A(f"s_cmp_gt_u32 s{sKX}, {i}")
            A(f"s_cselect_b32 s43, s{sCnts+i}, 0")
            A("s_add_u32 s49, s49, s43")
        A("s_or_b32 s49, s49, 0x300")
        A(f"s_lshl_b32 s43, s{sKX}, 5")
        A(f"s_add_u32 s43, s43, s{sKT}")
        A("s_or_b32 s43, s43, 0x200")
        A(f"s_cmp_ge_u32 s48, {33 if 'slow' in exp else 32}")
        A("s_cselect_b32 s43, s43, s49")
        A("s_mov_b64 exec, 1")
        A(f"v_mov_b32 v4, {LDS_ROLE}")
        A("v_mov_b32 v5, s43")
        A("ds_write_b32 v4, v5")
        A("s_waitcnt lgkmcnt(0)")
        A("s_mov_b64 exec, -1")
        A.label(Lw0)
        A("s_barrier")
        A(f"v_mov_b32 v4, {LDS_ROLE}")
        A("ds_read_b32 v5, v4")
        A("s_waitcnt lgkmcnt(0)")
        A(f"v_readfirstlane_b32 s{sKR}, v5")
        A("s_nop 3")
        A("s_barrier")
        if force_jump:
            A(f"s_branch {Lentry}")
        else:
            A(f"s_bitcmp1_b32 s{sKR}, 8")
            A(f"s_cbranch_scc0 {Lskip}")
            A(f"s_branch {Lentry}")
        A.label(Lskip)

    Lhave = A.newlabel("Lhave")
    A(f"s_mov_b32 s{sCnt}, s{sKR}")
    A(f"s_cmp_lg_u32 s{sKR}, 0")
    A(f"s_cbranch_scc1 {Lhave}")
    A(f"s_getreg_b32 s{sKX}, hwreg(HW_REG_XCC_ID)")
    A(f"s_and_b32 s{sKX}, s{sKX}, 7")
    Lel_done = A.newlabel("Lel")
    A(f"s_cmp_lg_u32 s{sWave}, 0")
    A(f"s_cbranch_scc1 {Lel_done}")
    A(f"s_lshl_b32 s{sTmp}, s{sKX}, 8")
    A(f"s_add_u32 s{sTmp}, s{sTmp}, {WS_CNT:#x}")
    A(f"v_mov_b32 {v(vT0)}, s{sTmp}")
    A(f"v_mov_b32 {v(vT1)}, 1")
    A("s_mov_b64 exec, 1")
    A(f"buffer_atomic_add {v(vT1)}, {v(vT0)}, {WSR}, 0 offen sc0")
    A(f"v_mov_b32 {v(vT0)}, {LDS_ROLE}")
    A("s_waitcnt vmcnt(0)")
    A(f"ds_write_b32 {v(vT0)}, {v(vT1)}")
    A("s_waitcnt lgkmcnt(0)")
    A("s_mov_b64 exec, -1")
    A.label(Lel_done)
    A("s_barrier")
    A(f"v_mov_b32 {v(vT0)}, {LDS_ROLE}")
    A(f"ds_read_b32 {v(vT1)}, {v(vT0)}")
    A("s_waitcnt lgkmcnt(0)")
    A(f"v_readfirstlane_b32 s{sKT}, {v(vT1)}")
    A("s_nop 3")
    A("s_barrier")
    Lsp = A.newlabel("Lsp")
    A(f"s_cmp_lt_u32 s{sKT}, 32")
    A(f"s_cbranch_scc1 {Lsp}")
    confirm(sWave, force_jump=True)
    A.label(Lsp)
    A(f"s_lshl_b32 s{sCnt}, s{sKX}, 5")
    A(f"s_add_u32 s{sCnt}, s{sCnt}, s{sKT}")
    A.label(Lhave)
    A(f"s_bfe_u32 s{sMode}, s{sCnt}, 0x10008")
    A(f"s_and_b32 s{sCnt}, s{sCnt}, 255")
    Lw = A.newlabel("Lwrole")
    Lr = A.newlabel("Lrrole")
    A(f"s_cmp_ge_u32 s{sCnt}, 128")
    if wrole:
        A(f"s_cbranch_scc0 {Lr}")
        A(f"s_branch {Lw}")
        A.label(Lr)
    else:
        A(f"s_cbranch_scc0 {Lr}")
        confirm(sWave)
        A(f"s_branch {Lend}")
        A.label(Lr)
    A(f"s_lshr_b32 s{sGrp}, s{sCnt}, 4")
    A(f"s_and_b32 s{sMemb}, s{sCnt}, 15")
    A(f"s_lshl_b32 s71, s{sCnt}, 8")
    A(f"s_add_u32 s71, s71, {WS_PROF:#x}")
    if "tl" in exp:
        A("s_mov_b64 exec, 1")
        A(f"v_mov_b32 {v(vT0)}, s68")
        A(f"v_mov_b32 {v(vT1)}, 0")
        A(f"buffer_store_dword {v(vT0)}, {v(vT1)}, {WSR}, s71 offen")
        A("s_mov_b64 exec, -1")
        A("s_add_u32 s71, s71, 4")
    rtl()

    A(f"s_mov_b32 s{sMaskG}, -1")
    A(f"s_mov_b32 s{sMaskG+1}, 0")
    A(f"s_mov_b32 s{sC}, {f32bits(SCALE*LOG2E):#x}")
    A(f"v_mov_b32 {v(vNinf)}, 0xff800000")
    for i in range(4):
        A(f"v_mov_b32 {v(vOnes+i)}, 0x3f803f80")
        A(f"v_mov_b32 {v(vSent+i)}, -1")

    A(f"s_lshr_b32 s{sTmp}, s{sMemb}, 2")
    A(f"s_lshl_b32 s{sH}, s{sGrp}, 2")
    A(f"s_add_u32 s{sH}, s{sH}, s{sTmp}")
    A(f"s_and_b32 s{sTmp}, s{sMemb}, 3")
    A(f"s_lshl_b32 s{sTmp2}, s{sH}, 8")
    A(f"s_lshl_b32 s{sCnt}, s{sTmp}, 6")
    A(f"s_add_u32 s{sTmp2}, s{sTmp2}, s{sCnt}")
    A(f"s_mul_i32 s{sCnt}, s{sWave}, {160*8192}")
    A(f"s_add_u32 s{sTmp2}, s{sTmp2}, s{sCnt}")
    A(f"v_lshrrev_b32 {v(vT0)}, 2, {v(vLane)}")
    A(f"v_lshlrev_b32 {v(vT0)}, 13, {v(vT0)}")
    A(f"v_and_b32 {v(vT1)}, 3, {v(vLane)}")
    A(f"v_lshl_add_u32 {v(vT0)}, {v(vT1)}, 4, {v(vT0)}")
    A(f"v_add_u32 {v(vT0)}, s{sTmp2}, {v(vT0)}")
    for m in range(3):
        if m:
            make_srd(A, sW, 18 + 2 * m, 640 * 4096 * 2)
        for i in range(10):
            A(f"s_mov_b32 s{sCnt}, {i*131072}")
            A(f"buffer_load_dwordx4 {v(TMP+(m*10+i)*4,4)}, {v(vT0)}, s[{sW}:{sW+3}], s{sCnt} offen")
    make_srd(A, sW, 24, 4096 * 640 * 2)
    A(f"s_lshl_b32 s{sTmp2}, s{sGrp}, 2")
    A(f"s_add_u32 s{sTmp2}, s{sTmp2}, s{sWave}")
    A(f"s_mul_i32 s{sTmp2}, s{sTmp2}, {128*1280}")
    A(f"s_mul_i32 s{sCnt}, s{sMemb}, 80")
    A(f"s_add_u32 s{sTmp2}, s{sTmp2}, s{sCnt}")
    A(f"v_lshrrev_b32 {v(vT1)}, 3, {v(vLane)}")
    A(f"v_mul_u32_u24 {v(vT1)}, 1280, {v(vT1)}")
    A(f"v_and_b32 {v(vT2)}, 7, {v(vLane)}")
    A(f"v_lshl_add_u32 {v(vT1)}, {v(vT2)}, 4, {v(vT1)}")
    A(f"v_add_u32 {v(vT1)}, s{sTmp2}, {v(vT1)}")
    for i in range(16):
        A(f"s_mov_b32 s{sCnt}, {i*8*1280}")
        A(f"buffer_load_dwordx4 {v(TMP+120+i*4,4)}, {v(vT1)}, s[{sW}:{sW+3}], s{sCnt} offen")
    A(f"s_lshl_b32 s{sTmp2}, s{sWave}, 14")
    A(f"v_lshlrev_b32 {v(vT0)}, 4, {v(vLane)}")
    A(f"v_add_u32 {v(vT0)}, s{sTmp2}, {v(vT0)}")
    A(f"v_lshrrev_b32 {v(vT1)}, 2, {v(vN)}")
    A(f"v_lshl_add_u32 {v(vT2)}, {v(vG)}, 3, {v(vT1)}")
    A(f"v_lshlrev_b32 {v(vT2)}, 6, {v(vT2)}")
    A(f"v_and_b32 {v(vT3)}, 3, {v(vN)}")
    A(f"v_lshl_add_u32 {v(vT2)}, {v(vT3)}, 3, {v(vT2)}")
    A(f"v_add_u32 {v(vT2)}, s{sTmp2}, {v(vT2)}")
    for m in range(3):
        A(f"s_waitcnt vmcnt({(2-m)*10+16})")
        for i in range(10):
            A(f"ds_write_b128 {v(vT0)}, {v(TMP+(m*10+i)*4,4)} offset:{i*1024}")
        for tt in range(2):
            for ks in range(5):
                r0 = aWA + ((m * 2 + tt) * 5 + ks) * 4
                A(f"ds_read_b64_tr_b16 {a(r0,2)}, {v(vT2)} offset:{ks*2048+tt*32}")
                A(f"ds_read_b64_tr_b16 {a(r0+2,2)}, {v(vT2)} offset:{ks*2048+tt*32+256}")
            A("s_waitcnt lgkmcnt(0)")
    A(f"v_lshl_add_u32 {v(vT2)}, {v(vG)}, 2, {v(vT1)}")
    A(f"v_lshlrev_b32 {v(vT2)}, 7, {v(vT2)}")
    A(f"v_lshl_add_u32 {v(vT2)}, {v(vT3)}, 3, {v(vT2)}")
    A(f"v_add_u32 {v(vT2)}, s{sTmp2}, {v(vT2)}")
    A("s_waitcnt vmcnt(0)")
    for i in range(16):
        A(f"ds_write_b128 {v(vT0)}, {v(TMP+120+i*4,4)} offset:{i*1024}")
        if i % 8 == 7:
            A("s_waitcnt lgkmcnt(0)")
    for tt in range(3):
        for s_ in range(4):
            r0 = aWC + (tt * 4 + s_) * 4
            A(f"ds_read_b64_tr_b16 {a(r0,2)}, {v(vT2)} offset:{s_*4096+tt*32}")
            A(f"ds_read_b64_tr_b16 {a(r0+2,2)}, {v(vT2)} offset:{s_*4096+tt*32+2048}")
        A("s_waitcnt lgkmcnt(0)")

    confirm(sWave)
    A(f"v_and_b32 {v(vN8)}, 7, v0")
    if wrole:
        import parta
        A("s_load_dwordx4 s[24:27], s[0:1], 8")
        A(f"s_lshl_b32 s{sEnd}, s{sGrp}, 4")
        A(f"s_add_u32 s{sEnd}, s{sEnd}, s{sMemb}")
        A("s_waitcnt lgkmcnt(0)")
        Lcu, Lcx, Lcy = A.newlabel("Lcu"), A.newlabel("Lcx"), A.newlabel("Lcy")
        A(f"s_cmp_lg_u32 s{sEnd}, 0")
        A(f"s_cbranch_scc1 {Lcy}")
        A(f"s_branch {Lcx}")
        A.label(Lcy)
        A(f"s_sub_u32 s{sEnd}, s{sEnd}, 1")
        parta.wt_batch(A, sEnd, sWave)
        A.label(Lcu)
        parta.const_unit(A, sEnd)
        A(f"s_add_u32 s{sEnd}, s{sEnd}, 127")
        A(f"s_cmp_le_u32 s{sEnd}, {parta.NB_FG}")
        A(f"s_cbranch_scc1 {Lcu}")
        A.label(Lcx)
        A("s_waitcnt vmcnt(0)")
        A("s_barrier")
        A("s_mov_b64 exec, 1")
        A("v_mov_b32 v1, 1")
        A("v_mov_b32 v2, 0")
        A(f"s_mov_b32 s{sTmp}, {WS_CNT + CNT_CONST:#x}")
        A(f"buffer_atomic_add v1, v2, {WSR}, s{sTmp} offen")
        A("s_mov_b64 exec, -1")
        A("s_load_dwordx2 s[16:17], s[0:1], 32")
        A(f"v_and_b32 {v(vLane)}, 63, v0")
        A(f"v_and_b32 {v(vN)}, 15, v0")
        A(f"v_bfe_u32 {v(vG)}, v0, 4, 2")
        A(f"v_and_b32 {v(vN8)}, 7, v0")
        A(f"v_mov_b32 {v(vNinf)}, 0xff800000")
        for i in range(4):
            A(f"v_mov_b32 {v(vOnes+i)}, 0x3f803f80")
            A(f"v_mov_b32 {v(vSent+i)}, -1")
        A("s_waitcnt lgkmcnt(0)")
        make_srd(A, sM0, 16, 10240)
    A(f"v_mul_u32_u24 {v(vT0)}, 1280, {v(vN8)}")
    A(f"v_lshl_add_u32 {v(vT0)}, {v(vG)}, 4, {v(vT0)}")
    A(f"s_mul_i32 s{sTmp}, s{sWave}, 320")
    A(f"v_add_u32 {v(vT0)}, s{sTmp}, {v(vT0)}")
    A(f"v_add_u32 {v(Cg+1)}, 256, {v(vT0)}")
    A(f"v_lshrrev_b32 {v(vT1)}, 3, {v(vN)}")
    A(f"v_lshl_add_u32 {v(Cg)}, {v(vT1)}, 6, {v(vT0)}")
    A(f"s_mul_i32 s{sTmp}, s{sWave}, 2560")
    A(f"v_lshlrev_b32 {v(vT0)}, 4, {v(vLane)}")
    A(f"v_add_u32 {v(vD0)}, s{sTmp}, {v(vT0)}")
    A(f"v_lshl_add_u32 {v(vT1)}, {v(vG)}, 3, {v(vN8)}")
    A(f"v_lshlrev_b32 {v(vT1)}, 4, {v(vT1)}")
    A(f"s_add_u32 s{sTmp}, s{sTmp}, 2048")
    A(f"v_add_u32 {v(vD2)}, s{sTmp}, {v(vT1)}")
    A(f"s_lshl_b32 s{sTmp2}, s{sGrp}, 2")
    A(f"s_add_u32 s{sTmp2}, s{sTmp2}, s{sWave}")
    A(f"s_mul_i32 s{sTmp}, s{sTmp2}, 6144")
    A(f"v_add_u32 {v(vQo)}, s{sTmp}, {v(vT0)}")
    A(f"v_add_u32 {v(vKo)}, 2048, {v(vQo)}")
    A(f"s_lshl_b32 s{sTmp}, s{sTmp2}, 13")
    A(f"v_add_u32 {v(vK0)}, s{sTmp}, {v(vT0)}")
    A(f"v_add_u32 {v(vK1)}, 4096, {v(vK0)}")
    A(f"s_mul_i32 s{sTmp}, s{sTmp2}, 40960")
    A(f"s_mul_i32 s{sCnt}, s{sMemb}, 2560")
    A(f"s_add_u32 s{sTmp}, s{sTmp}, s{sCnt}")
    A(f"v_lshrrev_b32 {v(vT2)}, 3, {v(vN)}")
    A(f"v_lshl_add_u32 {v(vU)}, {v(vT2)}, 9, {v(vT1)}")
    A(f"v_add_u32 {v(vU)}, s{sTmp}, {v(vU)}")
    A(f"v_mov_b32 {v(vU2)}, {OOB:#x}")
    A(f"v_cmp_gt_u32 vcc, 8, {v(vN)}")
    A("s_nop 1")
    A(f"v_cndmask_b32 {v(vU2)}, {v(vU2)}, {v(vU)}, vcc")
    A(f"s_mul_i32 s{sTmp}, s{sWave}, 3072")
    A(f"s_add_u32 s{sCnt}, s{sTmp}, {LDS_RA}")
    A(f"v_add_u32 {v(vRAw)}, s{sCnt}, {v(vT0)}")
    A(f"s_add_u32 s{sCnt}, s{sTmp}, {LDS_RC}")
    A(f"v_add_u32 {v(vRCw)}, s{sCnt}, {v(vT0)}")
    def reader(ubase_mul, ubase_add, nl, rdst, adst, pdst, pbase):
        A(f"s_mul_i32 s{sTmp}, s{sWave}, {ubase_mul}")
        A(f"s_add_u32 s{sTmp}, s{sTmp}, {ubase_add}")
        A(f"v_add_u32 {v(vT0)}, s{sTmp}, {v(vLane)}")
        A(f"v_lshrrev_b32 {v(vT1)}, 6, {v(vT0)}")
        A(f"v_bfe_u32 {v(vT2)}, {v(vT0)}, 1, 3")
        A(f"v_bfe_u32 {v(vT3)}, {v(vT0)}, 4, 2")
        A(f"v_and_b32 {v(vT0)}, 1, {v(vT0)}")
        A(f"v_lshl_add_u32 {v(rdst)}, {v(vT3)}, 4, {v(vT2)}")
        A(f"v_lshlrev_b32 {v(adst)}, 4, {v(rdst)}")
        A(f"v_lshl_add_u32 {v(rdst)}, {v(vT0)}, 3, {v(rdst)}")
        A(f"v_lshlrev_b32 {v(rdst)}, 4, {v(rdst)}")
        A(f"v_lshl_add_u32 {v(rdst)}, {v(vT1)}, 10, {v(rdst)}")
        A(f"v_add_u32 {v(rdst)}, {LDS_RA}, {v(rdst)}")
        A(f"s_and_b32 s{sTmp}, s{sMemb}, 3")
        A(f"s_lshr_b32 s{sTmp2}, s{sTmp}, 1")
        A(f"s_lshl_b32 s{sTmp2}, s{sTmp2}, 10")
        A(f"s_and_b32 s{sCnt}, s{sTmp}, 1")
        A(f"s_lshl_b32 s{sCnt}, s{sCnt}, 7")
        A(f"s_add_u32 s{sTmp2}, s{sTmp2}, s{sCnt}")
        A(f"s_mul_i32 s{sCnt}, s{sH}, 6144")
        A(f"s_add_u32 s{sTmp2}, s{sTmp2}, s{sCnt}")
        A(f"v_add_u32 {v(adst)}, s{sTmp2}, {v(adst)}")
        A(f"v_lshl_add_u32 {v(adst)}, {v(vT0)}, 3, {v(adst)}")
        A(f"v_lshl_add_u32 {v(adst)}, {v(vT1)}, 11, {v(adst)}")
        A(f"s_lshl_b32 s{sTmp2}, s{sTmp}, 9")
        A(f"s_lshl_b32 s{sCnt}, s{sH}, 11")
        A(f"s_add_u32 s{sTmp2}, s{sTmp2}, s{sCnt}")
        A(f"s_add_u32 s{sTmp2}, s{sTmp2}, {pbase:#x}")
        A(f"v_lshl_add_u32 {v(vT2)}, {v(vT3)}, 3, {v(vT2)}")
        A(f"v_lshlrev_b32 {v(vT2)}, 4, {v(vT2)}")
        A(f"v_lshl_add_u32 {v(vT2)}, {v(vT0)}, 3, {v(vT2)}")
        A(f"v_add_u32 {v(pdst)}, s{sTmp2}, {v(vT2)}")
        A(f"v_mov_b32 {v(vT3)}, {OOB:#x}")
        A(f"v_cmp_eq_u32 vcc, 0, {v(vT1)}")
        A("s_nop 1")
        A(f"v_cndmask_b32 {v(pdst)}, {v(pdst)}, {v(vT3)}, vcc")
        A(f"v_cmp_gt_u32 vcc, {nl}, {v(vLane)}")
        A("s_nop 1")
        A(f"v_cndmask_b32 {v(pdst)}, {v(vT3)}, {v(pdst)}, vcc")
        A(f"v_cndmask_b32 {v(adst)}, {v(vT3)}, {v(adst)}, vcc")
        A(f"v_cndmask_b32 {v(rdst)}, {v(vRAw)}, {v(rdst)}, vcc")
    reader(32, 0, 32, vRAr, vAst, vKMst, 0)
    reader(16, 128, 16, vRAr2, vAst2, vVMst, WS_VM - WS_KM)
    A(f"s_and_b32 s{sTmp}, s{sGrp}, 1")
    A(f"s_cmp_lt_u32 s{sWave}, 2")
    A(f"s_cselect_b32 s{sTmp}, s{sWave}, s{sTmp}")
    A(f"v_lshrrev_b32 {v(vT1)}, 3, {v(vLane)}")
    A(f"v_and_b32 {v(vT2)}, 1, {v(vLane)}")
    A(f"v_lshl_add_u32 {v(vT0)}, {v(vT1)}, 1, {v(vT2)}")
    A(f"v_bfe_u32 {v(vT2)}, {v(vLane)}, 1, 2")
    A(f"s_lshl_b32 s{sTmp2}, s{sTmp}, 2")
    A(f"v_add_u32 {v(vT2)}, s{sTmp2}, {v(vT2)}")
    A(f"v_and_b32 {v(vT3)}, 3, {v(vT0)}")
    A(f"v_lshl_add_u32 {v(vT3)}, {v(vT3)}, 4, {v(vT2)}")
    A(f"v_lshlrev_b32 {v(vT3)}, 4, {v(vT3)}")
    A(f"v_lshrrev_b32 {v(vT0)}, 2, {v(vT0)}")
    A(f"v_lshl_add_u32 {v(vT3)}, {v(vT0)}, 10, {v(vT3)}")
    A(f"v_add_u32 {v(vRCr)}, {LDS_RC}, {v(vT3)}")
    A(f"s_mul_i32 s{sCnt}, s{sMemb}, 43")
    A(f"s_lshr_b32 s{sCnt}, s{sCnt}, 8")
    A(f"s_mul_i32 s{sTmp2}, s{sMemb}, 1280")
    A(f"s_mul_i32 s{sCnt}, s{sCnt}, {16384 - 6*1280}")
    A(f"s_add_u32 s{sTmp2}, s{sTmp2}, s{sCnt}")
    A(f"s_mul_i32 s{sTmp}, s{sTmp}, 640")
    A(f"s_add_u32 s{sTmp}, s{sTmp}, s{sTmp2}")
    A(f"v_lshlrev_b32 {v(vT0)}, 4, {v(vLane)}")
    A(f"v_add_u32 {v(vCst)}, s{sTmp}, {v(vT0)}")
    for r in range(1, 8):
        A(f"s_xor_b32 s{sTmp2}, s{sGrp}, {r}")
        A(f"s_mul_i32 s{sTmp2}, s{sTmp2}, {RC_GRP}")
        A(f"v_add_u32 {v(vCg+r)}, s{sTmp2}, {v(vCst)}")
    A(f"s_mul_i32 s{sTmp}, s{sMemb}, 5")
    A(f"v_add_u32 {v(vT1)}, s{sTmp}, {v(vT1)}")
    A(f"v_lshlrev_b32 {v(vDst)}, 4, {v(vT2)}")
    A(f"v_and_b32 {v(vT2)}, 1, {v(vLane)}")
    A(f"v_lshl_add_u32 {v(vDst)}, {v(vT2)}, 3, {v(vDst)}")
    A(f"v_mul_u32_u24 {v(vT2)}, 205, {v(vT1)}")
    A(f"v_lshrrev_b32 {v(vT2)}, 12, {v(vT2)}")
    A(f"v_mul_u32_u24 {v(vT3)}, 20, {v(vT2)}")
    A(f"v_sub_u32 {v(vT1)}, {v(vT1)}, {v(vT3)}")
    A(f"v_mul_u32_u24 {v(vT2)}, 2560, {v(vT2)}")
    A(f"v_add_u32 {v(vDst)}, {v(vDst)}, {v(vT2)}")
    A(f"v_and_b32 {v(vT2)}, 3, {v(vT1)}")
    A(f"v_lshrrev_b32 {v(vT1)}, 2, {v(vT1)}")
    A(f"v_lshrrev_b32 {v(vT3)}, 1, {v(vT1)}")
    A(f"v_lshl_add_u32 {v(vDst)}, {v(vT3)}, 10, {v(vDst)}")
    A(f"v_and_b32 {v(vT3)}, 1, {v(vT1)}")
    A(f"v_lshl_add_u32 {v(vDst)}, {v(vT3)}, 7, {v(vDst)}")
    A(f"v_lshlrev_b32 {v(vT3)}, 8, {v(vT2)}")
    A(f"v_lshlrev_b32 {v(vT2)}, 7, {v(vT2)}")
    A(f"v_cmp_gt_u32 vcc, 4, {v(vT1)}")
    A("s_nop 1")
    A(f"v_cndmask_b32 {v(vT2)}, {v(vT2)}, {v(vT3)}, vcc")
    A(f"v_add_u32 {v(vDst)}, {v(vDst)}, {v(vT2)}")
    A(f"s_lshl_b32 s{sTmp}, s{sMemb}, 1")
    A(f"s_and_b32 s{sTmp2}, s{sWave}, 1")
    A(f"s_add_u32 s{sTmp}, s{sTmp}, s{sTmp2}")
    A(f"s_lshl_b32 s{sTmp}, s{sTmp}, 10")
    A(f"s_lshl_b32 s{sTmp2}, s{sGrp}, 15")
    A(f"s_add_u32 s{sTmp}, s{sTmp}, s{sTmp2}")
    A(f"v_lshlrev_b32 {v(vWarm)}, 4, {v(vLane)}")
    A(f"v_add_u32 {v(vWarm)}, s{sTmp}, {v(vWarm)}")

    A(f"s_lshl_b32 s{sTmp}, s{sGrp}, 9")
    A(f"v_and_b32 {v(vT0)}, 3, {v(vLane)}")
    A(f"v_lshlrev_b32 {v(vT0)}, 7, {v(vT0)}")
    A(f"v_add_u32 {v(vFlag)}, s{sTmp}, {v(vT0)}")
    A(f"v_bfe_u32 {v(vT0)}, {v(vLane)}, 2, 1")
    A(f"v_mul_u32_u24 {v(vT0)}, {CNT_VU - CNT_KVU:#x}, {v(vT0)}")
    A(f"v_add_u32 {v(vFlag)}, {v(vFlag)}, {v(vT0)}")
    A(f"s_lshl_b32 s{sTmp}, s{sH}, 7")
    A(f"v_mov_b32 {v(vSig)}, s{sTmp}")
    A(f"v_mov_b32 {v(vT0)}, {OOB:#x}")
    A(f"v_cmp_eq_u32 vcc, 0, {v(vLane)}")
    A("s_nop 1")
    A(f"v_cndmask_b32 {v(vSig)}, {v(vT0)}, {v(vSig)}, vcc")
    A(f"v_mov_b32 {v(vOne)}, 1")

    A(f"s_add_u32 s{sRCB}, s{sWS}, {WS_RC + 0x1fffff:#x}")
    A(f"s_and_b32 s{sRCB}, s{sRCB}, 0xffe00000")
    A(f"s_sub_u32 s{sRCB}, s{sRCB}, s{sWS}")
    Lnc = A.newlabel("Lncal")
    A(f"s_lshl_b32 s{sTmp}, s{sGrp}, 4")
    A(f"s_add_u32 s{sTmp}, s{sTmp}, s{sMemb}")
    A(f"s_add_u32 s{sTmp}, s{sTmp}, s{sWave}")
    A(f"s_cmp_lg_u32 s{sTmp}, 0")
    A(f"s_cbranch_scc1 {Lnc}")
    A("s_mov_b64 exec, 1")
    A(f"v_mov_b32 {v(vT0)}, 0")
    for c in range(2):
        A(f"s_mov_b32 s{60+c}, 0x7fffffff")
    for it in range(6):
        for c in range(2):
            A(f"s_add_u32 s{sTmp}, s{sRCB}, {RC_PROBE + c*8192:#x}")
            A(f"buffer_store_dword {v(vT0)}, {v(vT0)}, {WSR}, s{sTmp} offen sc1")
            A("s_waitcnt vmcnt(0)")
            A("s_memtime s[62:63]")
            A("s_waitcnt lgkmcnt(0)")
            A(f"buffer_load_dword {v(vT1)}, {v(vT0)}, {WSR}, s{sTmp} offen sc1")
            A("s_waitcnt vmcnt(0)")
            A("s_memtime s[64:65]")
            A("s_waitcnt lgkmcnt(0)")
            A("s_sub_u32 s64, s64, s62")
            A(f"s_min_u32 s{60+c}, s{60+c}, s64")
    A("s_cmp_le_u32 s60, s61")
    A(f"s_cselect_b32 s{sTmp}, {2 if 'badpol' in exp else 1}, {1 if 'badpol' in exp else 2}")
    A(f"v_mov_b32 {v(vT1)}, s{sTmp}")
    A(f"s_mov_b32 s{sTmp}, {WS_CNT + CNT_POL:#x}")
    A(f"buffer_store_dword {v(vT1)}, {v(vT0)}, {WSR}, s{sTmp} offen sc1")
    A("s_mov_b64 exec, -1")
    A.label(Lnc)
    Lpp, Lpd = A.newlabel("Lpp"), A.newlabel("Lppd")
    A(f"v_mov_b32 {v(vT0)}, 0")
    A(f"s_mov_b32 s{sTmp2}, {WS_CNT + CNT_POL:#x}")
    A(f"s_mov_b32 s{sCnt}, 0")
    A.label(Lpp)
    A(f"buffer_load_dword {v(vT1)}, {v(vT0)}, {WSR}, s{sTmp2} offen sc1")
    A("s_waitcnt vmcnt(0)")
    A(f"v_cmp_eq_u32 vcc, 0, {v(vT1)}")
    A(f"s_cbranch_vccz {Lpd}")
    A("s_sleep 4")
    A(f"s_add_u32 s{sCnt}, s{sCnt}, 1")
    A(f"s_cmp_lt_u32 s{sCnt}, {SPIN_MAX}")
    A(f"s_cbranch_scc1 {Lpp}")
    A(f"s_mov_b32 s{sTmp}, 6")
    A(f"s_branch {Lfail}")
    A.label(Lpd)
    A(f"v_cmp_eq_u32 vcc, 2, {v(vT1)}")
    A("s_cmp_lg_u64 vcc, 0")
    A(f"s_cselect_b32 s{sTmp}, 8192, 0")
    A(f"s_add_u32 s{sRCB}, s{sRCB}, s{sTmp}")

    def wait_kvu(srb):
        Lp_ = A.newlabel("Lkf")
        Ld_ = A.newlabel("Lkfd")
        A(f"s_lshl_b32 s{sTmp2}, s{srb}, 12")
        A(f"s_add_u32 s{sTmp2}, s{sTmp2}, {WS_CNT + CNT_KVU:#x}")
        A(f"s_mov_b32 s{sCnt}, 0")
        A.label(Lp_)
        A(f"buffer_load_dword {v(vT0)}, {v(vFlag)}, {WSR}, s{sTmp2} offen sc1")
        A("s_waitcnt vmcnt(0)")
        A(f"v_cmp_eq_u32 vcc, 0, {v(vT0)}")
        A(f"s_cbranch_vccz {Ld_}")
        A("s_sleep 4")
        A(f"s_add_u32 s{sCnt}, s{sCnt}, 1")
        A(f"s_cmp_lt_u32 s{sCnt}, {SPIN_MAX}")
        A(f"s_cbranch_scc1 {Lp_}")
        A(f"s_mov_b32 s{sTmp}, 5")
        A(f"s_branch {Lfail}")
        A.label(Ld_)

    def signal_mem(srb):
        A(f"s_lshl_b32 s{sTmp2}, s{srb}, 12")
        A(f"s_add_u32 s{sTmp2}, s{sTmp2}, {WS_CNT + CNT_MEM:#x}")
        A(f"buffer_atomic_add {v(vOne)}, {v(vSig)}, {WSR}, s{sTmp2} offen")

    A(f"s_mov_b32 s{sStep}, 0")
    rtl()
    if wrole:
        wait_kvu(sStep)
    A(f"s_mov_b32 s{sOffKM}, {WS_KM:#x}")
    A(f"s_mov_b32 s{sOffK}, {WS_KX:#x}")
    A(f"s_mov_b32 s{sOffU}, {WS_U:#x}")

    def k_load(f):
        vo = vK0 if f < 4 else vK1
        return f"buffer_load_dwordx4 {a(aK+f*4,4)}, {v(vo)}, {WSR}, s{sOffK} offen offset:{(f%4)*1024}"

    def u_load(t, dst):
        return f"buffer_load_dwordx4 {a(dst+t*4,4)}, {v(vU if t < 2 else vU2)}, {WSR}, s{sOffU} offen offset:{t*1024}"

    def check_sentinel(regs, tmp):
        regs = list(regs)
        A(f"v_max3_u32 {v(tmp)}, {v(regs[0])}, {v(regs[1])}, {v(regs[2])}")
        rest = regs[3:]
        while rest:
            if len(rest) >= 2:
                A(f"v_max3_u32 {v(tmp)}, {v(tmp)}, {v(rest[0])}, {v(rest[1])}")
                rest = rest[2:]
            else:
                A(f"v_max_u32 {v(tmp)}, {v(tmp)}, {v(rest[0])}")
                rest = []
        A(f"v_cmp_eq_u32 vcc, -1, {v(tmp)}")

    def poll(issue, regs, code):
        Lp_ = A.newlabel("Lpoll")
        Ld_ = A.newlabel("Lpd")
        A(f"s_mov_b32 s{sCnt}, 0")
        A.label(Lp_)
        issue()
        A("s_waitcnt vmcnt(0)")
        check_sentinel(regs, vT0)
        A(f"s_cbranch_vccz {Ld_}")
        A(f"s_add_u32 s{sCnt}, s{sCnt}, 1")
        A(f"s_cmp_lt_u32 s{sCnt}, {SPIN_MAX}")
        A(f"s_cbranch_scc1 {Lp_}")
        A(f"s_mov_b32 s{sTmp}, {code}")
        A(f"s_branch {Lfail}")
        A.label(Ld_)
        if prof:
            r = {4: 97, 1: 98, 3: 100}[code]
            A(f"s_add_u32 s{r}, s{r}, s{sCnt}")

    def store_local(instr):
        L1 = A.newlabel("Lsl")
        L2 = A.newlabel("Lsl")
        A(f"s_cmp_lg_u32 s{sMode}, 0")
        A(f"s_cbranch_scc1 {L1}")
        A(instr)
        A(f"s_branch {L2}")
        A.label(L1)
        A(instr + " sc1")
        A.label(L2)

    for f in range(8):
        A(k_load(f))
    for t in range(3):
        A(u_load(t, aUn))
    if prof:
        for i in range(16):
            A(f"s_mov_b32 s{sPr+i}, 0")
        for i in range(97, 101):
            A(f"s_mov_b32 s{i}, 0")
        A("s_memtime s[86:87]")
        A("s_waitcnt lgkmcnt(0)")

    ring = []
    ring += [f"s_and_b32 s{sTmp}, s{sStep}, 3",
             f"s_add_u32 s{sTmp2}, s{sStep}, 3",
             f"s_and_b32 s{sTmp2}, s{sTmp2}, 3",
             f"s_mul_i32 s{sRA}, s{sTmp}, {32*6144}",
             f"s_add_u32 s{sRA}, s{sRA}, {WS_RA:#x}",
             f"s_mul_i32 s{sRAp}, s{sTmp2}, {32*6144}",
             f"s_add_u32 s{sRAp}, s{sRAp}, {WS_RA:#x}",
             f"s_mul_i32 s{sRC}, s{sTmp}, {RC_SLOT}",
             f"s_add_u32 s{sRC}, s{sRC}, s{sRCB}",
             f"s_add_u32 s{sRCp}, s{sStep}, 2",
             f"s_and_b32 s{sRCp}, s{sRCp}, 3",
             f"s_mul_i32 s{sRCp}, s{sRCp}, {RC_SLOT}",
             f"s_add_u32 s{sRCp}, s{sRCp}, s{sRCB}",
             f"s_mul_i32 s{sCnt}, s{sGrp}, {RC_GRP}",
             f"s_add_u32 s{sRCp}, s{sRCp}, s{sCnt}",
             f"s_add_u32 s{sOffC}, s{sRC}, s{sCnt}",
             f"s_lshr_b32 s{sCnt}, s{sGrp}, 1",
             f"s_mul_i32 s{sCnt}, s{sCnt}, 10240",
             f"s_add_u32 s{sCnt}, s{sCnt}, {WS_RD:#x}",
             f"s_mul_i32 s{sRDp}, s{sTmp2}, {8*10240}",
             f"s_add_u32 s{sRDp}, s{sRDp}, s{sCnt}",
             f"s_add_u32 s{sTmp}, s{sStep}, 1",
             f"s_and_b32 s{sTmp}, s{sTmp}, 3",
             f"s_mul_i32 s{sRD}, s{sTmp}, {8*10240}",
             f"s_add_u32 s{sRD}, s{sRD}, s{sCnt}",
             f"s_add_u32 s{sOffK}, s{sOffK}, {32*8192}",
             f"s_add_u32 s{sOffU}, s{sOffU}, {32*40960}",
             f"s_add_u32 s{sWarm}, s{sOffK}, {WARM*32*8192}",
             f"s_min_u32 s{sWarm}, s{sWarm}, {WS_KX+63*32*8192}"]

    for ins in ring:
        A(ins)
    A(f"buffer_load_dwordx4 {v(M,4)}, {v(Cg)}, s[{sM0}:{sM0+3}], 0 offen")
    A(f"buffer_load_dwordx4 {v(M+4,4)}, {v(Cg)}, s[{sM0}:{sM0+3}], 0 offen offset:128")
    A(f"buffer_load_dwordx4 {v(M+8,4)}, {v(Cg+1)}, s[{sM0}:{sM0+3}], 0 offen")
    A("s_waitcnt vmcnt(0)")
    Lloop = A.newlabel("Lloop")
    A.label(Lloop)
    rtl(True)
    stamp(0)
    Bks = [M, Mr, M + 4, Mr + 4, M + 8]
    fill = [f"v_mov_b32_dpp {v(Mr+i)}, {v(M+i)} row_ror:8 row_mask:0xf bank_mask:0xf" for i in range(8)]
    fill += [f"v_accvgpr_mov_b32 {a(aU+i)}, {a(aUn+i)}" for i in range(12)]
    order = [(ks, t) for ks in (0, 2, 1) for t in range(4)]
    order += [(ks, t) for t in range(4) for ks in (3, 4)]
    for idx, (ks, t) in enumerate(order):
        c = "0" if ks == 0 else v(accA + t * 4, 4)
        A(f"v_mfma_f32_16x16x32_bf16 {v(accA+t*4,4)}, {WA(t,ks)}, {v(Bks[ks],4)}, {c}")
        for _ in range(2):
            if fill:
                A(fill.pop(0))
    assert not fill

    def merge_write(p):
        for i in range(4):
            A(f"v_mov_b32_dpp {v(accA+8*p+i)}, {v(accA+8*p+4+i)} row_ror:8 row_mask:0xf bank_mask:0xc")
        A(f"ds_write_b128 {v(vRAw)}, {v(accA+8*p,4)} offset:{p*1024}")

    vm = []
    for ks in range(5):
        for t in (4, 5):
            c = "0" if ks == 0 else v(accA + t * 4, 4)
            vm.append(f"v_mfma_f32_16x16x32_bf16 {v(accA+t*4,4)}, {WA(t,ks)}, {v(Bks[ks],4)}, {c}")

    def reduce_pub(raddr, pub, T, fillers=()):
        for w in range(4):
            A(f"ds_read_b128 {v(T+w*4,4)}, {v(raddr)} offset:{w*3072}")
        for ins in fillers:
            A(ins)
        A("s_waitcnt lgkmcnt(2)")
        A(f"v_pk_add_f32 {v(T,2)}, {v(T,2)}, {v(T+4,2)}")
        A(f"v_pk_add_f32 {v(T+2,2)}, {v(T+2,2)}, {v(T+6,2)}")
        A("s_waitcnt lgkmcnt(0)")
        A(f"v_pk_add_f32 {v(T+8,2)}, {v(T+8,2)}, {v(T+12,2)}")
        A(f"v_pk_add_f32 {v(T+10,2)}, {v(T+10,2)}, {v(T+14,2)}")
        A(f"v_pk_add_f32 {v(T,2)}, {v(T,2)}, {v(T+8,2)}")
        A(f"v_pk_add_f32 {v(T+2,2)}, {v(T+2,2)}, {v(T+10,2)}")
        A(f"v_cvt_pk_bf16_f32 {v(pub)}, {v(T)}, {v(T+1)}")
        A(f"v_cvt_pk_bf16_f32 {v(pub+1)}, {v(T+2)}, {v(T+3)}")
        A(f"v_min_u32 {v(pub)}, 0xfffffffe, {v(pub)}")
        A(f"v_min_u32 {v(pub+1)}, 0xfffffffe, {v(pub+1)}")
    A.nop(4)
    merge_write(0)
    merge_write(1)
    for ins in vm[:VM1]:
        A(ins)
    stamp(6)
    A("s_waitcnt lgkmcnt(0)")
    stamp(7)
    A("s_barrier")
    stamp(8)
    reduce_pub(vRAr, vPub, Cg, vm[VM1:VM1+VM2])
    store_local(f"buffer_store_dwordx2 {v(vPub,2)}, {v(vAst)}, {WSR}, s{sRA} offen")
    stamp(1)
    def issue_q():
        A(f"buffer_load_dwordx4 {v(Q,4)}, {v(vQo)}, {WSR}, s{sRA} offen sc1")
        A(f"buffer_load_dwordx4 {v(Q+4,4)}, {v(vQo)}, {WSR}, s{sRA} offen offset:1024 sc1")

    def issue_k():
        for c in range(2):
            A(f"buffer_load_dwordx4 {v(KM+c*8,4)}, {v(vKo)}, {WSR}, s{sRA} offen offset:{c*1024} sc1")

    def issue_v():
        for c in range(2):
            A(f"buffer_load_dwordx4 {v(VM+c*8,4)}, {v(vKo)}, {WSR}, s{sRA} offen offset:{2048+c*1024} sc1")
    for ins in vm[VM1+VM2:]:
        A(ins)
    A.nop(8)
    merge_write(2)
    if EARLY == 1:
        issue_q()
        issue_k()
    A("s_waitcnt lgkmcnt(0)")
    A("s_barrier")
    if EARLY == 2:
        issue_q()
        issue_k()
    reduce_pub(vRAr2, vPub2, Cg)
    A(f"s_cmp_eq_u32 s{sStep}, {nsteps-1}")
    Lfin = A.newlabel("Lfin")
    A(f"s_cbranch_scc1 {Lfin}")
    store_local(f"buffer_store_dwordx2 {v(vPub2,2)}, {v(vAst2)}, {WSR}, s{sRA} offen")

    if ADELAY:
        A(f"s_sleep {ADELAY}")
    Lp_, Ld_ = A.newlabel("Lpa"), A.newlabel("Lpad")
    A(f"s_mov_b32 s{sCnt}, 0")
    if EARLY:
        A("s_waitcnt vmcnt(3)")
        check_sentinel(range(Q, Q + 8), vT0)
        A(f"s_cbranch_vccz {Ld_}")
    A.label(Lp_)
    issue_q()
    issue_k()
    A("s_waitcnt vmcnt(0)")
    check_sentinel(range(Q, Q + 8), vT0)
    A(f"s_cbranch_vccz {Ld_}")
    A(f"s_add_u32 s{sCnt}, s{sCnt}, 1")
    A(f"s_cmp_lt_u32 s{sCnt}, {SPIN_MAX}")
    A(f"s_cbranch_scc1 {Lp_}")
    A(f"s_mov_b32 s{sTmp}, 1")
    A(f"s_branch {Lfail}")
    A.label(Ld_)
    if prof:
        A(f"s_add_u32 s98, s98, s{sCnt}")
    stamp(2)
    Qks = [Q, Qr, Q + 4, Qr + 4]
    A(f"v_mfma_f32_16x16x32_bf16 {v(acc1,4)}, {a(aK+0,4)}, {v(Q,4)}, 0")
    for i in range(4):
        A(f"v_mov_b32_dpp {v(Qr+i)}, {v(Q+i)} row_ror:8 row_mask:0xf bank_mask:0xf")
    A(f"v_mfma_f32_16x16x32_bf16 {v(acc2,4)}, {a(aK+16,4)}, {v(Q,4)}, 0")
    for i in range(4, 8):
        A(f"v_mov_b32_dpp {v(Qr+i)}, {v(Q+i)} row_ror:8 row_mask:0xf bank_mask:0xf")
    Lkv = A.newlabel("Lkv")
    Lkvd = A.newlabel("Lkvd")
    A(f"s_mov_b32 s{sCnt}, 0")
    A("s_waitcnt vmcnt(1)")
    A.label(Lkv)
    check_sentinel(list(range(KM, KM + 4)) + list(range(KM + 8, KM + 12)), vT0)
    A(f"s_cbranch_vccz {Lkvd}")
    issue_k()
    A("s_waitcnt vmcnt(0)")
    A(f"s_add_u32 s{sCnt}, s{sCnt}, 1")
    A(f"s_cmp_lt_u32 s{sCnt}, {SPIN_MAX}")
    A(f"s_cbranch_scc1 {Lkv}")
    A(f"s_mov_b32 s{sTmp}, 2")
    A(f"s_branch {Lfail}")
    A.label(Lkvd)
    A(f"v_mfma_f32_16x16x32_bf16 {v(acc0,4)}, {v(KM,4)}, {v(Qks[0],4)}, 0")
    for i in range(4):
        A(f"v_mov_b32_dpp {v(KM+4+i)}, {v(KM+i)} row_ror:8 row_mask:0xf bank_mask:0xf")
    A(f"v_mfma_f32_16x16x32_bf16 {v(acc1,4)}, {a(aK+8,4)}, {v(Qks[2],4)}, {v(acc1,4)}")
    A(f"v_mfma_f32_16x16x32_bf16 {v(acc2,4)}, {a(aK+24,4)}, {v(Qks[2],4)}, {v(acc2,4)}")
    A(f"v_mfma_f32_16x16x32_bf16 {v(acc0,4)}, {v(KM+8,4)}, {v(Qks[2],4)}, {v(acc0,4)}")
    for i in range(4):
        A(f"v_mov_b32_dpp {v(KM+12+i)}, {v(KM+8+i)} row_ror:8 row_mask:0xf bank_mask:0xf")
    for ks in (1, 3):
        A(f"v_mfma_f32_16x16x32_bf16 {v(acc1,4)}, {a(aK+ks*4,4)}, {v(Qks[ks],4)}, {v(acc1,4)}")
        A(f"v_mfma_f32_16x16x32_bf16 {v(acc2,4)}, {a(aK+16+ks*4,4)}, {v(Qks[ks],4)}, {v(acc2,4)}")
        A(f"v_mfma_f32_16x16x32_bf16 {v(acc0,4)}, {v(KM+ks*4,4)}, {v(Qks[ks],4)}, {v(acc0,4)}")
    issue_v()
    A.nop(5)
    stamp(9)
    S = [acc1 + i for i in range(4)] + [acc2 + i for i in range(4)] + [acc0 + i for i in range(4)]
    sm = [f"v_max3_f32 {v(vMx)}, {v(S[0])}, {v(S[1])}, {v(S[2])}",
          f"v_max3_f32 {v(vMx)}, {v(vMx)}, {v(S[3])}, {v(S[4])}",
          f"v_max3_f32 {v(vMx)}, {v(vMx)}, {v(S[5])}, {v(S[6])}"]
    for i in range(4):
        sm.append(f"v_cndmask_b32 {v(acc0+i)}, {v(vNinf)}, {v(acc0+i)}, s[{sMaskG}:{sMaskG+1}]")
    sm += [f"v_max3_f32 {v(vMx)}, {v(vMx)}, {v(S[7])}, {v(S[8])}",
           f"v_max3_f32 {v(vMx)}, {v(vMx)}, {v(S[9])}, {v(S[10])}",
           f"v_max_f32 {v(vMx)}, {v(vMx)}, {v(S[11])}",
           f"v_mov_b32 {v(vMx2)}, {v(vMx)}",
           "s_nop 1",
           f"v_permlane16_swap_b32 {v(vMx)}, {v(vMx2)}",
           "s_nop 0",
           f"v_max_f32 {v(vMx)}, {v(vMx)}, {v(vMx2)}",
           f"v_mov_b32 {v(vMx2)}, {v(vMx)}",
           "s_nop 1",
           f"v_permlane32_swap_b32 {v(vMx)}, {v(vMx2)}",
           "s_nop 0",
           f"v_max_f32 {v(vMx)}, {v(vMx)}, {v(vMx2)}",
           f"v_mul_f32 {v(vMx)}, s{sC}, {v(vMx)}"]
    for r in S:
        sm.append(f"v_fma_f32 {v(r)}, {v(r)}, s{sC}, -{v(vMx)}")
    for r in S[:VSPLIT]:
        sm.append(f"v_exp_f32 {v(r)}, {v(r)}")
    for ins in sm:
        A(ins)
    Lv, Lvd = A.newlabel("Lv"), A.newlabel("Lvd")
    A(f"s_mov_b32 s{sCnt}, 0")
    A.label(Lv)
    A("s_waitcnt vmcnt(0)")
    check_sentinel(list(range(VM, VM + 4)) + list(range(VM + 8, VM + 12)), vT0)
    A(f"s_cbranch_vccz {Lvd}")
    issue_v()
    A(f"s_add_u32 s{sCnt}, s{sCnt}, 1")
    A(f"s_cmp_lt_u32 s{sCnt}, {SPIN_MAX}")
    A(f"s_cbranch_scc1 {Lv}")
    A(f"s_mov_b32 s{sTmp}, 2")
    A(f"s_branch {Lfail}")
    A.label(Lvd)
    if prof:
        A(f"s_add_u32 s99, s99, s{sCnt}")
    um = []
    for s_ in (0, 2, 1, 3):
        for t in range(3):
            c = "0" if s_ == 0 else v(accU + t * 4, 4)
            um.append(f"v_mfma_f32_16x16x32_bf16 {v(accU+t*4,4)}, {v(VM+s_*4,4)}, {WC(t,s_)}, {c}")
    sm = [f"v_mov_b32_dpp {v(VM+4+i)}, {v(VM+i)} row_ror:8 row_mask:0xf bank_mask:0xf" for i in range(4)]
    sm += [f"v_mov_b32_dpp {v(VM+12+i)}, {v(VM+8+i)} row_ror:8 row_mask:0xf bank_mask:0xf" for i in range(4)]
    for r in S[VSPLIT:]:
        sm.append(f"v_exp_f32 {v(r)}, {v(r)}")
    sm.append("s_nop 0")
    for i in range(4):
        sm.append(f"v_cvt_pk_bf16_f32 {v(P0+i)}, {v(S[2*i])}, {v(S[2*i+1])}")
    sm.append(f"v_cvt_pk_bf16_f32 {v(Blo)}, {v(S[8])}, {v(S[9])}")
    sm.append(f"v_cvt_pk_bf16_f32 {v(Blo+1)}, {v(S[10])}, {v(S[11])}")
    for idx in range(max(len(sm) // 2 + 1, len(um))):
        if um:
            A(um.pop(0))
        for _ in range(2):
            if sm:
                A(sm.pop(0))
    assert not um and not sm
    pre = [u_load(t, aUn) for t in range(3)] + ([] if KLATE else [k_load(f) for f in range(8)])
    if "nokv" in exp:
        pre = []
    stamp(3)
    def pl(n=1):
        for _ in range(n):
            A(pre.pop(0) if pre else "s_nop 0")
    A(f"v_mfma_f32_16x16x32_bf16 {v(accZ,4)}, {v(vOnes,4)}, {v(P0,4)}, 0")
    for t in range(3):
        A(f"v_mfma_f32_16x16x32_bf16 {v(accC+t*4,4)}, {a(aU+t*4,4)}, {v(P0,4)}, 0")
        pl()
    A(f"v_mfma_f32_16x16x16_bf16 {v(accZ,4)}, {v(vOnes,2)}, {v(Blo,2)}, {v(accZ,4)}")
    pl(2)
    for t in range(3):
        A(f"v_cvt_pk_bf16_f32 {v(UA+t*2)}, {v(accU+t*4)}, {v(accU+t*4+1)}")
        A(f"v_cvt_pk_bf16_f32 {v(UA+t*2+1)}, {v(accU+t*4+2)}, {v(accU+t*4+3)}")
    pl(1)
    A(f"v_rcp_f32 {v(vRz)}, {v(accZ)}")
    for t in range(3):
        A(f"v_mfma_f32_16x16x16_bf16 {v(accC+t*4,4)}, {v(UA+t*2,2)}, {v(Blo,2)}, {v(accC+t*4,4)}")
    A(f"v_mov_b32 {v(vRz+1)}, {v(vRz)}")
    pl(5)
    A.nop(1)
    stamp(10)
    for t in range(3):
        A(f"v_pk_mul_f32 {v(accC+t*4,2)}, {v(accC+t*4,2)}, {v(vRz,2)}")
        A(f"v_pk_mul_f32 {v(accC+t*4+2,2)}, {v(accC+t*4+2,2)}, {v(vRz,2)}")
        A(f"ds_write_b128 {v(vRCw)}, {v(accC+t*4,4)} offset:{t*1024}")
    assert not pre
    A("s_waitcnt lgkmcnt(0)")
    stamp(11)
    A("s_barrier")
    stamp(12)
    A("s_mov_b32 exec_hi, 0xff")
    for w in range(4):
        A(f"ds_read_b128 {v(Cg+w*4,4)}, {v(vRCr)} offset:{w*3072}")
    A("s_waitcnt lgkmcnt(2)")
    for i in range(4):
        A(f"v_add_f32 {v(Cg+i)}, {v(Cg+i)}, {v(Cg+4+i)}")
    A("s_waitcnt lgkmcnt(0)")
    for i in range(4):
        A(f"v_add_f32 {v(Cg+8+i)}, {v(Cg+8+i)}, {v(Cg+12+i)}")
    for i in range(4):
        A(f"v_add_f32 {v(Cg+i)}, {v(Cg+i)}, {v(Cg+8+i)}")

    def persist(final=False):
        A("s_mov_b64 exec, -1")
        if KLATE and not final:
            for f in range(8):
                A(k_load(f))
        A(f"buffer_store_dwordx2 {v(vPub,2)}, {v(vKMst)}, {WSR}, s{sOffKM} offen" + (" sc1" if wrole else ""))
        A(f"buffer_store_dwordx2 {v(vPub2,2)}, {v(vVMst)}, {WSR}, s{sOffKM} offen" + (" sc1" if wrole else ""))
        if wrole and not final:
            Lns = A.newlabel("Lns")
            A(f"s_and_b32 s{sTmp}, s{sStep}, 3")
            A(f"s_cmp_lg_u32 s{sTmp}, 0")
            A(f"s_cbranch_scc1 {Lns}")
            A(f"s_cmp_eq_u32 s{sStep}, 0")
            A(f"s_cbranch_scc1 {Lns}")
            A(f"s_lshr_b32 s{sTmp}, s{sStep}, 2")
            A(f"s_sub_u32 s{sTmp}, s{sTmp}, 1")
            signal_mem(sTmp)
            A.label(Lns)
            Lns2 = A.newlabel("Lns")
            A(f"s_cmp_lg_u32 s{sStep}, 62")
            A(f"s_cbranch_scc1 {Lns2}")
            A(f"s_mov_b32 s{sTmp}, 16")
            signal_mem(sTmp)
            A.label(Lns2)

    def background(storer):
        persist()
        store_local(f"buffer_store_dwordx2 {v(vSent,2)}, {v(vAst)}, {WSR}, s{sRAp} offen"); store_local(f"buffer_store_dwordx2 {v(vSent,2)}, {v(vAst2)}, {WSR}, s{sRAp} offen")
        A("s_mov_b32 exec_hi, 0xff")
        if storer:
            for kc in range(KC):
                A(f"buffer_store_dwordx4 {v(vSent,4)}, {v(vCst)}, {WSR}, s{sRCp} offen sc1")
                if kc < KC - 1:
                    A(f"s_add_u32 s{sRCp}, s{sRCp}, {8*20480}")
            if "nokv" not in exp:
                A("s_mov_b64 exec, -1")
                A(f"buffer_load_dwordx4 {v(vDummy,4)}, {v(vWarm)}, {WSR}, s{sWarm} offen")
        else:
            store_local(f"buffer_store_dwordx2 {v(vSent,2)}, {v(vDst)}, {WSR}, s{sRDp} offen")

    Lpw = A.newlabel("Lpw")
    Lcdone = A.newlabel("Lcdone")
    A(f"s_cmp_ge_u32 s{sWave}, 2")
    A(f"s_cbranch_scc1 {Lpw}")
    for i in range(4):
        A(f"v_min_u32 {v(Cg+i)}, 0xfffffffe, {v(Cg+i)}")
    for kc in range(KC):
        A(f"buffer_store_dwordx4 {v(Cg,4)}, {v(vCst)}, {WSR}, s{sOffC} offen sc1")
        if kc < KC - 1:
            A(f"s_add_u32 s{sOffC}, s{sOffC}, {8*20480}")
    stamp(4)
    background(True)
    if DSLEEP:
        A(f"s_sleep {DSLEEP}")
    A(f"s_branch {Lcdone}")
    A.label(Lpw)
    stamp(4)
    Lw3 = A.newlabel("Lw3")
    A(f"s_cmp_eq_u32 s{sWave}, 3")
    A(f"s_cbranch_scc1 {Lw3}")
    background(False)
    A(f"s_mov_b32 s{sEnd}, s{sRC}")

    def advance():
        A(f"s_add_u32 s{sStep}, s{sStep}, 1")
        A(f"s_add_u32 s{sOffKM}, s{sOffKM}, {32*2048}")
        A(f"s_mov_b32 s{sOffD}, s{sRD}")
        for ins in ring:
            A(ins)
    advance()
    if CDELAY:
        A(f"s_sleep {CDELAY}")

    def issue_c():
        for r in range(1, 8):
            A(f"buffer_load_dwordx4 {v(CR+(r-1)*4,4)}, {v(vCg+r)}, {WSR}, s{sEnd} offen sc1")
    poll(issue_c, range(CR, CR + 28), 3)
    stamp(5)
    c = CR
    for i in (0, 2):
        A(f"v_pk_add_f32 {v(Cg+i,2)}, {v(Cg+i,2)}, {v(c+i,2)}")
        A(f"v_pk_add_f32 {v(Cg+4+i,2)}, {v(c+4+i,2)}, {v(c+8+i,2)}")
        A(f"v_pk_add_f32 {v(Cg+8+i,2)}, {v(c+12+i,2)}, {v(c+16+i,2)}")
        A(f"v_pk_add_f32 {v(Cg+12+i,2)}, {v(c+20+i,2)}, {v(c+24+i,2)}")
    for i in (0, 2):
        A(f"v_pk_add_f32 {v(Cg+i,2)}, {v(Cg+i,2)}, {v(Cg+4+i,2)}")
        A(f"v_pk_add_f32 {v(Cg+8+i,2)}, {v(Cg+8+i,2)}, {v(Cg+12+i,2)}")
    for i in (0, 2):
        A(f"v_pk_add_f32 {v(Cg+i,2)}, {v(Cg+i,2)}, {v(Cg+8+i,2)}")
    A(f"v_cvt_pk_bf16_f32 {v(Cg+4)}, {v(Cg)}, {v(Cg+1)}")
    A(f"v_cvt_pk_bf16_f32 {v(Cg+5)}, {v(Cg+2)}, {v(Cg+3)}")
    A(f"v_min_u32 {v(Cg+4)}, 0xfffffffe, {v(Cg+4)}")
    A(f"v_min_u32 {v(Cg+5)}, 0xfffffffe, {v(Cg+5)}")
    store_local(f"buffer_store_dwordx2 {v(Cg+4,2)}, {v(vDst)}, {WSR}, s{sOffD} offen")
    A("s_mov_b64 exec, -1")
    Ldp = A.newlabel("Ldp")
    A(f"s_branch {Ldp}")
    A.label(Lw3)
    persist()
    store_local(f"buffer_store_dwordx2 {v(vSent,2)}, {v(vAst)}, {WSR}, s{sRAp} offen"); store_local(f"buffer_store_dwordx2 {v(vSent,2)}, {v(vAst2)}, {WSR}, s{sRAp} offen")
    Lnf = A.newlabel("Lnf")
    if wrole:
        A("s_mov_b64 exec, -1")
        A(f"s_and_b32 s{sTmp}, s{sStep}, 3")
        A(f"s_cmp_lg_u32 s{sTmp}, 1")
        A(f"s_cbranch_scc1 {Lnf}")
        A(f"s_add_u32 s{sEnd}, s{sStep}, 3")
        A(f"s_lshr_b32 s{sEnd}, s{sEnd}, 2")
        A(f"s_cmp_gt_u32 s{sEnd}, 15")
        A(f"s_cbranch_scc1 {Lnf}")
        wait_kvu(sEnd)
        A(f"s_branch {Lcdone}")
    A.label(Lnf)
    if DSLEEP:
        A(f"s_sleep {DSLEEP}")
    A.label(Lcdone)
    A("s_mov_b64 exec, -1")
    advance()
    A.label(Ldp)
    stamp(13)

    if PDELAY:
        Lpd = A.newlabel("Lpdl")
        A(f"s_cmp_lg_u32 s{sWave}, 2")
        A(f"s_cbranch_scc1 {Lpd}")
        A(f"s_sleep {PDELAY}")
        A.label(Lpd)

    def issue_d():
        A(f"buffer_load_dwordx4 {v(M,4)}, {v(vD0)}, {WSR}, s{sOffD} offen sc1")
        A(f"buffer_load_dwordx4 {v(M+4,4)}, {v(vD0)}, {WSR}, s{sOffD} offen offset:1024 sc1")
        A(f"buffer_load_dwordx4 {v(M+8,4)}, {v(vD2)}, {WSR}, s{sOffD} offen sc1")
    poll(issue_d, range(M, M + 12), 4)
    A(f"s_branch {Lloop}")

    A.label(Lfin)
    persist(True)
    A("s_mov_b64 exec, -1")
    rtl()
    if wrole:
        A("s_waitcnt vmcnt(0)")
        A(f"s_mov_b32 s{sTmp}, 15")
        signal_mem(sTmp)
    if prof:
        A(f"s_lshl_b32 s{sTmp}, s{sGrp}, 4")
        A(f"s_add_u32 s{sTmp}, s{sTmp}, s{sMemb}")
        A(f"s_lshl_b32 s{sTmp}, s{sTmp}, 2")
        A(f"s_add_u32 s{sTmp}, s{sTmp}, s{sWave}")
        A(f"s_lshl_b32 s{sTmp}, s{sTmp}, 6")
        A(f"s_add_u32 s{sTmp}, s{sTmp}, {WS_PROF:#x}")
        A("s_mov_b64 exec, 1")
        A(f"s_lshl_b32 s97, s97, 16")
        A(f"s_or_b32 s{sPr+14}, s97, s98")
        A(f"s_lshl_b32 s99, s99, 16")
        A(f"s_or_b32 s{sPr+15}, s99, s100")
        for i in range(16):
            A(f"v_mov_b32 {v(vT0)}, s{sPr+i}")
            A(f"v_mov_b32 {v(vT1)}, {i*4}")
            A(f"buffer_store_dword {v(vT0)}, {v(vT1)}, {WSR}, s{sTmp} offen")
    A(f"s_branch {Lend}")
    A.label(Lfail)
    A("s_mov_b64 exec, 1")
    A(f"v_mov_b32 {v(vT0)}, s{sTmp}")
    A(f"v_mov_b32 {v(vT1)}, 0")
    A(f"v_or_b32 {v(vT0)}, 0x100, {v(vT0)}")
    A(f"buffer_store_dword {v(vT0)}, {v(vT1)}, s[{sDBG}:{sDBG+3}], 0 offen")
    A.label(Lend)
    A("s_endpgm")
    if wrole:
        A.label(Lw)
        A(f"s_sub_u32 s54, s{sCnt}, 128")
        wrole(A, 54, confirm)
        A("s_endpgm")
    return kernel_desc(name, 512, 102, 256)
```

```python
import struct
from asmlib import *
from layout import *


def f32bits(x):
    return struct.unpack("<I", struct.pack("<f", x))[0]


SPIN_MAX = 400000
WARM = 1
NST = 64
CDELAY = 7
KC = 1
DSLEEP = 24
AALL = 1
ADELAY = 0
VSPLIT = 4
EARLY = 1
VM1 = 0
VM2 = 0
KLATE = 0
PDELAY = 0
OOB = 0x7ff00000


def gen_rec(A, name="rec_kernel", prof=False, nsteps=64, exp=(), wrole=None):
    kernel_header(A, name)
    sWS, sM0, sW, sDBG = 4, 8, 12, 32
    sX, sT, sGrp, sMemb, sWave, sStep, sMode, sCnt = 36, 37, 38, 39, 40, 41, 42, 43
    sOffKM, sOffC, sOffD, sOffK, sTmp, sTmp2, sH, sOffU = 44, 45, 46, 47, 48, 49, 50, 51
    sRA, sRC, sRD, sRAp, sRCp, sRDp, sWarm, sOffUM = 90, 91, 92, 93, 94, 95, 96, 101
    sRCB = 101
    sMaskG = 54
    sC = 58
    sEnd = 59
    sCnts = 60
    sPr = 70
    R = RegAlloc(1, 256)
    vLane, vN, vG, vN8 = R.alloc(), R.alloc(), R.alloc(), R.alloc()
    vT0, vT1, vT2, vT3 = R.alloc(), R.alloc(), R.alloc(), R.alloc()
    vD0, vD2 = R.alloc(), R.alloc()
    vRAw, vRAr, vAst, vKMst = R.alloc(), R.alloc(), R.alloc(), R.alloc()
    vRAr2, vAst2, vVMst = R.alloc(), R.alloc(), R.alloc()
    vQo, vKo = R.alloc(), R.alloc()
    vRCw, vRCr, vCst = R.alloc(), R.alloc(), R.alloc()
    vCg = R.alloc(8)
    vDst = R.alloc()
    vK0, vK1, vU = R.alloc(), R.alloc(), R.alloc()
    vWarm = R.alloc()
    vNinf = R.alloc()
    vFlag, vSig, vOne = R.alloc(), R.alloc(), R.alloc()
    vU2 = R.alloc()
    vOnes = R.alloc(4)
    vSent = R.alloc(4)
    vDummy = R.alloc(4)
    vPub = R.alloc(2)
    vPub2 = R.alloc(2)
    assert R.next <= 64
    M = R.alloc(12)
    Mr = R.alloc(8)
    accA = R.alloc(24)
    Q = R.alloc(8)
    Qr = R.alloc(8)
    KM = R.alloc(16)
    VM = R.alloc(16)
    acc1, acc2, acc0 = R.alloc(4), R.alloc(4), R.alloc(4)
    accU = R.alloc(12)
    UA = R.alloc(6)
    P0 = R.alloc(4)
    PM, Blo = R.alloc(2), R.alloc(2)
    vMx, vMx2 = R.alloc(), R.alloc()
    vRz = R.alloc(2)
    accZ = R.alloc(4)
    accC = R.alloc(12)
    Cg = R.alloc(16)
    CR = KM
    TMP = 64
    aWA, aWC, aK, aU, aUn = 0, 120, 168, 200, 212

    def WA(t, ks):
        return a(aWA + (t * 5 + ks) * 4, 4)

    def WC(t, s_):
        return a(aWC + (t * 4 + s_) * 4, 4)

    LDS_RA = 65536
    LDS_RC = 65536 + 12288
    LDS_ROLE = 163840 - 16

    Lend = A.newlabel("Lend")
    Lfail = A.newlabel("Lfail")
    WSR = f"s[{sWS}:{sWS+3}]"

    def rtl(cond8=False):
        if "tl" not in exp:
            return
        Ls = A.newlabel("Lrtl")
        A(f"s_cmp_lg_u32 s{sWave}, 3")
        A(f"s_cbranch_scc1 {Ls}")
        if cond8:
            A(f"s_and_b32 s70, s{sStep}, 7")
            A(f"s_cmp_lg_u32 s70, 0")
            A(f"s_cbranch_scc1 {Ls}")
        A("s_memrealtime s[72:73]")
        A("s_waitcnt lgkmcnt(0)")
        A("s_mov_b64 exec, 1")
        A(f"v_mov_b32 {v(vT0)}, s72")
        A(f"v_mov_b32 {v(vT1)}, 0")
        A(f"buffer_store_dword {v(vT0)}, {v(vT1)}, {WSR}, s71 offen")
        A("s_mov_b64 exec, -1")
        A("s_add_u32 s71, s71, 4")
        A.label(Ls)

    def stamp(i):
        if not prof:
            return
        if "rt" in exp:
            Ls = A.newlabel("Lst")
            A(f"s_cmp_lg_u32 s{sStep}, {30 if i != 13 else 31}")
            A(f"s_cbranch_scc1 {Ls}")
            A(f"s_memrealtime s[88:89]")
            A("s_waitcnt lgkmcnt(0)")
            A(f"s_mov_b32 s{sPr+i}, s88")
            A.label(Ls)
            return
        A(f"s_memtime s[88:89]")
        A("s_waitcnt lgkmcnt(0)")
        A(f"s_sub_u32 s{sTmp2}, s88, s86")
        A(f"s_add_u32 s{sPr+i}, s{sPr+i}, s{sTmp2}")
        A("s_mov_b32 s86, s88")

    sKX, sKT, sKR = 98, 99, 97
    assert not prof or not wrole
    A("s_cmp_ge_u32 s2, 256")
    A(f"s_cbranch_scc1 {Lend}")
    if "tl" in exp:
        A("s_memrealtime s[68:69]")
    A(f"s_mov_b32 s{sKR}, 0")
    Lentry = A.newlabel("Lentry")
    A.label(Lentry)
    A("s_waitcnt vmcnt(0) lgkmcnt(0)")
    A("s_load_dwordx8 s[16:23], s[0:1], 32")
    A("s_load_dwordx2 s[24:25], s[0:1], 64")
    A("s_load_dwordx4 s[28:31], s[0:1], 88")
    A(f"v_and_b32 {v(vLane)}, 63, v0")
    A(f"v_lshrrev_b32 {v(vT0)}, 6, v0")
    A(f"v_and_b32 {v(vN)}, 15, v0")
    A(f"v_readfirstlane_b32 s{sWave}, {v(vT0)}")
    A(f"v_bfe_u32 {v(vG)}, v0, 4, 2")
    A(f"v_and_b32 {v(vN8)}, 7, v0")
    A("s_waitcnt lgkmcnt(0)")
    make_srd(A, sWS, 30, WS_BYTES)
    make_srd(A, sM0, 16, 10240)
    make_srd(A, sDBG, 28, 256)
    make_srd(A, sW, 18, 640 * 4096 * 2)

    def confirm(swave, force_jump=False):
        Lskip, Lw0, Lp = A.newlabel("Lcf"), A.newlabel("Lcf0"), A.newlabel("Lcfp")
        A(f"s_cmp_lg_u32 s{sKR}, 0")
        A(f"s_cbranch_scc1 {Lskip}")
        A(f"s_cmp_lg_u32 s{swave}, 0")
        A(f"s_cbranch_scc1 {Lw0}")
        A("s_load_dwordx2 s[88:89], s[0:1], 88")
        A("v_and_b32 v4, 63, v0")
        A("v_lshlrev_b32 v4, 2, v4")
        A("v_add_u32 v4, 64, v4")
        A("s_mov_b64 exec, 0x1ff")
        A("s_mov_b32 s43, 0")
        A("s_waitcnt lgkmcnt(0)")
        A("s_and_b32 s89, s89, 0xffff")
        A("s_mov_b32 s90, 256")
        A("s_mov_b32 s91, 0x00020000")
        A.label(Lp)
        A("buffer_load_dword v5, v4, s[88:91], 0 offen sc1")
        A("s_waitcnt vmcnt(0)")
        for i in range(8):
            A(f"v_readlane_b32 s{sCnts+i}, v5, {i}")
        A("v_readlane_b32 s48, v5, 8")
        A("s_nop 3")
        A("s_add_u32 s43, s43, 1")
        A(f"s_cmp_gt_u32 s43, {SPIN_MAX}")
        Lok = A.newlabel("Lcfo")
        A(f"s_cbranch_scc0 {Lok}")
        A("s_endpgm")
        A.label(Lok)
        A("s_cmp_lt_u32 s48, 256")
        A(f"s_cbranch_scc1 {Lp}")
        A(f"s_min_u32 s48, s{sCnts}, s{sCnts+1}")
        for i in range(2, 8):
            A(f"s_min_u32 s48, s48, s{sCnts+i}")
        A(f"s_mov_b32 s49, s{sKT}")
        for i in range(7):
            A(f"s_cmp_gt_u32 s{sKX}, {i}")
            A(f"s_cselect_b32 s43, s{sCnts+i}, 0")
            A("s_add_u32 s49, s49, s43")
        A("s_or_b32 s49, s49, 0x300")
        A(f"s_lshl_b32 s43, s{sKX}, 5")
        A(f"s_add_u32 s43, s43, s{sKT}")
        A("s_or_b32 s43, s43, 0x200")
        A(f"s_cmp_ge_u32 s48, {33 if 'slow' in exp else 32}")
        A("s_cselect_b32 s43, s43, s49")
        A("s_mov_b64 exec, 1")
        A(f"v_mov_b32 v4, {LDS_ROLE}")
        A("v_mov_b32 v5, s43")
        A("ds_write_b32 v4, v5")
        A("s_waitcnt lgkmcnt(0)")
        A("s_mov_b64 exec, -1")
        A.label(Lw0)
        A("s_barrier")
        A(f"v_mov_b32 v4, {LDS_ROLE}")
        A("ds_read_b32 v5, v4")
        A("s_waitcnt lgkmcnt(0)")
        A(f"v_readfirstlane_b32 s{sKR}, v5")
        A("s_nop 3")
        A("s_barrier")
        if force_jump:
            A(f"s_branch {Lentry}")
        else:
            A(f"s_bitcmp1_b32 s{sKR}, 8")
            A(f"s_cbranch_scc0 {Lskip}")
            A(f"s_branch {Lentry}")
        A.label(Lskip)

    Lhave = A.newlabel("Lhave")
    A(f"s_mov_b32 s{sCnt}, s{sKR}")
    A(f"s_cmp_lg_u32 s{sKR}, 0")
    A(f"s_cbranch_scc1 {Lhave}")
    A(f"s_getreg_b32 s{sKX}, hwreg(HW_REG_XCC_ID)")
    A(f"s_and_b32 s{sKX}, s{sKX}, 7")
    Lel_done = A.newlabel("Lel")
    A(f"s_cmp_lg_u32 s{sWave}, 0")
    A(f"s_cbranch_scc1 {Lel_done}")
    A(f"s_lshl_b32 s{sTmp}, s{sKX}, 2")
    A(f"s_add_u32 s{sTmp}, s{sTmp}, 64")
    A(f"v_mov_b32 {v(vT0)}, s{sTmp}")
    A(f"v_mov_b32 {v(vT1)}, 1")
    A("s_mov_b64 exec, 1")
    A(f"buffer_atomic_add {v(vT1)}, {v(vT0)}, s[{sDBG}:{sDBG+3}], 0 offen sc0")
    A(f"v_mov_b32 {v(vT0)}, {LDS_ROLE}")
    A("s_waitcnt vmcnt(0)")
    A(f"ds_write_b32 {v(vT0)}, {v(vT1)}")
    A("s_waitcnt lgkmcnt(0)")
    A("s_mov_b64 exec, -1")
    A.label(Lel_done)
    A("s_barrier")
    A(f"v_mov_b32 {v(vT0)}, {LDS_ROLE}")
    A(f"ds_read_b32 {v(vT1)}, {v(vT0)}")
    A("s_waitcnt lgkmcnt(0)")
    A(f"v_readfirstlane_b32 s{sKT}, {v(vT1)}")
    A("s_nop 3")
    import parta
    A(f"s_add_u32 s61, s{sWS}, {WS_RC + 0x1fffff:#x}")
    A("s_and_b32 s61, s61, 0xffe00000")
    A(f"s_sub_u32 s61, s61, s{sWS}")
    A(f"s_sub_u32 s61, s61, {WS_RC:#x}")
    A(f"v_lshlrev_b32 {v(vT0)}, 4, v0")
    for k in range((parta.NB_INIT + 255) // 256):
        A(f"s_add_u32 s60, s2, {k*256}")
        A("s_lshl_b32 s62, s60, 12")
        A(f"s_add_u32 s63, s62, {WS_CNT:#x}")
        A("s_mov_b32 s64, 0")
        base = parta.NB_ZERO
        for off, n in parta.FILL_RANGES:
            A(f"s_add_u32 s65, s62, {off - base*4096:#x}")
            if off == WS_RC:
                A("s_add_u32 s65, s65, s61")
            A(f"s_cmp_ge_u32 s60, {base}")
            A("s_cselect_b32 s63, s65, s63")
            A("s_cselect_b32 s64, -1, s64")
            base += n // 4096
        A(f"s_cmp_ge_u32 s60, {parta.NB_INIT}")
        A(f"s_cselect_b32 s63, {OOB:#x}, s63")
        for i in range(4):
            A(f"v_mov_b32 v{64+k*4+i}, s64")
        A(f"buffer_store_dwordx4 v[{64+k*4}:{67+k*4}], {v(vT0)}, {WSR}, s63 offen sc1")
    A("s_waitcnt vmcnt(0)")
    A("s_barrier")
    Lid = A.newlabel("Lid")
    A(f"s_cmp_lg_u32 s{sWave}, 0")
    A(f"s_cbranch_scc1 {Lid}")
    A("s_mov_b64 exec, 1")
    A(f"v_mov_b32 {v(vT0)}, 96")
    A(f"v_mov_b32 {v(vT1)}, 1")
    A(f"buffer_atomic_add {v(vT1)}, {v(vT0)}, s[{sDBG}:{sDBG+3}], 0 offen")
    A("s_mov_b64 exec, -1")
    A.label(Lid)
    Lsp = A.newlabel("Lsp")
    A(f"s_cmp_lt_u32 s{sKT}, 32")
    A(f"s_cbranch_scc1 {Lsp}")
    confirm(sWave, force_jump=True)
    A.label(Lsp)
    A(f"s_lshl_b32 s{sCnt}, s{sKX}, 5")
    A(f"s_add_u32 s{sCnt}, s{sCnt}, s{sKT}")
    A.label(Lhave)
    A(f"s_bfe_u32 s{sMode}, s{sCnt}, 0x10008")
    A(f"s_and_b32 s{sCnt}, s{sCnt}, 255")
    Lw = A.newlabel("Lwrole")
    Lr = A.newlabel("Lrrole")
    A(f"s_cmp_ge_u32 s{sCnt}, 128")
    if wrole:
        A(f"s_cbranch_scc0 {Lr}")
        A(f"s_branch {Lw}")
        A.label(Lr)
    else:
        A(f"s_cbranch_scc0 {Lr}")
        confirm(sWave)
        A(f"s_branch {Lend}")
        A.label(Lr)
    A(f"s_lshr_b32 s{sGrp}, s{sCnt}, 4")
    A(f"s_and_b32 s{sMemb}, s{sCnt}, 15")
    A(f"s_lshl_b32 s71, s{sCnt}, 8")
    A(f"s_add_u32 s71, s71, {WS_PROF:#x}")
    if "tl" in exp:
        A("s_mov_b64 exec, 1")
        A(f"v_mov_b32 {v(vT0)}, s68")
        A(f"v_mov_b32 {v(vT1)}, 0")
        A(f"buffer_store_dword {v(vT0)}, {v(vT1)}, {WSR}, s71 offen")
        A("s_mov_b64 exec, -1")
        A("s_add_u32 s71, s71, 4")
    rtl()

    A(f"s_mov_b32 s{sMaskG}, -1")
    A(f"s_mov_b32 s{sMaskG+1}, 0")
    A(f"s_mov_b32 s{sC}, {f32bits(SCALE*LOG2E):#x}")
    A(f"v_mov_b32 {v(vNinf)}, 0xff800000")
    for i in range(4):
        A(f"v_mov_b32 {v(vOnes+i)}, 0x3f803f80")
        A(f"v_mov_b32 {v(vSent+i)}, -1")

    A(f"s_lshr_b32 s{sTmp}, s{sMemb}, 2")
    A(f"s_lshl_b32 s{sH}, s{sGrp}, 2")
    A(f"s_add_u32 s{sH}, s{sH}, s{sTmp}")
    A(f"s_and_b32 s{sTmp}, s{sMemb}, 3")
    A(f"s_lshl_b32 s{sTmp2}, s{sH}, 8")
    A(f"s_lshl_b32 s{sCnt}, s{sTmp}, 6")
    A(f"s_add_u32 s{sTmp2}, s{sTmp2}, s{sCnt}")
    A(f"s_mul_i32 s{sCnt}, s{sWave}, {160*8192}")
    A(f"s_add_u32 s{sTmp2}, s{sTmp2}, s{sCnt}")
    A(f"v_lshrrev_b32 {v(vT0)}, 2, {v(vLane)}")
    A(f"v_lshlrev_b32 {v(vT0)}, 13, {v(vT0)}")
    A(f"v_and_b32 {v(vT1)}, 3, {v(vLane)}")
    A(f"v_lshl_add_u32 {v(vT0)}, {v(vT1)}, 4, {v(vT0)}")
    A(f"v_add_u32 {v(vT0)}, s{sTmp2}, {v(vT0)}")
    for m in range(3):
        if m:
            make_srd(A, sW, 18 + 2 * m, 640 * 4096 * 2)
        for i in range(10):
            A(f"s_mov_b32 s{sCnt}, {i*131072}")
            A(f"buffer_load_dwordx4 {v(TMP+(m*10+i)*4,4)}, {v(vT0)}, s[{sW}:{sW+3}], s{sCnt} offen")
    make_srd(A, sW, 24, 4096 * 640 * 2)
    A(f"s_lshl_b32 s{sTmp2}, s{sGrp}, 2")
    A(f"s_add_u32 s{sTmp2}, s{sTmp2}, s{sWave}")
    A(f"s_mul_i32 s{sTmp2}, s{sTmp2}, {128*1280}")
    A(f"s_mul_i32 s{sCnt}, s{sMemb}, 80")
    A(f"s_add_u32 s{sTmp2}, s{sTmp2}, s{sCnt}")
    A(f"v_lshrrev_b32 {v(vT1)}, 3, {v(vLane)}")
    A(f"v_mul_u32_u24 {v(vT1)}, 1280, {v(vT1)}")
    A(f"v_and_b32 {v(vT2)}, 7, {v(vLane)}")
    A(f"v_lshl_add_u32 {v(vT1)}, {v(vT2)}, 4, {v(vT1)}")
    A(f"v_add_u32 {v(vT1)}, s{sTmp2}, {v(vT1)}")
    for i in range(16):
        A(f"s_mov_b32 s{sCnt}, {i*8*1280}")
        A(f"buffer_load_dwordx4 {v(TMP+120+i*4,4)}, {v(vT1)}, s[{sW}:{sW+3}], s{sCnt} offen")
    A(f"s_lshl_b32 s{sTmp2}, s{sWave}, 14")
    A(f"v_lshlrev_b32 {v(vT0)}, 4, {v(vLane)}")
    A(f"v_add_u32 {v(vT0)}, s{sTmp2}, {v(vT0)}")
    A(f"v_lshrrev_b32 {v(vT1)}, 2, {v(vN)}")
    A(f"v_lshl_add_u32 {v(vT2)}, {v(vG)}, 3, {v(vT1)}")
    A(f"v_lshlrev_b32 {v(vT2)}, 6, {v(vT2)}")
    A(f"v_and_b32 {v(vT3)}, 3, {v(vN)}")
    A(f"v_lshl_add_u32 {v(vT2)}, {v(vT3)}, 3, {v(vT2)}")
    A(f"v_add_u32 {v(vT2)}, s{sTmp2}, {v(vT2)}")
    for m in range(3):
        A(f"s_waitcnt vmcnt({(2-m)*10+16})")
        for i in range(10):
            A(f"ds_write_b128 {v(vT0)}, {v(TMP+(m*10+i)*4,4)} offset:{i*1024}")
        for tt in range(2):
            for ks in range(5):
                r0 = aWA + ((m * 2 + tt) * 5 + ks) * 4
                A(f"ds_read_b64_tr_b16 {a(r0,2)}, {v(vT2)} offset:{ks*2048+tt*32}")
                A(f"ds_read_b64_tr_b16 {a(r0+2,2)}, {v(vT2)} offset:{ks*2048+tt*32+256}")
            A("s_waitcnt lgkmcnt(0)")
    A(f"v_lshl_add_u32 {v(vT2)}, {v(vG)}, 2, {v(vT1)}")
    A(f"v_lshlrev_b32 {v(vT2)}, 7, {v(vT2)}")
    A(f"v_lshl_add_u32 {v(vT2)}, {v(vT3)}, 3, {v(vT2)}")
    A(f"v_add_u32 {v(vT2)}, s{sTmp2}, {v(vT2)}")
    A("s_waitcnt vmcnt(0)")
    for i in range(16):
        A(f"ds_write_b128 {v(vT0)}, {v(TMP+120+i*4,4)} offset:{i*1024}")
        if i % 8 == 7:
            A("s_waitcnt lgkmcnt(0)")
    for tt in range(3):
        for s_ in range(4):
            r0 = aWC + (tt * 4 + s_) * 4
            A(f"ds_read_b64_tr_b16 {a(r0,2)}, {v(vT2)} offset:{s_*4096+tt*32}")
            A(f"ds_read_b64_tr_b16 {a(r0+2,2)}, {v(vT2)} offset:{s_*4096+tt*32+2048}")
        A("s_waitcnt lgkmcnt(0)")

    confirm(sWave)
    A(f"v_and_b32 {v(vN8)}, 7, v0")
    if wrole:
        import parta
        A("s_load_dwordx4 s[24:27], s[0:1], 8")
        A(f"s_lshl_b32 s{sEnd}, s{sGrp}, 4")
        A(f"s_add_u32 s{sEnd}, s{sEnd}, s{sMemb}")
        A("s_waitcnt lgkmcnt(0)")
        Lcu, Lcx, Lcy = A.newlabel("Lcu"), A.newlabel("Lcx"), A.newlabel("Lcy")
        A(f"s_cmp_lg_u32 s{sEnd}, 0")
        A(f"s_cbranch_scc1 {Lcy}")
        A(f"s_branch {Lcx}")
        A.label(Lcy)
        A(f"s_sub_u32 s{sEnd}, s{sEnd}, 1")
        parta.wt_batch(A, sEnd, sWave)
        A.label(Lcu)
        parta.const_unit(A, sEnd)
        A(f"s_add_u32 s{sEnd}, s{sEnd}, 127")
        A(f"s_cmp_le_u32 s{sEnd}, {parta.NB_FG}")
        A(f"s_cbranch_scc1 {Lcu}")
        A.label(Lcx)
        A("s_waitcnt vmcnt(0)")
        A("s_barrier")
        A("s_mov_b64 exec, 1")
        A("v_mov_b32 v1, 1")
        A("v_mov_b32 v2, 0")
        A(f"s_mov_b32 s{sTmp}, {WS_CNT + CNT_CONST:#x}")
        A(f"buffer_atomic_add v1, v2, {WSR}, s{sTmp} offen")
        A("s_mov_b64 exec, -1")
        A("s_load_dwordx2 s[16:17], s[0:1], 32")
        A(f"v_and_b32 {v(vLane)}, 63, v0")
        A(f"v_and_b32 {v(vN)}, 15, v0")
        A(f"v_bfe_u32 {v(vG)}, v0, 4, 2")
        A(f"v_and_b32 {v(vN8)}, 7, v0")
        A(f"v_mov_b32 {v(vNinf)}, 0xff800000")
        for i in range(4):
            A(f"v_mov_b32 {v(vOnes+i)}, 0x3f803f80")
            A(f"v_mov_b32 {v(vSent+i)}, -1")
        A("s_waitcnt lgkmcnt(0)")
        make_srd(A, sM0, 16, 10240)
    A(f"v_mul_u32_u24 {v(vT0)}, 1280, {v(vN8)}")
    A(f"v_lshl_add_u32 {v(vT0)}, {v(vG)}, 4, {v(vT0)}")
    A(f"s_mul_i32 s{sTmp}, s{sWave}, 320")
    A(f"v_add_u32 {v(vT0)}, s{sTmp}, {v(vT0)}")
    A(f"v_add_u32 {v(Cg+1)}, 256, {v(vT0)}")
    A(f"v_lshrrev_b32 {v(vT1)}, 3, {v(vN)}")
    A(f"v_lshl_add_u32 {v(Cg)}, {v(vT1)}, 6, {v(vT0)}")
    A(f"s_mul_i32 s{sTmp}, s{sWave}, 2560")
    A(f"v_lshlrev_b32 {v(vT0)}, 4, {v(vLane)}")
    A(f"v_add_u32 {v(vD0)}, s{sTmp}, {v(vT0)}")
    A(f"v_lshl_add_u32 {v(vT1)}, {v(vG)}, 3, {v(vN8)}")
    A(f"v_lshlrev_b32 {v(vT1)}, 4, {v(vT1)}")
    A(f"s_add_u32 s{sTmp}, s{sTmp}, 2048")
    A(f"v_add_u32 {v(vD2)}, s{sTmp}, {v(vT1)}")
    A(f"s_lshl_b32 s{sTmp2}, s{sGrp}, 2")
    A(f"s_add_u32 s{sTmp2}, s{sTmp2}, s{sWave}")
    A(f"s_mul_i32 s{sTmp}, s{sTmp2}, 6144")
    A(f"v_add_u32 {v(vQo)}, s{sTmp}, {v(vT0)}")
    A(f"v_add_u32 {v(vKo)}, 2048, {v(vQo)}")
    A(f"s_lshl_b32 s{sTmp}, s{sTmp2}, 13")
    A(f"v_add_u32 {v(vK0)}, s{sTmp}, {v(vT0)}")
    A(f"v_add_u32 {v(vK1)}, 4096, {v(vK0)}")
    A(f"s_mul_i32 s{sTmp}, s{sTmp2}, 40960")
    A(f"s_mul_i32 s{sCnt}, s{sMemb}, 2560")
    A(f"s_add_u32 s{sTmp}, s{sTmp}, s{sCnt}")
    A(f"v_lshrrev_b32 {v(vT2)}, 3, {v(vN)}")
    A(f"v_lshl_add_u32 {v(vU)}, {v(vT2)}, 9, {v(vT1)}")
    A(f"v_add_u32 {v(vU)}, s{sTmp}, {v(vU)}")
    A(f"v_mov_b32 {v(vU2)}, {OOB:#x}")
    A(f"v_cmp_gt_u32 vcc, 8, {v(vN)}")
    A("s_nop 1")
    A(f"v_cndmask_b32 {v(vU2)}, {v(vU2)}, {v(vU)}, vcc")
    A(f"s_mul_i32 s{sTmp}, s{sWave}, 3072")
    A(f"s_add_u32 s{sCnt}, s{sTmp}, {LDS_RA}")
    A(f"v_add_u32 {v(vRAw)}, s{sCnt}, {v(vT0)}")
    A(f"s_add_u32 s{sCnt}, s{sTmp}, {LDS_RC}")
    A(f"v_add_u32 {v(vRCw)}, s{sCnt}, {v(vT0)}")
    def reader(ubase_mul, ubase_add, nl, rdst, adst, pdst, pbase):
        A(f"s_mul_i32 s{sTmp}, s{sWave}, {ubase_mul}")
        A(f"s_add_u32 s{sTmp}, s{sTmp}, {ubase_add}")
        A(f"v_add_u32 {v(vT0)}, s{sTmp}, {v(vLane)}")
        A(f"v_lshrrev_b32 {v(vT1)}, 6, {v(vT0)}")
        A(f"v_bfe_u32 {v(vT2)}, {v(vT0)}, 1, 3")
        A(f"v_bfe_u32 {v(vT3)}, {v(vT0)}, 4, 2")
        A(f"v_and_b32 {v(vT0)}, 1, {v(vT0)}")
        A(f"v_lshl_add_u32 {v(rdst)}, {v(vT3)}, 4, {v(vT2)}")
        A(f"v_lshlrev_b32 {v(adst)}, 4, {v(rdst)}")
        A(f"v_lshl_add_u32 {v(rdst)}, {v(vT0)}, 3, {v(rdst)}")
        A(f"v_lshlrev_b32 {v(rdst)}, 4, {v(rdst)}")
        A(f"v_lshl_add_u32 {v(rdst)}, {v(vT1)}, 10, {v(rdst)}")
        A(f"v_add_u32 {v(rdst)}, {LDS_RA}, {v(rdst)}")
        A(f"s_and_b32 s{sTmp}, s{sMemb}, 3")
        A(f"s_lshr_b32 s{sTmp2}, s{sTmp}, 1")
        A(f"s_lshl_b32 s{sTmp2}, s{sTmp2}, 10")
        A(f"s_and_b32 s{sCnt}, s{sTmp}, 1")
        A(f"s_lshl_b32 s{sCnt}, s{sCnt}, 7")
        A(f"s_add_u32 s{sTmp2}, s{sTmp2}, s{sCnt}")
        A(f"s_mul_i32 s{sCnt}, s{sH}, 6144")
        A(f"s_add_u32 s{sTmp2}, s{sTmp2}, s{sCnt}")
        A(f"v_add_u32 {v(adst)}, s{sTmp2}, {v(adst)}")
        A(f"v_lshl_add_u32 {v(adst)}, {v(vT0)}, 3, {v(adst)}")
        A(f"v_lshl_add_u32 {v(adst)}, {v(vT1)}, 11, {v(adst)}")
        A(f"s_lshl_b32 s{sTmp2}, s{sTmp}, 9")
        A(f"s_lshl_b32 s{sCnt}, s{sH}, 11")
        A(f"s_add_u32 s{sTmp2}, s{sTmp2}, s{sCnt}")
        A(f"s_add_u32 s{sTmp2}, s{sTmp2}, {pbase:#x}")
        A(f"v_lshl_add_u32 {v(vT2)}, {v(vT3)}, 3, {v(vT2)}")
        A(f"v_lshlrev_b32 {v(vT2)}, 4, {v(vT2)}")
        A(f"v_lshl_add_u32 {v(vT2)}, {v(vT0)}, 3, {v(vT2)}")
        A(f"v_add_u32 {v(pdst)}, s{sTmp2}, {v(vT2)}")
        A(f"v_mov_b32 {v(vT3)}, {OOB:#x}")
        A(f"v_cmp_eq_u32 vcc, 0, {v(vT1)}")
        A("s_nop 1")
        A(f"v_cndmask_b32 {v(pdst)}, {v(pdst)}, {v(vT3)}, vcc")
        A(f"v_cmp_gt_u32 vcc, {nl}, {v(vLane)}")
        A("s_nop 1")
        A(f"v_cndmask_b32 {v(pdst)}, {v(vT3)}, {v(pdst)}, vcc")
        A(f"v_cndmask_b32 {v(adst)}, {v(vT3)}, {v(adst)}, vcc")
        A(f"v_cndmask_b32 {v(rdst)}, {v(vRAw)}, {v(rdst)}, vcc")
    reader(32, 0, 32, vRAr, vAst, vKMst, 0)
    reader(16, 128, 16, vRAr2, vAst2, vVMst, WS_VM - WS_KM)
    A(f"s_and_b32 s{sTmp}, s{sGrp}, 1")
    A(f"s_cmp_lt_u32 s{sWave}, 2")
    A(f"s_cselect_b32 s{sTmp}, s{sWave}, s{sTmp}")
    A(f"v_lshrrev_b32 {v(vT1)}, 3, {v(vLane)}")
    A(f"v_and_b32 {v(vT2)}, 1, {v(vLane)}")
    A(f"v_lshl_add_u32 {v(vT0)}, {v(vT1)}, 1, {v(vT2)}")
    A(f"v_bfe_u32 {v(vT2)}, {v(vLane)}, 1, 2")
    A(f"s_lshl_b32 s{sTmp2}, s{sTmp}, 2")
    A(f"v_add_u32 {v(vT2)}, s{sTmp2}, {v(vT2)}")
    A(f"v_and_b32 {v(vT3)}, 3, {v(vT0)}")
    A(f"v_lshl_add_u32 {v(vT3)}, {v(vT3)}, 4, {v(vT2)}")
    A(f"v_lshlrev_b32 {v(vT3)}, 4, {v(vT3)}")
    A(f"v_lshrrev_b32 {v(vT0)}, 2, {v(vT0)}")
    A(f"v_lshl_add_u32 {v(vT3)}, {v(vT0)}, 10, {v(vT3)}")
    A(f"v_add_u32 {v(vRCr)}, {LDS_RC}, {v(vT3)}")
    A(f"s_mul_i32 s{sCnt}, s{sMemb}, 43")
    A(f"s_lshr_b32 s{sCnt}, s{sCnt}, 8")
    A(f"s_mul_i32 s{sTmp2}, s{sMemb}, 1280")
    A(f"s_mul_i32 s{sCnt}, s{sCnt}, {16384 - 6*1280}")
    A(f"s_add_u32 s{sTmp2}, s{sTmp2}, s{sCnt}")
    A(f"s_mul_i32 s{sTmp}, s{sTmp}, 640")
    A(f"s_add_u32 s{sTmp}, s{sTmp}, s{sTmp2}")
    A(f"v_lshlrev_b32 {v(vT0)}, 4, {v(vLane)}")
    A(f"v_add_u32 {v(vCst)}, s{sTmp}, {v(vT0)}")
    for r in range(1, 8):
        A(f"s_xor_b32 s{sTmp2}, s{sGrp}, {r}")
        A(f"s_mul_i32 s{sTmp2}, s{sTmp2}, {RC_GRP}")
        A(f"v_add_u32 {v(vCg+r)}, s{sTmp2}, {v(vCst)}")
    A(f"s_mul_i32 s{sTmp}, s{sMemb}, 5")
    A(f"v_add_u32 {v(vT1)}, s{sTmp}, {v(vT1)}")
    A(f"v_lshlrev_b32 {v(vDst)}, 4, {v(vT2)}")
    A(f"v_and_b32 {v(vT2)}, 1, {v(vLane)}")
    A(f"v_lshl_add_u32 {v(vDst)}, {v(vT2)}, 3, {v(vDst)}")
    A(f"v_mul_u32_u24 {v(vT2)}, 205, {v(vT1)}")
    A(f"v_lshrrev_b32 {v(vT2)}, 12, {v(vT2)}")
    A(f"v_mul_u32_u24 {v(vT3)}, 20, {v(vT2)}")
    A(f"v_sub_u32 {v(vT1)}, {v(vT1)}, {v(vT3)}")
    A(f"v_mul_u32_u24 {v(vT2)}, 2560, {v(vT2)}")
    A(f"v_add_u32 {v(vDst)}, {v(vDst)}, {v(vT2)}")
    A(f"v_and_b32 {v(vT2)}, 3, {v(vT1)}")
    A(f"v_lshrrev_b32 {v(vT1)}, 2, {v(vT1)}")
    A(f"v_lshrrev_b32 {v(vT3)}, 1, {v(vT1)}")
    A(f"v_lshl_add_u32 {v(vDst)}, {v(vT3)}, 10, {v(vDst)}")
    A(f"v_and_b32 {v(vT3)}, 1, {v(vT1)}")
    A(f"v_lshl_add_u32 {v(vDst)}, {v(vT3)}, 7, {v(vDst)}")
    A(f"v_lshlrev_b32 {v(vT3)}, 8, {v(vT2)}")
    A(f"v_lshlrev_b32 {v(vT2)}, 7, {v(vT2)}")
    A(f"v_cmp_gt_u32 vcc, 4, {v(vT1)}")
    A("s_nop 1")
    A(f"v_cndmask_b32 {v(vT2)}, {v(vT2)}, {v(vT3)}, vcc")
    A(f"v_add_u32 {v(vDst)}, {v(vDst)}, {v(vT2)}")
    A(f"s_lshl_b32 s{sTmp}, s{sMemb}, 1")
    A(f"s_and_b32 s{sTmp2}, s{sWave}, 1")
    A(f"s_add_u32 s{sTmp}, s{sTmp}, s{sTmp2}")
    A(f"s_lshl_b32 s{sTmp}, s{sTmp}, 10")
    A(f"s_lshl_b32 s{sTmp2}, s{sGrp}, 15")
    A(f"s_add_u32 s{sTmp}, s{sTmp}, s{sTmp2}")
    A(f"v_lshlrev_b32 {v(vWarm)}, 4, {v(vLane)}")
    A(f"v_add_u32 {v(vWarm)}, s{sTmp}, {v(vWarm)}")

    A(f"s_lshl_b32 s{sTmp}, s{sGrp}, 9")
    A(f"v_and_b32 {v(vT0)}, 3, {v(vLane)}")
    A(f"v_lshlrev_b32 {v(vT0)}, 7, {v(vT0)}")
    A(f"v_add_u32 {v(vFlag)}, s{sTmp}, {v(vT0)}")
    A(f"v_bfe_u32 {v(vT0)}, {v(vLane)}, 2, 1")
    A(f"v_mul_u32_u24 {v(vT0)}, {CNT_VU - CNT_KVU:#x}, {v(vT0)}")
    A(f"v_add_u32 {v(vFlag)}, {v(vFlag)}, {v(vT0)}")
    A(f"s_lshl_b32 s{sTmp}, s{sH}, 7")
    A(f"v_mov_b32 {v(vSig)}, s{sTmp}")
    A(f"v_mov_b32 {v(vT0)}, {OOB:#x}")
    A(f"v_cmp_eq_u32 vcc, 0, {v(vLane)}")
    A("s_nop 1")
    A(f"v_cndmask_b32 {v(vSig)}, {v(vT0)}, {v(vSig)}, vcc")
    A(f"v_mov_b32 {v(vOne)}, 1")

    A(f"s_add_u32 s{sRCB}, s{sWS}, {WS_RC + 0x1fffff:#x}")
    A(f"s_and_b32 s{sRCB}, s{sRCB}, 0xffe00000")
    A(f"s_sub_u32 s{sRCB}, s{sRCB}, s{sWS}")
    Lnc = A.newlabel("Lncal")
    A(f"s_lshl_b32 s{sTmp}, s{sGrp}, 4")
    A(f"s_add_u32 s{sTmp}, s{sTmp}, s{sMemb}")
    A(f"s_add_u32 s{sTmp}, s{sTmp}, s{sWave}")
    A(f"s_cmp_lg_u32 s{sTmp}, 0")
    A(f"s_cbranch_scc1 {Lnc}")
    A("s_mov_b64 exec, 1")
    A(f"v_mov_b32 {v(vT0)}, 0")
    for c in range(2):
        A(f"s_mov_b32 s{60+c}, 0x7fffffff")
    for it in range(6):
        for c in range(2):
            A(f"s_add_u32 s{sTmp}, s{sRCB}, {RC_PROBE + c*8192:#x}")
            A(f"buffer_store_dword {v(vT0)}, {v(vT0)}, {WSR}, s{sTmp} offen sc1")
            A("s_waitcnt vmcnt(0)")
            A("s_memtime s[62:63]")
            A("s_waitcnt lgkmcnt(0)")
            A(f"buffer_load_dword {v(vT1)}, {v(vT0)}, {WSR}, s{sTmp} offen sc1")
            A("s_waitcnt vmcnt(0)")
            A("s_memtime s[64:65]")
            A("s_waitcnt lgkmcnt(0)")
            A("s_sub_u32 s64, s64, s62")
            A(f"s_min_u32 s{60+c}, s{60+c}, s64")
    A("s_cmp_le_u32 s60, s61")
    A(f"s_cselect_b32 s{sTmp}, {2 if 'badpol' in exp else 1}, {1 if 'badpol' in exp else 2}")
    A(f"v_mov_b32 {v(vT1)}, s{sTmp}")
    A(f"s_mov_b32 s{sTmp}, {WS_CNT + CNT_POL:#x}")
    A(f"buffer_store_dword {v(vT1)}, {v(vT0)}, {WSR}, s{sTmp} offen sc1")
    A("s_mov_b64 exec, -1")
    A.label(Lnc)
    Lpp, Lpd = A.newlabel("Lpp"), A.newlabel("Lppd")
    A(f"v_mov_b32 {v(vT0)}, 0")
    A(f"s_mov_b32 s{sTmp2}, {WS_CNT + CNT_POL:#x}")
    A(f"s_mov_b32 s{sCnt}, 0")
    A.label(Lpp)
    A(f"buffer_load_dword {v(vT1)}, {v(vT0)}, {WSR}, s{sTmp2} offen sc1")
    A("s_waitcnt vmcnt(0)")
    A(f"v_cmp_eq_u32 vcc, 0, {v(vT1)}")
    A(f"s_cbranch_vccz {Lpd}")
    A("s_sleep 4")
    A(f"s_add_u32 s{sCnt}, s{sCnt}, 1")
    A(f"s_cmp_lt_u32 s{sCnt}, {SPIN_MAX}")
    A(f"s_cbranch_scc1 {Lpp}")
    A(f"s_mov_b32 s{sTmp}, 6")
    A(f"s_branch {Lfail}")
    A.label(Lpd)
    A(f"v_cmp_eq_u32 vcc, 2, {v(vT1)}")
    A("s_cmp_lg_u64 vcc, 0")
    A(f"s_cselect_b32 s{sTmp}, 8192, 0")
    A(f"s_add_u32 s{sRCB}, s{sRCB}, s{sTmp}")

    def wait_kvu(srb):
        Lp_ = A.newlabel("Lkf")
        Ld_ = A.newlabel("Lkfd")
        A(f"s_lshl_b32 s{sTmp2}, s{srb}, 12")
        A(f"s_add_u32 s{sTmp2}, s{sTmp2}, {WS_CNT + CNT_KVU:#x}")
        A(f"s_mov_b32 s{sCnt}, 0")
        A.label(Lp_)
        A(f"buffer_load_dword {v(vT0)}, {v(vFlag)}, {WSR}, s{sTmp2} offen sc1")
        A("s_waitcnt vmcnt(0)")
        A(f"v_cmp_eq_u32 vcc, 0, {v(vT0)}")
        A(f"s_cbranch_vccz {Ld_}")
        A("s_sleep 4")
        A(f"s_add_u32 s{sCnt}, s{sCnt}, 1")
        A(f"s_cmp_lt_u32 s{sCnt}, {SPIN_MAX}")
        A(f"s_cbranch_scc1 {Lp_}")
        A(f"s_mov_b32 s{sTmp}, 5")
        A(f"s_branch {Lfail}")
        A.label(Ld_)

    def signal_mem(srb):
        A(f"s_lshl_b32 s{sTmp2}, s{srb}, 12")
        A(f"s_add_u32 s{sTmp2}, s{sTmp2}, {WS_CNT + CNT_MEM:#x}")
        A(f"buffer_atomic_add {v(vOne)}, {v(vSig)}, {WSR}, s{sTmp2} offen")

    A(f"s_mov_b32 s{sStep}, 0")
    rtl()
    if wrole:
        wait_kvu(sStep)
    A(f"s_mov_b32 s{sOffKM}, {WS_KM:#x}")
    A(f"s_mov_b32 s{sOffK}, {WS_KX:#x}")
    A(f"s_mov_b32 s{sOffU}, {WS_U:#x}")

    def k_load(f):
        vo = vK0 if f < 4 else vK1
        return f"buffer_load_dwordx4 {a(aK+f*4,4)}, {v(vo)}, {WSR}, s{sOffK} offen offset:{(f%4)*1024}"

    def u_load(t, dst):
        return f"buffer_load_dwordx4 {a(dst+t*4,4)}, {v(vU if t < 2 else vU2)}, {WSR}, s{sOffU} offen offset:{t*1024}"

    def check_sentinel(regs, tmp):
        regs = list(regs)
        A(f"v_max3_u32 {v(tmp)}, {v(regs[0])}, {v(regs[1])}, {v(regs[2])}")
        rest = regs[3:]
        while rest:
            if len(rest) >= 2:
                A(f"v_max3_u32 {v(tmp)}, {v(tmp)}, {v(rest[0])}, {v(rest[1])}")
                rest = rest[2:]
            else:
                A(f"v_max_u32 {v(tmp)}, {v(tmp)}, {v(rest[0])}")
                rest = []
        A(f"v_cmp_eq_u32 vcc, -1, {v(tmp)}")

    def poll(issue, regs, code):
        Lp_ = A.newlabel("Lpoll")
        Ld_ = A.newlabel("Lpd")
        A(f"s_mov_b32 s{sCnt}, 0")
        A.label(Lp_)
        issue()
        A("s_waitcnt vmcnt(0)")
        check_sentinel(regs, vT0)
        A(f"s_cbranch_vccz {Ld_}")
        A(f"s_add_u32 s{sCnt}, s{sCnt}, 1")
        A(f"s_cmp_lt_u32 s{sCnt}, {SPIN_MAX}")
        A(f"s_cbranch_scc1 {Lp_}")
        A(f"s_mov_b32 s{sTmp}, {code}")
        A(f"s_branch {Lfail}")
        A.label(Ld_)
        if prof:
            r = {4: 97, 1: 98, 3: 100}[code]
            A(f"s_add_u32 s{r}, s{r}, s{sCnt}")

    def store_local(instr):
        L1 = A.newlabel("Lsl")
        L2 = A.newlabel("Lsl")
        A(f"s_cmp_lg_u32 s{sMode}, 0")
        A(f"s_cbranch_scc1 {L1}")
        A(instr)
        A(f"s_branch {L2}")
        A.label(L1)
        A(instr + " sc1")
        A.label(L2)

    for f in range(8):
        A(k_load(f))
    for t in range(3):
        A(u_load(t, aUn))
    if prof:
        for i in range(16):
            A(f"s_mov_b32 s{sPr+i}, 0")
        for i in range(97, 101):
            A(f"s_mov_b32 s{i}, 0")
        A("s_memtime s[86:87]")
        A("s_waitcnt lgkmcnt(0)")

    ring = []
    ring += [f"s_and_b32 s{sTmp}, s{sStep}, 3",
             f"s_add_u32 s{sTmp2}, s{sStep}, 3",
             f"s_and_b32 s{sTmp2}, s{sTmp2}, 3",
             f"s_mul_i32 s{sRA}, s{sTmp}, {32*6144}",
             f"s_add_u32 s{sRA}, s{sRA}, {WS_RA:#x}",
             f"s_mul_i32 s{sRAp}, s{sTmp2}, {32*6144}",
             f"s_add_u32 s{sRAp}, s{sRAp}, {WS_RA:#x}",
             f"s_mul_i32 s{sRC}, s{sTmp}, {RC_SLOT}",
             f"s_add_u32 s{sRC}, s{sRC}, s{sRCB}",
             f"s_add_u32 s{sRCp}, s{sStep}, 2",
             f"s_and_b32 s{sRCp}, s{sRCp}, 3",
             f"s_mul_i32 s{sRCp}, s{sRCp}, {RC_SLOT}",
             f"s_add_u32 s{sRCp}, s{sRCp}, s{sRCB}",
             f"s_mul_i32 s{sCnt}, s{sGrp}, {RC_GRP}",
             f"s_add_u32 s{sRCp}, s{sRCp}, s{sCnt}",
             f"s_add_u32 s{sOffC}, s{sRC}, s{sCnt}",
             f"s_lshr_b32 s{sCnt}, s{sGrp}, 1",
             f"s_mul_i32 s{sCnt}, s{sCnt}, 10240",
             f"s_add_u32 s{sCnt}, s{sCnt}, {WS_RD:#x}",
             f"s_mul_i32 s{sRDp}, s{sTmp2}, {8*10240}",
             f"s_add_u32 s{sRDp}, s{sRDp}, s{sCnt}",
             f"s_add_u32 s{sTmp}, s{sStep}, 1",
             f"s_and_b32 s{sTmp}, s{sTmp}, 3",
             f"s_mul_i32 s{sRD}, s{sTmp}, {8*10240}",
             f"s_add_u32 s{sRD}, s{sRD}, s{sCnt}",
             f"s_add_u32 s{sOffK}, s{sOffK}, {32*8192}",
             f"s_add_u32 s{sOffU}, s{sOffU}, {32*40960}",
             f"s_add_u32 s{sWarm}, s{sOffK}, {WARM*32*8192}",
             f"s_min_u32 s{sWarm}, s{sWarm}, {WS_KX+63*32*8192}"]

    for ins in ring:
        A(ins)
    A(f"buffer_load_dwordx4 {v(M,4)}, {v(Cg)}, s[{sM0}:{sM0+3}], 0 offen")
    A(f"buffer_load_dwordx4 {v(M+4,4)}, {v(Cg)}, s[{sM0}:{sM0+3}], 0 offen offset:128")
    A(f"buffer_load_dwordx4 {v(M+8,4)}, {v(Cg+1)}, s[{sM0}:{sM0+3}], 0 offen")
    A("s_waitcnt vmcnt(0)")
    Lloop = A.newlabel("Lloop")
    A.label(Lloop)
    rtl(True)
    stamp(0)
    Bks = [M, Mr, M + 4, Mr + 4, M + 8]
    fill = [f"v_mov_b32_dpp {v(Mr+i)}, {v(M+i)} row_ror:8 row_mask:0xf bank_mask:0xf" for i in range(8)]
    fill += [f"v_accvgpr_mov_b32 {a(aU+i)}, {a(aUn+i)}" for i in range(12)]
    order = [(ks, t) for ks in (0, 2, 1) for t in range(4)]
    order += [(ks, t) for t in range(4) for ks in (3, 4)]
    for idx, (ks, t) in enumerate(order):
        c = "0" if ks == 0 else v(accA + t * 4, 4)
        A(f"v_mfma_f32_16x16x32_bf16 {v(accA+t*4,4)}, {WA(t,ks)}, {v(Bks[ks],4)}, {c}")
        for _ in range(2):
            if fill:
                A(fill.pop(0))
    assert not fill

    def merge_write(p):
        for i in range(4):
            A(f"v_mov_b32_dpp {v(accA+8*p+i)}, {v(accA+8*p+4+i)} row_ror:8 row_mask:0xf bank_mask:0xc")
        A(f"ds_write_b128 {v(vRAw)}, {v(accA+8*p,4)} offset:{p*1024}")

    vm = []
    for ks in range(5):
        for t in (4, 5):
            c = "0" if ks == 0 else v(accA + t * 4, 4)
            vm.append(f"v_mfma_f32_16x16x32_bf16 {v(accA+t*4,4)}, {WA(t,ks)}, {v(Bks[ks],4)}, {c}")

    def reduce_pub(raddr, pub, T, fillers=()):
        for w in range(4):
            A(f"ds_read_b128 {v(T+w*4,4)}, {v(raddr)} offset:{w*3072}")
        for ins in fillers:
            A(ins)
        A("s_waitcnt lgkmcnt(2)")
        A(f"v_pk_add_f32 {v(T,2)}, {v(T,2)}, {v(T+4,2)}")
        A(f"v_pk_add_f32 {v(T+2,2)}, {v(T+2,2)}, {v(T+6,2)}")
        A("s_waitcnt lgkmcnt(0)")
        A(f"v_pk_add_f32 {v(T+8,2)}, {v(T+8,2)}, {v(T+12,2)}")
        A(f"v_pk_add_f32 {v(T+10,2)}, {v(T+10,2)}, {v(T+14,2)}")
        A(f"v_pk_add_f32 {v(T,2)}, {v(T,2)}, {v(T+8,2)}")
        A(f"v_pk_add_f32 {v(T+2,2)}, {v(T+2,2)}, {v(T+10,2)}")
        A(f"v_cvt_pk_bf16_f32 {v(pub)}, {v(T)}, {v(T+1)}")
        A(f"v_cvt_pk_bf16_f32 {v(pub+1)}, {v(T+2)}, {v(T+3)}")
        A(f"v_min_u32 {v(pub)}, 0xfffffffe, {v(pub)}")
        A(f"v_min_u32 {v(pub+1)}, 0xfffffffe, {v(pub+1)}")
    A.nop(4)
    merge_write(0)
    merge_write(1)
    for ins in vm[:VM1]:
        A(ins)
    stamp(6)
    A("s_waitcnt lgkmcnt(0)")
    stamp(7)
    A("s_barrier")
    stamp(8)
    reduce_pub(vRAr, vPub, Cg, vm[VM1:VM1+VM2])
    store_local(f"buffer_store_dwordx2 {v(vPub,2)}, {v(vAst)}, {WSR}, s{sRA} offen")
    stamp(1)
    def issue_q():
        A(f"buffer_load_dwordx4 {v(Q,4)}, {v(vQo)}, {WSR}, s{sRA} offen sc1")
        A(f"buffer_load_dwordx4 {v(Q+4,4)}, {v(vQo)}, {WSR}, s{sRA} offen offset:1024 sc1")

    def issue_k():
        for c in range(2):
            A(f"buffer_load_dwordx4 {v(KM+c*8,4)}, {v(vKo)}, {WSR}, s{sRA} offen offset:{c*1024} sc1")

    def issue_v():
        for c in range(2):
            A(f"buffer_load_dwordx4 {v(VM+c*8,4)}, {v(vKo)}, {WSR}, s{sRA} offen offset:{2048+c*1024} sc1")
    for ins in vm[VM1+VM2:]:
        A(ins)
    A.nop(8)
    merge_write(2)
    if EARLY == 1:
        issue_q()
        issue_k()
    A("s_waitcnt lgkmcnt(0)")
    A("s_barrier")
    if EARLY == 2:
        issue_q()
        issue_k()
    reduce_pub(vRAr2, vPub2, Cg)
    A(f"s_cmp_eq_u32 s{sStep}, {nsteps-1}")
    Lfin = A.newlabel("Lfin")
    A(f"s_cbranch_scc1 {Lfin}")
    store_local(f"buffer_store_dwordx2 {v(vPub2,2)}, {v(vAst2)}, {WSR}, s{sRA} offen")

    if ADELAY:
        A(f"s_sleep {ADELAY}")
    Lp_, Ld_ = A.newlabel("Lpa"), A.newlabel("Lpad")
    A(f"s_mov_b32 s{sCnt}, 0")
    if EARLY:
        A("s_waitcnt vmcnt(3)")
        check_sentinel(range(Q, Q + 8), vT0)
        A(f"s_cbranch_vccz {Ld_}")
    A.label(Lp_)
    issue_q()
    issue_k()
    A("s_waitcnt vmcnt(0)")
    check_sentinel(range(Q, Q + 8), vT0)
    A(f"s_cbranch_vccz {Ld_}")
    A(f"s_add_u32 s{sCnt}, s{sCnt}, 1")
    A(f"s_cmp_lt_u32 s{sCnt}, {SPIN_MAX}")
    A(f"s_cbranch_scc1 {Lp_}")
    A(f"s_mov_b32 s{sTmp}, 1")
    A(f"s_branch {Lfail}")
    A.label(Ld_)
    if prof:
        A(f"s_add_u32 s98, s98, s{sCnt}")
    stamp(2)
    Qks = [Q, Qr, Q + 4, Qr + 4]
    A(f"v_mfma_f32_16x16x32_bf16 {v(acc1,4)}, {a(aK+0,4)}, {v(Q,4)}, 0")
    for i in range(4):
        A(f"v_mov_b32_dpp {v(Qr+i)}, {v(Q+i)} row_ror:8 row_mask:0xf bank_mask:0xf")
    A(f"v_mfma_f32_16x16x32_bf16 {v(acc2,4)}, {a(aK+16,4)}, {v(Q,4)}, 0")
    for i in range(4, 8):
        A(f"v_mov_b32_dpp {v(Qr+i)}, {v(Q+i)} row_ror:8 row_mask:0xf bank_mask:0xf")
    Lkv = A.newlabel("Lkv")
    Lkvd = A.newlabel("Lkvd")
    A(f"s_mov_b32 s{sCnt}, 0")
    A("s_waitcnt vmcnt(1)")
    A.label(Lkv)
    check_sentinel(list(range(KM, KM + 4)) + list(range(KM + 8, KM + 12)), vT0)
    A(f"s_cbranch_vccz {Lkvd}")
    issue_k()
    A("s_waitcnt vmcnt(0)")
    A(f"s_add_u32 s{sCnt}, s{sCnt}, 1")
    A(f"s_cmp_lt_u32 s{sCnt}, {SPIN_MAX}")
    A(f"s_cbranch_scc1 {Lkv}")
    A(f"s_mov_b32 s{sTmp}, 2")
    A(f"s_branch {Lfail}")
    A.label(Lkvd)
    A(f"v_mfma_f32_16x16x32_bf16 {v(acc0,4)}, {v(KM,4)}, {v(Qks[0],4)}, 0")
    for i in range(4):
        A(f"v_mov_b32_dpp {v(KM+4+i)}, {v(KM+i)} row_ror:8 row_mask:0xf bank_mask:0xf")
    A(f"v_mfma_f32_16x16x32_bf16 {v(acc1,4)}, {a(aK+8,4)}, {v(Qks[2],4)}, {v(acc1,4)}")
    A(f"v_mfma_f32_16x16x32_bf16 {v(acc2,4)}, {a(aK+24,4)}, {v(Qks[2],4)}, {v(acc2,4)}")
    A(f"v_mfma_f32_16x16x32_bf16 {v(acc0,4)}, {v(KM+8,4)}, {v(Qks[2],4)}, {v(acc0,4)}")
    for i in range(4):
        A(f"v_mov_b32_dpp {v(KM+12+i)}, {v(KM+8+i)} row_ror:8 row_mask:0xf bank_mask:0xf")
    for ks in (1, 3):
        A(f"v_mfma_f32_16x16x32_bf16 {v(acc1,4)}, {a(aK+ks*4,4)}, {v(Qks[ks],4)}, {v(acc1,4)}")
        A(f"v_mfma_f32_16x16x32_bf16 {v(acc2,4)}, {a(aK+16+ks*4,4)}, {v(Qks[ks],4)}, {v(acc2,4)}")
        A(f"v_mfma_f32_16x16x32_bf16 {v(acc0,4)}, {v(KM+ks*4,4)}, {v(Qks[ks],4)}, {v(acc0,4)}")
    issue_v()
    A.nop(5)
    stamp(9)
    S = [acc1 + i for i in range(4)] + [acc2 + i for i in range(4)] + [acc0 + i for i in range(4)]
    sm = [f"v_max3_f32 {v(vMx)}, {v(S[0])}, {v(S[1])}, {v(S[2])}",
          f"v_max3_f32 {v(vMx)}, {v(vMx)}, {v(S[3])}, {v(S[4])}",
          f"v_max3_f32 {v(vMx)}, {v(vMx)}, {v(S[5])}, {v(S[6])}"]
    for i in range(4):
        sm.append(f"v_cndmask_b32 {v(acc0+i)}, {v(vNinf)}, {v(acc0+i)}, s[{sMaskG}:{sMaskG+1}]")
    sm += [f"v_max3_f32 {v(vMx)}, {v(vMx)}, {v(S[7])}, {v(S[8])}",
           f"v_max3_f32 {v(vMx)}, {v(vMx)}, {v(S[9])}, {v(S[10])}",
           f"v_max_f32 {v(vMx)}, {v(vMx)}, {v(S[11])}",
           f"v_mov_b32 {v(vMx2)}, {v(vMx)}",
           "s_nop 1",
           f"v_permlane16_swap_b32 {v(vMx)}, {v(vMx2)}",
           "s_nop 0",
           f"v_max_f32 {v(vMx)}, {v(vMx)}, {v(vMx2)}",
           f"v_mov_b32 {v(vMx2)}, {v(vMx)}",
           "s_nop 1",
           f"v_permlane32_swap_b32 {v(vMx)}, {v(vMx2)}",
           "s_nop 0",
           f"v_max_f32 {v(vMx)}, {v(vMx)}, {v(vMx2)}",
           f"v_mul_f32 {v(vMx)}, s{sC}, {v(vMx)}"]
    for r in S:
        sm.append(f"v_fma_f32 {v(r)}, {v(r)}, s{sC}, -{v(vMx)}")
    for r in S[:VSPLIT]:
        sm.append(f"v_exp_f32 {v(r)}, {v(r)}")
    for ins in sm:
        A(ins)
    Lv, Lvd = A.newlabel("Lv"), A.newlabel("Lvd")
    A(f"s_mov_b32 s{sCnt}, 0")
    A.label(Lv)
    A("s_waitcnt vmcnt(0)")
    check_sentinel(list(range(VM, VM + 4)) + list(range(VM + 8, VM + 12)), vT0)
    A(f"s_cbranch_vccz {Lvd}")
    issue_v()
    A(f"s_add_u32 s{sCnt}, s{sCnt}, 1")
    A(f"s_cmp_lt_u32 s{sCnt}, {SPIN_MAX}")
    A(f"s_cbranch_scc1 {Lv}")
    A(f"s_mov_b32 s{sTmp}, 2")
    A(f"s_branch {Lfail}")
    A.label(Lvd)
    if prof:
        A(f"s_add_u32 s99, s99, s{sCnt}")
    um = []
    for s_ in (0, 2, 1, 3):
        for t in range(3):
            c = "0" if s_ == 0 else v(accU + t * 4, 4)
            um.append(f"v_mfma_f32_16x16x32_bf16 {v(accU+t*4,4)}, {v(VM+s_*4,4)}, {WC(t,s_)}, {c}")
    sm = [f"v_mov_b32_dpp {v(VM+4+i)}, {v(VM+i)} row_ror:8 row_mask:0xf bank_mask:0xf" for i in range(4)]
    sm += [f"v_mov_b32_dpp {v(VM+12+i)}, {v(VM+8+i)} row_ror:8 row_mask:0xf bank_mask:0xf" for i in range(4)]
    for r in S[VSPLIT:]:
        sm.append(f"v_exp_f32 {v(r)}, {v(r)}")
    sm.append("s_nop 0")
    for i in range(4):
        sm.append(f"v_cvt_pk_bf16_f32 {v(P0+i)}, {v(S[2*i])}, {v(S[2*i+1])}")
    sm.append(f"v_cvt_pk_bf16_f32 {v(Blo)}, {v(S[8])}, {v(S[9])}")
    sm.append(f"v_cvt_pk_bf16_f32 {v(Blo+1)}, {v(S[10])}, {v(S[11])}")
    for idx in range(max(len(sm) // 2 + 1, len(um))):
        if um:
            A(um.pop(0))
        for _ in range(2):
            if sm:
                A(sm.pop(0))
    assert not um and not sm
    pre = [u_load(t, aUn) for t in range(3)] + ([] if KLATE else [k_load(f) for f in range(8)])
    if "nokv" in exp:
        pre = []
    stamp(3)
    def pl(n=1):
        for _ in range(n):
            A(pre.pop(0) if pre else "s_nop 0")
    A(f"v_mfma_f32_16x16x32_bf16 {v(accZ,4)}, {v(vOnes,4)}, {v(P0,4)}, 0")
    for t in range(3):
        A(f"v_mfma_f32_16x16x32_bf16 {v(accC+t*4,4)}, {a(aU+t*4,4)}, {v(P0,4)}, 0")
        pl()
    A(f"v_mfma_f32_16x16x16_bf16 {v(accZ,4)}, {v(vOnes,2)}, {v(Blo,2)}, {v(accZ,4)}")
    pl(2)
    for t in range(3):
        A(f"v_cvt_pk_bf16_f32 {v(UA+t*2)}, {v(accU+t*4)}, {v(accU+t*4+1)}")
        A(f"v_cvt_pk_bf16_f32 {v(UA+t*2+1)}, {v(accU+t*4+2)}, {v(accU+t*4+3)}")
    pl(1)
    A(f"v_rcp_f32 {v(vRz)}, {v(accZ)}")
    for t in range(3):
        A(f"v_mfma_f32_16x16x16_bf16 {v(accC+t*4,4)}, {v(UA+t*2,2)}, {v(Blo,2)}, {v(accC+t*4,4)}")
    A(f"v_mov_b32 {v(vRz+1)}, {v(vRz)}")
    pl(5)
    A.nop(1)
    stamp(10)
    for t in range(3):
        A(f"v_pk_mul_f32 {v(accC+t*4,2)}, {v(accC+t*4,2)}, {v(vRz,2)}")
        A(f"v_pk_mul_f32 {v(accC+t*4+2,2)}, {v(accC+t*4+2,2)}, {v(vRz,2)}")
        A(f"ds_write_b128 {v(vRCw)}, {v(accC+t*4,4)} offset:{t*1024}")
    assert not pre
    A("s_waitcnt lgkmcnt(0)")
    stamp(11)
    A("s_barrier")
    stamp(12)
    A("s_mov_b32 exec_hi, 0xff")
    for w in range(4):
        A(f"ds_read_b128 {v(Cg+w*4,4)}, {v(vRCr)} offset:{w*3072}")
    A("s_waitcnt lgkmcnt(2)")
    for i in range(4):
        A(f"v_add_f32 {v(Cg+i)}, {v(Cg+i)}, {v(Cg+4+i)}")
    A("s_waitcnt lgkmcnt(0)")
    for i in range(4):
        A(f"v_add_f32 {v(Cg+8+i)}, {v(Cg+8+i)}, {v(Cg+12+i)}")
    for i in range(4):
        A(f"v_add_f32 {v(Cg+i)}, {v(Cg+i)}, {v(Cg+8+i)}")

    def persist(final=False):
        A("s_mov_b64 exec, -1")
        if KLATE and not final:
            for f in range(8):
                A(k_load(f))
        A(f"buffer_store_dwordx2 {v(vPub,2)}, {v(vKMst)}, {WSR}, s{sOffKM} offen" + (" sc1" if wrole else ""))
        A(f"buffer_store_dwordx2 {v(vPub2,2)}, {v(vVMst)}, {WSR}, s{sOffKM} offen" + (" sc1" if wrole else ""))
        if wrole and not final:
            Lns = A.newlabel("Lns")
            A(f"s_and_b32 s{sTmp}, s{sStep}, 3")
            A(f"s_cmp_lg_u32 s{sTmp}, 0")
            A(f"s_cbranch_scc1 {Lns}")
            A(f"s_cmp_eq_u32 s{sStep}, 0")
            A(f"s_cbranch_scc1 {Lns}")
            A(f"s_lshr_b32 s{sTmp}, s{sStep}, 2")
            A(f"s_sub_u32 s{sTmp}, s{sTmp}, 1")
            signal_mem(sTmp)
            A.label(Lns)
            Lns2 = A.newlabel("Lns")
            A(f"s_cmp_lg_u32 s{sStep}, 62")
            A(f"s_cbranch_scc1 {Lns2}")
            A(f"s_mov_b32 s{sTmp}, 16")
            signal_mem(sTmp)
            A.label(Lns2)

    def background(storer):
        persist()
        store_local(f"buffer_store_dwordx2 {v(vSent,2)}, {v(vAst)}, {WSR}, s{sRAp} offen"); store_local(f"buffer_store_dwordx2 {v(vSent,2)}, {v(vAst2)}, {WSR}, s{sRAp} offen")
        A("s_mov_b32 exec_hi, 0xff")
        if storer:
            for kc in range(KC):
                A(f"buffer_store_dwordx4 {v(vSent,4)}, {v(vCst)}, {WSR}, s{sRCp} offen sc1")
                if kc < KC - 1:
                    A(f"s_add_u32 s{sRCp}, s{sRCp}, {8*20480}")
            if "nokv" not in exp:
                A("s_mov_b64 exec, -1")
                A(f"buffer_load_dwordx4 {v(vDummy,4)}, {v(vWarm)}, {WSR}, s{sWarm} offen")
        else:
            store_local(f"buffer_store_dwordx2 {v(vSent,2)}, {v(vDst)}, {WSR}, s{sRDp} offen")

    Lpw = A.newlabel("Lpw")
    Lcdone = A.newlabel("Lcdone")
    A(f"s_cmp_ge_u32 s{sWave}, 2")
    A(f"s_cbranch_scc1 {Lpw}")
    for i in range(4):
        A(f"v_min_u32 {v(Cg+i)}, 0xfffffffe, {v(Cg+i)}")
    for kc in range(KC):
        A(f"buffer_store_dwordx4 {v(Cg,4)}, {v(vCst)}, {WSR}, s{sOffC} offen sc1")
        if kc < KC - 1:
            A(f"s_add_u32 s{sOffC}, s{sOffC}, {8*20480}")
    stamp(4)
    background(True)
    if DSLEEP:
        A(f"s_sleep {DSLEEP}")
    A(f"s_branch {Lcdone}")
    A.label(Lpw)
    stamp(4)
    Lw3 = A.newlabel("Lw3")
    A(f"s_cmp_eq_u32 s{sWave}, 3")
    A(f"s_cbranch_scc1 {Lw3}")
    background(False)
    A(f"s_mov_b32 s{sEnd}, s{sRC}")

    def advance():
        A(f"s_add_u32 s{sStep}, s{sStep}, 1")
        A(f"s_add_u32 s{sOffKM}, s{sOffKM}, {32*2048}")
        A(f"s_mov_b32 s{sOffD}, s{sRD}")
        for ins in ring:
            A(ins)
    advance()
    if CDELAY:
        A(f"s_sleep {CDELAY}")

    def issue_c():
        for r in range(1, 8):
            A(f"buffer_load_dwordx4 {v(CR+(r-1)*4,4)}, {v(vCg+r)}, {WSR}, s{sEnd} offen sc1")
    poll(issue_c, range(CR, CR + 28), 3)
    stamp(5)
    c = CR
    for i in (0, 2):
        A(f"v_pk_add_f32 {v(Cg+i,2)}, {v(Cg+i,2)}, {v(c+i,2)}")
        A(f"v_pk_add_f32 {v(Cg+4+i,2)}, {v(c+4+i,2)}, {v(c+8+i,2)}")
        A(f"v_pk_add_f32 {v(Cg+8+i,2)}, {v(c+12+i,2)}, {v(c+16+i,2)}")
        A(f"v_pk_add_f32 {v(Cg+12+i,2)}, {v(c+20+i,2)}, {v(c+24+i,2)}")
    for i in (0, 2):
        A(f"v_pk_add_f32 {v(Cg+i,2)}, {v(Cg+i,2)}, {v(Cg+4+i,2)}")
        A(f"v_pk_add_f32 {v(Cg+8+i,2)}, {v(Cg+8+i,2)}, {v(Cg+12+i,2)}")
    for i in (0, 2):
        A(f"v_pk_add_f32 {v(Cg+i,2)}, {v(Cg+i,2)}, {v(Cg+8+i,2)}")
    A(f"v_cvt_pk_bf16_f32 {v(Cg+4)}, {v(Cg)}, {v(Cg+1)}")
    A(f"v_cvt_pk_bf16_f32 {v(Cg+5)}, {v(Cg+2)}, {v(Cg+3)}")
    A(f"v_min_u32 {v(Cg+4)}, 0xfffffffe, {v(Cg+4)}")
    A(f"v_min_u32 {v(Cg+5)}, 0xfffffffe, {v(Cg+5)}")
    store_local(f"buffer_store_dwordx2 {v(Cg+4,2)}, {v(vDst)}, {WSR}, s{sOffD} offen")
    A("s_mov_b64 exec, -1")
    Ldp = A.newlabel("Ldp")
    A(f"s_branch {Ldp}")
    A.label(Lw3)
    persist()
    store_local(f"buffer_store_dwordx2 {v(vSent,2)}, {v(vAst)}, {WSR}, s{sRAp} offen"); store_local(f"buffer_store_dwordx2 {v(vSent,2)}, {v(vAst2)}, {WSR}, s{sRAp} offen")
    Lnf = A.newlabel("Lnf")
    if wrole:
        A("s_mov_b64 exec, -1")
        A(f"s_and_b32 s{sTmp}, s{sStep}, 3")
        A(f"s_cmp_lg_u32 s{sTmp}, 1")
        A(f"s_cbranch_scc1 {Lnf}")
        A(f"s_add_u32 s{sEnd}, s{sStep}, 3")
        A(f"s_lshr_b32 s{sEnd}, s{sEnd}, 2")
        A(f"s_cmp_gt_u32 s{sEnd}, 15")
        A(f"s_cbranch_scc1 {Lnf}")
        wait_kvu(sEnd)
        A(f"s_branch {Lcdone}")
    A.label(Lnf)
    if DSLEEP:
        A(f"s_sleep {DSLEEP}")
    A.label(Lcdone)
    A("s_mov_b64 exec, -1")
    advance()
    A.label(Ldp)
    stamp(13)

    if PDELAY:
        Lpd = A.newlabel("Lpdl")
        A(f"s_cmp_lg_u32 s{sWave}, 2")
        A(f"s_cbranch_scc1 {Lpd}")
        A(f"s_sleep {PDELAY}")
        A.label(Lpd)

    def issue_d():
        A(f"buffer_load_dwordx4 {v(M,4)}, {v(vD0)}, {WSR}, s{sOffD} offen sc1")
        A(f"buffer_load_dwordx4 {v(M+4,4)}, {v(vD0)}, {WSR}, s{sOffD} offen offset:1024 sc1")
        A(f"buffer_load_dwordx4 {v(M+8,4)}, {v(vD2)}, {WSR}, s{sOffD} offen sc1")
    poll(issue_d, range(M, M + 12), 4)
    A(f"s_branch {Lloop}")

    A.label(Lfin)
    persist(True)
    A("s_mov_b64 exec, -1")
    rtl()
    if wrole:
        A("s_waitcnt vmcnt(0)")
        A(f"s_mov_b32 s{sTmp}, 15")
        signal_mem(sTmp)
    if prof:
        A(f"s_lshl_b32 s{sTmp}, s{sGrp}, 4")
        A(f"s_add_u32 s{sTmp}, s{sTmp}, s{sMemb}")
        A(f"s_lshl_b32 s{sTmp}, s{sTmp}, 2")
        A(f"s_add_u32 s{sTmp}, s{sTmp}, s{sWave}")
        A(f"s_lshl_b32 s{sTmp}, s{sTmp}, 6")
        A(f"s_add_u32 s{sTmp}, s{sTmp}, {WS_PROF:#x}")
        A("s_mov_b64 exec, 1")
        A(f"s_lshl_b32 s97, s97, 16")
        A(f"s_or_b32 s{sPr+14}, s97, s98")
        A(f"s_lshl_b32 s99, s99, 16")
        A(f"s_or_b32 s{sPr+15}, s99, s100")
        for i in range(16):
            A(f"v_mov_b32 {v(vT0)}, s{sPr+i}")
            A(f"v_mov_b32 {v(vT1)}, {i*4}")
            A(f"buffer_store_dword {v(vT0)}, {v(vT1)}, {WSR}, s{sTmp} offen")
    A(f"s_branch {Lend}")
    A.label(Lfail)
    A("s_mov_b64 exec, 1")
    A(f"v_mov_b32 {v(vT0)}, s{sTmp}")
    A(f"v_mov_b32 {v(vT1)}, 0")
    A(f"v_or_b32 {v(vT0)}, 0x100, {v(vT0)}")
    A(f"buffer_store_dword {v(vT0)}, {v(vT1)}, s[{sDBG}:{sDBG+3}], 0 offen")
    A.label(Lend)
    A("s_endpgm")
    if wrole:
        A.label(Lw)
        A(f"s_sub_u32 s54, s{sCnt}, 128")
        wrole(A, 54, confirm)
        A("s_endpgm")
    return kernel_desc(name, 512, 102, 256)
```

```python
import struct
from asmlib import *
from layout import *


def f32bits(x):
    return struct.unpack("<I", struct.pack("<f", x))[0]


SPIN_MAX = 400000
WARM = 1
NST = 64
CDELAY = 7
KC = 1
DSLEEP = 24
AALL = 1
ADELAY = 0
VSPLIT = 4
EARLY = 1
VM1 = 0
VM2 = 0
KLATE = 0
PDELAY = 0
OOB = 0x7ff00000


def gen_rec(A, name="rec_kernel", prof=False, nsteps=64, exp=(), wrole=None):
    kernel_header(A, name)
    sWS, sM0, sW, sDBG = 4, 8, 12, 32
    sX, sT, sGrp, sMemb, sWave, sStep, sMode, sCnt = 36, 37, 38, 39, 40, 41, 42, 43
    sOffKM, sOffC, sOffD, sOffK, sTmp, sTmp2, sH, sOffU = 44, 45, 46, 47, 48, 49, 50, 51
    sRA, sRC, sRD, sRAp, sRCp, sRDp, sWarm, sOffUM = 90, 91, 92, 93, 94, 95, 96, 101
    sRCB = 101
    sMaskG = 54
    sC = 58
    sEnd = 59
    sCnts = 60
    sPr = 70
    R = RegAlloc(1, 256)
    vLane, vN, vG, vN8 = R.alloc(), R.alloc(), R.alloc(), R.alloc()
    vT0, vT1, vT2, vT3 = R.alloc(), R.alloc(), R.alloc(), R.alloc()
    vD0, vD2 = R.alloc(), R.alloc()
    vRAw, vRAr, vAst, vKMst = R.alloc(), R.alloc(), R.alloc(), R.alloc()
    vRAr2, vAst2, vVMst = R.alloc(), R.alloc(), R.alloc()
    vQo, vKo = R.alloc(), R.alloc()
    vRCw, vRCr, vCst = R.alloc(), R.alloc(), R.alloc()
    vCg = R.alloc(8)
    vDst = R.alloc()
    vK0, vK1, vU = R.alloc(), R.alloc(), R.alloc()
    vWarm = R.alloc()
    vNinf = R.alloc()
    vFlag, vSig, vOne = R.alloc(), R.alloc(), R.alloc()
    vU2 = R.alloc()
    vOnes = R.alloc(4)
    vSent = R.alloc(4)
    vDummy = R.alloc(4)
    vPub = R.alloc(2)
    vPub2 = R.alloc(2)
    assert R.next <= 64
    M = R.alloc(12)
    Mr = R.alloc(8)
    accA = R.alloc(24)
    Q = R.alloc(8)
    Qr = R.alloc(8)
    KM = R.alloc(16)
    VM = R.alloc(16)
    acc1, acc2, acc0 = R.alloc(4), R.alloc(4), R.alloc(4)
    accU = R.alloc(12)
    UA = R.alloc(6)
    P0 = R.alloc(4)
    PM, Blo = R.alloc(2), R.alloc(2)
    vMx, vMx2 = R.alloc(), R.alloc()
    vRz = R.alloc(2)
    accZ = R.alloc(4)
    accC = R.alloc(12)
    Cg = R.alloc(16)
    CR = KM
    TMP = 64
    aWA, aWC, aK, aU, aUn = 0, 120, 168, 200, 212

    def WA(t, ks):
        return a(aWA + (t * 5 + ks) * 4, 4)

    def WC(t, s_):
        return a(aWC + (t * 4 + s_) * 4, 4)

    LDS_RA = 65536
    LDS_RC = 65536 + 12288
    LDS_ROLE = 163840 - 16

    Lend = A.newlabel("Lend")
    Lfail = A.newlabel("Lfail")
    WSR = f"s[{sWS}:{sWS+3}]"

    def rtl(cond8=False):
        if "tl" not in exp:
            return
        Ls = A.newlabel("Lrtl")
        A(f"s_cmp_lg_u32 s{sWave}, 3")
        A(f"s_cbranch_scc1 {Ls}")
        if cond8:
            A(f"s_and_b32 s70, s{sStep}, 7")
            A(f"s_cmp_lg_u32 s70, 0")
            A(f"s_cbranch_scc1 {Ls}")
        A("s_memrealtime s[72:73]")
        A("s_waitcnt lgkmcnt(0)")
        A("s_mov_b64 exec, 1")
        A(f"v_mov_b32 {v(vT0)}, s72")
        A(f"v_mov_b32 {v(vT1)}, 0")
        A(f"buffer_store_dword {v(vT0)}, {v(vT1)}, {WSR}, s71 offen")
        A("s_mov_b64 exec, -1")
        A("s_add_u32 s71, s71, 4")
        A.label(Ls)

    def dbgmax(slot):
        if "dbg" not in exp:
            return
        A("s_memrealtime s[72:73]")
        A("s_load_dwordx2 s[88:89], s[0:1], 88")
        A("s_waitcnt lgkmcnt(0)")
        A("s_mov_b32 s84, s88")
        A("s_and_b32 s85, s89, 0xffff")
        A("s_mov_b32 s86, 256")
        A("s_mov_b32 s87, 0x00020000")
        A("s_mov_b64 exec, 1")
        A("s_and_b32 s72, s72, 0xffffff")
        A("v_mov_b32 v4, s72")
        A(f"v_mov_b32 v5, {slot*4}")
        A("buffer_atomic_umax v4, v5, s[84:87], 0 offen")
        A("s_mov_b64 exec, -1")
        A("v_and_b32 v4, 7, v0")

    def stamp(i):
        if not prof:
            return
        if "rt" in exp:
            Ls = A.newlabel("Lst")
            A(f"s_cmp_lg_u32 s{sStep}, {30 if i != 13 else 31}")
            A(f"s_cbranch_scc1 {Ls}")
            A(f"s_memrealtime s[88:89]")
            A("s_waitcnt lgkmcnt(0)")
            A(f"s_mov_b32 s{sPr+i}, s88")
            A.label(Ls)
            return
        A(f"s_memtime s[88:89]")
        A("s_waitcnt lgkmcnt(0)")
        A(f"s_sub_u32 s{sTmp2}, s88, s86")
        A(f"s_add_u32 s{sPr+i}, s{sPr+i}, s{sTmp2}")
        A("s_mov_b32 s86, s88")

    sKX, sKT, sKR = 98, 99, 97
    assert not prof or not wrole
    A("s_cmp_ge_u32 s2, 256")
    A(f"s_cbranch_scc1 {Lend}")
    if "tl" in exp:
        A("s_memrealtime s[68:69]")
    A(f"s_mov_b32 s{sKR}, 0")
    dbgmax(1)
    Lentry = A.newlabel("Lentry")
    A.label(Lentry)
    A("s_waitcnt vmcnt(0) lgkmcnt(0)")
    A("s_load_dwordx8 s[16:23], s[0:1], 32")
    A("s_load_dwordx2 s[24:25], s[0:1], 64")
    A("s_load_dwordx4 s[28:31], s[0:1], 88")
    A(f"v_and_b32 {v(vLane)}, 63, v0")
    A(f"v_lshrrev_b32 {v(vT0)}, 6, v0")
    A(f"v_and_b32 {v(vN)}, 15, v0")
    A(f"v_readfirstlane_b32 s{sWave}, {v(vT0)}")
    A(f"v_bfe_u32 {v(vG)}, v0, 4, 2")
    A(f"v_and_b32 {v(vN8)}, 7, v0")
    A("s_waitcnt lgkmcnt(0)")
    make_srd(A, sWS, 30, WS_BYTES)
    make_srd(A, sM0, 16, 10240)
    make_srd(A, sDBG, 28, 256)
    make_srd(A, sW, 18, 640 * 4096 * 2)

    def confirm(swave, force_jump=False):
        Lskip, Lw0, Lp = A.newlabel("Lcf"), A.newlabel("Lcf0"), A.newlabel("Lcfp")
        A(f"s_cmp_lg_u32 s{sKR}, 0")
        A(f"s_cbranch_scc1 {Lskip}")
        A(f"s_cmp_lg_u32 s{swave}, 0")
        A(f"s_cbranch_scc1 {Lw0}")
        A("s_load_dwordx2 s[88:89], s[0:1], 88")
        A("v_and_b32 v4, 63, v0")
        A("v_lshlrev_b32 v4, 2, v4")
        A("v_add_u32 v4, 64, v4")
        A("s_mov_b64 exec, 0x1ff")
        A("s_mov_b32 s43, 0")
        A("s_waitcnt lgkmcnt(0)")
        A("s_and_b32 s89, s89, 0xffff")
        A("s_mov_b32 s90, 256")
        A("s_mov_b32 s91, 0x00020000")
        A.label(Lp)
        A("buffer_load_dword v5, v4, s[88:91], 0 offen sc1")
        A("s_waitcnt vmcnt(0)")
        for i in range(8):
            A(f"v_readlane_b32 s{sCnts+i}, v5, {i}")
        A("v_readlane_b32 s48, v5, 8")
        A("s_nop 3")
        A("s_add_u32 s43, s43, 1")
        A(f"s_cmp_gt_u32 s43, {SPIN_MAX}")
        Lok = A.newlabel("Lcfo")
        A(f"s_cbranch_scc0 {Lok}")
        A("s_endpgm")
        A.label(Lok)
        A("s_cmp_lt_u32 s48, 256")
        A(f"s_cbranch_scc1 {Lp}")
        A(f"s_min_u32 s48, s{sCnts}, s{sCnts+1}")
        for i in range(2, 8):
            A(f"s_min_u32 s48, s48, s{sCnts+i}")
        A(f"s_mov_b32 s49, s{sKT}")
        for i in range(7):
            A(f"s_cmp_gt_u32 s{sKX}, {i}")
            A(f"s_cselect_b32 s43, s{sCnts+i}, 0")
            A("s_add_u32 s49, s49, s43")
        A("s_or_b32 s49, s49, 0x300")
        A(f"s_lshl_b32 s43, s{sKX}, 5")
        A(f"s_add_u32 s43, s43, s{sKT}")
        A("s_or_b32 s43, s43, 0x200")
        A(f"s_cmp_ge_u32 s48, {33 if 'slow' in exp else 32}")
        A("s_cselect_b32 s43, s43, s49")
        A("s_mov_b64 exec, 1")
        A(f"v_mov_b32 v4, {LDS_ROLE}")
        A("v_mov_b32 v5, s43")
        A("ds_write_b32 v4, v5")
        A("s_waitcnt lgkmcnt(0)")
        A("s_mov_b64 exec, -1")
        A.label(Lw0)
        A("s_barrier")
        A(f"v_mov_b32 v4, {LDS_ROLE}")
        A("ds_read_b32 v5, v4")
        A("s_waitcnt lgkmcnt(0)")
        A(f"v_readfirstlane_b32 s{sKR}, v5")
        A("s_nop 3")
        A("s_barrier")
        if force_jump:
            A(f"s_branch {Lentry}")
        else:
            A(f"s_bitcmp1_b32 s{sKR}, 8")
            A(f"s_cbranch_scc0 {Lskip}")
            A(f"s_branch {Lentry}")
        A.label(Lskip)

    Lhave = A.newlabel("Lhave")
    A(f"s_mov_b32 s{sCnt}, s{sKR}")
    A(f"s_cmp_lg_u32 s{sKR}, 0")
    A(f"s_cbranch_scc1 {Lhave}")
    A(f"s_getreg_b32 s{sKX}, hwreg(HW_REG_XCC_ID)")
    A(f"s_and_b32 s{sKX}, s{sKX}, 7")
    Lel_done = A.newlabel("Lel")
    A(f"s_cmp_lg_u32 s{sWave}, 0")
    A(f"s_cbranch_scc1 {Lel_done}")
    A(f"s_lshl_b32 s{sTmp}, s{sKX}, 2")
    A(f"s_add_u32 s{sTmp}, s{sTmp}, 64")
    A(f"v_mov_b32 {v(vT0)}, s{sTmp}")
    A(f"v_mov_b32 {v(vT1)}, 1")
    A("s_mov_b64 exec, 1")
    A(f"buffer_atomic_add {v(vT1)}, {v(vT0)}, s[{sDBG}:{sDBG+3}], 0 offen sc0")
    A(f"v_mov_b32 {v(vT0)}, {LDS_ROLE}")
    A("s_waitcnt vmcnt(0)")
    A(f"ds_write_b32 {v(vT0)}, {v(vT1)}")
    A("s_waitcnt lgkmcnt(0)")
    A("s_mov_b64 exec, -1")
    A.label(Lel_done)
    A("s_barrier")
    A(f"v_mov_b32 {v(vT0)}, {LDS_ROLE}")
    A(f"ds_read_b32 {v(vT1)}, {v(vT0)}")
    A("s_waitcnt lgkmcnt(0)")
    A(f"v_readfirstlane_b32 s{sKT}, {v(vT1)}")
    A("s_nop 3")
    import parta
    A(f"s_add_u32 s61, s{sWS}, {WS_RC + 0x1fffff:#x}")
    A("s_and_b32 s61, s61, 0xffe00000")
    A(f"s_sub_u32 s61, s61, s{sWS}")
    A(f"s_sub_u32 s61, s61, {WS_RC:#x}")
    A(f"v_lshlrev_b32 {v(vT0)}, 4, v0")
    for k in range((parta.NB_INIT + 255) // 256):
        A(f"s_add_u32 s60, s2, {k*256}")
        A("s_lshl_b32 s62, s60, 12")
        A(f"s_add_u32 s63, s62, {WS_CNT:#x}")
        A("s_mov_b32 s64, 0")
        base = parta.NB_ZERO
        for off, n in parta.FILL_RANGES:
            A(f"s_add_u32 s65, s62, {off - base*4096:#x}")
            if off == WS_RC:
                A("s_add_u32 s65, s65, s61")
            A(f"s_cmp_ge_u32 s60, {base}")
            A("s_cselect_b32 s63, s65, s63")
            A("s_cselect_b32 s64, -1, s64")
            base += n // 4096
        A(f"s_cmp_ge_u32 s60, {parta.NB_INIT}")
        A(f"s_cselect_b32 s63, {OOB:#x}, s63")
        for i in range(4):
            A(f"v_mov_b32 v{64+k*4+i}, s64")
        A(f"buffer_store_dwordx4 v[{64+k*4}:{67+k*4}], {v(vT0)}, {WSR}, s63 offen sc1")
    A("s_waitcnt vmcnt(0)")
    A("s_barrier")
    Lid = A.newlabel("Lid")
    A(f"s_cmp_lg_u32 s{sWave}, 0")
    A(f"s_cbranch_scc1 {Lid}")
    A("s_mov_b64 exec, 1")
    A(f"v_mov_b32 {v(vT0)}, 96")
    A(f"v_mov_b32 {v(vT1)}, 1")
    A(f"buffer_atomic_add {v(vT1)}, {v(vT0)}, s[{sDBG}:{sDBG+3}], 0 offen")
    A("s_mov_b64 exec, -1")
    A.label(Lid)
    Lsp = A.newlabel("Lsp")
    A(f"s_cmp_lt_u32 s{sKT}, 32")
    A(f"s_cbranch_scc1 {Lsp}")
    confirm(sWave, force_jump=True)
    A.label(Lsp)
    A(f"s_lshl_b32 s{sCnt}, s{sKX}, 5")
    A(f"s_add_u32 s{sCnt}, s{sCnt}, s{sKT}")
    A.label(Lhave)
    A(f"s_bfe_u32 s{sMode}, s{sCnt}, 0x10008")
    A(f"s_and_b32 s{sCnt}, s{sCnt}, 255")
    Lw = A.newlabel("Lwrole")
    Lr = A.newlabel("Lrrole")
    A(f"s_cmp_ge_u32 s{sCnt}, 128")
    if wrole:
        A(f"s_cbranch_scc0 {Lr}")
        A(f"s_branch {Lw}")
        A.label(Lr)
    else:
        A(f"s_cbranch_scc0 {Lr}")
        confirm(sWave)
        A(f"s_branch {Lend}")
        A.label(Lr)
    A(f"s_lshr_b32 s{sGrp}, s{sCnt}, 4")
    A(f"s_and_b32 s{sMemb}, s{sCnt}, 15")
    A(f"s_lshl_b32 s71, s{sCnt}, 8")
    A(f"s_add_u32 s71, s71, {WS_PROF:#x}")
    if "tl" in exp:
        A("s_mov_b64 exec, 1")
        A(f"v_mov_b32 {v(vT0)}, s68")
        A(f"v_mov_b32 {v(vT1)}, 0")
        A(f"buffer_store_dword {v(vT0)}, {v(vT1)}, {WSR}, s71 offen")
        A("s_mov_b64 exec, -1")
        A("s_add_u32 s71, s71, 4")
    rtl()

    A(f"s_mov_b32 s{sMaskG}, -1")
    A(f"s_mov_b32 s{sMaskG+1}, 0")
    A(f"s_mov_b32 s{sC}, {f32bits(SCALE*LOG2E):#x}")
    A(f"v_mov_b32 {v(vNinf)}, 0xff800000")
    for i in range(4):
        A(f"v_mov_b32 {v(vOnes+i)}, 0x3f803f80")
        A(f"v_mov_b32 {v(vSent+i)}, -1")

    A(f"s_lshr_b32 s{sTmp}, s{sMemb}, 2")
    A(f"s_lshl_b32 s{sH}, s{sGrp}, 2")
    A(f"s_add_u32 s{sH}, s{sH}, s{sTmp}")
    A(f"s_and_b32 s{sTmp}, s{sMemb}, 3")
    A(f"s_lshl_b32 s{sTmp2}, s{sH}, 8")
    A(f"s_lshl_b32 s{sCnt}, s{sTmp}, 6")
    A(f"s_add_u32 s{sTmp2}, s{sTmp2}, s{sCnt}")
    A(f"s_mul_i32 s{sCnt}, s{sWave}, {160*8192}")
    A(f"s_add_u32 s{sTmp2}, s{sTmp2}, s{sCnt}")
    A(f"v_lshrrev_b32 {v(vT0)}, 2, {v(vLane)}")
    A(f"v_lshlrev_b32 {v(vT0)}, 13, {v(vT0)}")
    A(f"v_and_b32 {v(vT1)}, 3, {v(vLane)}")
    A(f"v_lshl_add_u32 {v(vT0)}, {v(vT1)}, 4, {v(vT0)}")
    A(f"v_add_u32 {v(vT0)}, s{sTmp2}, {v(vT0)}")
    for m in range(3):
        if m:
            make_srd(A, sW, 18 + 2 * m, 640 * 4096 * 2)
        for i in range(10):
            A(f"s_mov_b32 s{sCnt}, {i*131072}")
            A(f"buffer_load_dwordx4 {v(TMP+(m*10+i)*4,4)}, {v(vT0)}, s[{sW}:{sW+3}], s{sCnt} offen")
    make_srd(A, sW, 24, 4096 * 640 * 2)
    A(f"s_lshl_b32 s{sTmp2}, s{sGrp}, 2")
    A(f"s_add_u32 s{sTmp2}, s{sTmp2}, s{sWave}")
    A(f"s_mul_i32 s{sTmp2}, s{sTmp2}, {128*1280}")
    A(f"s_mul_i32 s{sCnt}, s{sMemb}, 80")
    A(f"s_add_u32 s{sTmp2}, s{sTmp2}, s{sCnt}")
    A(f"v_lshrrev_b32 {v(vT1)}, 3, {v(vLane)}")
    A(f"v_mul_u32_u24 {v(vT1)}, 1280, {v(vT1)}")
    A(f"v_and_b32 {v(vT2)}, 7, {v(vLane)}")
    A(f"v_lshl_add_u32 {v(vT1)}, {v(vT2)}, 4, {v(vT1)}")
    A(f"v_add_u32 {v(vT1)}, s{sTmp2}, {v(vT1)}")
    for i in range(16):
        A(f"s_mov_b32 s{sCnt}, {i*8*1280}")
        A(f"buffer_load_dwordx4 {v(TMP+120+i*4,4)}, {v(vT1)}, s[{sW}:{sW+3}], s{sCnt} offen")
    A(f"s_lshl_b32 s{sTmp2}, s{sWave}, 14")
    A(f"v_lshlrev_b32 {v(vT0)}, 4, {v(vLane)}")
    A(f"v_add_u32 {v(vT0)}, s{sTmp2}, {v(vT0)}")
    A(f"v_lshrrev_b32 {v(vT1)}, 2, {v(vN)}")
    A(f"v_lshl_add_u32 {v(vT2)}, {v(vG)}, 3, {v(vT1)}")
    A(f"v_lshlrev_b32 {v(vT2)}, 6, {v(vT2)}")
    A(f"v_and_b32 {v(vT3)}, 3, {v(vN)}")
    A(f"v_lshl_add_u32 {v(vT2)}, {v(vT3)}, 3, {v(vT2)}")
    A(f"v_add_u32 {v(vT2)}, s{sTmp2}, {v(vT2)}")
    for m in range(3):
        A(f"s_waitcnt vmcnt({(2-m)*10+16})")
        for i in range(10):
            A(f"ds_write_b128 {v(vT0)}, {v(TMP+(m*10+i)*4,4)} offset:{i*1024}")
        for tt in range(2):
            for ks in range(5):
                r0 = aWA + ((m * 2 + tt) * 5 + ks) * 4
                A(f"ds_read_b64_tr_b16 {a(r0,2)}, {v(vT2)} offset:{ks*2048+tt*32}")
                A(f"ds_read_b64_tr_b16 {a(r0+2,2)}, {v(vT2)} offset:{ks*2048+tt*32+256}")
            A("s_waitcnt lgkmcnt(0)")
    A(f"v_lshl_add_u32 {v(vT2)}, {v(vG)}, 2, {v(vT1)}")
    A(f"v_lshlrev_b32 {v(vT2)}, 7, {v(vT2)}")
    A(f"v_lshl_add_u32 {v(vT2)}, {v(vT3)}, 3, {v(vT2)}")
    A(f"v_add_u32 {v(vT2)}, s{sTmp2}, {v(vT2)}")
    A("s_waitcnt vmcnt(0)")
    for i in range(16):
        A(f"ds_write_b128 {v(vT0)}, {v(TMP+120+i*4,4)} offset:{i*1024}")
        if i % 8 == 7:
            A("s_waitcnt lgkmcnt(0)")
    for tt in range(3):
        for s_ in range(4):
            r0 = aWC + (tt * 4 + s_) * 4
            A(f"ds_read_b64_tr_b16 {a(r0,2)}, {v(vT2)} offset:{s_*4096+tt*32}")
            A(f"ds_read_b64_tr_b16 {a(r0+2,2)}, {v(vT2)} offset:{s_*4096+tt*32+2048}")
        A("s_waitcnt lgkmcnt(0)")

    confirm(sWave)
    A(f"v_and_b32 {v(vN8)}, 7, v0")
    if wrole:
        import parta
        A("s_load_dwordx4 s[24:27], s[0:1], 8")
        A(f"s_lshl_b32 s{sEnd}, s{sGrp}, 4")
        A(f"s_add_u32 s{sEnd}, s{sEnd}, s{sMemb}")
        A("s_waitcnt lgkmcnt(0)")
        Lcu, Lcx, Lcy = A.newlabel("Lcu"), A.newlabel("Lcx"), A.newlabel("Lcy")
        A(f"s_cmp_lg_u32 s{sEnd}, 0")
        A(f"s_cbranch_scc1 {Lcy}")
        A(f"s_branch {Lcx}")
        A.label(Lcy)
        A(f"s_sub_u32 s{sEnd}, s{sEnd}, 1")
        parta.wt_batch(A, sEnd, sWave)
        A.label(Lcu)
        parta.const_unit(A, sEnd)
        A(f"s_add_u32 s{sEnd}, s{sEnd}, 127")
        A(f"s_cmp_le_u32 s{sEnd}, {parta.NB_FG}")
        A(f"s_cbranch_scc1 {Lcu}")
        A.label(Lcx)
        A("s_waitcnt vmcnt(0)")
        A("s_barrier")
        A("s_mov_b64 exec, 1")
        A("v_mov_b32 v1, 1")
        A("v_mov_b32 v2, 0")
        A(f"s_mov_b32 s{sTmp}, {WS_CNT + CNT_CONST:#x}")
        A(f"buffer_atomic_add v1, v2, {WSR}, s{sTmp} offen")
        A("s_mov_b64 exec, -1")
        A("s_load_dwordx2 s[16:17], s[0:1], 32")
        A(f"v_and_b32 {v(vLane)}, 63, v0")
        A(f"v_and_b32 {v(vN)}, 15, v0")
        A(f"v_bfe_u32 {v(vG)}, v0, 4, 2")
        A(f"v_and_b32 {v(vN8)}, 7, v0")
        A(f"v_mov_b32 {v(vNinf)}, 0xff800000")
        for i in range(4):
            A(f"v_mov_b32 {v(vOnes+i)}, 0x3f803f80")
            A(f"v_mov_b32 {v(vSent+i)}, -1")
        A("s_waitcnt lgkmcnt(0)")
        make_srd(A, sM0, 16, 10240)
    A(f"v_mul_u32_u24 {v(vT0)}, 1280, {v(vN8)}")
    A(f"v_lshl_add_u32 {v(vT0)}, {v(vG)}, 4, {v(vT0)}")
    A(f"s_mul_i32 s{sTmp}, s{sWave}, 320")
    A(f"v_add_u32 {v(vT0)}, s{sTmp}, {v(vT0)}")
    A(f"v_add_u32 {v(Cg+1)}, 256, {v(vT0)}")
    A(f"v_lshrrev_b32 {v(vT1)}, 3, {v(vN)}")
    A(f"v_lshl_add_u32 {v(Cg)}, {v(vT1)}, 6, {v(vT0)}")
    A(f"s_mul_i32 s{sTmp}, s{sWave}, 2560")
    A(f"v_lshlrev_b32 {v(vT0)}, 4, {v(vLane)}")
    A(f"v_add_u32 {v(vD0)}, s{sTmp}, {v(vT0)}")
    A(f"v_lshl_add_u32 {v(vT1)}, {v(vG)}, 3, {v(vN8)}")
    A(f"v_lshlrev_b32 {v(vT1)}, 4, {v(vT1)}")
    A(f"s_add_u32 s{sTmp}, s{sTmp}, 2048")
    A(f"v_add_u32 {v(vD2)}, s{sTmp}, {v(vT1)}")
    A(f"s_lshl_b32 s{sTmp2}, s{sGrp}, 2")
    A(f"s_add_u32 s{sTmp2}, s{sTmp2}, s{sWave}")
    A(f"s_mul_i32 s{sTmp}, s{sTmp2}, 6144")
    A(f"v_add_u32 {v(vQo)}, s{sTmp}, {v(vT0)}")
    A(f"v_add_u32 {v(vKo)}, 2048, {v(vQo)}")
    A(f"s_lshl_b32 s{sTmp}, s{sTmp2}, 13")
    A(f"v_add_u32 {v(vK0)}, s{sTmp}, {v(vT0)}")
    A(f"v_add_u32 {v(vK1)}, 4096, {v(vK0)}")
    A(f"s_mul_i32 s{sTmp}, s{sTmp2}, 40960")
    A(f"s_mul_i32 s{sCnt}, s{sMemb}, 2560")
    A(f"s_add_u32 s{sTmp}, s{sTmp}, s{sCnt}")
    A(f"v_lshrrev_b32 {v(vT2)}, 3, {v(vN)}")
    A(f"v_lshl_add_u32 {v(vU)}, {v(vT2)}, 9, {v(vT1)}")
    A(f"v_add_u32 {v(vU)}, s{sTmp}, {v(vU)}")
    A(f"v_mov_b32 {v(vU2)}, {OOB:#x}")
    A(f"v_cmp_gt_u32 vcc, 8, {v(vN)}")
    A("s_nop 1")
    A(f"v_cndmask_b32 {v(vU2)}, {v(vU2)}, {v(vU)}, vcc")
    A(f"s_mul_i32 s{sTmp}, s{sWave}, 3072")
    A(f"s_add_u32 s{sCnt}, s{sTmp}, {LDS_RA}")
    A(f"v_add_u32 {v(vRAw)}, s{sCnt}, {v(vT0)}")
    A(f"s_add_u32 s{sCnt}, s{sTmp}, {LDS_RC}")
    A(f"v_add_u32 {v(vRCw)}, s{sCnt}, {v(vT0)}")
    def reader(ubase_mul, ubase_add, nl, rdst, adst, pdst, pbase):
        A(f"s_mul_i32 s{sTmp}, s{sWave}, {ubase_mul}")
        A(f"s_add_u32 s{sTmp}, s{sTmp}, {ubase_add}")
        A(f"v_add_u32 {v(vT0)}, s{sTmp}, {v(vLane)}")
        A(f"v_lshrrev_b32 {v(vT1)}, 6, {v(vT0)}")
        A(f"v_bfe_u32 {v(vT2)}, {v(vT0)}, 1, 3")
        A(f"v_bfe_u32 {v(vT3)}, {v(vT0)}, 4, 2")
        A(f"v_and_b32 {v(vT0)}, 1, {v(vT0)}")
        A(f"v_lshl_add_u32 {v(rdst)}, {v(vT3)}, 4, {v(vT2)}")
        A(f"v_lshlrev_b32 {v(adst)}, 4, {v(rdst)}")
        A(f"v_lshl_add_u32 {v(rdst)}, {v(vT0)}, 3, {v(rdst)}")
        A(f"v_lshlrev_b32 {v(rdst)}, 4, {v(rdst)}")
        A(f"v_lshl_add_u32 {v(rdst)}, {v(vT1)}, 10, {v(rdst)}")
        A(f"v_add_u32 {v(rdst)}, {LDS_RA}, {v(rdst)}")
        A(f"s_and_b32 s{sTmp}, s{sMemb}, 3")
        A(f"s_lshr_b32 s{sTmp2}, s{sTmp}, 1")
        A(f"s_lshl_b32 s{sTmp2}, s{sTmp2}, 10")
        A(f"s_and_b32 s{sCnt}, s{sTmp}, 1")
        A(f"s_lshl_b32 s{sCnt}, s{sCnt}, 7")
        A(f"s_add_u32 s{sTmp2}, s{sTmp2}, s{sCnt}")
        A(f"s_mul_i32 s{sCnt}, s{sH}, 6144")
        A(f"s_add_u32 s{sTmp2}, s{sTmp2}, s{sCnt}")
        A(f"v_add_u32 {v(adst)}, s{sTmp2}, {v(adst)}")
        A(f"v_lshl_add_u32 {v(adst)}, {v(vT0)}, 3, {v(adst)}")
        A(f"v_lshl_add_u32 {v(adst)}, {v(vT1)}, 11, {v(adst)}")
        A(f"s_lshl_b32 s{sTmp2}, s{sTmp}, 9")
        A(f"s_lshl_b32 s{sCnt}, s{sH}, 11")
        A(f"s_add_u32 s{sTmp2}, s{sTmp2}, s{sCnt}")
        A(f"s_add_u32 s{sTmp2}, s{sTmp2}, {pbase:#x}")
        A(f"v_lshl_add_u32 {v(vT2)}, {v(vT3)}, 3, {v(vT2)}")
        A(f"v_lshlrev_b32 {v(vT2)}, 4, {v(vT2)}")
        A(f"v_lshl_add_u32 {v(vT2)}, {v(vT0)}, 3, {v(vT2)}")
        A(f"v_add_u32 {v(pdst)}, s{sTmp2}, {v(vT2)}")
        A(f"v_mov_b32 {v(vT3)}, {OOB:#x}")
        A(f"v_cmp_eq_u32 vcc, 0, {v(vT1)}")
        A("s_nop 1")
        A(f"v_cndmask_b32 {v(pdst)}, {v(pdst)}, {v(vT3)}, vcc")
        A(f"v_cmp_gt_u32 vcc, {nl}, {v(vLane)}")
        A("s_nop 1")
        A(f"v_cndmask_b32 {v(pdst)}, {v(vT3)}, {v(pdst)}, vcc")
        A(f"v_cndmask_b32 {v(adst)}, {v(vT3)}, {v(adst)}, vcc")
        A(f"v_cndmask_b32 {v(rdst)}, {v(vRAw)}, {v(rdst)}, vcc")
    reader(32, 0, 32, vRAr, vAst, vKMst, 0)
    reader(16, 128, 16, vRAr2, vAst2, vVMst, WS_VM - WS_KM)
    A(f"s_and_b32 s{sTmp}, s{sGrp}, 1")
    A(f"s_cmp_lt_u32 s{sWave}, 2")
    A(f"s_cselect_b32 s{sTmp}, s{sWave}, s{sTmp}")
    A(f"v_lshrrev_b32 {v(vT1)}, 3, {v(vLane)}")
    A(f"v_and_b32 {v(vT2)}, 1, {v(vLane)}")
    A(f"v_lshl_add_u32 {v(vT0)}, {v(vT1)}, 1, {v(vT2)}")
    A(f"v_bfe_u32 {v(vT2)}, {v(vLane)}, 1, 2")
    A(f"s_lshl_b32 s{sTmp2}, s{sTmp}, 2")
    A(f"v_add_u32 {v(vT2)}, s{sTmp2}, {v(vT2)}")
    A(f"v_and_b32 {v(vT3)}, 3, {v(vT0)}")
    A(f"v_lshl_add_u32 {v(vT3)}, {v(vT3)}, 4, {v(vT2)}")
    A(f"v_lshlrev_b32 {v(vT3)}, 4, {v(vT3)}")
    A(f"v_lshrrev_b32 {v(vT0)}, 2, {v(vT0)}")
    A(f"v_lshl_add_u32 {v(vT3)}, {v(vT0)}, 10, {v(vT3)}")
    A(f"v_add_u32 {v(vRCr)}, {LDS_RC}, {v(vT3)}")
    A(f"s_mul_i32 s{sCnt}, s{sMemb}, 43")
    A(f"s_lshr_b32 s{sCnt}, s{sCnt}, 8")
    A(f"s_mul_i32 s{sTmp2}, s{sMemb}, 1280")
    A(f"s_mul_i32 s{sCnt}, s{sCnt}, {16384 - 6*1280}")
    A(f"s_add_u32 s{sTmp2}, s{sTmp2}, s{sCnt}")
    A(f"s_mul_i32 s{sTmp}, s{sTmp}, 640")
    A(f"s_add_u32 s{sTmp}, s{sTmp}, s{sTmp2}")
    A(f"v_lshlrev_b32 {v(vT0)}, 4, {v(vLane)}")
    A(f"v_add_u32 {v(vCst)}, s{sTmp}, {v(vT0)}")
    for r in range(1, 8):
        A(f"s_xor_b32 s{sTmp2}, s{sGrp}, {r}")
        A(f"s_mul_i32 s{sTmp2}, s{sTmp2}, {RC_GRP}")
        A(f"v_add_u32 {v(vCg+r)}, s{sTmp2}, {v(vCst)}")
    A(f"s_mul_i32 s{sTmp}, s{sMemb}, 5")
    A(f"v_add_u32 {v(vT1)}, s{sTmp}, {v(vT1)}")
    A(f"v_lshlrev_b32 {v(vDst)}, 4, {v(vT2)}")
    A(f"v_and_b32 {v(vT2)}, 1, {v(vLane)}")
    A(f"v_lshl_add_u32 {v(vDst)}, {v(vT2)}, 3, {v(vDst)}")
    A(f"v_mul_u32_u24 {v(vT2)}, 205, {v(vT1)}")
    A(f"v_lshrrev_b32 {v(vT2)}, 12, {v(vT2)}")
    A(f"v_mul_u32_u24 {v(vT3)}, 20, {v(vT2)}")
    A(f"v_sub_u32 {v(vT1)}, {v(vT1)}, {v(vT3)}")
    A(f"v_mul_u32_u24 {v(vT2)}, 2560, {v(vT2)}")
    A(f"v_add_u32 {v(vDst)}, {v(vDst)}, {v(vT2)}")
    A(f"v_and_b32 {v(vT2)}, 3, {v(vT1)}")
    A(f"v_lshrrev_b32 {v(vT1)}, 2, {v(vT1)}")
    A(f"v_lshrrev_b32 {v(vT3)}, 1, {v(vT1)}")
    A(f"v_lshl_add_u32 {v(vDst)}, {v(vT3)}, 10, {v(vDst)}")
    A(f"v_and_b32 {v(vT3)}, 1, {v(vT1)}")
    A(f"v_lshl_add_u32 {v(vDst)}, {v(vT3)}, 7, {v(vDst)}")
    A(f"v_lshlrev_b32 {v(vT3)}, 8, {v(vT2)}")
    A(f"v_lshlrev_b32 {v(vT2)}, 7, {v(vT2)}")
    A(f"v_cmp_gt_u32 vcc, 4, {v(vT1)}")
    A("s_nop 1")
    A(f"v_cndmask_b32 {v(vT2)}, {v(vT2)}, {v(vT3)}, vcc")
    A(f"v_add_u32 {v(vDst)}, {v(vDst)}, {v(vT2)}")
    A(f"s_lshl_b32 s{sTmp}, s{sMemb}, 1")
    A(f"s_and_b32 s{sTmp2}, s{sWave}, 1")
    A(f"s_add_u32 s{sTmp}, s{sTmp}, s{sTmp2}")
    A(f"s_lshl_b32 s{sTmp}, s{sTmp}, 10")
    A(f"s_lshl_b32 s{sTmp2}, s{sGrp}, 15")
    A(f"s_add_u32 s{sTmp}, s{sTmp}, s{sTmp2}")
    A(f"v_lshlrev_b32 {v(vWarm)}, 4, {v(vLane)}")
    A(f"v_add_u32 {v(vWarm)}, s{sTmp}, {v(vWarm)}")

    A(f"s_lshl_b32 s{sTmp}, s{sGrp}, 9")
    A(f"v_and_b32 {v(vT0)}, 3, {v(vLane)}")
    A(f"v_lshlrev_b32 {v(vT0)}, 7, {v(vT0)}")
    A(f"v_add_u32 {v(vFlag)}, s{sTmp}, {v(vT0)}")
    A(f"v_bfe_u32 {v(vT0)}, {v(vLane)}, 2, 1")
    A(f"v_mul_u32_u24 {v(vT0)}, {CNT_VU - CNT_KVU:#x}, {v(vT0)}")
    A(f"v_add_u32 {v(vFlag)}, {v(vFlag)}, {v(vT0)}")
    A(f"s_lshl_b32 s{sTmp}, s{sH}, 7")
    A(f"v_mov_b32 {v(vSig)}, s{sTmp}")
    A(f"v_mov_b32 {v(vT0)}, {OOB:#x}")
    A(f"v_cmp_eq_u32 vcc, 0, {v(vLane)}")
    A("s_nop 1")
    A(f"v_cndmask_b32 {v(vSig)}, {v(vT0)}, {v(vSig)}, vcc")
    A(f"v_mov_b32 {v(vOne)}, 1")

    A(f"s_add_u32 s{sRCB}, s{sWS}, {WS_RC + 0x1fffff:#x}")
    A(f"s_and_b32 s{sRCB}, s{sRCB}, 0xffe00000")
    A(f"s_sub_u32 s{sRCB}, s{sRCB}, s{sWS}")
    Lnc = A.newlabel("Lncal")
    A(f"s_lshl_b32 s{sTmp}, s{sGrp}, 4")
    A(f"s_add_u32 s{sTmp}, s{sTmp}, s{sMemb}")
    A(f"s_add_u32 s{sTmp}, s{sTmp}, s{sWave}")
    A(f"s_cmp_lg_u32 s{sTmp}, 0")
    A(f"s_cbranch_scc1 {Lnc}")
    A("s_mov_b64 exec, 1")
    A(f"v_mov_b32 {v(vT0)}, 0")
    for c in range(2):
        A(f"s_mov_b32 s{60+c}, 0x7fffffff")
    for it in range(6):
        for c in range(2):
            A(f"s_add_u32 s{sTmp}, s{sRCB}, {RC_PROBE + c*8192:#x}")
            A(f"buffer_store_dword {v(vT0)}, {v(vT0)}, {WSR}, s{sTmp} offen sc1")
            A("s_waitcnt vmcnt(0)")
            A("s_memtime s[62:63]")
            A("s_waitcnt lgkmcnt(0)")
            A(f"buffer_load_dword {v(vT1)}, {v(vT0)}, {WSR}, s{sTmp} offen sc1")
            A("s_waitcnt vmcnt(0)")
            A("s_memtime s[64:65]")
            A("s_waitcnt lgkmcnt(0)")
            A("s_sub_u32 s64, s64, s62")
            A(f"s_min_u32 s{60+c}, s{60+c}, s64")
    A("s_cmp_le_u32 s60, s61")
    A(f"s_cselect_b32 s{sTmp}, {2 if 'badpol' in exp else 1}, {1 if 'badpol' in exp else 2}")
    A(f"v_mov_b32 {v(vT1)}, s{sTmp}")
    A(f"s_mov_b32 s{sTmp}, {WS_CNT + CNT_POL:#x}")
    A(f"buffer_store_dword {v(vT1)}, {v(vT0)}, {WSR}, s{sTmp} offen sc1")
    A("s_mov_b64 exec, -1")
    A.label(Lnc)
    Lpp, Lpd = A.newlabel("Lpp"), A.newlabel("Lppd")
    A(f"v_mov_b32 {v(vT0)}, 0")
    A(f"s_mov_b32 s{sTmp2}, {WS_CNT + CNT_POL:#x}")
    A(f"s_mov_b32 s{sCnt}, 0")
    A.label(Lpp)
    A(f"buffer_load_dword {v(vT1)}, {v(vT0)}, {WSR}, s{sTmp2} offen sc1")
    A("s_waitcnt vmcnt(0)")
    A(f"v_cmp_eq_u32 vcc, 0, {v(vT1)}")
    A(f"s_cbranch_vccz {Lpd}")
    A("s_sleep 4")
    A(f"s_add_u32 s{sCnt}, s{sCnt}, 1")
    A(f"s_cmp_lt_u32 s{sCnt}, {SPIN_MAX}")
    A(f"s_cbranch_scc1 {Lpp}")
    A(f"s_mov_b32 s{sTmp}, 6")
    A(f"s_branch {Lfail}")
    A.label(Lpd)
    A(f"v_cmp_eq_u32 vcc, 2, {v(vT1)}")
    A("s_cmp_lg_u64 vcc, 0")
    A(f"s_cselect_b32 s{sTmp}, 8192, 0")
    A(f"s_add_u32 s{sRCB}, s{sRCB}, s{sTmp}")

    def wait_kvu(srb):
        Lp_ = A.newlabel("Lkf")
        Ld_ = A.newlabel("Lkfd")
        A(f"s_lshl_b32 s{sTmp2}, s{srb}, 12")
        A(f"s_add_u32 s{sTmp2}, s{sTmp2}, {WS_CNT + CNT_KVU:#x}")
        A(f"s_mov_b32 s{sCnt}, 0")
        A.label(Lp_)
        A(f"buffer_load_dword {v(vT0)}, {v(vFlag)}, {WSR}, s{sTmp2} offen sc1")
        A("s_waitcnt vmcnt(0)")
        A(f"v_cmp_eq_u32 vcc, 0, {v(vT0)}")
        A(f"s_cbranch_vccz {Ld_}")
        A("s_sleep 4")
        A(f"s_add_u32 s{sCnt}, s{sCnt}, 1")
        A(f"s_cmp_lt_u32 s{sCnt}, {SPIN_MAX}")
        A(f"s_cbranch_scc1 {Lp_}")
        A(f"s_mov_b32 s{sTmp}, 5")
        A(f"s_branch {Lfail}")
        A.label(Ld_)

    def signal_mem(srb):
        A(f"s_lshl_b32 s{sTmp2}, s{srb}, 12")
        A(f"s_add_u32 s{sTmp2}, s{sTmp2}, {WS_CNT + CNT_MEM:#x}")
        A(f"buffer_atomic_add {v(vOne)}, {v(vSig)}, {WSR}, s{sTmp2} offen")

    A(f"s_mov_b32 s{sStep}, 0")
    rtl()
    if wrole:
        wait_kvu(sStep)
    A(f"s_mov_b32 s{sOffKM}, {WS_KM:#x}")
    A(f"s_mov_b32 s{sOffK}, {WS_KX:#x}")
    A(f"s_mov_b32 s{sOffU}, {WS_U:#x}")

    def k_load(f):
        vo = vK0 if f < 4 else vK1
        return f"buffer_load_dwordx4 {a(aK+f*4,4)}, {v(vo)}, {WSR}, s{sOffK} offen offset:{(f%4)*1024}"

    def u_load(t, dst):
        return f"buffer_load_dwordx4 {a(dst+t*4,4)}, {v(vU if t < 2 else vU2)}, {WSR}, s{sOffU} offen offset:{t*1024}"

    def check_sentinel(regs, tmp):
        regs = list(regs)
        A(f"v_max3_u32 {v(tmp)}, {v(regs[0])}, {v(regs[1])}, {v(regs[2])}")
        rest = regs[3:]
        while rest:
            if len(rest) >= 2:
                A(f"v_max3_u32 {v(tmp)}, {v(tmp)}, {v(rest[0])}, {v(rest[1])}")
                rest = rest[2:]
            else:
                A(f"v_max_u32 {v(tmp)}, {v(tmp)}, {v(rest[0])}")
                rest = []
        A(f"v_cmp_eq_u32 vcc, -1, {v(tmp)}")

    def poll(issue, regs, code):
        Lp_ = A.newlabel("Lpoll")
        Ld_ = A.newlabel("Lpd")
        A(f"s_mov_b32 s{sCnt}, 0")
        A.label(Lp_)
        issue()
        A("s_waitcnt vmcnt(0)")
        check_sentinel(regs, vT0)
        A(f"s_cbranch_vccz {Ld_}")
        A(f"s_add_u32 s{sCnt}, s{sCnt}, 1")
        A(f"s_cmp_lt_u32 s{sCnt}, {SPIN_MAX}")
        A(f"s_cbranch_scc1 {Lp_}")
        A(f"s_mov_b32 s{sTmp}, {code}")
        A(f"s_branch {Lfail}")
        A.label(Ld_)
        if prof:
            r = {4: 97, 1: 98, 3: 100}[code]
            A(f"s_add_u32 s{r}, s{r}, s{sCnt}")

    def store_local(instr):
        L1 = A.newlabel("Lsl")
        L2 = A.newlabel("Lsl")
        A(f"s_cmp_lg_u32 s{sMode}, 0")
        A(f"s_cbranch_scc1 {L1}")
        A(instr)
        A(f"s_branch {L2}")
        A.label(L1)
        A(instr + " sc1")
        A.label(L2)

    for f in range(8):
        A(k_load(f))
    for t in range(3):
        A(u_load(t, aUn))
    if prof:
        for i in range(16):
            A(f"s_mov_b32 s{sPr+i}, 0")
        for i in range(97, 101):
            A(f"s_mov_b32 s{i}, 0")
        A("s_memtime s[86:87]")
        A("s_waitcnt lgkmcnt(0)")

    ring = []
    ring += [f"s_and_b32 s{sTmp}, s{sStep}, 3",
             f"s_add_u32 s{sTmp2}, s{sStep}, 3",
             f"s_and_b32 s{sTmp2}, s{sTmp2}, 3",
             f"s_mul_i32 s{sRA}, s{sTmp}, {32*6144}",
             f"s_add_u32 s{sRA}, s{sRA}, {WS_RA:#x}",
             f"s_mul_i32 s{sRAp}, s{sTmp2}, {32*6144}",
             f"s_add_u32 s{sRAp}, s{sRAp}, {WS_RA:#x}",
             f"s_mul_i32 s{sRC}, s{sTmp}, {RC_SLOT}",
             f"s_add_u32 s{sRC}, s{sRC}, s{sRCB}",
             f"s_add_u32 s{sRCp}, s{sStep}, 2",
             f"s_and_b32 s{sRCp}, s{sRCp}, 3",
             f"s_mul_i32 s{sRCp}, s{sRCp}, {RC_SLOT}",
             f"s_add_u32 s{sRCp}, s{sRCp}, s{sRCB}",
             f"s_mul_i32 s{sCnt}, s{sGrp}, {RC_GRP}",
             f"s_add_u32 s{sRCp}, s{sRCp}, s{sCnt}",
             f"s_add_u32 s{sOffC}, s{sRC}, s{sCnt}",
             f"s_lshr_b32 s{sCnt}, s{sGrp}, 1",
             f"s_mul_i32 s{sCnt}, s{sCnt}, 10240",
             f"s_add_u32 s{sCnt}, s{sCnt}, {WS_RD:#x}",
             f"s_mul_i32 s{sRDp}, s{sTmp2}, {8*10240}",
             f"s_add_u32 s{sRDp}, s{sRDp}, s{sCnt}",
             f"s_add_u32 s{sTmp}, s{sStep}, 1",
             f"s_and_b32 s{sTmp}, s{sTmp}, 3",
             f"s_mul_i32 s{sRD}, s{sTmp}, {8*10240}",
             f"s_add_u32 s{sRD}, s{sRD}, s{sCnt}",
             f"s_add_u32 s{sOffK}, s{sOffK}, {32*8192}",
             f"s_add_u32 s{sOffU}, s{sOffU}, {32*40960}",
             f"s_add_u32 s{sWarm}, s{sOffK}, {WARM*32*8192}",
             f"s_min_u32 s{sWarm}, s{sWarm}, {WS_KX+63*32*8192}"]

    dbgmax(2)
    for ins in ring:
        A(ins)
    A(f"buffer_load_dwordx4 {v(M,4)}, {v(Cg)}, s[{sM0}:{sM0+3}], 0 offen")
    A(f"buffer_load_dwordx4 {v(M+4,4)}, {v(Cg)}, s[{sM0}:{sM0+3}], 0 offen offset:128")
    A(f"buffer_load_dwordx4 {v(M+8,4)}, {v(Cg+1)}, s[{sM0}:{sM0+3}], 0 offen")
    A("s_waitcnt vmcnt(0)")
    Lloop = A.newlabel("Lloop")
    A.label(Lloop)
    rtl(True)
    stamp(0)
    Bks = [M, Mr, M + 4, Mr + 4, M + 8]
    fill = [f"v_mov_b32_dpp {v(Mr+i)}, {v(M+i)} row_ror:8 row_mask:0xf bank_mask:0xf" for i in range(8)]
    fill += [f"v_accvgpr_mov_b32 {a(aU+i)}, {a(aUn+i)}" for i in range(12)]
    order = [(ks, t) for ks in (0, 2, 1) for t in range(4)]
    order += [(ks, t) for t in range(4) for ks in (3, 4)]
    for idx, (ks, t) in enumerate(order):
        c = "0" if ks == 0 else v(accA + t * 4, 4)
        A(f"v_mfma_f32_16x16x32_bf16 {v(accA+t*4,4)}, {WA(t,ks)}, {v(Bks[ks],4)}, {c}")
        for _ in range(2):
            if fill:
                A(fill.pop(0))
    assert not fill

    def merge_write(p):
        for i in range(4):
            A(f"v_mov_b32_dpp {v(accA+8*p+i)}, {v(accA+8*p+4+i)} row_ror:8 row_mask:0xf bank_mask:0xc")
        A(f"ds_write_b128 {v(vRAw)}, {v(accA+8*p,4)} offset:{p*1024}")

    vm = []
    for ks in range(5):
        for t in (4, 5):
            c = "0" if ks == 0 else v(accA + t * 4, 4)
            vm.append(f"v_mfma_f32_16x16x32_bf16 {v(accA+t*4,4)}, {WA(t,ks)}, {v(Bks[ks],4)}, {c}")

    def reduce_pub(raddr, pub, T, fillers=()):
        for w in range(4):
            A(f"ds_read_b128 {v(T+w*4,4)}, {v(raddr)} offset:{w*3072}")
        for ins in fillers:
            A(ins)
        A("s_waitcnt lgkmcnt(2)")
        A(f"v_pk_add_f32 {v(T,2)}, {v(T,2)}, {v(T+4,2)}")
        A(f"v_pk_add_f32 {v(T+2,2)}, {v(T+2,2)}, {v(T+6,2)}")
        A("s_waitcnt lgkmcnt(0)")
        A(f"v_pk_add_f32 {v(T+8,2)}, {v(T+8,2)}, {v(T+12,2)}")
        A(f"v_pk_add_f32 {v(T+10,2)}, {v(T+10,2)}, {v(T+14,2)}")
        A(f"v_pk_add_f32 {v(T,2)}, {v(T,2)}, {v(T+8,2)}")
        A(f"v_pk_add_f32 {v(T+2,2)}, {v(T+2,2)}, {v(T+10,2)}")
        A(f"v_cvt_pk_bf16_f32 {v(pub)}, {v(T)}, {v(T+1)}")
        A(f"v_cvt_pk_bf16_f32 {v(pub+1)}, {v(T+2)}, {v(T+3)}")
        A(f"v_min_u32 {v(pub)}, 0xfffffffe, {v(pub)}")
        A(f"v_min_u32 {v(pub+1)}, 0xfffffffe, {v(pub+1)}")
    A.nop(4)
    merge_write(0)
    merge_write(1)
    for ins in vm[:VM1]:
        A(ins)
    stamp(6)
    A("s_waitcnt lgkmcnt(0)")
    stamp(7)
    A("s_barrier")
    stamp(8)
    reduce_pub(vRAr, vPub, Cg, vm[VM1:VM1+VM2])
    store_local(f"buffer_store_dwordx2 {v(vPub,2)}, {v(vAst)}, {WSR}, s{sRA} offen")
    stamp(1)
    def issue_q():
        A(f"buffer_load_dwordx4 {v(Q,4)}, {v(vQo)}, {WSR}, s{sRA} offen sc1")
        A(f"buffer_load_dwordx4 {v(Q+4,4)}, {v(vQo)}, {WSR}, s{sRA} offen offset:1024 sc1")

    def issue_k():
        for c in range(2):
            A(f"buffer_load_dwordx4 {v(KM+c*8,4)}, {v(vKo)}, {WSR}, s{sRA} offen offset:{c*1024} sc1")

    def issue_v():
        for c in range(2):
            A(f"buffer_load_dwordx4 {v(VM+c*8,4)}, {v(vKo)}, {WSR}, s{sRA} offen offset:{2048+c*1024} sc1")
    for ins in vm[VM1+VM2:]:
        A(ins)
    A.nop(8)
    merge_write(2)
    if EARLY == 1:
        issue_q()
        issue_k()
    A("s_waitcnt lgkmcnt(0)")
    A("s_barrier")
    if EARLY == 2:
        issue_q()
        issue_k()
    reduce_pub(vRAr2, vPub2, Cg)
    A(f"s_cmp_eq_u32 s{sStep}, {nsteps-1}")
    Lfin = A.newlabel("Lfin")
    A(f"s_cbranch_scc1 {Lfin}")
    store_local(f"buffer_store_dwordx2 {v(vPub2,2)}, {v(vAst2)}, {WSR}, s{sRA} offen")

    if ADELAY:
        A(f"s_sleep {ADELAY}")
    Lp_, Ld_ = A.newlabel("Lpa"), A.newlabel("Lpad")
    A(f"s_mov_b32 s{sCnt}, 0")
    if EARLY:
        A("s_waitcnt vmcnt(3)")
        check_sentinel(range(Q, Q + 8), vT0)
        A(f"s_cbranch_vccz {Ld_}")
    A.label(Lp_)
    issue_q()
    issue_k()
    A("s_waitcnt vmcnt(0)")
    check_sentinel(range(Q, Q + 8), vT0)
    A(f"s_cbranch_vccz {Ld_}")
    A(f"s_add_u32 s{sCnt}, s{sCnt}, 1")
    A(f"s_cmp_lt_u32 s{sCnt}, {SPIN_MAX}")
    A(f"s_cbranch_scc1 {Lp_}")
    A(f"s_mov_b32 s{sTmp}, 1")
    A(f"s_branch {Lfail}")
    A.label(Ld_)
    if prof:
        A(f"s_add_u32 s98, s98, s{sCnt}")
    stamp(2)
    Qks = [Q, Qr, Q + 4, Qr + 4]
    A(f"v_mfma_f32_16x16x32_bf16 {v(acc1,4)}, {a(aK+0,4)}, {v(Q,4)}, 0")
    for i in range(4):
        A(f"v_mov_b32_dpp {v(Qr+i)}, {v(Q+i)} row_ror:8 row_mask:0xf bank_mask:0xf")
    A(f"v_mfma_f32_16x16x32_bf16 {v(acc2,4)}, {a(aK+16,4)}, {v(Q,4)}, 0")
    for i in range(4, 8):
        A(f"v_mov_b32_dpp {v(Qr+i)}, {v(Q+i)} row_ror:8 row_mask:0xf bank_mask:0xf")
    Lkv = A.newlabel("Lkv")
    Lkvd = A.newlabel("Lkvd")
    A(f"s_mov_b32 s{sCnt}, 0")
    A("s_waitcnt vmcnt(1)")
    A.label(Lkv)
    check_sentinel(list(range(KM, KM + 4)) + list(range(KM + 8, KM + 12)), vT0)
    A(f"s_cbranch_vccz {Lkvd}")
    issue_k()
    A("s_waitcnt vmcnt(0)")
    A(f"s_add_u32 s{sCnt}, s{sCnt}, 1")
    A(f"s_cmp_lt_u32 s{sCnt}, {SPIN_MAX}")
    A(f"s_cbranch_scc1 {Lkv}")
    A(f"s_mov_b32 s{sTmp}, 2")
    A(f"s_branch {Lfail}")
    A.label(Lkvd)
    A(f"v_mfma_f32_16x16x32_bf16 {v(acc0,4)}, {v(KM,4)}, {v(Qks[0],4)}, 0")
    for i in range(4):
        A(f"v_mov_b32_dpp {v(KM+4+i)}, {v(KM+i)} row_ror:8 row_mask:0xf bank_mask:0xf")
    A(f"v_mfma_f32_16x16x32_bf16 {v(acc1,4)}, {a(aK+8,4)}, {v(Qks[2],4)}, {v(acc1,4)}")
    A(f"v_mfma_f32_16x16x32_bf16 {v(acc2,4)}, {a(aK+24,4)}, {v(Qks[2],4)}, {v(acc2,4)}")
    A(f"v_mfma_f32_16x16x32_bf16 {v(acc0,4)}, {v(KM+8,4)}, {v(Qks[2],4)}, {v(acc0,4)}")
    for i in range(4):
        A(f"v_mov_b32_dpp {v(KM+12+i)}, {v(KM+8+i)} row_ror:8 row_mask:0xf bank_mask:0xf")
    for ks in (1, 3):
        A(f"v_mfma_f32_16x16x32_bf16 {v(acc1,4)}, {a(aK+ks*4,4)}, {v(Qks[ks],4)}, {v(acc1,4)}")
        A(f"v_mfma_f32_16x16x32_bf16 {v(acc2,4)}, {a(aK+16+ks*4,4)}, {v(Qks[ks],4)}, {v(acc2,4)}")
        A(f"v_mfma_f32_16x16x32_bf16 {v(acc0,4)}, {v(KM+ks*4,4)}, {v(Qks[ks],4)}, {v(acc0,4)}")
    issue_v()
    A.nop(5)
    stamp(9)
    S = [acc1 + i for i in range(4)] + [acc2 + i for i in range(4)] + [acc0 + i for i in range(4)]
    sm = [f"v_max3_f32 {v(vMx)}, {v(S[0])}, {v(S[1])}, {v(S[2])}",
          f"v_max3_f32 {v(vMx)}, {v(vMx)}, {v(S[3])}, {v(S[4])}",
          f"v_max3_f32 {v(vMx)}, {v(vMx)}, {v(S[5])}, {v(S[6])}"]
    for i in range(4):
        sm.append(f"v_cndmask_b32 {v(acc0+i)}, {v(vNinf)}, {v(acc0+i)}, s[{sMaskG}:{sMaskG+1}]")
    sm += [f"v_max3_f32 {v(vMx)}, {v(vMx)}, {v(S[7])}, {v(S[8])}",
           f"v_max3_f32 {v(vMx)}, {v(vMx)}, {v(S[9])}, {v(S[10])}",
           f"v_max_f32 {v(vMx)}, {v(vMx)}, {v(S[11])}",
           f"v_mov_b32 {v(vMx2)}, {v(vMx)}",
           "s_nop 1",
           f"v_permlane16_swap_b32 {v(vMx)}, {v(vMx2)}",
           "s_nop 0",
           f"v_max_f32 {v(vMx)}, {v(vMx)}, {v(vMx2)}",
           f"v_mov_b32 {v(vMx2)}, {v(vMx)}",
           "s_nop 1",
           f"v_permlane32_swap_b32 {v(vMx)}, {v(vMx2)}",
           "s_nop 0",
           f"v_max_f32 {v(vMx)}, {v(vMx)}, {v(vMx2)}",
           f"v_mul_f32 {v(vMx)}, s{sC}, {v(vMx)}"]
    for r in S:
        sm.append(f"v_fma_f32 {v(r)}, {v(r)}, s{sC}, -{v(vMx)}")
    for r in S[:VSPLIT]:
        sm.append(f"v_exp_f32 {v(r)}, {v(r)}")
    for ins in sm:
        A(ins)
    Lv, Lvd = A.newlabel("Lv"), A.newlabel("Lvd")
    A(f"s_mov_b32 s{sCnt}, 0")
    A.label(Lv)
    A("s_waitcnt vmcnt(0)")
    check_sentinel(list(range(VM, VM + 4)) + list(range(VM + 8, VM + 12)), vT0)
    A(f"s_cbranch_vccz {Lvd}")
    issue_v()
    A(f"s_add_u32 s{sCnt}, s{sCnt}, 1")
    A(f"s_cmp_lt_u32 s{sCnt}, {SPIN_MAX}")
    A(f"s_cbranch_scc1 {Lv}")
    A(f"s_mov_b32 s{sTmp}, 2")
    A(f"s_branch {Lfail}")
    A.label(Lvd)
    if prof:
        A(f"s_add_u32 s99, s99, s{sCnt}")
    um = []
    for s_ in (0, 2, 1, 3):
        for t in range(3):
            c = "0" if s_ == 0 else v(accU + t * 4, 4)
            um.append(f"v_mfma_f32_16x16x32_bf16 {v(accU+t*4,4)}, {v(VM+s_*4,4)}, {WC(t,s_)}, {c}")
    sm = [f"v_mov_b32_dpp {v(VM+4+i)}, {v(VM+i)} row_ror:8 row_mask:0xf bank_mask:0xf" for i in range(4)]
    sm += [f"v_mov_b32_dpp {v(VM+12+i)}, {v(VM+8+i)} row_ror:8 row_mask:0xf bank_mask:0xf" for i in range(4)]
    for r in S[VSPLIT:]:
        sm.append(f"v_exp_f32 {v(r)}, {v(r)}")
    sm.append("s_nop 0")
    for i in range(4):
        sm.append(f"v_cvt_pk_bf16_f32 {v(P0+i)}, {v(S[2*i])}, {v(S[2*i+1])}")
    sm.append(f"v_cvt_pk_bf16_f32 {v(Blo)}, {v(S[8])}, {v(S[9])}")
    sm.append(f"v_cvt_pk_bf16_f32 {v(Blo+1)}, {v(S[10])}, {v(S[11])}")
    for idx in range(max(len(sm) // 2 + 1, len(um))):
        if um:
            A(um.pop(0))
        for _ in range(2):
            if sm:
                A(sm.pop(0))
    assert not um and not sm
    pre = [u_load(t, aUn) for t in range(3)] + ([] if KLATE else [k_load(f) for f in range(8)])
    if "nokv" in exp:
        pre = []
    stamp(3)
    def pl(n=1):
        for _ in range(n):
            A(pre.pop(0) if pre else "s_nop 0")
    A(f"v_mfma_f32_16x16x32_bf16 {v(accZ,4)}, {v(vOnes,4)}, {v(P0,4)}, 0")
    for t in range(3):
        A(f"v_mfma_f32_16x16x32_bf16 {v(accC+t*4,4)}, {a(aU+t*4,4)}, {v(P0,4)}, 0")
        pl()
    A(f"v_mfma_f32_16x16x16_bf16 {v(accZ,4)}, {v(vOnes,2)}, {v(Blo,2)}, {v(accZ,4)}")
    pl(2)
    for t in range(3):
        A(f"v_cvt_pk_bf16_f32 {v(UA+t*2)}, {v(accU+t*4)}, {v(accU+t*4+1)}")
        A(f"v_cvt_pk_bf16_f32 {v(UA+t*2+1)}, {v(accU+t*4+2)}, {v(accU+t*4+3)}")
    pl(1)
    A(f"v_rcp_f32 {v(vRz)}, {v(accZ)}")
    for t in range(3):
        A(f"v_mfma_f32_16x16x16_bf16 {v(accC+t*4,4)}, {v(UA+t*2,2)}, {v(Blo,2)}, {v(accC+t*4,4)}")
    A(f"v_mov_b32 {v(vRz+1)}, {v(vRz)}")
    pl(5)
    A.nop(1)
    stamp(10)
    for t in range(3):
        A(f"v_pk_mul_f32 {v(accC+t*4,2)}, {v(accC+t*4,2)}, {v(vRz,2)}")
        A(f"v_pk_mul_f32 {v(accC+t*4+2,2)}, {v(accC+t*4+2,2)}, {v(vRz,2)}")
        A(f"ds_write_b128 {v(vRCw)}, {v(accC+t*4,4)} offset:{t*1024}")
    assert not pre
    A("s_waitcnt lgkmcnt(0)")
    stamp(11)
    A("s_barrier")
    stamp(12)
    A("s_mov_b32 exec_hi, 0xff")
    for w in range(4):
        A(f"ds_read_b128 {v(Cg+w*4,4)}, {v(vRCr)} offset:{w*3072}")
    A("s_waitcnt lgkmcnt(2)")
    for i in range(4):
        A(f"v_add_f32 {v(Cg+i)}, {v(Cg+i)}, {v(Cg+4+i)}")
    A("s_waitcnt lgkmcnt(0)")
    for i in range(4):
        A(f"v_add_f32 {v(Cg+8+i)}, {v(Cg+8+i)}, {v(Cg+12+i)}")
    for i in range(4):
        A(f"v_add_f32 {v(Cg+i)}, {v(Cg+i)}, {v(Cg+8+i)}")

    def persist(final=False):
        A("s_mov_b64 exec, -1")
        if KLATE and not final:
            for f in range(8):
                A(k_load(f))
        A(f"buffer_store_dwordx2 {v(vPub,2)}, {v(vKMst)}, {WSR}, s{sOffKM} offen" + (" sc1" if wrole else ""))
        A(f"buffer_store_dwordx2 {v(vPub2,2)}, {v(vVMst)}, {WSR}, s{sOffKM} offen" + (" sc1" if wrole else ""))
        if wrole and not final:
            Lns = A.newlabel("Lns")
            A(f"s_and_b32 s{sTmp}, s{sStep}, 3")
            A(f"s_cmp_lg_u32 s{sTmp}, 0")
            A(f"s_cbranch_scc1 {Lns}")
            A(f"s_cmp_eq_u32 s{sStep}, 0")
            A(f"s_cbranch_scc1 {Lns}")
            A(f"s_lshr_b32 s{sTmp}, s{sStep}, 2")
            A(f"s_sub_u32 s{sTmp}, s{sTmp}, 1")
            signal_mem(sTmp)
            A.label(Lns)
            Lns2 = A.newlabel("Lns")
            A(f"s_cmp_lg_u32 s{sStep}, 62")
            A(f"s_cbranch_scc1 {Lns2}")
            A(f"s_mov_b32 s{sTmp}, 16")
            signal_mem(sTmp)
            A.label(Lns2)

    def background(storer):
        persist()
        store_local(f"buffer_store_dwordx2 {v(vSent,2)}, {v(vAst)}, {WSR}, s{sRAp} offen"); store_local(f"buffer_store_dwordx2 {v(vSent,2)}, {v(vAst2)}, {WSR}, s{sRAp} offen")
        A("s_mov_b32 exec_hi, 0xff")
        if storer:
            for kc in range(KC):
                A(f"buffer_store_dwordx4 {v(vSent,4)}, {v(vCst)}, {WSR}, s{sRCp} offen sc1")
                if kc < KC - 1:
                    A(f"s_add_u32 s{sRCp}, s{sRCp}, {8*20480}")
            if "nokv" not in exp:
                A("s_mov_b64 exec, -1")
                A(f"buffer_load_dwordx4 {v(vDummy,4)}, {v(vWarm)}, {WSR}, s{sWarm} offen")
        else:
            store_local(f"buffer_store_dwordx2 {v(vSent,2)}, {v(vDst)}, {WSR}, s{sRDp} offen")

    Lpw = A.newlabel("Lpw")
    Lcdone = A.newlabel("Lcdone")
    A(f"s_cmp_ge_u32 s{sWave}, 2")
    A(f"s_cbranch_scc1 {Lpw}")
    for i in range(4):
        A(f"v_min_u32 {v(Cg+i)}, 0xfffffffe, {v(Cg+i)}")
    for kc in range(KC):
        A(f"buffer_store_dwordx4 {v(Cg,4)}, {v(vCst)}, {WSR}, s{sOffC} offen sc1")
        if kc < KC - 1:
            A(f"s_add_u32 s{sOffC}, s{sOffC}, {8*20480}")
    stamp(4)
    background(True)
    if DSLEEP:
        A(f"s_sleep {DSLEEP}")
    A(f"s_branch {Lcdone}")
    A.label(Lpw)
    stamp(4)
    Lw3 = A.newlabel("Lw3")
    A(f"s_cmp_eq_u32 s{sWave}, 3")
    A(f"s_cbranch_scc1 {Lw3}")
    background(False)
    A(f"s_mov_b32 s{sEnd}, s{sRC}")

    def advance():
        A(f"s_add_u32 s{sStep}, s{sStep}, 1")
        A(f"s_add_u32 s{sOffKM}, s{sOffKM}, {32*2048}")
        A(f"s_mov_b32 s{sOffD}, s{sRD}")
        for ins in ring:
            A(ins)
    advance()
    if CDELAY:
        A(f"s_sleep {CDELAY}")

    def issue_c():
        for r in range(1, 8):
            A(f"buffer_load_dwordx4 {v(CR+(r-1)*4,4)}, {v(vCg+r)}, {WSR}, s{sEnd} offen sc1")
    poll(issue_c, range(CR, CR + 28), 3)
    stamp(5)
    c = CR
    for i in (0, 2):
        A(f"v_pk_add_f32 {v(Cg+i,2)}, {v(Cg+i,2)}, {v(c+i,2)}")
        A(f"v_pk_add_f32 {v(Cg+4+i,2)}, {v(c+4+i,2)}, {v(c+8+i,2)}")
        A(f"v_pk_add_f32 {v(Cg+8+i,2)}, {v(c+12+i,2)}, {v(c+16+i,2)}")
        A(f"v_pk_add_f32 {v(Cg+12+i,2)}, {v(c+20+i,2)}, {v(c+24+i,2)}")
    for i in (0, 2):
        A(f"v_pk_add_f32 {v(Cg+i,2)}, {v(Cg+i,2)}, {v(Cg+4+i,2)}")
        A(f"v_pk_add_f32 {v(Cg+8+i,2)}, {v(Cg+8+i,2)}, {v(Cg+12+i,2)}")
    for i in (0, 2):
        A(f"v_pk_add_f32 {v(Cg+i,2)}, {v(Cg+i,2)}, {v(Cg+8+i,2)}")
    A(f"v_cvt_pk_bf16_f32 {v(Cg+4)}, {v(Cg)}, {v(Cg+1)}")
    A(f"v_cvt_pk_bf16_f32 {v(Cg+5)}, {v(Cg+2)}, {v(Cg+3)}")
    A(f"v_min_u32 {v(Cg+4)}, 0xfffffffe, {v(Cg+4)}")
    A(f"v_min_u32 {v(Cg+5)}, 0xfffffffe, {v(Cg+5)}")
    store_local(f"buffer_store_dwordx2 {v(Cg+4,2)}, {v(vDst)}, {WSR}, s{sOffD} offen")
    A("s_mov_b64 exec, -1")
    Ldp = A.newlabel("Ldp")
    A(f"s_branch {Ldp}")
    A.label(Lw3)
    persist()
    store_local(f"buffer_store_dwordx2 {v(vSent,2)}, {v(vAst)}, {WSR}, s{sRAp} offen"); store_local(f"buffer_store_dwordx2 {v(vSent,2)}, {v(vAst2)}, {WSR}, s{sRAp} offen")
    Lnf = A.newlabel("Lnf")
    if wrole:
        A("s_mov_b64 exec, -1")
        A(f"s_and_b32 s{sTmp}, s{sStep}, 3")
        A(f"s_cmp_lg_u32 s{sTmp}, 1")
        A(f"s_cbranch_scc1 {Lnf}")
        A(f"s_add_u32 s{sEnd}, s{sStep}, 3")
        A(f"s_lshr_b32 s{sEnd}, s{sEnd}, 2")
        A(f"s_cmp_gt_u32 s{sEnd}, 15")
        A(f"s_cbranch_scc1 {Lnf}")
        wait_kvu(sEnd)
        A(f"s_branch {Lcdone}")
    A.label(Lnf)
    if DSLEEP:
        A(f"s_sleep {DSLEEP}")
    A.label(Lcdone)
    A("s_mov_b64 exec, -1")
    advance()
    A.label(Ldp)
    stamp(13)

    if PDELAY:
        Lpd = A.newlabel("Lpdl")
        A(f"s_cmp_lg_u32 s{sWave}, 2")
        A(f"s_cbranch_scc1 {Lpd}")
        A(f"s_sleep {PDELAY}")
        A.label(Lpd)

    def issue_d():
        A(f"buffer_load_dwordx4 {v(M,4)}, {v(vD0)}, {WSR}, s{sOffD} offen sc1")
        A(f"buffer_load_dwordx4 {v(M+4,4)}, {v(vD0)}, {WSR}, s{sOffD} offen offset:1024 sc1")
        A(f"buffer_load_dwordx4 {v(M+8,4)}, {v(vD2)}, {WSR}, s{sOffD} offen sc1")
    poll(issue_d, range(M, M + 12), 4)
    A(f"s_branch {Lloop}")

    A.label(Lfin)
    persist(True)
    A("s_mov_b64 exec, -1")
    rtl()
    if wrole:
        A("s_waitcnt vmcnt(0)")
        A(f"s_mov_b32 s{sTmp}, 15")
        signal_mem(sTmp)
        dbgmax(3)
    if prof:
        A(f"s_lshl_b32 s{sTmp}, s{sGrp}, 4")
        A(f"s_add_u32 s{sTmp}, s{sTmp}, s{sMemb}")
        A(f"s_lshl_b32 s{sTmp}, s{sTmp}, 2")
        A(f"s_add_u32 s{sTmp}, s{sTmp}, s{sWave}")
        A(f"s_lshl_b32 s{sTmp}, s{sTmp}, 6")
        A(f"s_add_u32 s{sTmp}, s{sTmp}, {WS_PROF:#x}")
        A("s_mov_b64 exec, 1")
        A(f"s_lshl_b32 s97, s97, 16")
        A(f"s_or_b32 s{sPr+14}, s97, s98")
        A(f"s_lshl_b32 s99, s99, 16")
        A(f"s_or_b32 s{sPr+15}, s99, s100")
        for i in range(16):
            A(f"v_mov_b32 {v(vT0)}, s{sPr+i}")
            A(f"v_mov_b32 {v(vT1)}, {i*4}")
            A(f"buffer_store_dword {v(vT0)}, {v(vT1)}, {WSR}, s{sTmp} offen")
    A(f"s_branch {Lend}")
    A.label(Lfail)
    A("s_mov_b64 exec, 1")
    A(f"v_mov_b32 {v(vT0)}, s{sTmp}")
    A(f"v_mov_b32 {v(vT1)}, 0")
    A(f"v_or_b32 {v(vT0)}, 0x100, {v(vT0)}")
    A(f"buffer_store_dword {v(vT0)}, {v(vT1)}, s[{sDBG}:{sDBG+3}], 0 offen")
    A.label(Lend)
    A("s_endpgm")
    if wrole:
        A.label(Lw)
        A(f"s_sub_u32 s54, s{sCnt}, 128")
        wrole(A, 54, confirm)
        dbgmax(4)
        A("s_endpgm")
    return kernel_desc(name, 512, 102, 256)
```

```python
from asmlib import *
from layout import *
from wside import *
import parta

SPIN = 4000000
sW, sJ, sHead, sRnd, sPoll = 70, 71, 72, 73, 74


TL = False
A3_AT = 9
NRM = 6
STAG = 3
SC = " sc1"


def wrole(A, sIdx, confirm, dbgmax):
    Lq = A.newlabel("Lwq")

    def tl():
        if not TL:
            return
        Ls = A.newlabel("Ltl")
        A(f"s_cmp_lg_u32 s{sWave}, 0")
        A(f"s_cbranch_scc1 {Ls}")
        A("s_memrealtime s[78:79]")
        A("s_waitcnt lgkmcnt(0)")
        A("s_mov_b64 exec, 1")
        A("v_mov_b32 v4, s78")
        A("v_mov_b32 v5, 0")
        A(f"buffer_store_dword v4, v5, {srd(sWS)}, s80 offen")
        A("s_mov_b64 exec, -1")
        A("s_add_u32 s80, s80, 4")
        A.label(Ls)
        return 1
    A(f"s_mov_b32 s{sW}, s{sIdx}")
    A("s_load_dwordx4 s[24:27], s[0:1], 24")
    A("s_load_dwordx8 s[28:35], s[0:1], 40")
    A("s_load_dwordx2 s[36:37], s[0:1], 96")
    A("s_load_dwordx2 s[38:39], s[0:1], 80")
    A("s_load_dwordx2 s[76:77], s[0:1], 0")
    A("v_and_b32 v1, 63, v0")
    A("v_lshrrev_b32 v5, 6, v0")
    A("v_and_b32 v2, 15, v0")
    A(f"v_readfirstlane_b32 s{sWave}, v5")
    A("v_bfe_u32 v3, v0, 4, 2")
    A("s_waitcnt lgkmcnt(0)")
    make_srd(A, sWS, 36, WS_BYTES)
    A(f"s_lshr_b32 s{sHead}, s{sW}, 5")
    A(f"s_lshl_b32 s{sHead}, s{sHead}, 3")
    A(f"s_and_b32 s{sTmp}, s{sW}, 7")
    A(f"s_add_u32 s{sHead}, s{sHead}, s{sTmp}")
    A(f"s_bfe_u32 s{sJ}, s{sW}, 0x20003")
    A(f"s_lshl_b32 s80, s{sW}, 8")
    A(f"s_add_u32 s80, s80, {WS_PROF + 65536:#x}")
    tl()

    def signal(off_sreg, n=1, stride=0):
        Ls = A.newlabel("Lsig")
        A("s_waitcnt vmcnt(0)")
        A("s_barrier")
        A(f"s_cmp_lg_u32 s{sWave}, 0")
        A(f"s_cbranch_scc1 {Ls}")
        A("s_mov_b64 exec, 1")
        A("v_mov_b32 v4, 1")
        A("v_mov_b32 v5, 0")
        for i in range(n):
            A(f"buffer_atomic_add v4, v5, {srd(sWS)}, s{off_sreg} offen")
            if i < n - 1:
                A(f"s_add_u32 s{off_sreg}, s{off_sreg}, {stride}")
        A("s_mov_b64 exec, -1")
        A.label(Ls)
        tl()

    def wait(off_sreg, target):
        Lp, Ld = A.newlabel("Lwt"), A.newlabel("Lwtd")
        A(f"s_cmp_lg_u32 s{sWave}, 0")
        A(f"s_cbranch_scc1 {Ld}")
        A("v_mov_b32 v5, 0")
        A(f"s_mov_b32 s{sPoll}, 0")
        A.label(Lp)
        A(f"buffer_load_dword v4, v5, {srd(sWS)}, s{off_sreg} offen sc1")
        A("s_waitcnt vmcnt(0)")
        A(f"v_cmp_gt_u32 vcc, {target:#x}, v4")
        A(f"s_cbranch_vccz {Ld}")
        A("s_sleep 8")
        A(f"s_add_u32 s{sPoll}, s{sPoll}, 1")
        A(f"s_cmp_lt_u32 s{sPoll}, {SPIN}")
        A(f"s_cbranch_scc1 {Lp}")
        A.label(Ld)
        A("s_barrier")
        tl()

    def cnt_rbh(base):
        A(f"s_lshl_b32 s75, s{sRB}, 12")
        A(f"s_lshl_b32 s{sTmp}, s{sH}, 7")
        A(f"s_add_u32 s75, s75, s{sTmp}")
        A(f"s_add_u32 s75, s75, {WS_CNT + base:#x}")

    def cond_block(cmps, body):
        Lskip = A.newlabel("Lcs")
        for c in cmps:
            Lgo = A.newlabel("Lcg")
            A(c)
            A(f"s_cbranch_scc1 {Lgo}")
            A(f"s_branch {Lskip}")
            A.label(Lgo)
        body()
        A.label(Lskip)

    def dw(slot):
        A("s_mov_b64 s[92:93], s[72:73]")
        dbgmax(slot)
        A("s_mov_b64 s[72:73], s[92:93]")

    def confirm_lds():
        confirm(sWave)

    def hook_vu():
        dw(11)
        confirm(sWave)
        dw(12)

    def do_vu():
        A(f"s_mov_b32 s{sRB}, s{sJ}")
        A(f"s_mov_b32 s{sH}, s{sHead}")
        kvu_body(A, 2, SC, tl=tl, mode="vu", u_hook=hook_vu)
        cnt_rbh(CNT_VU)
        signal(75)
        dw(6)
    cond_block([f"s_cmp_lt_u32 s{sJ}, 2"], do_vu)

    def do_k():
        A(f"s_mov_b32 s{sRB}, 0")
        A(f"s_mov_b32 s{sH}, s{sHead}")
        kvu_body(A, 4, SC, tl=tl, mode="k")
        confirm_lds()
        cnt_rbh(CNT_KVU)
        signal(75, 2, 4096)
        dw(7)
    cond_block([f"s_cmp_eq_u32 s{sJ}, 2"], do_k)
    A(f"s_add_u32 s{sRnd}, s{sJ}, 4")
    A(f"s_sub_u32 s86, 5, s{sJ}")
    A(f"s_cmp_lt_u32 s{sJ}, 2")
    A(f"s_cselect_b32 s{sRnd}, s{sRnd}, s86")
    Lk = A.newlabel("Lkvu")
    A.label(Lk)
    A(f"s_mov_b32 s{sRB}, s{sRnd}")
    A(f"s_mov_b32 s{sH}, s{sHead}")
    kvu_body(A, 2, SC, tl=tl, u_hook=confirm_lds)
    cnt_rbh(CNT_KVU)
    signal(75, 2, CNT_VU - CNT_KVU)
    A(f"s_add_u32 s{sRnd}, s{sRnd}, 4")
    A(f"s_cmp_lt_u32 s{sRnd}, 8")
    Lk2 = A.newlabel("Lkvu2")
    A(f"s_cbranch_scc0 {Lk2}")
    A(f"s_branch {Lk}")
    A.label(Lk2)
    def idx40(dst, ja, jb):
        A(f"s_add_u32 s{dst}, s{sHead}, 32")
        A(f"s_cmp_eq_u32 s{sJ}, {jb}")
        A(f"s_cselect_b32 s{dst}, s{dst}, 99")
        A(f"s_cmp_eq_u32 s{sJ}, {ja}")
        A(f"s_cselect_b32 s{dst}, s{sHead}, s{dst}")

    def do_a1():
        A(f"s_mov_b32 s75, {WS_CNT + CNT_CONST:#x}")
        wait(75, 512)
        A(f"s_and_b32 s{sRB}, s85, 7")
        A(f"s_lshr_b32 s{sH}, s85, 3")
        parta.a1_body(A, 76, " sc1")
        A(f"s_mov_b32 s75, {WS_CNT + CNT_A1:#x}")
        signal(75)
    idx40(85, 1, 2)
    cond_block(["s_cmp_lt_u32 s85, 40"], do_a1)
    A(f"s_mov_b32 s{sRB}, s{sJ}")
    A(f"s_mov_b32 s{sH}, s{sHead}")
    kvu_body(A, 4, SC, seg_base=32, tl=tl)
    A(f"s_lshl_b32 s{sRB}, s{sJ}, 1")
    A(f"s_add_u32 s{sRB}, s{sRB}, 8")
    cnt_rbh(CNT_KVU)
    signal(75, 2, 4096)
    cnt_rbh(CNT_VU)
    signal(75, 2, 4096)

    def do_a2():
        A(f"s_mov_b32 s75, {WS_CNT + CNT_A1:#x}")
        wait(75, 40)
        La = A.newlabel("La2l")
        A.label(La)
        A(f"s_lshl_b32 s{sH}, s85, 2")
        A(f"s_add_u32 s{sH}, s{sH}, s{sWave}")
        cond_block([f"s_cmp_le_u32 s{sH}, 320"], lambda: parta.a2_body(A, " sc1"))
        A(f"s_mov_b32 s75, {WS_CNT + CNT_A2:#x}")
        signal(75)
        A("s_add_u32 s85, s85, 32")
        A("s_cmp_lt_u32 s85, 64")
        Lb = A.newlabel("La2e")
        A(f"s_cbranch_scc0 {Lb}")
        A(f"s_branch {La}")
        A.label(Lb)
    A(f"s_add_u32 s85, s{sHead}, 56")
    A(f"s_cmp_lt_u32 s{sHead}, 8")
    A(f"s_cselect_b32 s85, 99, s85")
    A(f"s_cmp_lt_u32 s{sJ}, 2")
    A(f"s_cselect_b32 s85, 99, s85")
    A(f"s_cmp_eq_u32 s{sJ}, 3")
    A(f"s_cselect_b32 s85, s{sHead}, s85")
    cond_block(["s_cmp_lt_u32 s85, 81"], do_a2)

    def do_a3():
        A(f"s_mov_b32 s75, {WS_CNT + CNT_A2:#x}")
        wait(75, 81)
        A(f"s_and_b32 s{sRB}, s{sHead}, 1")
        A(f"s_lshr_b32 s{sH}, s{sHead}, 1")
        parta.a3_body(A)
        A("s_barrier")
        tl()
    cond_block([f"s_cmp_eq_u32 s{sJ}, 3"], do_a3)
    def do_q():
        A(f"s_mov_b32 s{sRnd}, s{sJ}")
        Lq1 = A.newlabel("Lq")
        A.label(Lq1)
        A(f"s_mov_b32 s{sRB}, s{sRnd}")
        A(f"s_mov_b32 s{sH}, s{sHead}")
        q_body(A, " sc1")
        cnt_rbh(CNT_Q)
        signal(75)
        A(f"s_add_u32 s{sRnd}, s{sRnd}, 2")
        A(f"s_cmp_eq_u32 s{sRnd}, 3")
        Lq2 = A.newlabel("Lq")
        A(f"s_cbranch_scc0 {Lq2}")
        A(f"s_branch {Lq1}")
        A.label(Lq2)
    cond_block([f"s_cmp_lt_u32 s{sJ}, 3"], do_q)

    def do_att():
        A(f"s_mov_b32 s{sRnd}, 0")
        Lt = A.newlabel("Latt")
        A.label(Lt)
        A(f"s_mov_b32 s{sH}, s{sHead}")

        def wq():
            A(f"s_lshr_b32 s{sRB}, s{sRnd}, 2")
            cnt_rbh(CNT_Q)
            wait(75, 1)
        A(f"s_and_b32 s86, s{sRnd}, 3")
        cond_block(["s_cmp_eq_u32 s86, 0", f"s_cmp_lt_u32 s{sRnd}, 16"], wq)
        A(f"s_min_u32 s{sRB}, s{sRnd}, 15")
        A(f"s_lshr_b32 s86, s{sWave}, 1")
        A(f"s_add_u32 s86, s86, 15")
        A(f"s_cmp_lg_u32 s86, s{sRnd}")
        A("s_cselect_b32 s87, 1, 0")
        A(f"s_cmp_lt_u32 s{sRnd}, 15")
        A("s_cselect_b32 s87, 0, s87")

        def wkv():
            cnt_rbh(CNT_KVU)
            wait(75, 1)
            cnt_rbh(CNT_VU)
            wait(75, 1)
        cond_block([f"s_cmp_eq_u32 s{sRnd}, 0"], wkv)

        def hook():
            cnt_rbh(CNT_MEM)
            A(f"s_cmp_eq_u32 s{sRnd}, 15")
            A("s_cselect_b32 s86, 4096, 0")
            A("s_add_u32 s75, s75, s86")
            wait(75, 16)
        att_body(A, 2, " sc1", hook, rm_below=NRM, light=True, skip_sreg=87)
        A(f"s_lshl_b32 s75, s{sRnd}, 7")
        A(f"s_add_u32 s75, s75, {WS_CNT + CNT_ATT:#x}")
        signal(75)
        A(f"s_add_u32 s{sRnd}, s{sRnd}, 1")
        A(f"s_cmp_lt_u32 s{sRnd}, 17")
        Le = A.newlabel("Latte")
        A(f"s_cbranch_scc0 {Le}")
        A(f"s_branch {Lt}")
        A.label(Le)
        A("s_endpgm")
    cond_block([f"s_cmp_eq_u32 s{sJ}, 0"], do_att)

    def do_outp():
        A(f"s_mul_i32 s{sRB}, s85, 52")
        A(f"s_lshr_b32 s{sRB}, s{sRB}, 8")
        A(f"s_mul_i32 s{sTmp}, s{sRB}, 5")
        A(f"s_sub_u32 s{sH}, s85, s{sTmp}")
        A(f"s_lshl_b32 s75, s{sRB}, 7")
        A(f"s_add_u32 s75, s75, {WS_CNT + CNT_ATT:#x}")
        wait(75, 32)
        outp2_body(A)
        A("s_barrier")
        tl()
    assert all((c * 52) >> 8 == c // 5 for c in range(40))
    idx40(85, 2, 1)
    cond_block([f"s_cmp_lt_u32 s85, {5*NRM}"], do_outp)
    sF = 84
    A(f"s_sub_u32 s{sF}, s{sJ}, 2")
    A(f"s_lshl_b32 s{sF}, s{sF}, 5")
    A(f"s_cmp_eq_u32 s{sJ}, 1")
    A(f"s_cselect_b32 s{sF}, 64, s{sF}")
    A(f"s_add_u32 s{sF}, s{sF}, s{sHead}")

    def hook2(sBlk):
        A(f"s_cmp_ge_u32 s52, {8*(16-NRM) - 4}")
        A(f"s_cselect_b32 s86, 1, 0")
        A(f"s_add_u32 s75, s{sBlk}, s86")
        A(f"s_lshl_b32 s75, s75, 7")
        A(f"s_add_u32 s75, s75, {WS_CNT + CNT_ATT + NRM*128:#x}")
        wait(75, 32)
    outp_fast_body(A, sF, 8*NRM, hook2, nblk=16-NRM)
    tl()
```

```python
import struct
from asmlib import *
from layout import *


def f32bits(x):
    return struct.unpack("<I", struct.pack("<f", x))[0]


SPIN_MAX = 400000
WARM = 1
NST = 64
CDELAY = 7
KC = 1
DSLEEP = 24
AALL = 1
ADELAY = 0
VSPLIT = 4
EARLY = 1
VM1 = 0
VM2 = 0
KLATE = 0
PDELAY = 0
OOB = 0x7ff00000


def gen_rec(A, name="rec_kernel", prof=False, nsteps=64, exp=(), wrole=None):
    kernel_header(A, name)
    sWS, sM0, sW, sDBG = 4, 8, 12, 32
    sX, sT, sGrp, sMemb, sWave, sStep, sMode, sCnt = 36, 37, 38, 39, 40, 41, 42, 43
    sOffKM, sOffC, sOffD, sOffK, sTmp, sTmp2, sH, sOffU = 44, 45, 46, 47, 48, 49, 50, 51
    sRA, sRC, sRD, sRAp, sRCp, sRDp, sWarm, sOffUM = 90, 91, 92, 93, 94, 95, 96, 101
    sRCB = 101
    sMaskG = 54
    sC = 58
    sEnd = 59
    sCnts = 60
    sPr = 70
    R = RegAlloc(1, 256)
    vLane, vN, vG, vN8 = R.alloc(), R.alloc(), R.alloc(), R.alloc()
    vT0, vT1, vT2, vT3 = R.alloc(), R.alloc(), R.alloc(), R.alloc()
    vD0, vD2 = R.alloc(), R.alloc()
    vRAw, vRAr, vAst, vKMst = R.alloc(), R.alloc(), R.alloc(), R.alloc()
    vRAr2, vAst2, vVMst = R.alloc(), R.alloc(), R.alloc()
    vQo, vKo = R.alloc(), R.alloc()
    vRCw, vRCr, vCst = R.alloc(), R.alloc(), R.alloc()
    vCg = R.alloc(8)
    vDst = R.alloc()
    vK0, vK1, vU = R.alloc(), R.alloc(), R.alloc()
    vWarm = R.alloc()
    vNinf = R.alloc()
    vFlag, vSig, vOne = R.alloc(), R.alloc(), R.alloc()
    vU2 = R.alloc()
    vOnes = R.alloc(4)
    vSent = R.alloc(4)
    vDummy = R.alloc(4)
    vPub = R.alloc(2)
    vPub2 = R.alloc(2)
    assert R.next <= 64
    M = R.alloc(12)
    Mr = R.alloc(8)
    accA = R.alloc(24)
    Q = R.alloc(8)
    Qr = R.alloc(8)
    KM = R.alloc(16)
    VM = R.alloc(16)
    acc1, acc2, acc0 = R.alloc(4), R.alloc(4), R.alloc(4)
    accU = R.alloc(12)
    UA = R.alloc(6)
    P0 = R.alloc(4)
    PM, Blo = R.alloc(2), R.alloc(2)
    vMx, vMx2 = R.alloc(), R.alloc()
    vRz = R.alloc(2)
    accZ = R.alloc(4)
    accC = R.alloc(12)
    Cg = R.alloc(16)
    CR = KM
    TMP = 64
    aWA, aWC, aK, aU, aUn = 0, 120, 168, 200, 212

    def WA(t, ks):
        return a(aWA + (t * 5 + ks) * 4, 4)

    def WC(t, s_):
        return a(aWC + (t * 4 + s_) * 4, 4)

    LDS_RA = 65536
    LDS_RC = 65536 + 12288
    LDS_ROLE = 163840 - 16

    Lend = A.newlabel("Lend")
    Lfail = A.newlabel("Lfail")
    WSR = f"s[{sWS}:{sWS+3}]"

    def rtl(cond8=False):
        if "tl" not in exp:
            return
        Ls = A.newlabel("Lrtl")
        A(f"s_cmp_lg_u32 s{sWave}, 3")
        A(f"s_cbranch_scc1 {Ls}")
        if cond8:
            A(f"s_and_b32 s70, s{sStep}, 7")
            A(f"s_cmp_lg_u32 s70, 0")
            A(f"s_cbranch_scc1 {Ls}")
        A("s_memrealtime s[72:73]")
        A("s_waitcnt lgkmcnt(0)")
        A("s_mov_b64 exec, 1")
        A(f"v_mov_b32 {v(vT0)}, s72")
        A(f"v_mov_b32 {v(vT1)}, 0")
        A(f"buffer_store_dword {v(vT0)}, {v(vT1)}, {WSR}, s71 offen")
        A("s_mov_b64 exec, -1")
        A("s_add_u32 s71, s71, 4")
        A.label(Ls)

    def dbgmax(slot):
        if "dbg" not in exp:
            return
        A("s_memrealtime s[72:73]")
        A("s_load_dwordx2 s[88:89], s[0:1], 88")
        A("s_waitcnt lgkmcnt(0)")
        A("s_mov_b32 s84, s88")
        A("s_and_b32 s85, s89, 0xffff")
        A("s_mov_b32 s86, 256")
        A("s_mov_b32 s87, 0x00020000")
        A("s_mov_b64 exec, 1")
        A("s_and_b32 s72, s72, 0xffffff")
        A("v_mov_b32 v4, s72")
        A(f"v_mov_b32 v5, {slot*4}")
        A("buffer_atomic_umax v4, v5, s[84:87], 0 offen")
        A("s_mov_b64 exec, -1")
        A("v_and_b32 v4, 7, v0")

    def stamp(i):
        if not prof:
            return
        if "rt" in exp:
            Ls = A.newlabel("Lst")
            A(f"s_cmp_lg_u32 s{sStep}, {30 if i != 13 else 31}")
            A(f"s_cbranch_scc1 {Ls}")
            A(f"s_memrealtime s[88:89]")
            A("s_waitcnt lgkmcnt(0)")
            A(f"s_mov_b32 s{sPr+i}, s88")
            A.label(Ls)
            return
        A(f"s_memtime s[88:89]")
        A("s_waitcnt lgkmcnt(0)")
        A(f"s_sub_u32 s{sTmp2}, s88, s86")
        A(f"s_add_u32 s{sPr+i}, s{sPr+i}, s{sTmp2}")
        A("s_mov_b32 s86, s88")

    sKX, sKT, sKR = 98, 99, 97
    assert not prof or not wrole
    A("s_cmp_ge_u32 s2, 256")
    A(f"s_cbranch_scc1 {Lend}")
    if "tl" in exp:
        A("s_memrealtime s[68:69]")
    A(f"s_mov_b32 s{sKR}, 0")
    dbgmax(1)
    Lentry = A.newlabel("Lentry")
    A.label(Lentry)
    A("s_waitcnt vmcnt(0) lgkmcnt(0)")
    A("s_load_dwordx8 s[16:23], s[0:1], 32")
    A("s_load_dwordx2 s[24:25], s[0:1], 64")
    A("s_load_dwordx4 s[28:31], s[0:1], 88")
    A(f"v_and_b32 {v(vLane)}, 63, v0")
    A(f"v_lshrrev_b32 {v(vT0)}, 6, v0")
    A(f"v_and_b32 {v(vN)}, 15, v0")
    A(f"v_readfirstlane_b32 s{sWave}, {v(vT0)}")
    A(f"v_bfe_u32 {v(vG)}, v0, 4, 2")
    A(f"v_and_b32 {v(vN8)}, 7, v0")
    A("s_waitcnt lgkmcnt(0)")
    make_srd(A, sWS, 30, WS_BYTES)
    make_srd(A, sM0, 16, 10240)
    make_srd(A, sDBG, 28, 256)
    make_srd(A, sW, 18, 640 * 4096 * 2)

    def confirm(swave, force_jump=False):
        Lskip, Lw0, Lp = A.newlabel("Lcf"), A.newlabel("Lcf0"), A.newlabel("Lcfp")
        A(f"s_cmp_lg_u32 s{sKR}, 0")
        A(f"s_cbranch_scc1 {Lskip}")
        A(f"s_cmp_lg_u32 s{swave}, 0")
        A(f"s_cbranch_scc1 {Lw0}")
        A("s_load_dwordx2 s[88:89], s[0:1], 88")
        A("v_and_b32 v4, 63, v0")
        A("v_lshlrev_b32 v4, 2, v4")
        A("v_add_u32 v4, 64, v4")
        A("s_mov_b64 exec, 0x1ff")
        A("s_mov_b32 s43, 0")
        A("s_waitcnt lgkmcnt(0)")
        A("s_and_b32 s89, s89, 0xffff")
        A("s_mov_b32 s90, 256")
        A("s_mov_b32 s91, 0x00020000")
        A.label(Lp)
        A("buffer_load_dword v5, v4, s[88:91], 0 offen sc1")
        A("s_waitcnt vmcnt(0)")
        for i in range(8):
            A(f"v_readlane_b32 s{sCnts+i}, v5, {i}")
        A("v_readlane_b32 s48, v5, 8")
        A("s_nop 3")
        A("s_add_u32 s43, s43, 1")
        A(f"s_cmp_gt_u32 s43, {SPIN_MAX}")
        Lok = A.newlabel("Lcfo")
        A(f"s_cbranch_scc0 {Lok}")
        A("s_endpgm")
        A.label(Lok)
        A("s_cmp_lt_u32 s48, 256")
        A(f"s_cbranch_scc1 {Lp}")
        A(f"s_min_u32 s48, s{sCnts}, s{sCnts+1}")
        for i in range(2, 8):
            A(f"s_min_u32 s48, s48, s{sCnts+i}")
        A(f"s_mov_b32 s49, s{sKT}")
        for i in range(7):
            A(f"s_cmp_gt_u32 s{sKX}, {i}")
            A(f"s_cselect_b32 s43, s{sCnts+i}, 0")
            A("s_add_u32 s49, s49, s43")
        A("s_or_b32 s49, s49, 0x300")
        A(f"s_lshl_b32 s43, s{sKX}, 5")
        A(f"s_add_u32 s43, s43, s{sKT}")
        A("s_or_b32 s43, s43, 0x200")
        A(f"s_cmp_ge_u32 s48, {33 if 'slow' in exp else 32}")
        A("s_cselect_b32 s43, s43, s49")
        A("s_mov_b64 exec, 1")
        A(f"v_mov_b32 v4, {LDS_ROLE}")
        A("v_mov_b32 v5, s43")
        A("ds_write_b32 v4, v5")
        A("s_waitcnt lgkmcnt(0)")
        A("s_mov_b64 exec, -1")
        A.label(Lw0)
        A("s_barrier")
        A(f"v_mov_b32 v4, {LDS_ROLE}")
        A("ds_read_b32 v5, v4")
        A("s_waitcnt lgkmcnt(0)")
        A(f"v_readfirstlane_b32 s{sKR}, v5")
        A("s_nop 3")
        A("s_barrier")
        if force_jump:
            A(f"s_branch {Lentry}")
        else:
            A(f"s_bitcmp1_b32 s{sKR}, 8")
            A(f"s_cbranch_scc0 {Lskip}")
            A(f"s_branch {Lentry}")
        A.label(Lskip)

    Lhave = A.newlabel("Lhave")
    A(f"s_mov_b32 s{sCnt}, s{sKR}")
    A(f"s_cmp_lg_u32 s{sKR}, 0")
    A(f"s_cbranch_scc1 {Lhave}")
    A(f"s_getreg_b32 s{sKX}, hwreg(HW_REG_XCC_ID)")
    A(f"s_and_b32 s{sKX}, s{sKX}, 7")
    Lel_done = A.newlabel("Lel")
    A(f"s_cmp_lg_u32 s{sWave}, 0")
    A(f"s_cbranch_scc1 {Lel_done}")
    A(f"s_lshl_b32 s{sTmp}, s{sKX}, 2")
    A(f"s_add_u32 s{sTmp}, s{sTmp}, 64")
    A(f"v_mov_b32 {v(vT0)}, s{sTmp}")
    A(f"v_mov_b32 {v(vT1)}, 1")
    A("s_mov_b64 exec, 1")
    A(f"buffer_atomic_add {v(vT1)}, {v(vT0)}, s[{sDBG}:{sDBG+3}], 0 offen sc0")
    A(f"v_mov_b32 {v(vT0)}, {LDS_ROLE}")
    A("s_waitcnt vmcnt(0)")
    A(f"ds_write_b32 {v(vT0)}, {v(vT1)}")
    A("s_waitcnt lgkmcnt(0)")
    A("s_mov_b64 exec, -1")
    A.label(Lel_done)
    A("s_barrier")
    A(f"v_mov_b32 {v(vT0)}, {LDS_ROLE}")
    A(f"ds_read_b32 {v(vT1)}, {v(vT0)}")
    A("s_waitcnt lgkmcnt(0)")
    A(f"v_readfirstlane_b32 s{sKT}, {v(vT1)}")
    A("s_nop 3")
    import parta
    A(f"s_add_u32 s61, s{sWS}, {WS_RC + 0x1fffff:#x}")
    A("s_and_b32 s61, s61, 0xffe00000")
    A(f"s_sub_u32 s61, s61, s{sWS}")
    A(f"s_sub_u32 s61, s61, {WS_RC:#x}")
    A(f"v_lshlrev_b32 {v(vT0)}, 4, v0")
    for k in range((parta.NB_INIT + 255) // 256):
        A(f"s_add_u32 s60, s2, {k*256}")
        A("s_lshl_b32 s62, s60, 12")
        A(f"s_add_u32 s63, s62, {WS_CNT:#x}")
        A("s_mov_b32 s64, 0")
        base = parta.NB_ZERO
        for off, n in parta.FILL_RANGES:
            A(f"s_add_u32 s65, s62, {off - base*4096:#x}")
            if off == WS_RC:
                A("s_add_u32 s65, s65, s61")
            A(f"s_cmp_ge_u32 s60, {base}")
            A("s_cselect_b32 s63, s65, s63")
            A("s_cselect_b32 s64, -1, s64")
            base += n // 4096
        A(f"s_cmp_ge_u32 s60, {parta.NB_INIT}")
        A(f"s_cselect_b32 s63, {OOB:#x}, s63")
        for i in range(4):
            A(f"v_mov_b32 v{64+k*4+i}, s64")
        A(f"buffer_store_dwordx4 v[{64+k*4}:{67+k*4}], {v(vT0)}, {WSR}, s63 offen sc1")
    A("s_waitcnt vmcnt(0)")
    A("s_barrier")
    Lid = A.newlabel("Lid")
    A(f"s_cmp_lg_u32 s{sWave}, 0")
    A(f"s_cbranch_scc1 {Lid}")
    A("s_mov_b64 exec, 1")
    A(f"v_mov_b32 {v(vT0)}, 96")
    A(f"v_mov_b32 {v(vT1)}, 1")
    A(f"buffer_atomic_add {v(vT1)}, {v(vT0)}, s[{sDBG}:{sDBG+3}], 0 offen")
    A("s_mov_b64 exec, -1")
    A.label(Lid)
    Lsp = A.newlabel("Lsp")
    A(f"s_cmp_lt_u32 s{sKT}, 32")
    A(f"s_cbranch_scc1 {Lsp}")
    confirm(sWave, force_jump=True)
    A.label(Lsp)
    A(f"s_lshl_b32 s{sCnt}, s{sKX}, 5")
    A(f"s_add_u32 s{sCnt}, s{sCnt}, s{sKT}")
    A.label(Lhave)
    dbgmax(10)
    A(f"s_bfe_u32 s{sMode}, s{sCnt}, 0x10008")
    A(f"s_and_b32 s{sCnt}, s{sCnt}, 255")
    Lw = A.newlabel("Lwrole")
    Lr = A.newlabel("Lrrole")
    A(f"s_cmp_ge_u32 s{sCnt}, 128")
    if wrole:
        A(f"s_cbranch_scc0 {Lr}")
        A(f"s_branch {Lw}")
        A.label(Lr)
    else:
        A(f"s_cbranch_scc0 {Lr}")
        confirm(sWave)
        A(f"s_branch {Lend}")
        A.label(Lr)
    A(f"s_lshr_b32 s{sGrp}, s{sCnt}, 4")
    A(f"s_and_b32 s{sMemb}, s{sCnt}, 15")
    A(f"s_lshl_b32 s71, s{sCnt}, 8")
    A(f"s_add_u32 s71, s71, {WS_PROF:#x}")
    if "tl" in exp:
        A("s_mov_b64 exec, 1")
        A(f"v_mov_b32 {v(vT0)}, s68")
        A(f"v_mov_b32 {v(vT1)}, 0")
        A(f"buffer_store_dword {v(vT0)}, {v(vT1)}, {WSR}, s71 offen")
        A("s_mov_b64 exec, -1")
        A("s_add_u32 s71, s71, 4")
    rtl()

    A(f"s_mov_b32 s{sMaskG}, -1")
    A(f"s_mov_b32 s{sMaskG+1}, 0")
    A(f"s_mov_b32 s{sC}, {f32bits(SCALE*LOG2E):#x}")
    A(f"v_mov_b32 {v(vNinf)}, 0xff800000")
    for i in range(4):
        A(f"v_mov_b32 {v(vOnes+i)}, 0x3f803f80")
        A(f"v_mov_b32 {v(vSent+i)}, -1")

    A(f"s_lshr_b32 s{sTmp}, s{sMemb}, 2")
    A(f"s_lshl_b32 s{sH}, s{sGrp}, 2")
    A(f"s_add_u32 s{sH}, s{sH}, s{sTmp}")
    A(f"s_and_b32 s{sTmp}, s{sMemb}, 3")
    A(f"s_lshl_b32 s{sTmp2}, s{sH}, 8")
    A(f"s_lshl_b32 s{sCnt}, s{sTmp}, 6")
    A(f"s_add_u32 s{sTmp2}, s{sTmp2}, s{sCnt}")
    A(f"s_mul_i32 s{sCnt}, s{sWave}, {160*8192}")
    A(f"s_add_u32 s{sTmp2}, s{sTmp2}, s{sCnt}")
    A(f"v_lshrrev_b32 {v(vT0)}, 2, {v(vLane)}")
    A(f"v_lshlrev_b32 {v(vT0)}, 13, {v(vT0)}")
    A(f"v_and_b32 {v(vT1)}, 3, {v(vLane)}")
    A(f"v_lshl_add_u32 {v(vT0)}, {v(vT1)}, 4, {v(vT0)}")
    A(f"v_add_u32 {v(vT0)}, s{sTmp2}, {v(vT0)}")
    for m in range(3):
        if m:
            make_srd(A, sW, 18 + 2 * m, 640 * 4096 * 2)
        for i in range(10):
            A(f"s_mov_b32 s{sCnt}, {i*131072}")
            A(f"buffer_load_dwordx4 {v(TMP+(m*10+i)*4,4)}, {v(vT0)}, s[{sW}:{sW+3}], s{sCnt} offen")
    make_srd(A, sW, 24, 4096 * 640 * 2)
    A(f"s_lshl_b32 s{sTmp2}, s{sGrp}, 2")
    A(f"s_add_u32 s{sTmp2}, s{sTmp2}, s{sWave}")
    A(f"s_mul_i32 s{sTmp2}, s{sTmp2}, {128*1280}")
    A(f"s_mul_i32 s{sCnt}, s{sMemb}, 80")
    A(f"s_add_u32 s{sTmp2}, s{sTmp2}, s{sCnt}")
    A(f"v_lshrrev_b32 {v(vT1)}, 3, {v(vLane)}")
    A(f"v_mul_u32_u24 {v(vT1)}, 1280, {v(vT1)}")
    A(f"v_and_b32 {v(vT2)}, 7, {v(vLane)}")
    A(f"v_lshl_add_u32 {v(vT1)}, {v(vT2)}, 4, {v(vT1)}")
    A(f"v_add_u32 {v(vT1)}, s{sTmp2}, {v(vT1)}")
    for i in range(16):
        A(f"s_mov_b32 s{sCnt}, {i*8*1280}")
        A(f"buffer_load_dwordx4 {v(TMP+120+i*4,4)}, {v(vT1)}, s[{sW}:{sW+3}], s{sCnt} offen")
    A(f"s_lshl_b32 s{sTmp2}, s{sWave}, 14")
    A(f"v_lshlrev_b32 {v(vT0)}, 4, {v(vLane)}")
    A(f"v_add_u32 {v(vT0)}, s{sTmp2}, {v(vT0)}")
    A(f"v_lshrrev_b32 {v(vT1)}, 2, {v(vN)}")
    A(f"v_lshl_add_u32 {v(vT2)}, {v(vG)}, 3, {v(vT1)}")
    A(f"v_lshlrev_b32 {v(vT2)}, 6, {v(vT2)}")
    A(f"v_and_b32 {v(vT3)}, 3, {v(vN)}")
    A(f"v_lshl_add_u32 {v(vT2)}, {v(vT3)}, 3, {v(vT2)}")
    A(f"v_add_u32 {v(vT2)}, s{sTmp2}, {v(vT2)}")
    for m in range(3):
        A(f"s_waitcnt vmcnt({(2-m)*10+16})")
        for i in range(10):
            A(f"ds_write_b128 {v(vT0)}, {v(TMP+(m*10+i)*4,4)} offset:{i*1024}")
        for tt in range(2):
            for ks in range(5):
                r0 = aWA + ((m * 2 + tt) * 5 + ks) * 4
                A(f"ds_read_b64_tr_b16 {a(r0,2)}, {v(vT2)} offset:{ks*2048+tt*32}")
                A(f"ds_read_b64_tr_b16 {a(r0+2,2)}, {v(vT2)} offset:{ks*2048+tt*32+256}")
            A("s_waitcnt lgkmcnt(0)")
    A(f"v_lshl_add_u32 {v(vT2)}, {v(vG)}, 2, {v(vT1)}")
    A(f"v_lshlrev_b32 {v(vT2)}, 7, {v(vT2)}")
    A(f"v_lshl_add_u32 {v(vT2)}, {v(vT3)}, 3, {v(vT2)}")
    A(f"v_add_u32 {v(vT2)}, s{sTmp2}, {v(vT2)}")
    A("s_waitcnt vmcnt(0)")
    for i in range(16):
        A(f"ds_write_b128 {v(vT0)}, {v(TMP+120+i*4,4)} offset:{i*1024}")
        if i % 8 == 7:
            A("s_waitcnt lgkmcnt(0)")
    for tt in range(3):
        for s_ in range(4):
            r0 = aWC + (tt * 4 + s_) * 4
            A(f"ds_read_b64_tr_b16 {a(r0,2)}, {v(vT2)} offset:{s_*4096+tt*32}")
            A(f"ds_read_b64_tr_b16 {a(r0+2,2)}, {v(vT2)} offset:{s_*4096+tt*32+2048}")
        A("s_waitcnt lgkmcnt(0)")

    dbgmax(8)
    confirm(sWave)
    dbgmax(9)
    A(f"v_and_b32 {v(vN8)}, 7, v0")
    if wrole:
        import parta
        A("s_load_dwordx4 s[24:27], s[0:1], 8")
        A(f"s_lshl_b32 s{sEnd}, s{sGrp}, 4")
        A(f"s_add_u32 s{sEnd}, s{sEnd}, s{sMemb}")
        A("s_waitcnt lgkmcnt(0)")
        Lcu, Lcx, Lcy = A.newlabel("Lcu"), A.newlabel("Lcx"), A.newlabel("Lcy")
        A(f"s_cmp_lg_u32 s{sEnd}, 0")
        A(f"s_cbranch_scc1 {Lcy}")
        A(f"s_branch {Lcx}")
        A.label(Lcy)
        A(f"s_sub_u32 s{sEnd}, s{sEnd}, 1")
        parta.wt_batch(A, sEnd, sWave)
        A.label(Lcu)
        parta.const_unit(A, sEnd)
        A(f"s_add_u32 s{sEnd}, s{sEnd}, 127")
        A(f"s_cmp_le_u32 s{sEnd}, {parta.NB_FG}")
        A(f"s_cbranch_scc1 {Lcu}")
        A.label(Lcx)
        A("s_waitcnt vmcnt(0)")
        A("s_barrier")
        A("s_mov_b64 exec, 1")
        A("v_mov_b32 v1, 1")
        A("v_mov_b32 v2, 0")
        A(f"s_mov_b32 s{sTmp}, {WS_CNT + CNT_CONST:#x}")
        A(f"buffer_atomic_add v1, v2, {WSR}, s{sTmp} offen")
        A("s_mov_b64 exec, -1")
        A("s_load_dwordx2 s[16:17], s[0:1], 32")
        A(f"v_and_b32 {v(vLane)}, 63, v0")
        A(f"v_and_b32 {v(vN)}, 15, v0")
        A(f"v_bfe_u32 {v(vG)}, v0, 4, 2")
        A(f"v_and_b32 {v(vN8)}, 7, v0")
        A(f"v_mov_b32 {v(vNinf)}, 0xff800000")
        for i in range(4):
            A(f"v_mov_b32 {v(vOnes+i)}, 0x3f803f80")
            A(f"v_mov_b32 {v(vSent+i)}, -1")
        A("s_waitcnt lgkmcnt(0)")
        make_srd(A, sM0, 16, 10240)
    A(f"v_mul_u32_u24 {v(vT0)}, 1280, {v(vN8)}")
    A(f"v_lshl_add_u32 {v(vT0)}, {v(vG)}, 4, {v(vT0)}")
    A(f"s_mul_i32 s{sTmp}, s{sWave}, 320")
    A(f"v_add_u32 {v(vT0)}, s{sTmp}, {v(vT0)}")
    A(f"v_add_u32 {v(Cg+1)}, 256, {v(vT0)}")
    A(f"v_lshrrev_b32 {v(vT1)}, 3, {v(vN)}")
    A(f"v_lshl_add_u32 {v(Cg)}, {v(vT1)}, 6, {v(vT0)}")
    A(f"s_mul_i32 s{sTmp}, s{sWave}, 2560")
    A(f"v_lshlrev_b32 {v(vT0)}, 4, {v(vLane)}")
    A(f"v_add_u32 {v(vD0)}, s{sTmp}, {v(vT0)}")
    A(f"v_lshl_add_u32 {v(vT1)}, {v(vG)}, 3, {v(vN8)}")
    A(f"v_lshlrev_b32 {v(vT1)}, 4, {v(vT1)}")
    A(f"s_add_u32 s{sTmp}, s{sTmp}, 2048")
    A(f"v_add_u32 {v(vD2)}, s{sTmp}, {v(vT1)}")
    A(f"s_lshl_b32 s{sTmp2}, s{sGrp}, 2")
    A(f"s_add_u32 s{sTmp2}, s{sTmp2}, s{sWave}")
    A(f"s_mul_i32 s{sTmp}, s{sTmp2}, 6144")
    A(f"v_add_u32 {v(vQo)}, s{sTmp}, {v(vT0)}")
    A(f"v_add_u32 {v(vKo)}, 2048, {v(vQo)}")
    A(f"s_lshl_b32 s{sTmp}, s{sTmp2}, 13")
    A(f"v_add_u32 {v(vK0)}, s{sTmp}, {v(vT0)}")
    A(f"v_add_u32 {v(vK1)}, 4096, {v(vK0)}")
    A(f"s_mul_i32 s{sTmp}, s{sTmp2}, 40960")
    A(f"s_mul_i32 s{sCnt}, s{sMemb}, 2560")
    A(f"s_add_u32 s{sTmp}, s{sTmp}, s{sCnt}")
    A(f"v_lshrrev_b32 {v(vT2)}, 3, {v(vN)}")
    A(f"v_lshl_add_u32 {v(vU)}, {v(vT2)}, 9, {v(vT1)}")
    A(f"v_add_u32 {v(vU)}, s{sTmp}, {v(vU)}")
    A(f"v_mov_b32 {v(vU2)}, {OOB:#x}")
    A(f"v_cmp_gt_u32 vcc, 8, {v(vN)}")
    A("s_nop 1")
    A(f"v_cndmask_b32 {v(vU2)}, {v(vU2)}, {v(vU)}, vcc")
    A(f"s_mul_i32 s{sTmp}, s{sWave}, 3072")
    A(f"s_add_u32 s{sCnt}, s{sTmp}, {LDS_RA}")
    A(f"v_add_u32 {v(vRAw)}, s{sCnt}, {v(vT0)}")
    A(f"s_add_u32 s{sCnt}, s{sTmp}, {LDS_RC}")
    A(f"v_add_u32 {v(vRCw)}, s{sCnt}, {v(vT0)}")
    def reader(ubase_mul, ubase_add, nl, rdst, adst, pdst, pbase):
        A(f"s_mul_i32 s{sTmp}, s{sWave}, {ubase_mul}")
        A(f"s_add_u32 s{sTmp}, s{sTmp}, {ubase_add}")
        A(f"v_add_u32 {v(vT0)}, s{sTmp}, {v(vLane)}")
        A(f"v_lshrrev_b32 {v(vT1)}, 6, {v(vT0)}")
        A(f"v_bfe_u32 {v(vT2)}, {v(vT0)}, 1, 3")
        A(f"v_bfe_u32 {v(vT3)}, {v(vT0)}, 4, 2")
        A(f"v_and_b32 {v(vT0)}, 1, {v(vT0)}")
        A(f"v_lshl_add_u32 {v(rdst)}, {v(vT3)}, 4, {v(vT2)}")
        A(f"v_lshlrev_b32 {v(adst)}, 4, {v(rdst)}")
        A(f"v_lshl_add_u32 {v(rdst)}, {v(vT0)}, 3, {v(rdst)}")
        A(f"v_lshlrev_b32 {v(rdst)}, 4, {v(rdst)}")
        A(f"v_lshl_add_u32 {v(rdst)}, {v(vT1)}, 10, {v(rdst)}")
        A(f"v_add_u32 {v(rdst)}, {LDS_RA}, {v(rdst)}")
        A(f"s_and_b32 s{sTmp}, s{sMemb}, 3")
        A(f"s_lshr_b32 s{sTmp2}, s{sTmp}, 1")
        A(f"s_lshl_b32 s{sTmp2}, s{sTmp2}, 10")
        A(f"s_and_b32 s{sCnt}, s{sTmp}, 1")
        A(f"s_lshl_b32 s{sCnt}, s{sCnt}, 7")
        A(f"s_add_u32 s{sTmp2}, s{sTmp2}, s{sCnt}")
        A(f"s_mul_i32 s{sCnt}, s{sH}, 6144")
        A(f"s_add_u32 s{sTmp2}, s{sTmp2}, s{sCnt}")
        A(f"v_add_u32 {v(adst)}, s{sTmp2}, {v(adst)}")
        A(f"v_lshl_add_u32 {v(adst)}, {v(vT0)}, 3, {v(adst)}")
        A(f"v_lshl_add_u32 {v(adst)}, {v(vT1)}, 11, {v(adst)}")
        A(f"s_lshl_b32 s{sTmp2}, s{sTmp}, 9")
        A(f"s_lshl_b32 s{sCnt}, s{sH}, 11")
        A(f"s_add_u32 s{sTmp2}, s{sTmp2}, s{sCnt}")
        A(f"s_add_u32 s{sTmp2}, s{sTmp2}, {pbase:#x}")
        A(f"v_lshl_add_u32 {v(vT2)}, {v(vT3)}, 3, {v(vT2)}")
        A(f"v_lshlrev_b32 {v(vT2)}, 4, {v(vT2)}")
        A(f"v_lshl_add_u32 {v(vT2)}, {v(vT0)}, 3, {v(vT2)}")
        A(f"v_add_u32 {v(pdst)}, s{sTmp2}, {v(vT2)}")
        A(f"v_mov_b32 {v(vT3)}, {OOB:#x}")
        A(f"v_cmp_eq_u32 vcc, 0, {v(vT1)}")
        A("s_nop 1")
        A(f"v_cndmask_b32 {v(pdst)}, {v(pdst)}, {v(vT3)}, vcc")
        A(f"v_cmp_gt_u32 vcc, {nl}, {v(vLane)}")
        A("s_nop 1")
        A(f"v_cndmask_b32 {v(pdst)}, {v(vT3)}, {v(pdst)}, vcc")
        A(f"v_cndmask_b32 {v(adst)}, {v(vT3)}, {v(adst)}, vcc")
        A(f"v_cndmask_b32 {v(rdst)}, {v(vRAw)}, {v(rdst)}, vcc")
    reader(32, 0, 32, vRAr, vAst, vKMst, 0)
    reader(16, 128, 16, vRAr2, vAst2, vVMst, WS_VM - WS_KM)
    A(f"s_and_b32 s{sTmp}, s{sGrp}, 1")
    A(f"s_cmp_lt_u32 s{sWave}, 2")
    A(f"s_cselect_b32 s{sTmp}, s{sWave}, s{sTmp}")
    A(f"v_lshrrev_b32 {v(vT1)}, 3, {v(vLane)}")
    A(f"v_and_b32 {v(vT2)}, 1, {v(vLane)}")
    A(f"v_lshl_add_u32 {v(vT0)}, {v(vT1)}, 1, {v(vT2)}")
    A(f"v_bfe_u32 {v(vT2)}, {v(vLane)}, 1, 2")
    A(f"s_lshl_b32 s{sTmp2}, s{sTmp}, 2")
    A(f"v_add_u32 {v(vT2)}, s{sTmp2}, {v(vT2)}")
    A(f"v_and_b32 {v(vT3)}, 3, {v(vT0)}")
    A(f"v_lshl_add_u32 {v(vT3)}, {v(vT3)}, 4, {v(vT2)}")
    A(f"v_lshlrev_b32 {v(vT3)}, 4, {v(vT3)}")
    A(f"v_lshrrev_b32 {v(vT0)}, 2, {v(vT0)}")
    A(f"v_lshl_add_u32 {v(vT3)}, {v(vT0)}, 10, {v(vT3)}")
    A(f"v_add_u32 {v(vRCr)}, {LDS_RC}, {v(vT3)}")
    A(f"s_mul_i32 s{sCnt}, s{sMemb}, 43")
    A(f"s_lshr_b32 s{sCnt}, s{sCnt}, 8")
    A(f"s_mul_i32 s{sTmp2}, s{sMemb}, 1280")
    A(f"s_mul_i32 s{sCnt}, s{sCnt}, {16384 - 6*1280}")
    A(f"s_add_u32 s{sTmp2}, s{sTmp2}, s{sCnt}")
    A(f"s_mul_i32 s{sTmp}, s{sTmp}, 640")
    A(f"s_add_u32 s{sTmp}, s{sTmp}, s{sTmp2}")
    A(f"v_lshlrev_b32 {v(vT0)}, 4, {v(vLane)}")
    A(f"v_add_u32 {v(vCst)}, s{sTmp}, {v(vT0)}")
    for r in range(1, 8):
        A(f"s_xor_b32 s{sTmp2}, s{sGrp}, {r}")
        A(f"s_mul_i32 s{sTmp2}, s{sTmp2}, {RC_GRP}")
        A(f"v_add_u32 {v(vCg+r)}, s{sTmp2}, {v(vCst)}")
    A(f"s_mul_i32 s{sTmp}, s{sMemb}, 5")
    A(f"v_add_u32 {v(vT1)}, s{sTmp}, {v(vT1)}")
    A(f"v_lshlrev_b32 {v(vDst)}, 4, {v(vT2)}")
    A(f"v_and_b32 {v(vT2)}, 1, {v(vLane)}")
    A(f"v_lshl_add_u32 {v(vDst)}, {v(vT2)}, 3, {v(vDst)}")
    A(f"v_mul_u32_u24 {v(vT2)}, 205, {v(vT1)}")
    A(f"v_lshrrev_b32 {v(vT2)}, 12, {v(vT2)}")
    A(f"v_mul_u32_u24 {v(vT3)}, 20, {v(vT2)}")
    A(f"v_sub_u32 {v(vT1)}, {v(vT1)}, {v(vT3)}")
    A(f"v_mul_u32_u24 {v(vT2)}, 2560, {v(vT2)}")
    A(f"v_add_u32 {v(vDst)}, {v(vDst)}, {v(vT2)}")
    A(f"v_and_b32 {v(vT2)}, 3, {v(vT1)}")
    A(f"v_lshrrev_b32 {v(vT1)}, 2, {v(vT1)}")
    A(f"v_lshrrev_b32 {v(vT3)}, 1, {v(vT1)}")
    A(f"v_lshl_add_u32 {v(vDst)}, {v(vT3)}, 10, {v(vDst)}")
    A(f"v_and_b32 {v(vT3)}, 1, {v(vT1)}")
    A(f"v_lshl_add_u32 {v(vDst)}, {v(vT3)}, 7, {v(vDst)}")
    A(f"v_lshlrev_b32 {v(vT3)}, 8, {v(vT2)}")
    A(f"v_lshlrev_b32 {v(vT2)}, 7, {v(vT2)}")
    A(f"v_cmp_gt_u32 vcc, 4, {v(vT1)}")
    A("s_nop 1")
    A(f"v_cndmask_b32 {v(vT2)}, {v(vT2)}, {v(vT3)}, vcc")
    A(f"v_add_u32 {v(vDst)}, {v(vDst)}, {v(vT2)}")
    A(f"s_lshl_b32 s{sTmp}, s{sMemb}, 1")
    A(f"s_and_b32 s{sTmp2}, s{sWave}, 1")
    A(f"s_add_u32 s{sTmp}, s{sTmp}, s{sTmp2}")
    A(f"s_lshl_b32 s{sTmp}, s{sTmp}, 10")
    A(f"s_lshl_b32 s{sTmp2}, s{sGrp}, 15")
    A(f"s_add_u32 s{sTmp}, s{sTmp}, s{sTmp2}")
    A(f"v_lshlrev_b32 {v(vWarm)}, 4, {v(vLane)}")
    A(f"v_add_u32 {v(vWarm)}, s{sTmp}, {v(vWarm)}")

    A(f"s_lshl_b32 s{sTmp}, s{sGrp}, 9")
    A(f"v_and_b32 {v(vT0)}, 3, {v(vLane)}")
    A(f"v_lshlrev_b32 {v(vT0)}, 7, {v(vT0)}")
    A(f"v_add_u32 {v(vFlag)}, s{sTmp}, {v(vT0)}")
    A(f"v_bfe_u32 {v(vT0)}, {v(vLane)}, 2, 1")
    A(f"v_mul_u32_u24 {v(vT0)}, {CNT_VU - CNT_KVU:#x}, {v(vT0)}")
    A(f"v_add_u32 {v(vFlag)}, {v(vFlag)}, {v(vT0)}")
    A(f"s_lshl_b32 s{sTmp}, s{sH}, 7")
    A(f"v_mov_b32 {v(vSig)}, s{sTmp}")
    A(f"v_mov_b32 {v(vT0)}, {OOB:#x}")
    A(f"v_cmp_eq_u32 vcc, 0, {v(vLane)}")
    A("s_nop 1")
    A(f"v_cndmask_b32 {v(vSig)}, {v(vT0)}, {v(vSig)}, vcc")
    A(f"v_mov_b32 {v(vOne)}, 1")

    A(f"s_add_u32 s{sRCB}, s{sWS}, {WS_RC + 0x1fffff:#x}")
    A(f"s_and_b32 s{sRCB}, s{sRCB}, 0xffe00000")
    A(f"s_sub_u32 s{sRCB}, s{sRCB}, s{sWS}")
    Lnc = A.newlabel("Lncal")
    A(f"s_lshl_b32 s{sTmp}, s{sGrp}, 4")
    A(f"s_add_u32 s{sTmp}, s{sTmp}, s{sMemb}")
    A(f"s_add_u32 s{sTmp}, s{sTmp}, s{sWave}")
    A(f"s_cmp_lg_u32 s{sTmp}, 0")
    A(f"s_cbranch_scc1 {Lnc}")
    A("s_mov_b64 exec, 1")
    A(f"v_mov_b32 {v(vT0)}, 0")
    for c in range(2):
        A(f"s_mov_b32 s{60+c}, 0x7fffffff")
    for it in range(6):
        for c in range(2):
            A(f"s_add_u32 s{sTmp}, s{sRCB}, {RC_PROBE + c*8192:#x}")
            A(f"buffer_store_dword {v(vT0)}, {v(vT0)}, {WSR}, s{sTmp} offen sc1")
            A("s_waitcnt vmcnt(0)")
            A("s_memtime s[62:63]")
            A("s_waitcnt lgkmcnt(0)")
            A(f"buffer_load_dword {v(vT1)}, {v(vT0)}, {WSR}, s{sTmp} offen sc1")
            A("s_waitcnt vmcnt(0)")
            A("s_memtime s[64:65]")
            A("s_waitcnt lgkmcnt(0)")
            A("s_sub_u32 s64, s64, s62")
            A(f"s_min_u32 s{60+c}, s{60+c}, s64")
    A("s_cmp_le_u32 s60, s61")
    A(f"s_cselect_b32 s{sTmp}, {2 if 'badpol' in exp else 1}, {1 if 'badpol' in exp else 2}")
    A(f"v_mov_b32 {v(vT1)}, s{sTmp}")
    A(f"s_mov_b32 s{sTmp}, {WS_CNT + CNT_POL:#x}")
    A(f"buffer_store_dword {v(vT1)}, {v(vT0)}, {WSR}, s{sTmp} offen sc1")
    A("s_mov_b64 exec, -1")
    A.label(Lnc)
    Lpp, Lpd = A.newlabel("Lpp"), A.newlabel("Lppd")
    A(f"v_mov_b32 {v(vT0)}, 0")
    A(f"s_mov_b32 s{sTmp2}, {WS_CNT + CNT_POL:#x}")
    A(f"s_mov_b32 s{sCnt}, 0")
    A.label(Lpp)
    A(f"buffer_load_dword {v(vT1)}, {v(vT0)}, {WSR}, s{sTmp2} offen sc1")
    A("s_waitcnt vmcnt(0)")
    A(f"v_cmp_eq_u32 vcc, 0, {v(vT1)}")
    A(f"s_cbranch_vccz {Lpd}")
    A("s_sleep 4")
    A(f"s_add_u32 s{sCnt}, s{sCnt}, 1")
    A(f"s_cmp_lt_u32 s{sCnt}, {SPIN_MAX}")
    A(f"s_cbranch_scc1 {Lpp}")
    A(f"s_mov_b32 s{sTmp}, 6")
    A(f"s_branch {Lfail}")
    A.label(Lpd)
    A(f"v_cmp_eq_u32 vcc, 2, {v(vT1)}")
    A("s_cmp_lg_u64 vcc, 0")
    A(f"s_cselect_b32 s{sTmp}, 8192, 0")
    A(f"s_add_u32 s{sRCB}, s{sRCB}, s{sTmp}")

    def wait_kvu(srb):
        Lp_ = A.newlabel("Lkf")
        Ld_ = A.newlabel("Lkfd")
        A(f"s_lshl_b32 s{sTmp2}, s{srb}, 12")
        A(f"s_add_u32 s{sTmp2}, s{sTmp2}, {WS_CNT + CNT_KVU:#x}")
        A(f"s_mov_b32 s{sCnt}, 0")
        A.label(Lp_)
        A(f"buffer_load_dword {v(vT0)}, {v(vFlag)}, {WSR}, s{sTmp2} offen sc1")
        A("s_waitcnt vmcnt(0)")
        A(f"v_cmp_eq_u32 vcc, 0, {v(vT0)}")
        A(f"s_cbranch_vccz {Ld_}")
        A("s_sleep 4")
        A(f"s_add_u32 s{sCnt}, s{sCnt}, 1")
        A(f"s_cmp_lt_u32 s{sCnt}, {SPIN_MAX}")
        A(f"s_cbranch_scc1 {Lp_}")
        A(f"s_mov_b32 s{sTmp}, 5")
        A(f"s_branch {Lfail}")
        A.label(Ld_)

    def signal_mem(srb):
        A(f"s_lshl_b32 s{sTmp2}, s{srb}, 12")
        A(f"s_add_u32 s{sTmp2}, s{sTmp2}, {WS_CNT + CNT_MEM:#x}")
        A(f"buffer_atomic_add {v(vOne)}, {v(vSig)}, {WSR}, s{sTmp2} offen")

    A(f"s_mov_b32 s{sStep}, 0")
    dbgmax(5)
    rtl()
    if wrole:
        wait_kvu(sStep)
    A(f"s_mov_b32 s{sOffKM}, {WS_KM:#x}")
    A(f"s_mov_b32 s{sOffK}, {WS_KX:#x}")
    A(f"s_mov_b32 s{sOffU}, {WS_U:#x}")

    def k_load(f):
        vo = vK0 if f < 4 else vK1
        return f"buffer_load_dwordx4 {a(aK+f*4,4)}, {v(vo)}, {WSR}, s{sOffK} offen offset:{(f%4)*1024}"

    def u_load(t, dst):
        return f"buffer_load_dwordx4 {a(dst+t*4,4)}, {v(vU if t < 2 else vU2)}, {WSR}, s{sOffU} offen offset:{t*1024}"

    def check_sentinel(regs, tmp):
        regs = list(regs)
        A(f"v_max3_u32 {v(tmp)}, {v(regs[0])}, {v(regs[1])}, {v(regs[2])}")
        rest = regs[3:]
        while rest:
            if len(rest) >= 2:
                A(f"v_max3_u32 {v(tmp)}, {v(tmp)}, {v(rest[0])}, {v(rest[1])}")
                rest = rest[2:]
            else:
                A(f"v_max_u32 {v(tmp)}, {v(tmp)}, {v(rest[0])}")
                rest = []
        A(f"v_cmp_eq_u32 vcc, -1, {v(tmp)}")

    def poll(issue, regs, code):
        Lp_ = A.newlabel("Lpoll")
        Ld_ = A.newlabel("Lpd")
        A(f"s_mov_b32 s{sCnt}, 0")
        A.label(Lp_)
        issue()
        A("s_waitcnt vmcnt(0)")
        check_sentinel(regs, vT0)
        A(f"s_cbranch_vccz {Ld_}")
        A(f"s_add_u32 s{sCnt}, s{sCnt}, 1")
        A(f"s_cmp_lt_u32 s{sCnt}, {SPIN_MAX}")
        A(f"s_cbranch_scc1 {Lp_}")
        A(f"s_mov_b32 s{sTmp}, {code}")
        A(f"s_branch {Lfail}")
        A.label(Ld_)
        if prof:
            r = {4: 97, 1: 98, 3: 100}[code]
            A(f"s_add_u32 s{r}, s{r}, s{sCnt}")

    def store_local(instr):
        L1 = A.newlabel("Lsl")
        L2 = A.newlabel("Lsl")
        A(f"s_cmp_lg_u32 s{sMode}, 0")
        A(f"s_cbranch_scc1 {L1}")
        A(instr)
        A(f"s_branch {L2}")
        A.label(L1)
        A(instr + " sc1")
        A.label(L2)

    for f in range(8):
        A(k_load(f))
    for t in range(3):
        A(u_load(t, aUn))
    if prof:
        for i in range(16):
            A(f"s_mov_b32 s{sPr+i}, 0")
        for i in range(97, 101):
            A(f"s_mov_b32 s{i}, 0")
        A("s_memtime s[86:87]")
        A("s_waitcnt lgkmcnt(0)")

    ring = []
    ring += [f"s_and_b32 s{sTmp}, s{sStep}, 3",
             f"s_add_u32 s{sTmp2}, s{sStep}, 3",
             f"s_and_b32 s{sTmp2}, s{sTmp2}, 3",
             f"s_mul_i32 s{sRA}, s{sTmp}, {32*6144}",
             f"s_add_u32 s{sRA}, s{sRA}, {WS_RA:#x}",
             f"s_mul_i32 s{sRAp}, s{sTmp2}, {32*6144}",
             f"s_add_u32 s{sRAp}, s{sRAp}, {WS_RA:#x}",
             f"s_mul_i32 s{sRC}, s{sTmp}, {RC_SLOT}",
             f"s_add_u32 s{sRC}, s{sRC}, s{sRCB}",
             f"s_add_u32 s{sRCp}, s{sStep}, 2",
             f"s_and_b32 s{sRCp}, s{sRCp}, 3",
             f"s_mul_i32 s{sRCp}, s{sRCp}, {RC_SLOT}",
             f"s_add_u32 s{sRCp}, s{sRCp}, s{sRCB}",
             f"s_mul_i32 s{sCnt}, s{sGrp}, {RC_GRP}",
             f"s_add_u32 s{sRCp}, s{sRCp}, s{sCnt}",
             f"s_add_u32 s{sOffC}, s{sRC}, s{sCnt}",
             f"s_lshr_b32 s{sCnt}, s{sGrp}, 1",
             f"s_mul_i32 s{sCnt}, s{sCnt}, 10240",
             f"s_add_u32 s{sCnt}, s{sCnt}, {WS_RD:#x}",
             f"s_mul_i32 s{sRDp}, s{sTmp2}, {8*10240}",
             f"s_add_u32 s{sRDp}, s{sRDp}, s{sCnt}",
             f"s_add_u32 s{sTmp}, s{sStep}, 1",
             f"s_and_b32 s{sTmp}, s{sTmp}, 3",
             f"s_mul_i32 s{sRD}, s{sTmp}, {8*10240}",
             f"s_add_u32 s{sRD}, s{sRD}, s{sCnt}",
             f"s_add_u32 s{sOffK}, s{sOffK}, {32*8192}",
             f"s_add_u32 s{sOffU}, s{sOffU}, {32*40960}",
             f"s_add_u32 s{sWarm}, s{sOffK}, {WARM*32*8192}",
             f"s_min_u32 s{sWarm}, s{sWarm}, {WS_KX+63*32*8192}"]

    dbgmax(2)
    for ins in ring:
        A(ins)
    A(f"buffer_load_dwordx4 {v(M,4)}, {v(Cg)}, s[{sM0}:{sM0+3}], 0 offen")
    A(f"buffer_load_dwordx4 {v(M+4,4)}, {v(Cg)}, s[{sM0}:{sM0+3}], 0 offen offset:128")
    A(f"buffer_load_dwordx4 {v(M+8,4)}, {v(Cg+1)}, s[{sM0}:{sM0+3}], 0 offen")
    A("s_waitcnt vmcnt(0)")
    Lloop = A.newlabel("Lloop")
    A.label(Lloop)
    rtl(True)
    stamp(0)
    Bks = [M, Mr, M + 4, Mr + 4, M + 8]
    fill = [f"v_mov_b32_dpp {v(Mr+i)}, {v(M+i)} row_ror:8 row_mask:0xf bank_mask:0xf" for i in range(8)]
    fill += [f"v_accvgpr_mov_b32 {a(aU+i)}, {a(aUn+i)}" for i in range(12)]
    order = [(ks, t) for ks in (0, 2, 1) for t in range(4)]
    order += [(ks, t) for t in range(4) for ks in (3, 4)]
    for idx, (ks, t) in enumerate(order):
        c = "0" if ks == 0 else v(accA + t * 4, 4)
        A(f"v_mfma_f32_16x16x32_bf16 {v(accA+t*4,4)}, {WA(t,ks)}, {v(Bks[ks],4)}, {c}")
        for _ in range(2):
            if fill:
                A(fill.pop(0))
    assert not fill

    def merge_write(p):
        for i in range(4):
            A(f"v_mov_b32_dpp {v(accA+8*p+i)}, {v(accA+8*p+4+i)} row_ror:8 row_mask:0xf bank_mask:0xc")
        A(f"ds_write_b128 {v(vRAw)}, {v(accA+8*p,4)} offset:{p*1024}")

    vm = []
    for ks in range(5):
        for t in (4, 5):
            c = "0" if ks == 0 else v(accA + t * 4, 4)
            vm.append(f"v_mfma_f32_16x16x32_bf16 {v(accA+t*4,4)}, {WA(t,ks)}, {v(Bks[ks],4)}, {c}")

    def reduce_pub(raddr, pub, T, fillers=()):
        for w in range(4):
            A(f"ds_read_b128 {v(T+w*4,4)}, {v(raddr)} offset:{w*3072}")
        for ins in fillers:
            A(ins)
        A("s_waitcnt lgkmcnt(2)")
        A(f"v_pk_add_f32 {v(T,2)}, {v(T,2)}, {v(T+4,2)}")
        A(f"v_pk_add_f32 {v(T+2,2)}, {v(T+2,2)}, {v(T+6,2)}")
        A("s_waitcnt lgkmcnt(0)")
        A(f"v_pk_add_f32 {v(T+8,2)}, {v(T+8,2)}, {v(T+12,2)}")
        A(f"v_pk_add_f32 {v(T+10,2)}, {v(T+10,2)}, {v(T+14,2)}")
        A(f"v_pk_add_f32 {v(T,2)}, {v(T,2)}, {v(T+8,2)}")
        A(f"v_pk_add_f32 {v(T+2,2)}, {v(T+2,2)}, {v(T+10,2)}")
        A(f"v_cvt_pk_bf16_f32 {v(pub)}, {v(T)}, {v(T+1)}")
        A(f"v_cvt_pk_bf16_f32 {v(pub+1)}, {v(T+2)}, {v(T+3)}")
        A(f"v_min_u32 {v(pub)}, 0xfffffffe, {v(pub)}")
        A(f"v_min_u32 {v(pub+1)}, 0xfffffffe, {v(pub+1)}")
    A.nop(4)
    merge_write(0)
    merge_write(1)
    for ins in vm[:VM1]:
        A(ins)
    stamp(6)
    A("s_waitcnt lgkmcnt(0)")
    stamp(7)
    A("s_barrier")
    stamp(8)
    reduce_pub(vRAr, vPub, Cg, vm[VM1:VM1+VM2])
    store_local(f"buffer_store_dwordx2 {v(vPub,2)}, {v(vAst)}, {WSR}, s{sRA} offen")
    stamp(1)
    def issue_q():
        A(f"buffer_load_dwordx4 {v(Q,4)}, {v(vQo)}, {WSR}, s{sRA} offen sc1")
        A(f"buffer_load_dwordx4 {v(Q+4,4)}, {v(vQo)}, {WSR}, s{sRA} offen offset:1024 sc1")

    def issue_k():
        for c in range(2):
            A(f"buffer_load_dwordx4 {v(KM+c*8,4)}, {v(vKo)}, {WSR}, s{sRA} offen offset:{c*1024} sc1")

    def issue_v():
        for c in range(2):
            A(f"buffer_load_dwordx4 {v(VM+c*8,4)}, {v(vKo)}, {WSR}, s{sRA} offen offset:{2048+c*1024} sc1")
    for ins in vm[VM1+VM2:]:
        A(ins)
    A.nop(8)
    merge_write(2)
    if EARLY == 1:
        issue_q()
        issue_k()
    A("s_waitcnt lgkmcnt(0)")
    A("s_barrier")
    if EARLY == 2:
        issue_q()
        issue_k()
    reduce_pub(vRAr2, vPub2, Cg)
    A(f"s_cmp_eq_u32 s{sStep}, {nsteps-1}")
    Lfin = A.newlabel("Lfin")
    A(f"s_cbranch_scc1 {Lfin}")
    store_local(f"buffer_store_dwordx2 {v(vPub2,2)}, {v(vAst2)}, {WSR}, s{sRA} offen")

    if ADELAY:
        A(f"s_sleep {ADELAY}")
    Lp_, Ld_ = A.newlabel("Lpa"), A.newlabel("Lpad")
    A(f"s_mov_b32 s{sCnt}, 0")
    if EARLY:
        A("s_waitcnt vmcnt(3)")
        check_sentinel(range(Q, Q + 8), vT0)
        A(f"s_cbranch_vccz {Ld_}")
    A.label(Lp_)
    issue_q()
    issue_k()
    A("s_waitcnt vmcnt(0)")
    check_sentinel(range(Q, Q + 8), vT0)
    A(f"s_cbranch_vccz {Ld_}")
    A(f"s_add_u32 s{sCnt}, s{sCnt}, 1")
    A(f"s_cmp_lt_u32 s{sCnt}, {SPIN_MAX}")
    A(f"s_cbranch_scc1 {Lp_}")
    A(f"s_mov_b32 s{sTmp}, 1")
    A(f"s_branch {Lfail}")
    A.label(Ld_)
    if prof:
        A(f"s_add_u32 s98, s98, s{sCnt}")
    stamp(2)
    Qks = [Q, Qr, Q + 4, Qr + 4]
    A(f"v_mfma_f32_16x16x32_bf16 {v(acc1,4)}, {a(aK+0,4)}, {v(Q,4)}, 0")
    for i in range(4):
        A(f"v_mov_b32_dpp {v(Qr+i)}, {v(Q+i)} row_ror:8 row_mask:0xf bank_mask:0xf")
    A(f"v_mfma_f32_16x16x32_bf16 {v(acc2,4)}, {a(aK+16,4)}, {v(Q,4)}, 0")
    for i in range(4, 8):
        A(f"v_mov_b32_dpp {v(Qr+i)}, {v(Q+i)} row_ror:8 row_mask:0xf bank_mask:0xf")
    Lkv = A.newlabel("Lkv")
    Lkvd = A.newlabel("Lkvd")
    A(f"s_mov_b32 s{sCnt}, 0")
    A("s_waitcnt vmcnt(1)")
    A.label(Lkv)
    check_sentinel(list(range(KM, KM + 4)) + list(range(KM + 8, KM + 12)), vT0)
    A(f"s_cbranch_vccz {Lkvd}")
    issue_k()
    A("s_waitcnt vmcnt(0)")
    A(f"s_add_u32 s{sCnt}, s{sCnt}, 1")
    A(f"s_cmp_lt_u32 s{sCnt}, {SPIN_MAX}")
    A(f"s_cbranch_scc1 {Lkv}")
    A(f"s_mov_b32 s{sTmp}, 2")
    A(f"s_branch {Lfail}")
    A.label(Lkvd)
    A(f"v_mfma_f32_16x16x32_bf16 {v(acc0,4)}, {v(KM,4)}, {v(Qks[0],4)}, 0")
    for i in range(4):
        A(f"v_mov_b32_dpp {v(KM+4+i)}, {v(KM+i)} row_ror:8 row_mask:0xf bank_mask:0xf")
    A(f"v_mfma_f32_16x16x32_bf16 {v(acc1,4)}, {a(aK+8,4)}, {v(Qks[2],4)}, {v(acc1,4)}")
    A(f"v_mfma_f32_16x16x32_bf16 {v(acc2,4)}, {a(aK+24,4)}, {v(Qks[2],4)}, {v(acc2,4)}")
    A(f"v_mfma_f32_16x16x32_bf16 {v(acc0,4)}, {v(KM+8,4)}, {v(Qks[2],4)}, {v(acc0,4)}")
    for i in range(4):
        A(f"v_mov_b32_dpp {v(KM+12+i)}, {v(KM+8+i)} row_ror:8 row_mask:0xf bank_mask:0xf")
    for ks in (1, 3):
        A(f"v_mfma_f32_16x16x32_bf16 {v(acc1,4)}, {a(aK+ks*4,4)}, {v(Qks[ks],4)}, {v(acc1,4)}")
        A(f"v_mfma_f32_16x16x32_bf16 {v(acc2,4)}, {a(aK+16+ks*4,4)}, {v(Qks[ks],4)}, {v(acc2,4)}")
        A(f"v_mfma_f32_16x16x32_bf16 {v(acc0,4)}, {v(KM+ks*4,4)}, {v(Qks[ks],4)}, {v(acc0,4)}")
    issue_v()
    A.nop(5)
    stamp(9)
    S = [acc1 + i for i in range(4)] + [acc2 + i for i in range(4)] + [acc0 + i for i in range(4)]
    sm = [f"v_max3_f32 {v(vMx)}, {v(S[0])}, {v(S[1])}, {v(S[2])}",
          f"v_max3_f32 {v(vMx)}, {v(vMx)}, {v(S[3])}, {v(S[4])}",
          f"v_max3_f32 {v(vMx)}, {v(vMx)}, {v(S[5])}, {v(S[6])}"]
    for i in range(4):
        sm.append(f"v_cndmask_b32 {v(acc0+i)}, {v(vNinf)}, {v(acc0+i)}, s[{sMaskG}:{sMaskG+1}]")
    sm += [f"v_max3_f32 {v(vMx)}, {v(vMx)}, {v(S[7])}, {v(S[8])}",
           f"v_max3_f32 {v(vMx)}, {v(vMx)}, {v(S[9])}, {v(S[10])}",
           f"v_max_f32 {v(vMx)}, {v(vMx)}, {v(S[11])}",
           f"v_mov_b32 {v(vMx2)}, {v(vMx)}",
           "s_nop 1",
           f"v_permlane16_swap_b32 {v(vMx)}, {v(vMx2)}",
           "s_nop 0",
           f"v_max_f32 {v(vMx)}, {v(vMx)}, {v(vMx2)}",
           f"v_mov_b32 {v(vMx2)}, {v(vMx)}",
           "s_nop 1",
           f"v_permlane32_swap_b32 {v(vMx)}, {v(vMx2)}",
           "s_nop 0",
           f"v_max_f32 {v(vMx)}, {v(vMx)}, {v(vMx2)}",
           f"v_mul_f32 {v(vMx)}, s{sC}, {v(vMx)}"]
    for r in S:
        sm.append(f"v_fma_f32 {v(r)}, {v(r)}, s{sC}, -{v(vMx)}")
    for r in S[:VSPLIT]:
        sm.append(f"v_exp_f32 {v(r)}, {v(r)}")
    for ins in sm:
        A(ins)
    Lv, Lvd = A.newlabel("Lv"), A.newlabel("Lvd")
    A(f"s_mov_b32 s{sCnt}, 0")
    A.label(Lv)
    A("s_waitcnt vmcnt(0)")
    check_sentinel(list(range(VM, VM + 4)) + list(range(VM + 8, VM + 12)), vT0)
    A(f"s_cbranch_vccz {Lvd}")
    issue_v()
    A(f"s_add_u32 s{sCnt}, s{sCnt}, 1")
    A(f"s_cmp_lt_u32 s{sCnt}, {SPIN_MAX}")
    A(f"s_cbranch_scc1 {Lv}")
    A(f"s_mov_b32 s{sTmp}, 2")
    A(f"s_branch {Lfail}")
    A.label(Lvd)
    if prof:
        A(f"s_add_u32 s99, s99, s{sCnt}")
    um = []
    for s_ in (0, 2, 1, 3):
        for t in range(3):
            c = "0" if s_ == 0 else v(accU + t * 4, 4)
            um.append(f"v_mfma_f32_16x16x32_bf16 {v(accU+t*4,4)}, {v(VM+s_*4,4)}, {WC(t,s_)}, {c}")
    sm = [f"v_mov_b32_dpp {v(VM+4+i)}, {v(VM+i)} row_ror:8 row_mask:0xf bank_mask:0xf" for i in range(4)]
    sm += [f"v_mov_b32_dpp {v(VM+12+i)}, {v(VM+8+i)} row_ror:8 row_mask:0xf bank_mask:0xf" for i in range(4)]
    for r in S[VSPLIT:]:
        sm.append(f"v_exp_f32 {v(r)}, {v(r)}")
    sm.append("s_nop 0")
    for i in range(4):
        sm.append(f"v_cvt_pk_bf16_f32 {v(P0+i)}, {v(S[2*i])}, {v(S[2*i+1])}")
    sm.append(f"v_cvt_pk_bf16_f32 {v(Blo)}, {v(S[8])}, {v(S[9])}")
    sm.append(f"v_cvt_pk_bf16_f32 {v(Blo+1)}, {v(S[10])}, {v(S[11])}")
    for idx in range(max(len(sm) // 2 + 1, len(um))):
        if um:
            A(um.pop(0))
        for _ in range(2):
            if sm:
                A(sm.pop(0))
    assert not um and not sm
    pre = [u_load(t, aUn) for t in range(3)] + ([] if KLATE else [k_load(f) for f in range(8)])
    if "nokv" in exp:
        pre = []
    stamp(3)
    def pl(n=1):
        for _ in range(n):
            A(pre.pop(0) if pre else "s_nop 0")
    A(f"v_mfma_f32_16x16x32_bf16 {v(accZ,4)}, {v(vOnes,4)}, {v(P0,4)}, 0")
    for t in range(3):
        A(f"v_mfma_f32_16x16x32_bf16 {v(accC+t*4,4)}, {a(aU+t*4,4)}, {v(P0,4)}, 0")
        pl()
    A(f"v_mfma_f32_16x16x16_bf16 {v(accZ,4)}, {v(vOnes,2)}, {v(Blo,2)}, {v(accZ,4)}")
    pl(2)
    for t in range(3):
        A(f"v_cvt_pk_bf16_f32 {v(UA+t*2)}, {v(accU+t*4)}, {v(accU+t*4+1)}")
        A(f"v_cvt_pk_bf16_f32 {v(UA+t*2+1)}, {v(accU+t*4+2)}, {v(accU+t*4+3)}")
    pl(1)
    A(f"v_rcp_f32 {v(vRz)}, {v(accZ)}")
    for t in range(3):
        A(f"v_mfma_f32_16x16x16_bf16 {v(accC+t*4,4)}, {v(UA+t*2,2)}, {v(Blo,2)}, {v(accC+t*4,4)}")
    A(f"v_mov_b32 {v(vRz+1)}, {v(vRz)}")
    pl(5)
    A.nop(1)
    stamp(10)
    for t in range(3):
        A(f"v_pk_mul_f32 {v(accC+t*4,2)}, {v(accC+t*4,2)}, {v(vRz,2)}")
        A(f"v_pk_mul_f32 {v(accC+t*4+2,2)}, {v(accC+t*4+2,2)}, {v(vRz,2)}")
        A(f"ds_write_b128 {v(vRCw)}, {v(accC+t*4,4)} offset:{t*1024}")
    assert not pre
    A("s_waitcnt lgkmcnt(0)")
    stamp(11)
    A("s_barrier")
    stamp(12)
    A("s_mov_b32 exec_hi, 0xff")
    for w in range(4):
        A(f"ds_read_b128 {v(Cg+w*4,4)}, {v(vRCr)} offset:{w*3072}")
    A("s_waitcnt lgkmcnt(2)")
    for i in range(4):
        A(f"v_add_f32 {v(Cg+i)}, {v(Cg+i)}, {v(Cg+4+i)}")
    A("s_waitcnt lgkmcnt(0)")
    for i in range(4):
        A(f"v_add_f32 {v(Cg+8+i)}, {v(Cg+8+i)}, {v(Cg+12+i)}")
    for i in range(4):
        A(f"v_add_f32 {v(Cg+i)}, {v(Cg+i)}, {v(Cg+8+i)}")

    def persist(final=False):
        A("s_mov_b64 exec, -1")
        if KLATE and not final:
            for f in range(8):
                A(k_load(f))
        A(f"buffer_store_dwordx2 {v(vPub,2)}, {v(vKMst)}, {WSR}, s{sOffKM} offen" + (" sc1" if wrole else ""))
        A(f"buffer_store_dwordx2 {v(vPub2,2)}, {v(vVMst)}, {WSR}, s{sOffKM} offen" + (" sc1" if wrole else ""))
        if wrole and not final:
            Lns = A.newlabel("Lns")
            A(f"s_and_b32 s{sTmp}, s{sStep}, 3")
            A(f"s_cmp_lg_u32 s{sTmp}, 0")
            A(f"s_cbranch_scc1 {Lns}")
            A(f"s_cmp_eq_u32 s{sStep}, 0")
            A(f"s_cbranch_scc1 {Lns}")
            A(f"s_lshr_b32 s{sTmp}, s{sStep}, 2")
            A(f"s_sub_u32 s{sTmp}, s{sTmp}, 1")
            signal_mem(sTmp)
            A.label(Lns)
            Lns2 = A.newlabel("Lns")
            A(f"s_cmp_lg_u32 s{sStep}, 62")
            A(f"s_cbranch_scc1 {Lns2}")
            A(f"s_mov_b32 s{sTmp}, 16")
            signal_mem(sTmp)
            A.label(Lns2)

    def background(storer):
        persist()
        store_local(f"buffer_store_dwordx2 {v(vSent,2)}, {v(vAst)}, {WSR}, s{sRAp} offen"); store_local(f"buffer_store_dwordx2 {v(vSent,2)}, {v(vAst2)}, {WSR}, s{sRAp} offen")
        A("s_mov_b32 exec_hi, 0xff")
        if storer:
            for kc in range(KC):
                A(f"buffer_store_dwordx4 {v(vSent,4)}, {v(vCst)}, {WSR}, s{sRCp} offen sc1")
                if kc < KC - 1:
                    A(f"s_add_u32 s{sRCp}, s{sRCp}, {8*20480}")
            if "nokv" not in exp:
                A("s_mov_b64 exec, -1")
                A(f"buffer_load_dwordx4 {v(vDummy,4)}, {v(vWarm)}, {WSR}, s{sWarm} offen")
        else:
            store_local(f"buffer_store_dwordx2 {v(vSent,2)}, {v(vDst)}, {WSR}, s{sRDp} offen")

    Lpw = A.newlabel("Lpw")
    Lcdone = A.newlabel("Lcdone")
    A(f"s_cmp_ge_u32 s{sWave}, 2")
    A(f"s_cbranch_scc1 {Lpw}")
    for i in range(4):
        A(f"v_min_u32 {v(Cg+i)}, 0xfffffffe, {v(Cg+i)}")
    for kc in range(KC):
        A(f"buffer_store_dwordx4 {v(Cg,4)}, {v(vCst)}, {WSR}, s{sOffC} offen sc1")
        if kc < KC - 1:
            A(f"s_add_u32 s{sOffC}, s{sOffC}, {8*20480}")
    stamp(4)
    background(True)
    if DSLEEP:
        A(f"s_sleep {DSLEEP}")
    A(f"s_branch {Lcdone}")
    A.label(Lpw)
    stamp(4)
    Lw3 = A.newlabel("Lw3")
    A(f"s_cmp_eq_u32 s{sWave}, 3")
    A(f"s_cbranch_scc1 {Lw3}")
    background(False)
    A(f"s_mov_b32 s{sEnd}, s{sRC}")

    def advance():
        A(f"s_add_u32 s{sStep}, s{sStep}, 1")
        A(f"s_add_u32 s{sOffKM}, s{sOffKM}, {32*2048}")
        A(f"s_mov_b32 s{sOffD}, s{sRD}")
        for ins in ring:
            A(ins)
    advance()
    if CDELAY:
        A(f"s_sleep {CDELAY}")

    def issue_c():
        for r in range(1, 8):
            A(f"buffer_load_dwordx4 {v(CR+(r-1)*4,4)}, {v(vCg+r)}, {WSR}, s{sEnd} offen sc1")
    poll(issue_c, range(CR, CR + 28), 3)
    stamp(5)
    c = CR
    for i in (0, 2):
        A(f"v_pk_add_f32 {v(Cg+i,2)}, {v(Cg+i,2)}, {v(c+i,2)}")
        A(f"v_pk_add_f32 {v(Cg+4+i,2)}, {v(c+4+i,2)}, {v(c+8+i,2)}")
        A(f"v_pk_add_f32 {v(Cg+8+i,2)}, {v(c+12+i,2)}, {v(c+16+i,2)}")
        A(f"v_pk_add_f32 {v(Cg+12+i,2)}, {v(c+20+i,2)}, {v(c+24+i,2)}")
    for i in (0, 2):
        A(f"v_pk_add_f32 {v(Cg+i,2)}, {v(Cg+i,2)}, {v(Cg+4+i,2)}")
        A(f"v_pk_add_f32 {v(Cg+8+i,2)}, {v(Cg+8+i,2)}, {v(Cg+12+i,2)}")
    for i in (0, 2):
        A(f"v_pk_add_f32 {v(Cg+i,2)}, {v(Cg+i,2)}, {v(Cg+8+i,2)}")
    A(f"v_cvt_pk_bf16_f32 {v(Cg+4)}, {v(Cg)}, {v(Cg+1)}")
    A(f"v_cvt_pk_bf16_f32 {v(Cg+5)}, {v(Cg+2)}, {v(Cg+3)}")
    A(f"v_min_u32 {v(Cg+4)}, 0xfffffffe, {v(Cg+4)}")
    A(f"v_min_u32 {v(Cg+5)}, 0xfffffffe, {v(Cg+5)}")
    store_local(f"buffer_store_dwordx2 {v(Cg+4,2)}, {v(vDst)}, {WSR}, s{sOffD} offen")
    A("s_mov_b64 exec, -1")
    Ldp = A.newlabel("Ldp")
    A(f"s_branch {Ldp}")
    A.label(Lw3)
    persist()
    store_local(f"buffer_store_dwordx2 {v(vSent,2)}, {v(vAst)}, {WSR}, s{sRAp} offen"); store_local(f"buffer_store_dwordx2 {v(vSent,2)}, {v(vAst2)}, {WSR}, s{sRAp} offen")
    Lnf = A.newlabel("Lnf")
    if wrole:
        A("s_mov_b64 exec, -1")
        A(f"s_and_b32 s{sTmp}, s{sStep}, 3")
        A(f"s_cmp_lg_u32 s{sTmp}, 1")
        A(f"s_cbranch_scc1 {Lnf}")
        A(f"s_add_u32 s{sEnd}, s{sStep}, 3")
        A(f"s_lshr_b32 s{sEnd}, s{sEnd}, 2")
        A(f"s_cmp_gt_u32 s{sEnd}, 15")
        A(f"s_cbranch_scc1 {Lnf}")
        wait_kvu(sEnd)
        A(f"s_branch {Lcdone}")
    A.label(Lnf)
    if DSLEEP:
        A(f"s_sleep {DSLEEP}")
    A.label(Lcdone)
    A("s_mov_b64 exec, -1")
    advance()
    A.label(Ldp)
    stamp(13)

    if PDELAY:
        Lpd = A.newlabel("Lpdl")
        A(f"s_cmp_lg_u32 s{sWave}, 2")
        A(f"s_cbranch_scc1 {Lpd}")
        A(f"s_sleep {PDELAY}")
        A.label(Lpd)

    def issue_d():
        A(f"buffer_load_dwordx4 {v(M,4)}, {v(vD0)}, {WSR}, s{sOffD} offen sc1")
        A(f"buffer_load_dwordx4 {v(M+4,4)}, {v(vD0)}, {WSR}, s{sOffD} offen offset:1024 sc1")
        A(f"buffer_load_dwordx4 {v(M+8,4)}, {v(vD2)}, {WSR}, s{sOffD} offen sc1")
    poll(issue_d, range(M, M + 12), 4)
    A(f"s_branch {Lloop}")

    A.label(Lfin)
    persist(True)
    A("s_mov_b64 exec, -1")
    rtl()
    if wrole:
        A("s_waitcnt vmcnt(0)")
        A(f"s_mov_b32 s{sTmp}, 15")
        signal_mem(sTmp)
        dbgmax(3)
    if prof:
        A(f"s_lshl_b32 s{sTmp}, s{sGrp}, 4")
        A(f"s_add_u32 s{sTmp}, s{sTmp}, s{sMemb}")
        A(f"s_lshl_b32 s{sTmp}, s{sTmp}, 2")
        A(f"s_add_u32 s{sTmp}, s{sTmp}, s{sWave}")
        A(f"s_lshl_b32 s{sTmp}, s{sTmp}, 6")
        A(f"s_add_u32 s{sTmp}, s{sTmp}, {WS_PROF:#x}")
        A("s_mov_b64 exec, 1")
        A(f"s_lshl_b32 s97, s97, 16")
        A(f"s_or_b32 s{sPr+14}, s97, s98")
        A(f"s_lshl_b32 s99, s99, 16")
        A(f"s_or_b32 s{sPr+15}, s99, s100")
        for i in range(16):
            A(f"v_mov_b32 {v(vT0)}, s{sPr+i}")
            A(f"v_mov_b32 {v(vT1)}, {i*4}")
            A(f"buffer_store_dword {v(vT0)}, {v(vT1)}, {WSR}, s{sTmp} offen")
    A(f"s_branch {Lend}")
    A.label(Lfail)
    A("s_mov_b64 exec, 1")
    A(f"v_mov_b32 {v(vT0)}, s{sTmp}")
    A(f"v_mov_b32 {v(vT1)}, 0")
    A(f"v_or_b32 {v(vT0)}, 0x100, {v(vT0)}")
    A(f"buffer_store_dword {v(vT0)}, {v(vT1)}, s[{sDBG}:{sDBG+3}], 0 offen")
    A.label(Lend)
    A("s_endpgm")
    if wrole:
        A.label(Lw)
        A(f"s_sub_u32 s54, s{sCnt}, 128")
        wrole(A, 54, confirm, dbgmax)
        dbgmax(4)
        A("s_endpgm")
    return kernel_desc(name, 512, 102, 256)
```

```python
import struct
from asmlib import *
from layout import *


def f32bits(x):
    return struct.unpack("<I", struct.pack("<f", x))[0]


SPIN_MAX = 400000
WARM = 1
NST = 64
CDELAY = 7
KC = 1
DSLEEP = 24
AALL = 1
ADELAY = 0
VSPLIT = 4
EARLY = 1
VM1 = 0
VM2 = 0
KLATE = 0
PDELAY = 0
OOB = 0x7ff00000


def gen_rec(A, name="rec_kernel", prof=False, nsteps=64, exp=(), wrole=None):
    kernel_header(A, name)
    sWS, sM0, sW, sDBG = 4, 8, 12, 32
    sX, sT, sGrp, sMemb, sWave, sStep, sMode, sCnt = 36, 37, 38, 39, 40, 41, 42, 43
    sOffKM, sOffC, sOffD, sOffK, sTmp, sTmp2, sH, sOffU = 44, 45, 46, 47, 48, 49, 50, 51
    sRA, sRC, sRD, sRAp, sRCp, sRDp, sWarm, sOffUM = 90, 91, 92, 93, 94, 95, 96, 101
    sRCB = 101
    sMaskG = 54
    sC = 58
    sEnd = 59
    sCnts = 60
    sPr = 70
    R = RegAlloc(1, 256)
    vLane, vN, vG, vN8 = R.alloc(), R.alloc(), R.alloc(), R.alloc()
    vT0, vT1, vT2, vT3 = R.alloc(), R.alloc(), R.alloc(), R.alloc()
    vD0, vD2 = R.alloc(), R.alloc()
    vRAw, vRAr, vAst, vKMst = R.alloc(), R.alloc(), R.alloc(), R.alloc()
    vRAr2, vAst2, vVMst = R.alloc(), R.alloc(), R.alloc()
    vQo, vKo = R.alloc(), R.alloc()
    vRCw, vRCr, vCst = R.alloc(), R.alloc(), R.alloc()
    vCg = R.alloc(8)
    vDst = R.alloc()
    vK0, vK1, vU = R.alloc(), R.alloc(), R.alloc()
    vWarm = R.alloc()
    vNinf = R.alloc()
    vFlag, vSig, vOne = R.alloc(), R.alloc(), R.alloc()
    vU2 = R.alloc()
    vOnes = R.alloc(4)
    vSent = R.alloc(4)
    vDummy = R.alloc(4)
    vPub = R.alloc(2)
    vPub2 = R.alloc(2)
    assert R.next <= 64
    M = R.alloc(12)
    Mr = R.alloc(8)
    accA = R.alloc(24)
    Q = R.alloc(8)
    Qr = R.alloc(8)
    KM = R.alloc(16)
    VM = R.alloc(16)
    acc1, acc2, acc0 = R.alloc(4), R.alloc(4), R.alloc(4)
    accU = R.alloc(12)
    UA = R.alloc(6)
    P0 = R.alloc(4)
    PM, Blo = R.alloc(2), R.alloc(2)
    vMx, vMx2 = R.alloc(), R.alloc()
    vRz = R.alloc(2)
    accZ = R.alloc(4)
    accC = R.alloc(12)
    Cg = R.alloc(16)
    CR = KM
    TMP = 64
    aWA, aWC, aK, aU, aUn = 0, 120, 168, 200, 212

    def WA(t, ks):
        return a(aWA + (t * 5 + ks) * 4, 4)

    def WC(t, s_):
        return a(aWC + (t * 4 + s_) * 4, 4)

    LDS_RA = 65536
    LDS_RC = 65536 + 12288
    LDS_ROLE = 163840 - 16

    Lend = A.newlabel("Lend")
    Lfail = A.newlabel("Lfail")
    WSR = f"s[{sWS}:{sWS+3}]"

    def rtl(cond8=False):
        if "tl" not in exp:
            return
        Ls = A.newlabel("Lrtl")
        A(f"s_cmp_lg_u32 s{sWave}, 3")
        A(f"s_cbranch_scc1 {Ls}")
        if cond8:
            A(f"s_and_b32 s70, s{sStep}, 7")
            A(f"s_cmp_lg_u32 s70, 0")
            A(f"s_cbranch_scc1 {Ls}")
        A("s_memrealtime s[72:73]")
        A("s_waitcnt lgkmcnt(0)")
        A("s_mov_b64 exec, 1")
        A(f"v_mov_b32 {v(vT0)}, s72")
        A(f"v_mov_b32 {v(vT1)}, 0")
        A(f"buffer_store_dword {v(vT0)}, {v(vT1)}, {WSR}, s71 offen")
        A("s_mov_b64 exec, -1")
        A("s_add_u32 s71, s71, 4")
        A.label(Ls)

    def dbgmax(slot):
        if "dbg" not in exp:
            return
        A("s_memrealtime s[72:73]")
        A("s_load_dwordx2 s[88:89], s[0:1], 88")
        A("s_waitcnt lgkmcnt(0)")
        A("s_mov_b32 s84, s88")
        A("s_and_b32 s85, s89, 0xffff")
        A("s_mov_b32 s86, 256")
        A("s_mov_b32 s87, 0x00020000")
        A("s_mov_b64 exec, 1")
        A("s_and_b32 s72, s72, 0xffffff")
        A("v_mov_b32 v4, s72")
        A(f"v_mov_b32 v5, {slot*4}")
        A("buffer_atomic_umax v4, v5, s[84:87], 0 offen")
        A("s_mov_b64 exec, -1")
        A("v_and_b32 v4, 7, v0")

    def stamp(i):
        if not prof:
            return
        if "rt" in exp:
            Ls = A.newlabel("Lst")
            A(f"s_cmp_lg_u32 s{sStep}, {30 if i != 13 else 31}")
            A(f"s_cbranch_scc1 {Ls}")
            A(f"s_memrealtime s[88:89]")
            A("s_waitcnt lgkmcnt(0)")
            A(f"s_mov_b32 s{sPr+i}, s88")
            A.label(Ls)
            return
        A(f"s_memtime s[88:89]")
        A("s_waitcnt lgkmcnt(0)")
        A(f"s_sub_u32 s{sTmp2}, s88, s86")
        A(f"s_add_u32 s{sPr+i}, s{sPr+i}, s{sTmp2}")
        A("s_mov_b32 s86, s88")

    sKX, sKT, sKR = 98, 99, 97
    assert not prof or not wrole
    A("s_cmp_ge_u32 s2, 256")
    A(f"s_cbranch_scc1 {Lend}")
    if "tl" in exp:
        A("s_memrealtime s[68:69]")
    A(f"s_mov_b32 s{sKR}, 0")
    dbgmax(1)
    Lentry = A.newlabel("Lentry")
    A.label(Lentry)
    A("s_waitcnt vmcnt(0) lgkmcnt(0)")
    A("s_load_dwordx8 s[16:23], s[0:1], 32")
    A("s_load_dwordx2 s[24:25], s[0:1], 64")
    A("s_load_dwordx4 s[28:31], s[0:1], 88")
    A(f"v_and_b32 {v(vLane)}, 63, v0")
    A(f"v_lshrrev_b32 {v(vT0)}, 6, v0")
    A(f"v_and_b32 {v(vN)}, 15, v0")
    A(f"v_readfirstlane_b32 s{sWave}, {v(vT0)}")
    A(f"v_bfe_u32 {v(vG)}, v0, 4, 2")
    A(f"v_and_b32 {v(vN8)}, 7, v0")
    A("s_waitcnt lgkmcnt(0)")
    make_srd(A, sWS, 30, WS_BYTES)
    make_srd(A, sM0, 16, 10240)
    make_srd(A, sDBG, 28, 256)
    make_srd(A, sW, 18, 640 * 4096 * 2)

    def confirm(swave, force_jump=False):
        Lskip, Lw0, Lp = A.newlabel("Lcf"), A.newlabel("Lcf0"), A.newlabel("Lcfp")
        A(f"s_cmp_lg_u32 s{sKR}, 0")
        A(f"s_cbranch_scc1 {Lskip}")
        A(f"s_cmp_lg_u32 s{swave}, 0")
        A(f"s_cbranch_scc1 {Lw0}")
        A("s_load_dwordx2 s[88:89], s[0:1], 88")
        A("v_and_b32 v4, 7, v0")
        A("v_lshlrev_b32 v4, 5, v4")
        A("v_bfe_u32 v5, v0, 3, 1")
        A("v_lshl_add_u32 v4, v5, 2, v4")
        A("v_add_u32 v4, 16, v4")
        A("s_mov_b64 exec, 0xffff")
        A("s_mov_b32 s43, 0")
        A("s_waitcnt lgkmcnt(0)")
        A("s_and_b32 s89, s89, 0xffff")
        A("s_mov_b32 s90, 256")
        A("s_mov_b32 s91, 0x00020000")
        A.label(Lp)
        A("buffer_load_dword v5, v4, s[88:91], 0 offen sc1")
        A("s_waitcnt vmcnt(0)")
        for i in range(8):
            A(f"v_readlane_b32 s{sCnts+i}, v5, {i}")
        A("v_readlane_b32 s48, v5, 8")
        for i in range(9, 16):
            A(f"v_readlane_b32 s49, v5, {i}")
            A("s_nop 3")
            A("s_add_u32 s48, s48, s49")
        A("s_add_u32 s43, s43, 1")
        A(f"s_cmp_gt_u32 s43, {SPIN_MAX}")
        Lok = A.newlabel("Lcfo")
        A(f"s_cbranch_scc0 {Lok}")
        A("s_endpgm")
        A.label(Lok)
        A("s_cmp_lt_u32 s48, 256")
        A(f"s_cbranch_scc1 {Lp}")
        A(f"s_min_u32 s48, s{sCnts}, s{sCnts+1}")
        for i in range(2, 8):
            A(f"s_min_u32 s48, s48, s{sCnts+i}")
        A(f"s_mov_b32 s49, s{sKT}")
        for i in range(7):
            A(f"s_cmp_gt_u32 s{sKX}, {i}")
            A(f"s_cselect_b32 s43, s{sCnts+i}, 0")
            A("s_add_u32 s49, s49, s43")
        A("s_or_b32 s49, s49, 0x300")
        A(f"s_lshl_b32 s43, s{sKX}, 5")
        A(f"s_add_u32 s43, s43, s{sKT}")
        A("s_or_b32 s43, s43, 0x200")
        A(f"s_cmp_ge_u32 s48, {33 if 'slow' in exp else 32}")
        A("s_cselect_b32 s43, s43, s49")
        A("s_mov_b64 exec, 1")
        A(f"v_mov_b32 v4, {LDS_ROLE}")
        A("v_mov_b32 v5, s43")
        A("ds_write_b32 v4, v5")
        A("s_waitcnt lgkmcnt(0)")
        A("s_mov_b64 exec, -1")
        A.label(Lw0)
        A("s_barrier")
        A(f"v_mov_b32 v4, {LDS_ROLE}")
        A("ds_read_b32 v5, v4")
        A("s_waitcnt lgkmcnt(0)")
        A(f"v_readfirstlane_b32 s{sKR}, v5")
        A("s_nop 3")
        A("s_barrier")
        if force_jump:
            A(f"s_branch {Lentry}")
        else:
            A(f"s_bitcmp1_b32 s{sKR}, 8")
            A(f"s_cbranch_scc0 {Lskip}")
            A(f"s_branch {Lentry}")
        A.label(Lskip)

    Lhave = A.newlabel("Lhave")
    A(f"s_mov_b32 s{sCnt}, s{sKR}")
    A(f"s_cmp_lg_u32 s{sKR}, 0")
    A(f"s_cbranch_scc1 {Lhave}")
    A(f"s_getreg_b32 s{sKX}, hwreg(HW_REG_XCC_ID)")
    A(f"s_and_b32 s{sKX}, s{sKX}, 7")
    import parta
    A(f"s_add_u32 s61, s{sWS}, {WS_RC + 0x1fffff:#x}")
    A("s_and_b32 s61, s61, 0xffe00000")
    A(f"s_sub_u32 s61, s61, s{sWS}")
    A(f"s_sub_u32 s61, s61, {WS_RC:#x}")
    A(f"v_lshlrev_b32 {v(vT0)}, 4, v0")
    for k in range((parta.NB_INIT + 255) // 256):
        A(f"s_add_u32 s60, s2, {k*256}")
        A("s_lshl_b32 s62, s60, 12")
        A(f"s_add_u32 s63, s62, {WS_CNT:#x}")
        A("s_mov_b32 s64, 0")
        base = parta.NB_ZERO
        for off, n in parta.FILL_RANGES:
            A(f"s_add_u32 s65, s62, {off - base*4096:#x}")
            if off == WS_RC:
                A("s_add_u32 s65, s65, s61")
            A(f"s_cmp_ge_u32 s60, {base}")
            A("s_cselect_b32 s63, s65, s63")
            A("s_cselect_b32 s64, -1, s64")
            base += n // 4096
        A(f"s_cmp_ge_u32 s60, {parta.NB_INIT}")
        A(f"s_cselect_b32 s63, {OOB:#x}, s63")
        for i in range(4):
            A(f"v_mov_b32 v{64+k*4+i}, s64")
        A(f"buffer_store_dwordx4 v[{64+k*4}:{67+k*4}], {v(vT0)}, {WSR}, s63 offen sc1")
    Lel_done = A.newlabel("Lel")
    A(f"s_cmp_lg_u32 s{sWave}, 0")
    A(f"s_cbranch_scc1 {Lel_done}")
    A(f"s_lshl_b32 s{sTmp}, s{sKX}, 5")
    A(f"s_add_u32 s{sTmp}, s{sTmp}, 16")
    A(f"v_mov_b32 {v(vT0)}, s{sTmp}")
    A(f"v_mov_b32 {v(vT1)}, 1")
    A("s_mov_b64 exec, 1")
    A(f"buffer_atomic_add {v(vT1)}, {v(vT0)}, s[{sDBG}:{sDBG+3}], 0 offen sc0")
    A(f"v_mov_b32 {v(vT0)}, {LDS_ROLE}")
    A("s_waitcnt vmcnt(0)")
    A(f"ds_write_b32 {v(vT0)}, {v(vT1)}")
    A("s_waitcnt lgkmcnt(0)")
    A("s_mov_b64 exec, -1")
    A.label(Lel_done)
    A("s_waitcnt vmcnt(0)")
    A("s_barrier")
    A(f"v_mov_b32 {v(vT0)}, {LDS_ROLE}")
    A(f"ds_read_b32 {v(vT1)}, {v(vT0)}")
    A("s_waitcnt lgkmcnt(0)")
    A(f"v_readfirstlane_b32 s{sKT}, {v(vT1)}")
    A("s_nop 3")
    A("s_barrier")
    Lid = A.newlabel("Lid")
    A(f"s_cmp_lg_u32 s{sWave}, 0")
    A(f"s_cbranch_scc1 {Lid}")
    A("s_mov_b64 exec, 1")
    A(f"s_lshl_b32 s{sTmp}, s{sKX}, 5")
    A(f"s_add_u32 s{sTmp}, s{sTmp}, 20")
    A(f"v_mov_b32 {v(vT0)}, s{sTmp}")
    A(f"v_mov_b32 {v(vT1)}, 1")
    A(f"buffer_atomic_add {v(vT1)}, {v(vT0)}, s[{sDBG}:{sDBG+3}], 0 offen")
    A("s_mov_b64 exec, -1")
    A.label(Lid)
    Lsp = A.newlabel("Lsp")
    A(f"s_cmp_lt_u32 s{sKT}, 32")
    A(f"s_cbranch_scc1 {Lsp}")
    confirm(sWave, force_jump=True)
    A.label(Lsp)
    A(f"s_lshl_b32 s{sCnt}, s{sKX}, 5")
    A(f"s_add_u32 s{sCnt}, s{sCnt}, s{sKT}")
    A.label(Lhave)
    dbgmax(10)
    A(f"s_bfe_u32 s{sMode}, s{sCnt}, 0x10008")
    A(f"s_and_b32 s{sCnt}, s{sCnt}, 255")
    Lw = A.newlabel("Lwrole")
    Lr = A.newlabel("Lrrole")
    A(f"s_cmp_ge_u32 s{sCnt}, 128")
    if wrole:
        A(f"s_cbranch_scc0 {Lr}")
        A(f"s_branch {Lw}")
        A.label(Lr)
    else:
        A(f"s_cbranch_scc0 {Lr}")
        confirm(sWave)
        A(f"s_branch {Lend}")
        A.label(Lr)
    A(f"s_lshr_b32 s{sGrp}, s{sCnt}, 4")
    A(f"s_and_b32 s{sMemb}, s{sCnt}, 15")
    A(f"s_lshl_b32 s71, s{sCnt}, 8")
    A(f"s_add_u32 s71, s71, {WS_PROF:#x}")
    if "tl" in exp:
        A("s_mov_b64 exec, 1")
        A(f"v_mov_b32 {v(vT0)}, s68")
        A(f"v_mov_b32 {v(vT1)}, 0")
        A(f"buffer_store_dword {v(vT0)}, {v(vT1)}, {WSR}, s71 offen")
        A("s_mov_b64 exec, -1")
        A("s_add_u32 s71, s71, 4")
    rtl()

    A(f"s_mov_b32 s{sMaskG}, -1")
    A(f"s_mov_b32 s{sMaskG+1}, 0")
    A(f"s_mov_b32 s{sC}, {f32bits(SCALE*LOG2E):#x}")
    A(f"v_mov_b32 {v(vNinf)}, 0xff800000")
    for i in range(4):
        A(f"v_mov_b32 {v(vOnes+i)}, 0x3f803f80")
        A(f"v_mov_b32 {v(vSent+i)}, -1")

    A(f"s_lshr_b32 s{sTmp}, s{sMemb}, 2")
    A(f"s_lshl_b32 s{sH}, s{sGrp}, 2")
    A(f"s_add_u32 s{sH}, s{sH}, s{sTmp}")
    A(f"s_and_b32 s{sTmp}, s{sMemb}, 3")
    A(f"s_lshl_b32 s{sTmp2}, s{sH}, 8")
    A(f"s_lshl_b32 s{sCnt}, s{sTmp}, 6")
    A(f"s_add_u32 s{sTmp2}, s{sTmp2}, s{sCnt}")
    A(f"s_mul_i32 s{sCnt}, s{sWave}, {160*8192}")
    A(f"s_add_u32 s{sTmp2}, s{sTmp2}, s{sCnt}")
    A(f"v_lshrrev_b32 {v(vT0)}, 2, {v(vLane)}")
    A(f"v_lshlrev_b32 {v(vT0)}, 13, {v(vT0)}")
    A(f"v_and_b32 {v(vT1)}, 3, {v(vLane)}")
    A(f"v_lshl_add_u32 {v(vT0)}, {v(vT1)}, 4, {v(vT0)}")
    A(f"v_add_u32 {v(vT0)}, s{sTmp2}, {v(vT0)}")
    for m in range(3):
        if m:
            make_srd(A, sW, 18 + 2 * m, 640 * 4096 * 2)
        for i in range(10):
            A(f"s_mov_b32 s{sCnt}, {i*131072}")
            A(f"buffer_load_dwordx4 {v(TMP+(m*10+i)*4,4)}, {v(vT0)}, s[{sW}:{sW+3}], s{sCnt} offen")
    make_srd(A, sW, 24, 4096 * 640 * 2)
    A(f"s_lshl_b32 s{sTmp2}, s{sGrp}, 2")
    A(f"s_add_u32 s{sTmp2}, s{sTmp2}, s{sWave}")
    A(f"s_mul_i32 s{sTmp2}, s{sTmp2}, {128*1280}")
    A(f"s_mul_i32 s{sCnt}, s{sMemb}, 80")
    A(f"s_add_u32 s{sTmp2}, s{sTmp2}, s{sCnt}")
    A(f"v_lshrrev_b32 {v(vT1)}, 3, {v(vLane)}")
    A(f"v_mul_u32_u24 {v(vT1)}, 1280, {v(vT1)}")
    A(f"v_and_b32 {v(vT2)}, 7, {v(vLane)}")
    A(f"v_lshl_add_u32 {v(vT1)}, {v(vT2)}, 4, {v(vT1)}")
    A(f"v_add_u32 {v(vT1)}, s{sTmp2}, {v(vT1)}")
    for i in range(16):
        A(f"s_mov_b32 s{sCnt}, {i*8*1280}")
        A(f"buffer_load_dwordx4 {v(TMP+120+i*4,4)}, {v(vT1)}, s[{sW}:{sW+3}], s{sCnt} offen")
    A(f"s_lshl_b32 s{sTmp2}, s{sWave}, 14")
    A(f"v_lshlrev_b32 {v(vT0)}, 4, {v(vLane)}")
    A(f"v_add_u32 {v(vT0)}, s{sTmp2}, {v(vT0)}")
    A(f"v_lshrrev_b32 {v(vT1)}, 2, {v(vN)}")
    A(f"v_lshl_add_u32 {v(vT2)}, {v(vG)}, 3, {v(vT1)}")
    A(f"v_lshlrev_b32 {v(vT2)}, 6, {v(vT2)}")
    A(f"v_and_b32 {v(vT3)}, 3, {v(vN)}")
    A(f"v_lshl_add_u32 {v(vT2)}, {v(vT3)}, 3, {v(vT2)}")
    A(f"v_add_u32 {v(vT2)}, s{sTmp2}, {v(vT2)}")
    for m in range(3):
        A(f"s_waitcnt vmcnt({(2-m)*10+16})")
        for i in range(10):
            A(f"ds_write_b128 {v(vT0)}, {v(TMP+(m*10+i)*4,4)} offset:{i*1024}")
        for tt in range(2):
            for ks in range(5):
                r0 = aWA + ((m * 2 + tt) * 5 + ks) * 4
                A(f"ds_read_b64_tr_b16 {a(r0,2)}, {v(vT2)} offset:{ks*2048+tt*32}")
                A(f"ds_read_b64_tr_b16 {a(r0+2,2)}, {v(vT2)} offset:{ks*2048+tt*32+256}")
            A("s_waitcnt lgkmcnt(0)")
    A(f"v_lshl_add_u32 {v(vT2)}, {v(vG)}, 2, {v(vT1)}")
    A(f"v_lshlrev_b32 {v(vT2)}, 7, {v(vT2)}")
    A(f"v_lshl_add_u32 {v(vT2)}, {v(vT3)}, 3, {v(vT2)}")
    A(f"v_add_u32 {v(vT2)}, s{sTmp2}, {v(vT2)}")
    A("s_waitcnt vmcnt(0)")
    for i in range(16):
        A(f"ds_write_b128 {v(vT0)}, {v(TMP+120+i*4,4)} offset:{i*1024}")
        if i % 8 == 7:
            A("s_waitcnt lgkmcnt(0)")
    for tt in range(3):
        for s_ in range(4):
            r0 = aWC + (tt * 4 + s_) * 4
            A(f"ds_read_b64_tr_b16 {a(r0,2)}, {v(vT2)} offset:{s_*4096+tt*32}")
            A(f"ds_read_b64_tr_b16 {a(r0+2,2)}, {v(vT2)} offset:{s_*4096+tt*32+2048}")
        A("s_waitcnt lgkmcnt(0)")

    dbgmax(8)
    confirm(sWave)
    dbgmax(9)
    A(f"v_and_b32 {v(vN8)}, 7, v0")
    if wrole:
        import parta
        A("s_load_dwordx4 s[24:27], s[0:1], 8")
        A(f"s_lshl_b32 s{sEnd}, s{sGrp}, 4")
        A(f"s_add_u32 s{sEnd}, s{sEnd}, s{sMemb}")
        A("s_waitcnt lgkmcnt(0)")
        Lcu, Lcx, Lcy = A.newlabel("Lcu"), A.newlabel("Lcx"), A.newlabel("Lcy")
        A(f"s_cmp_lg_u32 s{sEnd}, 0")
        A(f"s_cbranch_scc1 {Lcy}")
        A(f"s_branch {Lcx}")
        A.label(Lcy)
        A(f"s_sub_u32 s{sEnd}, s{sEnd}, 1")
        parta.wt_batch(A, sEnd, sWave)
        A.label(Lcu)
        parta.const_unit(A, sEnd)
        A(f"s_add_u32 s{sEnd}, s{sEnd}, 127")
        A(f"s_cmp_le_u32 s{sEnd}, {parta.NB_FG}")
        A(f"s_cbranch_scc1 {Lcu}")
        A.label(Lcx)
        A("s_waitcnt vmcnt(0)")
        A("s_barrier")
        A("s_mov_b64 exec, 1")
        A("v_mov_b32 v1, 1")
        A("v_mov_b32 v2, 0")
        A(f"s_mov_b32 s{sTmp}, {WS_CNT + CNT_CONST:#x}")
        A(f"buffer_atomic_add v1, v2, {WSR}, s{sTmp} offen")
        A("s_mov_b64 exec, -1")
        A("s_load_dwordx2 s[16:17], s[0:1], 32")
        A(f"v_and_b32 {v(vLane)}, 63, v0")
        A(f"v_and_b32 {v(vN)}, 15, v0")
        A(f"v_bfe_u32 {v(vG)}, v0, 4, 2")
        A(f"v_and_b32 {v(vN8)}, 7, v0")
        A(f"v_mov_b32 {v(vNinf)}, 0xff800000")
        for i in range(4):
            A(f"v_mov_b32 {v(vOnes+i)}, 0x3f803f80")
            A(f"v_mov_b32 {v(vSent+i)}, -1")
        A("s_waitcnt lgkmcnt(0)")
        make_srd(A, sM0, 16, 10240)
    A(f"v_mul_u32_u24 {v(vT0)}, 1280, {v(vN8)}")
    A(f"v_lshl_add_u32 {v(vT0)}, {v(vG)}, 4, {v(vT0)}")
    A(f"s_mul_i32 s{sTmp}, s{sWave}, 320")
    A(f"v_add_u32 {v(vT0)}, s{sTmp}, {v(vT0)}")
    A(f"v_add_u32 {v(Cg+1)}, 256, {v(vT0)}")
    A(f"v_lshrrev_b32 {v(vT1)}, 3, {v(vN)}")
    A(f"v_lshl_add_u32 {v(Cg)}, {v(vT1)}, 6, {v(vT0)}")
    A(f"s_mul_i32 s{sTmp}, s{sWave}, 2560")
    A(f"v_lshlrev_b32 {v(vT0)}, 4, {v(vLane)}")
    A(f"v_add_u32 {v(vD0)}, s{sTmp}, {v(vT0)}")
    A(f"v_lshl_add_u32 {v(vT1)}, {v(vG)}, 3, {v(vN8)}")
    A(f"v_lshlrev_b32 {v(vT1)}, 4, {v(vT1)}")
    A(f"s_add_u32 s{sTmp}, s{sTmp}, 2048")
    A(f"v_add_u32 {v(vD2)}, s{sTmp}, {v(vT1)}")
    A(f"s_lshl_b32 s{sTmp2}, s{sGrp}, 2")
    A(f"s_add_u32 s{sTmp2}, s{sTmp2}, s{sWave}")
    A(f"s_mul_i32 s{sTmp}, s{sTmp2}, 6144")
    A(f"v_add_u32 {v(vQo)}, s{sTmp}, {v(vT0)}")
    A(f"v_add_u32 {v(vKo)}, 2048, {v(vQo)}")
    A(f"s_lshl_b32 s{sTmp}, s{sTmp2}, 13")
    A(f"v_add_u32 {v(vK0)}, s{sTmp}, {v(vT0)}")
    A(f"v_add_u32 {v(vK1)}, 4096, {v(vK0)}")
    A(f"s_mul_i32 s{sTmp}, s{sTmp2}, 40960")
    A(f"s_mul_i32 s{sCnt}, s{sMemb}, 2560")
    A(f"s_add_u32 s{sTmp}, s{sTmp}, s{sCnt}")
    A(f"v_lshrrev_b32 {v(vT2)}, 3, {v(vN)}")
    A(f"v_lshl_add_u32 {v(vU)}, {v(vT2)}, 9, {v(vT1)}")
    A(f"v_add_u32 {v(vU)}, s{sTmp}, {v(vU)}")
    A(f"v_mov_b32 {v(vU2)}, {OOB:#x}")
    A(f"v_cmp_gt_u32 vcc, 8, {v(vN)}")
    A("s_nop 1")
    A(f"v_cndmask_b32 {v(vU2)}, {v(vU2)}, {v(vU)}, vcc")
    A(f"s_mul_i32 s{sTmp}, s{sWave}, 3072")
    A(f"s_add_u32 s{sCnt}, s{sTmp}, {LDS_RA}")
    A(f"v_add_u32 {v(vRAw)}, s{sCnt}, {v(vT0)}")
    A(f"s_add_u32 s{sCnt}, s{sTmp}, {LDS_RC}")
    A(f"v_add_u32 {v(vRCw)}, s{sCnt}, {v(vT0)}")
    def reader(ubase_mul, ubase_add, nl, rdst, adst, pdst, pbase):
        A(f"s_mul_i32 s{sTmp}, s{sWave}, {ubase_mul}")
        A(f"s_add_u32 s{sTmp}, s{sTmp}, {ubase_add}")
        A(f"v_add_u32 {v(vT0)}, s{sTmp}, {v(vLane)}")
        A(f"v_lshrrev_b32 {v(vT1)}, 6, {v(vT0)}")
        A(f"v_bfe_u32 {v(vT2)}, {v(vT0)}, 1, 3")
        A(f"v_bfe_u32 {v(vT3)}, {v(vT0)}, 4, 2")
        A(f"v_and_b32 {v(vT0)}, 1, {v(vT0)}")
        A(f"v_lshl_add_u32 {v(rdst)}, {v(vT3)}, 4, {v(vT2)}")
        A(f"v_lshlrev_b32 {v(adst)}, 4, {v(rdst)}")
        A(f"v_lshl_add_u32 {v(rdst)}, {v(vT0)}, 3, {v(rdst)}")
        A(f"v_lshlrev_b32 {v(rdst)}, 4, {v(rdst)}")
        A(f"v_lshl_add_u32 {v(rdst)}, {v(vT1)}, 10, {v(rdst)}")
        A(f"v_add_u32 {v(rdst)}, {LDS_RA}, {v(rdst)}")
        A(f"s_and_b32 s{sTmp}, s{sMemb}, 3")
        A(f"s_lshr_b32 s{sTmp2}, s{sTmp}, 1")
        A(f"s_lshl_b32 s{sTmp2}, s{sTmp2}, 10")
        A(f"s_and_b32 s{sCnt}, s{sTmp}, 1")
        A(f"s_lshl_b32 s{sCnt}, s{sCnt}, 7")
        A(f"s_add_u32 s{sTmp2}, s{sTmp2}, s{sCnt}")
        A(f"s_mul_i32 s{sCnt}, s{sH}, 6144")
        A(f"s_add_u32 s{sTmp2}, s{sTmp2}, s{sCnt}")
        A(f"v_add_u32 {v(adst)}, s{sTmp2}, {v(adst)}")
        A(f"v_lshl_add_u32 {v(adst)}, {v(vT0)}, 3, {v(adst)}")
        A(f"v_lshl_add_u32 {v(adst)}, {v(vT1)}, 11, {v(adst)}")
        A(f"s_lshl_b32 s{sTmp2}, s{sTmp}, 9")
        A(f"s_lshl_b32 s{sCnt}, s{sH}, 11")
        A(f"s_add_u32 s{sTmp2}, s{sTmp2}, s{sCnt}")
        A(f"s_add_u32 s{sTmp2}, s{sTmp2}, {pbase:#x}")
        A(f"v_lshl_add_u32 {v(vT2)}, {v(vT3)}, 3, {v(vT2)}")
        A(f"v_lshlrev_b32 {v(vT2)}, 4, {v(vT2)}")
        A(f"v_lshl_add_u32 {v(vT2)}, {v(vT0)}, 3, {v(vT2)}")
        A(f"v_add_u32 {v(pdst)}, s{sTmp2}, {v(vT2)}")
        A(f"v_mov_b32 {v(vT3)}, {OOB:#x}")
        A(f"v_cmp_eq_u32 vcc, 0, {v(vT1)}")
        A("s_nop 1")
        A(f"v_cndmask_b32 {v(pdst)}, {v(pdst)}, {v(vT3)}, vcc")
        A(f"v_cmp_gt_u32 vcc, {nl}, {v(vLane)}")
        A("s_nop 1")
        A(f"v_cndmask_b32 {v(pdst)}, {v(vT3)}, {v(pdst)}, vcc")
        A(f"v_cndmask_b32 {v(adst)}, {v(vT3)}, {v(adst)}, vcc")
        A(f"v_cndmask_b32 {v(rdst)}, {v(vRAw)}, {v(rdst)}, vcc")
    reader(32, 0, 32, vRAr, vAst, vKMst, 0)
    reader(16, 128, 16, vRAr2, vAst2, vVMst, WS_VM - WS_KM)
    A(f"s_and_b32 s{sTmp}, s{sGrp}, 1")
    A(f"s_cmp_lt_u32 s{sWave}, 2")
    A(f"s_cselect_b32 s{sTmp}, s{sWave}, s{sTmp}")
    A(f"v_lshrrev_b32 {v(vT1)}, 3, {v(vLane)}")
    A(f"v_and_b32 {v(vT2)}, 1, {v(vLane)}")
    A(f"v_lshl_add_u32 {v(vT0)}, {v(vT1)}, 1, {v(vT2)}")
    A(f"v_bfe_u32 {v(vT2)}, {v(vLane)}, 1, 2")
    A(f"s_lshl_b32 s{sTmp2}, s{sTmp}, 2")
    A(f"v_add_u32 {v(vT2)}, s{sTmp2}, {v(vT2)}")
    A(f"v_and_b32 {v(vT3)}, 3, {v(vT0)}")
    A(f"v_lshl_add_u32 {v(vT3)}, {v(vT3)}, 4, {v(vT2)}")
    A(f"v_lshlrev_b32 {v(vT3)}, 4, {v(vT3)}")
    A(f"v_lshrrev_b32 {v(vT0)}, 2, {v(vT0)}")
    A(f"v_lshl_add_u32 {v(vT3)}, {v(vT0)}, 10, {v(vT3)}")
    A(f"v_add_u32 {v(vRCr)}, {LDS_RC}, {v(vT3)}")
    A(f"s_mul_i32 s{sCnt}, s{sMemb}, 43")
    A(f"s_lshr_b32 s{sCnt}, s{sCnt}, 8")
    A(f"s_mul_i32 s{sTmp2}, s{sMemb}, 1280")
    A(f"s_mul_i32 s{sCnt}, s{sCnt}, {16384 - 6*1280}")
    A(f"s_add_u32 s{sTmp2}, s{sTmp2}, s{sCnt}")
    A(f"s_mul_i32 s{sTmp}, s{sTmp}, 640")
    A(f"s_add_u32 s{sTmp}, s{sTmp}, s{sTmp2}")
    A(f"v_lshlrev_b32 {v(vT0)}, 4, {v(vLane)}")
    A(f"v_add_u32 {v(vCst)}, s{sTmp}, {v(vT0)}")
    for r in range(1, 8):
        A(f"s_xor_b32 s{sTmp2}, s{sGrp}, {r}")
        A(f"s_mul_i32 s{sTmp2}, s{sTmp2}, {RC_GRP}")
        A(f"v_add_u32 {v(vCg+r)}, s{sTmp2}, {v(vCst)}")
    A(f"s_mul_i32 s{sTmp}, s{sMemb}, 5")
    A(f"v_add_u32 {v(vT1)}, s{sTmp}, {v(vT1)}")
    A(f"v_lshlrev_b32 {v(vDst)}, 4, {v(vT2)}")
    A(f"v_and_b32 {v(vT2)}, 1, {v(vLane)}")
    A(f"v_lshl_add_u32 {v(vDst)}, {v(vT2)}, 3, {v(vDst)}")
    A(f"v_mul_u32_u24 {v(vT2)}, 205, {v(vT1)}")
    A(f"v_lshrrev_b32 {v(vT2)}, 12, {v(vT2)}")
    A(f"v_mul_u32_u24 {v(vT3)}, 20, {v(vT2)}")
    A(f"v_sub_u32 {v(vT1)}, {v(vT1)}, {v(vT3)}")
    A(f"v_mul_u32_u24 {v(vT2)}, 2560, {v(vT2)}")
    A(f"v_add_u32 {v(vDst)}, {v(vDst)}, {v(vT2)}")
    A(f"v_and_b32 {v(vT2)}, 3, {v(vT1)}")
    A(f"v_lshrrev_b32 {v(vT1)}, 2, {v(vT1)}")
    A(f"v_lshrrev_b32 {v(vT3)}, 1, {v(vT1)}")
    A(f"v_lshl_add_u32 {v(vDst)}, {v(vT3)}, 10, {v(vDst)}")
    A(f"v_and_b32 {v(vT3)}, 1, {v(vT1)}")
    A(f"v_lshl_add_u32 {v(vDst)}, {v(vT3)}, 7, {v(vDst)}")
    A(f"v_lshlrev_b32 {v(vT3)}, 8, {v(vT2)}")
    A(f"v_lshlrev_b32 {v(vT2)}, 7, {v(vT2)}")
    A(f"v_cmp_gt_u32 vcc, 4, {v(vT1)}")
    A("s_nop 1")
    A(f"v_cndmask_b32 {v(vT2)}, {v(vT2)}, {v(vT3)}, vcc")
    A(f"v_add_u32 {v(vDst)}, {v(vDst)}, {v(vT2)}")
    A(f"s_lshl_b32 s{sTmp}, s{sMemb}, 1")
    A(f"s_and_b32 s{sTmp2}, s{sWave}, 1")
    A(f"s_add_u32 s{sTmp}, s{sTmp}, s{sTmp2}")
    A(f"s_lshl_b32 s{sTmp}, s{sTmp}, 10")
    A(f"s_lshl_b32 s{sTmp2}, s{sGrp}, 15")
    A(f"s_add_u32 s{sTmp}, s{sTmp}, s{sTmp2}")
    A(f"v_lshlrev_b32 {v(vWarm)}, 4, {v(vLane)}")
    A(f"v_add_u32 {v(vWarm)}, s{sTmp}, {v(vWarm)}")

    A(f"s_lshl_b32 s{sTmp}, s{sGrp}, 9")
    A(f"v_and_b32 {v(vT0)}, 3, {v(vLane)}")
    A(f"v_lshlrev_b32 {v(vT0)}, 7, {v(vT0)}")
    A(f"v_add_u32 {v(vFlag)}, s{sTmp}, {v(vT0)}")
    A(f"v_bfe_u32 {v(vT0)}, {v(vLane)}, 2, 1")
    A(f"v_mul_u32_u24 {v(vT0)}, {CNT_VU - CNT_KVU:#x}, {v(vT0)}")
    A(f"v_add_u32 {v(vFlag)}, {v(vFlag)}, {v(vT0)}")
    A(f"s_lshl_b32 s{sTmp}, s{sH}, 7")
    A(f"v_mov_b32 {v(vSig)}, s{sTmp}")
    A(f"v_mov_b32 {v(vT0)}, {OOB:#x}")
    A(f"v_cmp_eq_u32 vcc, 0, {v(vLane)}")
    A("s_nop 1")
    A(f"v_cndmask_b32 {v(vSig)}, {v(vT0)}, {v(vSig)}, vcc")
    A(f"v_mov_b32 {v(vOne)}, 1")

    A(f"s_add_u32 s{sRCB}, s{sWS}, {WS_RC + 0x1fffff:#x}")
    A(f"s_and_b32 s{sRCB}, s{sRCB}, 0xffe00000")
    A(f"s_sub_u32 s{sRCB}, s{sRCB}, s{sWS}")
    Lnc = A.newlabel("Lncal")
    A(f"s_lshl_b32 s{sTmp}, s{sGrp}, 4")
    A(f"s_add_u32 s{sTmp}, s{sTmp}, s{sMemb}")
    A(f"s_add_u32 s{sTmp}, s{sTmp}, s{sWave}")
    A(f"s_cmp_lg_u32 s{sTmp}, 0")
    A(f"s_cbranch_scc1 {Lnc}")
    A("s_mov_b64 exec, 1")
    A(f"v_mov_b32 {v(vT0)}, 0")
    for c in range(2):
        A(f"s_mov_b32 s{60+c}, 0x7fffffff")
    for it in range(6):
        for c in range(2):
            A(f"s_add_u32 s{sTmp}, s{sRCB}, {RC_PROBE + c*8192:#x}")
            A(f"buffer_store_dword {v(vT0)}, {v(vT0)}, {WSR}, s{sTmp} offen sc1")
            A("s_waitcnt vmcnt(0)")
            A("s_memtime s[62:63]")
            A("s_waitcnt lgkmcnt(0)")
            A(f"buffer_load_dword {v(vT1)}, {v(vT0)}, {WSR}, s{sTmp} offen sc1")
            A("s_waitcnt vmcnt(0)")
            A("s_memtime s[64:65]")
            A("s_waitcnt lgkmcnt(0)")
            A("s_sub_u32 s64, s64, s62")
            A(f"s_min_u32 s{60+c}, s{60+c}, s64")
    A("s_cmp_le_u32 s60, s61")
    A(f"s_cselect_b32 s{sTmp}, {2 if 'badpol' in exp else 1}, {1 if 'badpol' in exp else 2}")
    A(f"v_mov_b32 {v(vT1)}, s{sTmp}")
    A(f"s_mov_b32 s{sTmp}, {WS_CNT + CNT_POL:#x}")
    A(f"buffer_store_dword {v(vT1)}, {v(vT0)}, {WSR}, s{sTmp} offen sc1")
    A("s_mov_b64 exec, -1")
    A.label(Lnc)
    Lpp, Lpd = A.newlabel("Lpp"), A.newlabel("Lppd")
    A(f"v_mov_b32 {v(vT0)}, 0")
    A(f"s_mov_b32 s{sTmp2}, {WS_CNT + CNT_POL:#x}")
    A(f"s_mov_b32 s{sCnt}, 0")
    A.label(Lpp)
    A(f"buffer_load_dword {v(vT1)}, {v(vT0)}, {WSR}, s{sTmp2} offen sc1")
    A("s_waitcnt vmcnt(0)")
    A(f"v_cmp_eq_u32 vcc, 0, {v(vT1)}")
    A(f"s_cbranch_vccz {Lpd}")
    A("s_sleep 4")
    A(f"s_add_u32 s{sCnt}, s{sCnt}, 1")
    A(f"s_cmp_lt_u32 s{sCnt}, {SPIN_MAX}")
    A(f"s_cbranch_scc1 {Lpp}")
    A(f"s_mov_b32 s{sTmp}, 6")
    A(f"s_branch {Lfail}")
    A.label(Lpd)
    A(f"v_cmp_eq_u32 vcc, 2, {v(vT1)}")
    A("s_cmp_lg_u64 vcc, 0")
    A(f"s_cselect_b32 s{sTmp}, 8192, 0")
    A(f"s_add_u32 s{sRCB}, s{sRCB}, s{sTmp}")

    def wait_kvu(srb):
        Lp_ = A.newlabel("Lkf")
        Ld_ = A.newlabel("Lkfd")
        A(f"s_lshl_b32 s{sTmp2}, s{srb}, 12")
        A(f"s_add_u32 s{sTmp2}, s{sTmp2}, {WS_CNT + CNT_KVU:#x}")
        A(f"s_mov_b32 s{sCnt}, 0")
        A.label(Lp_)
        A(f"buffer_load_dword {v(vT0)}, {v(vFlag)}, {WSR}, s{sTmp2} offen sc1")
        A("s_waitcnt vmcnt(0)")
        A(f"v_cmp_eq_u32 vcc, 0, {v(vT0)}")
        A(f"s_cbranch_vccz {Ld_}")
        A("s_sleep 4")
        A(f"s_add_u32 s{sCnt}, s{sCnt}, 1")
        A(f"s_cmp_lt_u32 s{sCnt}, {SPIN_MAX}")
        A(f"s_cbranch_scc1 {Lp_}")
        A(f"s_mov_b32 s{sTmp}, 5")
        A(f"s_branch {Lfail}")
        A.label(Ld_)

    def signal_mem(srb):
        A(f"s_lshl_b32 s{sTmp2}, s{srb}, 12")
        A(f"s_add_u32 s{sTmp2}, s{sTmp2}, {WS_CNT + CNT_MEM:#x}")
        A(f"buffer_atomic_add {v(vOne)}, {v(vSig)}, {WSR}, s{sTmp2} offen")

    A(f"s_mov_b32 s{sStep}, 0")
    dbgmax(5)
    rtl()
    if wrole:
        wait_kvu(sStep)
    A(f"s_mov_b32 s{sOffKM}, {WS_KM:#x}")
    A(f"s_mov_b32 s{sOffK}, {WS_KX:#x}")
    A(f"s_mov_b32 s{sOffU}, {WS_U:#x}")

    def k_load(f):
        vo = vK0 if f < 4 else vK1
        return f"buffer_load_dwordx4 {a(aK+f*4,4)}, {v(vo)}, {WSR}, s{sOffK} offen offset:{(f%4)*1024}"

    def u_load(t, dst):
        return f"buffer_load_dwordx4 {a(dst+t*4,4)}, {v(vU if t < 2 else vU2)}, {WSR}, s{sOffU} offen offset:{t*1024}"

    def check_sentinel(regs, tmp):
        regs = list(regs)
        A(f"v_max3_u32 {v(tmp)}, {v(regs[0])}, {v(regs[1])}, {v(regs[2])}")
        rest = regs[3:]
        while rest:
            if len(rest) >= 2:
                A(f"v_max3_u32 {v(tmp)}, {v(tmp)}, {v(rest[0])}, {v(rest[1])}")
                rest = rest[2:]
            else:
                A(f"v_max_u32 {v(tmp)}, {v(tmp)}, {v(rest[0])}")
                rest = []
        A(f"v_cmp_eq_u32 vcc, -1, {v(tmp)}")

    def poll(issue, regs, code):
        Lp_ = A.newlabel("Lpoll")
        Ld_ = A.newlabel("Lpd")
        A(f"s_mov_b32 s{sCnt}, 0")
        A.label(Lp_)
        issue()
        A("s_waitcnt vmcnt(0)")
        check_sentinel(regs, vT0)
        A(f"s_cbranch_vccz {Ld_}")
        A(f"s_add_u32 s{sCnt}, s{sCnt}, 1")
        A(f"s_cmp_lt_u32 s{sCnt}, {SPIN_MAX}")
        A(f"s_cbranch_scc1 {Lp_}")
        A(f"s_mov_b32 s{sTmp}, {code}")
        A(f"s_branch {Lfail}")
        A.label(Ld_)
        if prof:
            r = {4: 97, 1: 98, 3: 100}[code]
            A(f"s_add_u32 s{r}, s{r}, s{sCnt}")

    def store_local(instr):
        L1 = A.newlabel("Lsl")
        L2 = A.newlabel("Lsl")
        A(f"s_cmp_lg_u32 s{sMode}, 0")
        A(f"s_cbranch_scc1 {L1}")
        A(instr)
        A(f"s_branch {L2}")
        A.label(L1)
        A(instr + " sc1")
        A.label(L2)

    for f in range(8):
        A(k_load(f))
    for t in range(3):
        A(u_load(t, aUn))
    if prof:
        for i in range(16):
            A(f"s_mov_b32 s{sPr+i}, 0")
        for i in range(97, 101):
            A(f"s_mov_b32 s{i}, 0")
        A("s_memtime s[86:87]")
        A("s_waitcnt lgkmcnt(0)")

    ring = []
    ring += [f"s_and_b32 s{sTmp}, s{sStep}, 3",
             f"s_add_u32 s{sTmp2}, s{sStep}, 3",
             f"s_and_b32 s{sTmp2}, s{sTmp2}, 3",
             f"s_mul_i32 s{sRA}, s{sTmp}, {32*6144}",
             f"s_add_u32 s{sRA}, s{sRA}, {WS_RA:#x}",
             f"s_mul_i32 s{sRAp}, s{sTmp2}, {32*6144}",
             f"s_add_u32 s{sRAp}, s{sRAp}, {WS_RA:#x}",
             f"s_mul_i32 s{sRC}, s{sTmp}, {RC_SLOT}",
             f"s_add_u32 s{sRC}, s{sRC}, s{sRCB}",
             f"s_add_u32 s{sRCp}, s{sStep}, 2",
             f"s_and_b32 s{sRCp}, s{sRCp}, 3",
             f"s_mul_i32 s{sRCp}, s{sRCp}, {RC_SLOT}",
             f"s_add_u32 s{sRCp}, s{sRCp}, s{sRCB}",
             f"s_mul_i32 s{sCnt}, s{sGrp}, {RC_GRP}",
             f"s_add_u32 s{sRCp}, s{sRCp}, s{sCnt}",
             f"s_add_u32 s{sOffC}, s{sRC}, s{sCnt}",
             f"s_lshr_b32 s{sCnt}, s{sGrp}, 1",
             f"s_mul_i32 s{sCnt}, s{sCnt}, 10240",
             f"s_add_u32 s{sCnt}, s{sCnt}, {WS_RD:#x}",
             f"s_mul_i32 s{sRDp}, s{sTmp2}, {8*10240}",
             f"s_add_u32 s{sRDp}, s{sRDp}, s{sCnt}",
             f"s_add_u32 s{sTmp}, s{sStep}, 1",
             f"s_and_b32 s{sTmp}, s{sTmp}, 3",
             f"s_mul_i32 s{sRD}, s{sTmp}, {8*10240}",
             f"s_add_u32 s{sRD}, s{sRD}, s{sCnt}",
             f"s_add_u32 s{sOffK}, s{sOffK}, {32*8192}",
             f"s_add_u32 s{sOffU}, s{sOffU}, {32*40960}",
             f"s_add_u32 s{sWarm}, s{sOffK}, {WARM*32*8192}",
             f"s_min_u32 s{sWarm}, s{sWarm}, {WS_KX+63*32*8192}"]

    dbgmax(2)
    for ins in ring:
        A(ins)
    A(f"buffer_load_dwordx4 {v(M,4)}, {v(Cg)}, s[{sM0}:{sM0+3}], 0 offen")
    A(f"buffer_load_dwordx4 {v(M+4,4)}, {v(Cg)}, s[{sM0}:{sM0+3}], 0 offen offset:128")
    A(f"buffer_load_dwordx4 {v(M+8,4)}, {v(Cg+1)}, s[{sM0}:{sM0+3}], 0 offen")
    A("s_waitcnt vmcnt(0)")
    Lloop = A.newlabel("Lloop")
    A.label(Lloop)
    rtl(True)
    stamp(0)
    Bks = [M, Mr, M + 4, Mr + 4, M + 8]
    fill = [f"v_mov_b32_dpp {v(Mr+i)}, {v(M+i)} row_ror:8 row_mask:0xf bank_mask:0xf" for i in range(8)]
    fill += [f"v_accvgpr_mov_b32 {a(aU+i)}, {a(aUn+i)}" for i in range(12)]
    order = [(ks, t) for ks in (0, 2, 1) for t in range(4)]
    order += [(ks, t) for t in range(4) for ks in (3, 4)]
    for idx, (ks, t) in enumerate(order):
        c = "0" if ks == 0 else v(accA + t * 4, 4)
        A(f"v_mfma_f32_16x16x32_bf16 {v(accA+t*4,4)}, {WA(t,ks)}, {v(Bks[ks],4)}, {c}")
        for _ in range(2):
            if fill:
                A(fill.pop(0))
    assert not fill

    def merge_write(p):
        for i in range(4):
            A(f"v_mov_b32_dpp {v(accA+8*p+i)}, {v(accA+8*p+4+i)} row_ror:8 row_mask:0xf bank_mask:0xc")
        A(f"ds_write_b128 {v(vRAw)}, {v(accA+8*p,4)} offset:{p*1024}")

    vm = []
    for ks in range(5):
        for t in (4, 5):
            c = "0" if ks == 0 else v(accA + t * 4, 4)
            vm.append(f"v_mfma_f32_16x16x32_bf16 {v(accA+t*4,4)}, {WA(t,ks)}, {v(Bks[ks],4)}, {c}")

    def reduce_pub(raddr, pub, T, fillers=()):
        for w in range(4):
            A(f"ds_read_b128 {v(T+w*4,4)}, {v(raddr)} offset:{w*3072}")
        for ins in fillers:
            A(ins)
        A("s_waitcnt lgkmcnt(2)")
        A(f"v_pk_add_f32 {v(T,2)}, {v(T,2)}, {v(T+4,2)}")
        A(f"v_pk_add_f32 {v(T+2,2)}, {v(T+2,2)}, {v(T+6,2)}")
        A("s_waitcnt lgkmcnt(0)")
        A(f"v_pk_add_f32 {v(T+8,2)}, {v(T+8,2)}, {v(T+12,2)}")
        A(f"v_pk_add_f32 {v(T+10,2)}, {v(T+10,2)}, {v(T+14,2)}")
        A(f"v_pk_add_f32 {v(T,2)}, {v(T,2)}, {v(T+8,2)}")
        A(f"v_pk_add_f32 {v(T+2,2)}, {v(T+2,2)}, {v(T+10,2)}")
        A(f"v_cvt_pk_bf16_f32 {v(pub)}, {v(T)}, {v(T+1)}")
        A(f"v_cvt_pk_bf16_f32 {v(pub+1)}, {v(T+2)}, {v(T+3)}")
        A(f"v_min_u32 {v(pub)}, 0xfffffffe, {v(pub)}")
        A(f"v_min_u32 {v(pub+1)}, 0xfffffffe, {v(pub+1)}")
    A.nop(4)
    merge_write(0)
    merge_write(1)
    for ins in vm[:VM1]:
        A(ins)
    stamp(6)
    A("s_waitcnt lgkmcnt(0)")
    stamp(7)
    A("s_barrier")
    stamp(8)
    reduce_pub(vRAr, vPub, Cg, vm[VM1:VM1+VM2])
    store_local(f"buffer_store_dwordx2 {v(vPub,2)}, {v(vAst)}, {WSR}, s{sRA} offen")
    stamp(1)
    def issue_q():
        A(f"buffer_load_dwordx4 {v(Q,4)}, {v(vQo)}, {WSR}, s{sRA} offen sc1")
        A(f"buffer_load_dwordx4 {v(Q+4,4)}, {v(vQo)}, {WSR}, s{sRA} offen offset:1024 sc1")

    def issue_k():
        for c in range(2):
            A(f"buffer_load_dwordx4 {v(KM+c*8,4)}, {v(vKo)}, {WSR}, s{sRA} offen offset:{c*1024} sc1")

    def issue_v():
        for c in range(2):
            A(f"buffer_load_dwordx4 {v(VM+c*8,4)}, {v(vKo)}, {WSR}, s{sRA} offen offset:{2048+c*1024} sc1")
    for ins in vm[VM1+VM2:]:
        A(ins)
    A.nop(8)
    merge_write(2)
    if EARLY == 1:
        issue_q()
        issue_k()
    A("s_waitcnt lgkmcnt(0)")
    A("s_barrier")
    if EARLY == 2:
        issue_q()
        issue_k()
    reduce_pub(vRAr2, vPub2, Cg)
    A(f"s_cmp_eq_u32 s{sStep}, {nsteps-1}")
    Lfin = A.newlabel("Lfin")
    A(f"s_cbranch_scc1 {Lfin}")
    store_local(f"buffer_store_dwordx2 {v(vPub2,2)}, {v(vAst2)}, {WSR}, s{sRA} offen")

    if ADELAY:
        A(f"s_sleep {ADELAY}")
    Lp_, Ld_ = A.newlabel("Lpa"), A.newlabel("Lpad")
    A(f"s_mov_b32 s{sCnt}, 0")
    if EARLY:
        A("s_waitcnt vmcnt(3)")
        check_sentinel(range(Q, Q + 8), vT0)
        A(f"s_cbranch_vccz {Ld_}")
    A.label(Lp_)
    issue_q()
    issue_k()
    A("s_waitcnt vmcnt(0)")
    check_sentinel(range(Q, Q + 8), vT0)
    A(f"s_cbranch_vccz {Ld_}")
    A(f"s_add_u32 s{sCnt}, s{sCnt}, 1")
    A(f"s_cmp_lt_u32 s{sCnt}, {SPIN_MAX}")
    A(f"s_cbranch_scc1 {Lp_}")
    A(f"s_mov_b32 s{sTmp}, 1")
    A(f"s_branch {Lfail}")
    A.label(Ld_)
    if prof:
        A(f"s_add_u32 s98, s98, s{sCnt}")
    stamp(2)
    Qks = [Q, Qr, Q + 4, Qr + 4]
    A(f"v_mfma_f32_16x16x32_bf16 {v(acc1,4)}, {a(aK+0,4)}, {v(Q,4)}, 0")
    for i in range(4):
        A(f"v_mov_b32_dpp {v(Qr+i)}, {v(Q+i)} row_ror:8 row_mask:0xf bank_mask:0xf")
    A(f"v_mfma_f32_16x16x32_bf16 {v(acc2,4)}, {a(aK+16,4)}, {v(Q,4)}, 0")
    for i in range(4, 8):
        A(f"v_mov_b32_dpp {v(Qr+i)}, {v(Q+i)} row_ror:8 row_mask:0xf bank_mask:0xf")
    Lkv = A.newlabel("Lkv")
    Lkvd = A.newlabel("Lkvd")
    A(f"s_mov_b32 s{sCnt}, 0")
    A("s_waitcnt vmcnt(1)")
    A.label(Lkv)
    check_sentinel(list(range(KM, KM + 4)) + list(range(KM + 8, KM + 12)), vT0)
    A(f"s_cbranch_vccz {Lkvd}")
    issue_k()
    A("s_waitcnt vmcnt(0)")
    A(f"s_add_u32 s{sCnt}, s{sCnt}, 1")
    A(f"s_cmp_lt_u32 s{sCnt}, {SPIN_MAX}")
    A(f"s_cbranch_scc1 {Lkv}")
    A(f"s_mov_b32 s{sTmp}, 2")
    A(f"s_branch {Lfail}")
    A.label(Lkvd)
    A(f"v_mfma_f32_16x16x32_bf16 {v(acc0,4)}, {v(KM,4)}, {v(Qks[0],4)}, 0")
    for i in range(4):
        A(f"v_mov_b32_dpp {v(KM+4+i)}, {v(KM+i)} row_ror:8 row_mask:0xf bank_mask:0xf")
    A(f"v_mfma_f32_16x16x32_bf16 {v(acc1,4)}, {a(aK+8,4)}, {v(Qks[2],4)}, {v(acc1,4)}")
    A(f"v_mfma_f32_16x16x32_bf16 {v(acc2,4)}, {a(aK+24,4)}, {v(Qks[2],4)}, {v(acc2,4)}")
    A(f"v_mfma_f32_16x16x32_bf16 {v(acc0,4)}, {v(KM+8,4)}, {v(Qks[2],4)}, {v(acc0,4)}")
    for i in range(4):
        A(f"v_mov_b32_dpp {v(KM+12+i)}, {v(KM+8+i)} row_ror:8 row_mask:0xf bank_mask:0xf")
    for ks in (1, 3):
        A(f"v_mfma_f32_16x16x32_bf16 {v(acc1,4)}, {a(aK+ks*4,4)}, {v(Qks[ks],4)}, {v(acc1,4)}")
        A(f"v_mfma_f32_16x16x32_bf16 {v(acc2,4)}, {a(aK+16+ks*4,4)}, {v(Qks[ks],4)}, {v(acc2,4)}")
        A(f"v_mfma_f32_16x16x32_bf16 {v(acc0,4)}, {v(KM+ks*4,4)}, {v(Qks[ks],4)}, {v(acc0,4)}")
    issue_v()
    A.nop(5)
    stamp(9)
    S = [acc1 + i for i in range(4)] + [acc2 + i for i in range(4)] + [acc0 + i for i in range(4)]
    sm = [f"v_max3_f32 {v(vMx)}, {v(S[0])}, {v(S[1])}, {v(S[2])}",
          f"v_max3_f32 {v(vMx)}, {v(vMx)}, {v(S[3])}, {v(S[4])}",
          f"v_max3_f32 {v(vMx)}, {v(vMx)}, {v(S[5])}, {v(S[6])}"]
    for i in range(4):
        sm.append(f"v_cndmask_b32 {v(acc0+i)}, {v(vNinf)}, {v(acc0+i)}, s[{sMaskG}:{sMaskG+1}]")
    sm += [f"v_max3_f32 {v(vMx)}, {v(vMx)}, {v(S[7])}, {v(S[8])}",
           f"v_max3_f32 {v(vMx)}, {v(vMx)}, {v(S[9])}, {v(S[10])}",
           f"v_max_f32 {v(vMx)}, {v(vMx)}, {v(S[11])}",
           f"v_mov_b32 {v(vMx2)}, {v(vMx)}",
           "s_nop 1",
           f"v_permlane16_swap_b32 {v(vMx)}, {v(vMx2)}",
           "s_nop 0",
           f"v_max_f32 {v(vMx)}, {v(vMx)}, {v(vMx2)}",
           f"v_mov_b32 {v(vMx2)}, {v(vMx)}",
           "s_nop 1",
           f"v_permlane32_swap_b32 {v(vMx)}, {v(vMx2)}",
           "s_nop 0",
           f"v_max_f32 {v(vMx)}, {v(vMx)}, {v(vMx2)}",
           f"v_mul_f32 {v(vMx)}, s{sC}, {v(vMx)}"]
    for r in S:
        sm.append(f"v_fma_f32 {v(r)}, {v(r)}, s{sC}, -{v(vMx)}")
    for r in S[:VSPLIT]:
        sm.append(f"v_exp_f32 {v(r)}, {v(r)}")
    for ins in sm:
        A(ins)
    Lv, Lvd = A.newlabel("Lv"), A.newlabel("Lvd")
    A(f"s_mov_b32 s{sCnt}, 0")
    A.label(Lv)
    A("s_waitcnt vmcnt(0)")
    check_sentinel(list(range(VM, VM + 4)) + list(range(VM + 8, VM + 12)), vT0)
    A(f"s_cbranch_vccz {Lvd}")
    issue_v()
    A(f"s_add_u32 s{sCnt}, s{sCnt}, 1")
    A(f"s_cmp_lt_u32 s{sCnt}, {SPIN_MAX}")
    A(f"s_cbranch_scc1 {Lv}")
    A(f"s_mov_b32 s{sTmp}, 2")
    A(f"s_branch {Lfail}")
    A.label(Lvd)
    if prof:
        A(f"s_add_u32 s99, s99, s{sCnt}")
    um = []
    for s_ in (0, 2, 1, 3):
        for t in range(3):
            c = "0" if s_ == 0 else v(accU + t * 4, 4)
            um.append(f"v_mfma_f32_16x16x32_bf16 {v(accU+t*4,4)}, {v(VM+s_*4,4)}, {WC(t,s_)}, {c}")
    sm = [f"v_mov_b32_dpp {v(VM+4+i)}, {v(VM+i)} row_ror:8 row_mask:0xf bank_mask:0xf" for i in range(4)]
    sm += [f"v_mov_b32_dpp {v(VM+12+i)}, {v(VM+8+i)} row_ror:8 row_mask:0xf bank_mask:0xf" for i in range(4)]
    for r in S[VSPLIT:]:
        sm.append(f"v_exp_f32 {v(r)}, {v(r)}")
    sm.append("s_nop 0")
    for i in range(4):
        sm.append(f"v_cvt_pk_bf16_f32 {v(P0+i)}, {v(S[2*i])}, {v(S[2*i+1])}")
    sm.append(f"v_cvt_pk_bf16_f32 {v(Blo)}, {v(S[8])}, {v(S[9])}")
    sm.append(f"v_cvt_pk_bf16_f32 {v(Blo+1)}, {v(S[10])}, {v(S[11])}")
    for idx in range(max(len(sm) // 2 + 1, len(um))):
        if um:
            A(um.pop(0))
        for _ in range(2):
            if sm:
                A(sm.pop(0))
    assert not um and not sm
    pre = [u_load(t, aUn) for t in range(3)] + ([] if KLATE else [k_load(f) for f in range(8)])
    if "nokv" in exp:
        pre = []
    stamp(3)
    def pl(n=1):
        for _ in range(n):
            A(pre.pop(0) if pre else "s_nop 0")
    A(f"v_mfma_f32_16x16x32_bf16 {v(accZ,4)}, {v(vOnes,4)}, {v(P0,4)}, 0")
    for t in range(3):
        A(f"v_mfma_f32_16x16x32_bf16 {v(accC+t*4,4)}, {a(aU+t*4,4)}, {v(P0,4)}, 0")
        pl()
    A(f"v_mfma_f32_16x16x16_bf16 {v(accZ,4)}, {v(vOnes,2)}, {v(Blo,2)}, {v(accZ,4)}")
    pl(2)
    for t in range(3):
        A(f"v_cvt_pk_bf16_f32 {v(UA+t*2)}, {v(accU+t*4)}, {v(accU+t*4+1)}")
        A(f"v_cvt_pk_bf16_f32 {v(UA+t*2+1)}, {v(accU+t*4+2)}, {v(accU+t*4+3)}")
    pl(1)
    A(f"v_rcp_f32 {v(vRz)}, {v(accZ)}")
    for t in range(3):
        A(f"v_mfma_f32_16x16x16_bf16 {v(accC+t*4,4)}, {v(UA+t*2,2)}, {v(Blo,2)}, {v(accC+t*4,4)}")
    A(f"v_mov_b32 {v(vRz+1)}, {v(vRz)}")
    pl(5)
    A.nop(1)
    stamp(10)
    for t in range(3):
        A(f"v_pk_mul_f32 {v(accC+t*4,2)}, {v(accC+t*4,2)}, {v(vRz,2)}")
        A(f"v_pk_mul_f32 {v(accC+t*4+2,2)}, {v(accC+t*4+2,2)}, {v(vRz,2)}")
        A(f"ds_write_b128 {v(vRCw)}, {v(accC+t*4,4)} offset:{t*1024}")
    assert not pre
    A("s_waitcnt lgkmcnt(0)")
    stamp(11)
    A("s_barrier")
    stamp(12)
    A("s_mov_b32 exec_hi, 0xff")
    for w in range(4):
        A(f"ds_read_b128 {v(Cg+w*4,4)}, {v(vRCr)} offset:{w*3072}")
    A("s_waitcnt lgkmcnt(2)")
    for i in range(4):
        A(f"v_add_f32 {v(Cg+i)}, {v(Cg+i)}, {v(Cg+4+i)}")
    A("s_waitcnt lgkmcnt(0)")
    for i in range(4):
        A(f"v_add_f32 {v(Cg+8+i)}, {v(Cg+8+i)}, {v(Cg+12+i)}")
    for i in range(4):
        A(f"v_add_f32 {v(Cg+i)}, {v(Cg+i)}, {v(Cg+8+i)}")

    def persist(final=False):
        A("s_mov_b64 exec, -1")
        if KLATE and not final:
            for f in range(8):
                A(k_load(f))
        A(f"buffer_store_dwordx2 {v(vPub,2)}, {v(vKMst)}, {WSR}, s{sOffKM} offen" + (" sc1" if wrole else ""))
        A(f"buffer_store_dwordx2 {v(vPub2,2)}, {v(vVMst)}, {WSR}, s{sOffKM} offen" + (" sc1" if wrole else ""))
        if wrole and not final:
            Lns = A.newlabel("Lns")
            A(f"s_and_b32 s{sTmp}, s{sStep}, 3")
            A(f"s_cmp_lg_u32 s{sTmp}, 0")
            A(f"s_cbranch_scc1 {Lns}")
            A(f"s_cmp_eq_u32 s{sStep}, 0")
            A(f"s_cbranch_scc1 {Lns}")
            A(f"s_lshr_b32 s{sTmp}, s{sStep}, 2")
            A(f"s_sub_u32 s{sTmp}, s{sTmp}, 1")
            signal_mem(sTmp)
            A.label(Lns)
            Lns2 = A.newlabel("Lns")
            A(f"s_cmp_lg_u32 s{sStep}, 62")
            A(f"s_cbranch_scc1 {Lns2}")
            A(f"s_mov_b32 s{sTmp}, 16")
            signal_mem(sTmp)
            A.label(Lns2)

    def background(storer):
        persist()
        store_local(f"buffer_store_dwordx2 {v(vSent,2)}, {v(vAst)}, {WSR}, s{sRAp} offen"); store_local(f"buffer_store_dwordx2 {v(vSent,2)}, {v(vAst2)}, {WSR}, s{sRAp} offen")
        A("s_mov_b32 exec_hi, 0xff")
        if storer:
            for kc in range(KC):
                A(f"buffer_store_dwordx4 {v(vSent,4)}, {v(vCst)}, {WSR}, s{sRCp} offen sc1")
                if kc < KC - 1:
                    A(f"s_add_u32 s{sRCp}, s{sRCp}, {8*20480}")
            if "nokv" not in exp:
                A("s_mov_b64 exec, -1")
                A(f"buffer_load_dwordx4 {v(vDummy,4)}, {v(vWarm)}, {WSR}, s{sWarm} offen")
        else:
            store_local(f"buffer_store_dwordx2 {v(vSent,2)}, {v(vDst)}, {WSR}, s{sRDp} offen")

    Lpw = A.newlabel("Lpw")
    Lcdone = A.newlabel("Lcdone")
    A(f"s_cmp_ge_u32 s{sWave}, 2")
    A(f"s_cbranch_scc1 {Lpw}")
    for i in range(4):
        A(f"v_min_u32 {v(Cg+i)}, 0xfffffffe, {v(Cg+i)}")
    for kc in range(KC):
        A(f"buffer_store_dwordx4 {v(Cg,4)}, {v(vCst)}, {WSR}, s{sOffC} offen sc1")
        if kc < KC - 1:
            A(f"s_add_u32 s{sOffC}, s{sOffC}, {8*20480}")
    stamp(4)
    background(True)
    if DSLEEP:
        A(f"s_sleep {DSLEEP}")
    A(f"s_branch {Lcdone}")
    A.label(Lpw)
    stamp(4)
    Lw3 = A.newlabel("Lw3")
    A(f"s_cmp_eq_u32 s{sWave}, 3")
    A(f"s_cbranch_scc1 {Lw3}")
    background(False)
    A(f"s_mov_b32 s{sEnd}, s{sRC}")

    def advance():
        A(f"s_add_u32 s{sStep}, s{sStep}, 1")
        A(f"s_add_u32 s{sOffKM}, s{sOffKM}, {32*2048}")
        A(f"s_mov_b32 s{sOffD}, s{sRD}")
        for ins in ring:
            A(ins)
    advance()
    if CDELAY:
        A(f"s_sleep {CDELAY}")

    def issue_c():
        for r in range(1, 8):
            A(f"buffer_load_dwordx4 {v(CR+(r-1)*4,4)}, {v(vCg+r)}, {WSR}, s{sEnd} offen sc1")
    poll(issue_c, range(CR, CR + 28), 3)
    stamp(5)
    c = CR
    for i in (0, 2):
        A(f"v_pk_add_f32 {v(Cg+i,2)}, {v(Cg+i,2)}, {v(c+i,2)}")
        A(f"v_pk_add_f32 {v(Cg+4+i,2)}, {v(c+4+i,2)}, {v(c+8+i,2)}")
        A(f"v_pk_add_f32 {v(Cg+8+i,2)}, {v(c+12+i,2)}, {v(c+16+i,2)}")
        A(f"v_pk_add_f32 {v(Cg+12+i,2)}, {v(c+20+i,2)}, {v(c+24+i,2)}")
    for i in (0, 2):
        A(f"v_pk_add_f32 {v(Cg+i,2)}, {v(Cg+i,2)}, {v(Cg+4+i,2)}")
        A(f"v_pk_add_f32 {v(Cg+8+i,2)}, {v(Cg+8+i,2)}, {v(Cg+12+i,2)}")
    for i in (0, 2):
        A(f"v_pk_add_f32 {v(Cg+i,2)}, {v(Cg+i,2)}, {v(Cg+8+i,2)}")
    A(f"v_cvt_pk_bf16_f32 {v(Cg+4)}, {v(Cg)}, {v(Cg+1)}")
    A(f"v_cvt_pk_bf16_f32 {v(Cg+5)}, {v(Cg+2)}, {v(Cg+3)}")
    A(f"v_min_u32 {v(Cg+4)}, 0xfffffffe, {v(Cg+4)}")
    A(f"v_min_u32 {v(Cg+5)}, 0xfffffffe, {v(Cg+5)}")
    store_local(f"buffer_store_dwordx2 {v(Cg+4,2)}, {v(vDst)}, {WSR}, s{sOffD} offen")
    A("s_mov_b64 exec, -1")
    Ldp = A.newlabel("Ldp")
    A(f"s_branch {Ldp}")
    A.label(Lw3)
    persist()
    store_local(f"buffer_store_dwordx2 {v(vSent,2)}, {v(vAst)}, {WSR}, s{sRAp} offen"); store_local(f"buffer_store_dwordx2 {v(vSent,2)}, {v(vAst2)}, {WSR}, s{sRAp} offen")
    Lnf = A.newlabel("Lnf")
    if wrole:
        A("s_mov_b64 exec, -1")
        A(f"s_and_b32 s{sTmp}, s{sStep}, 3")
        A(f"s_cmp_lg_u32 s{sTmp}, 1")
        A(f"s_cbranch_scc1 {Lnf}")
        A(f"s_add_u32 s{sEnd}, s{sStep}, 3")
        A(f"s_lshr_b32 s{sEnd}, s{sEnd}, 2")
        A(f"s_cmp_gt_u32 s{sEnd}, 15")
        A(f"s_cbranch_scc1 {Lnf}")
        wait_kvu(sEnd)
        A(f"s_branch {Lcdone}")
    A.label(Lnf)
    if DSLEEP:
        A(f"s_sleep {DSLEEP}")
    A.label(Lcdone)
    A("s_mov_b64 exec, -1")
    advance()
    A.label(Ldp)
    stamp(13)

    if PDELAY:
        Lpd = A.newlabel("Lpdl")
        A(f"s_cmp_lg_u32 s{sWave}, 2")
        A(f"s_cbranch_scc1 {Lpd}")
        A(f"s_sleep {PDELAY}")
        A.label(Lpd)

    def issue_d():
        A(f"buffer_load_dwordx4 {v(M,4)}, {v(vD0)}, {WSR}, s{sOffD} offen sc1")
        A(f"buffer_load_dwordx4 {v(M+4,4)}, {v(vD0)}, {WSR}, s{sOffD} offen offset:1024 sc1")
        A(f"buffer_load_dwordx4 {v(M+8,4)}, {v(vD2)}, {WSR}, s{sOffD} offen sc1")
    poll(issue_d, range(M, M + 12), 4)
    A(f"s_branch {Lloop}")

    A.label(Lfin)
    persist(True)
    A("s_mov_b64 exec, -1")
    rtl()
    if wrole:
        A("s_waitcnt vmcnt(0)")
        A(f"s_mov_b32 s{sTmp}, 15")
        signal_mem(sTmp)
        dbgmax(3)
    if prof:
        A(f"s_lshl_b32 s{sTmp}, s{sGrp}, 4")
        A(f"s_add_u32 s{sTmp}, s{sTmp}, s{sMemb}")
        A(f"s_lshl_b32 s{sTmp}, s{sTmp}, 2")
        A(f"s_add_u32 s{sTmp}, s{sTmp}, s{sWave}")
        A(f"s_lshl_b32 s{sTmp}, s{sTmp}, 6")
        A(f"s_add_u32 s{sTmp}, s{sTmp}, {WS_PROF:#x}")
        A("s_mov_b64 exec, 1")
        A(f"s_lshl_b32 s97, s97, 16")
        A(f"s_or_b32 s{sPr+14}, s97, s98")
        A(f"s_lshl_b32 s99, s99, 16")
        A(f"s_or_b32 s{sPr+15}, s99, s100")
        for i in range(16):
            A(f"v_mov_b32 {v(vT0)}, s{sPr+i}")
            A(f"v_mov_b32 {v(vT1)}, {i*4}")
            A(f"buffer_store_dword {v(vT0)}, {v(vT1)}, {WSR}, s{sTmp} offen")
    A(f"s_branch {Lend}")
    A.label(Lfail)
    A("s_mov_b64 exec, 1")
    A(f"v_mov_b32 {v(vT0)}, s{sTmp}")
    A(f"v_mov_b32 {v(vT1)}, 0")
    A(f"v_or_b32 {v(vT0)}, 0x100, {v(vT0)}")
    A(f"buffer_store_dword {v(vT0)}, {v(vT1)}, s[{sDBG}:{sDBG+3}], 0 offen")
    A.label(Lend)
    A("s_endpgm")
    if wrole:
        A.label(Lw)
        A(f"s_sub_u32 s54, s{sCnt}, 128")
        wrole(A, 54, confirm, dbgmax)
        dbgmax(4)
        A("s_endpgm")
    return kernel_desc(name, 512, 102, 256)
```

```python
from asmlib import *
from layout import *
from wside import *
import parta

SPIN = 4000000
sW, sJ, sHead, sRnd, sPoll = 70, 71, 72, 73, 74


TL = False
A3_AT = 9
NRM = 6
STAG = 3
SC = " sc1"


def wrole(A, sIdx, confirm, dbgmax):
    Lq = A.newlabel("Lwq")

    def tl():
        if not TL:
            return
        Ls = A.newlabel("Ltl")
        A(f"s_cmp_lg_u32 s{sWave}, 0")
        A(f"s_cbranch_scc1 {Ls}")
        A("s_memrealtime s[78:79]")
        A("s_waitcnt lgkmcnt(0)")
        A("s_mov_b64 exec, 1")
        A("v_mov_b32 v4, s78")
        A("v_mov_b32 v5, 0")
        A(f"buffer_store_dword v4, v5, {srd(sWS)}, s80 offen")
        A("s_mov_b64 exec, -1")
        A("s_add_u32 s80, s80, 4")
        A.label(Ls)
        return 1
    A(f"s_mov_b32 s{sW}, s{sIdx}")
    A("s_load_dwordx4 s[24:27], s[0:1], 24")
    A("s_load_dwordx8 s[28:35], s[0:1], 40")
    A("s_load_dwordx2 s[36:37], s[0:1], 96")
    A("s_load_dwordx2 s[38:39], s[0:1], 80")
    A("s_load_dwordx2 s[76:77], s[0:1], 0")
    A("v_and_b32 v1, 63, v0")
    A("v_lshrrev_b32 v5, 6, v0")
    A("v_and_b32 v2, 15, v0")
    A(f"v_readfirstlane_b32 s{sWave}, v5")
    A("v_bfe_u32 v3, v0, 4, 2")
    A("s_waitcnt lgkmcnt(0)")
    make_srd(A, sWS, 36, WS_BYTES)
    A(f"s_lshr_b32 s{sHead}, s{sW}, 5")
    A(f"s_lshl_b32 s{sHead}, s{sHead}, 3")
    A(f"s_and_b32 s{sTmp}, s{sW}, 7")
    A(f"s_add_u32 s{sHead}, s{sHead}, s{sTmp}")
    A(f"s_bfe_u32 s{sJ}, s{sW}, 0x20003")
    A(f"s_lshl_b32 s80, s{sW}, 8")
    A(f"s_add_u32 s80, s80, {WS_PROF + 65536:#x}")
    tl()

    def signal(off_sreg, n=1, stride=0):
        Ls = A.newlabel("Lsig")
        A("s_waitcnt vmcnt(0)")
        A("s_barrier")
        A(f"s_cmp_lg_u32 s{sWave}, 0")
        A(f"s_cbranch_scc1 {Ls}")
        A("s_mov_b64 exec, 1")
        A("v_mov_b32 v4, 1")
        A("v_mov_b32 v5, 0")
        for i in range(n):
            A(f"buffer_atomic_add v4, v5, {srd(sWS)}, s{off_sreg} offen")
            if i < n - 1:
                A(f"s_add_u32 s{off_sreg}, s{off_sreg}, {stride}")
        A("s_mov_b64 exec, -1")
        A.label(Ls)
        tl()

    def wait(off_sreg, target):
        Lp, Ld = A.newlabel("Lwt"), A.newlabel("Lwtd")
        A(f"s_cmp_lg_u32 s{sWave}, 0")
        A(f"s_cbranch_scc1 {Ld}")
        A("v_mov_b32 v5, 0")
        A(f"s_mov_b32 s{sPoll}, 0")
        A.label(Lp)
        A(f"buffer_load_dword v4, v5, {srd(sWS)}, s{off_sreg} offen sc1")
        A("s_waitcnt vmcnt(0)")
        A(f"v_cmp_gt_u32 vcc, {target:#x}, v4")
        A(f"s_cbranch_vccz {Ld}")
        A("s_sleep 8")
        A(f"s_add_u32 s{sPoll}, s{sPoll}, 1")
        A(f"s_cmp_lt_u32 s{sPoll}, {SPIN}")
        A(f"s_cbranch_scc1 {Lp}")
        A.label(Ld)
        A("s_barrier")
        tl()

    def cnt_rbh(base):
        A(f"s_lshl_b32 s75, s{sRB}, 12")
        A(f"s_lshl_b32 s{sTmp}, s{sH}, 7")
        A(f"s_add_u32 s75, s75, s{sTmp}")
        A(f"s_add_u32 s75, s75, {WS_CNT + base:#x}")

    def cond_block(cmps, body):
        Lskip = A.newlabel("Lcs")
        for c in cmps:
            Lgo = A.newlabel("Lcg")
            A(c)
            A(f"s_cbranch_scc1 {Lgo}")
            A(f"s_branch {Lskip}")
            A.label(Lgo)
        body()
        A.label(Lskip)

    def dw(slot):
        A("s_mov_b64 s[92:93], s[72:73]")
        dbgmax(slot)
        A("s_mov_b64 s[72:73], s[92:93]")

    def confirm_lds():
        confirm(sWave)

    def hook_vu():
        dw(10)
        confirm(sWave)
        dw(11)

    def do_vu():
        A(f"s_mov_b32 s{sRB}, s{sJ}")
        A(f"s_mov_b32 s{sH}, s{sHead}")
        kvu_body(A, 2, SC, tl=tl, mode="vu", u_hook=hook_vu)
        cnt_rbh(CNT_VU)
        signal(75)
        dw(7)
    cond_block([f"s_cmp_lt_u32 s{sJ}, 2"], do_vu)

    def do_k():
        A(f"s_mov_b32 s{sRB}, 0")
        A(f"s_mov_b32 s{sH}, s{sHead}")
        kvu_body(A, 4, SC, tl=tl, mode="k")
        confirm_lds()
        cnt_rbh(CNT_KVU)
        signal(75, 2, 4096)
    cond_block([f"s_cmp_eq_u32 s{sJ}, 2"], do_k)
    A(f"s_add_u32 s{sRnd}, s{sJ}, 4")
    A(f"s_sub_u32 s86, 5, s{sJ}")
    A(f"s_cmp_lt_u32 s{sJ}, 2")
    A(f"s_cselect_b32 s{sRnd}, s{sRnd}, s86")
    Lk = A.newlabel("Lkvu")
    A.label(Lk)
    A(f"s_mov_b32 s{sRB}, s{sRnd}")
    A(f"s_mov_b32 s{sH}, s{sHead}")
    kvu_body(A, 2, SC, tl=tl, u_hook=confirm_lds)
    cnt_rbh(CNT_KVU)
    signal(75, 2, CNT_VU - CNT_KVU)
    A(f"s_add_u32 s{sRnd}, s{sRnd}, 4")
    A(f"s_cmp_lt_u32 s{sRnd}, 8")
    Lk2 = A.newlabel("Lkvu2")
    A(f"s_cbranch_scc0 {Lk2}")
    A(f"s_branch {Lk}")
    A.label(Lk2)
    def idx40(dst, ja, jb):
        A(f"s_add_u32 s{dst}, s{sHead}, 32")
        A(f"s_cmp_eq_u32 s{sJ}, {jb}")
        A(f"s_cselect_b32 s{dst}, s{dst}, 99")
        A(f"s_cmp_eq_u32 s{sJ}, {ja}")
        A(f"s_cselect_b32 s{dst}, s{sHead}, s{dst}")

    def do_a1():
        A(f"s_mov_b32 s75, {WS_CNT + CNT_CONST:#x}")
        wait(75, 512)
        A(f"s_and_b32 s{sRB}, s85, 7")
        A(f"s_lshr_b32 s{sH}, s85, 3")
        parta.a1_body(A, 76, " sc1")
        A(f"s_mov_b32 s75, {WS_CNT + CNT_A1:#x}")
        signal(75)
    idx40(85, 1, 2)
    cond_block(["s_cmp_lt_u32 s85, 40"], do_a1)
    A(f"s_mov_b32 s{sRB}, s{sJ}")
    A(f"s_mov_b32 s{sH}, s{sHead}")
    kvu_body(A, 4, SC, seg_base=32, tl=tl)
    A(f"s_lshl_b32 s{sRB}, s{sJ}, 1")
    A(f"s_add_u32 s{sRB}, s{sRB}, 8")
    cnt_rbh(CNT_KVU)
    signal(75, 2, 4096)
    cnt_rbh(CNT_VU)
    signal(75, 2, 4096)

    def do_a2():
        A(f"s_mov_b32 s75, {WS_CNT + CNT_A1:#x}")
        wait(75, 40)
        La = A.newlabel("La2l")
        A.label(La)
        A(f"s_lshl_b32 s{sH}, s85, 2")
        A(f"s_add_u32 s{sH}, s{sH}, s{sWave}")
        cond_block([f"s_cmp_le_u32 s{sH}, 320"], lambda: parta.a2_body(A, " sc1"))
        A(f"s_mov_b32 s75, {WS_CNT + CNT_A2:#x}")
        signal(75)
        A("s_add_u32 s85, s85, 32")
        A("s_cmp_lt_u32 s85, 64")
        Lb = A.newlabel("La2e")
        A(f"s_cbranch_scc0 {Lb}")
        A(f"s_branch {La}")
        A.label(Lb)
    A(f"s_add_u32 s85, s{sHead}, 56")
    A(f"s_cmp_lt_u32 s{sHead}, 8")
    A(f"s_cselect_b32 s85, 99, s85")
    A(f"s_cmp_lt_u32 s{sJ}, 2")
    A(f"s_cselect_b32 s85, 99, s85")
    A(f"s_cmp_eq_u32 s{sJ}, 3")
    A(f"s_cselect_b32 s85, s{sHead}, s85")
    cond_block(["s_cmp_lt_u32 s85, 81"], do_a2)

    def do_a3():
        A(f"s_mov_b32 s75, {WS_CNT + CNT_A2:#x}")
        wait(75, 81)
        A(f"s_and_b32 s{sRB}, s{sHead}, 1")
        A(f"s_lshr_b32 s{sH}, s{sHead}, 1")
        parta.a3_body(A)
        A("s_barrier")
        tl()
    cond_block([f"s_cmp_eq_u32 s{sJ}, 3"], do_a3)
    def do_q():
        A(f"s_mov_b32 s{sRnd}, s{sJ}")
        Lq1 = A.newlabel("Lq")
        A.label(Lq1)
        A(f"s_mov_b32 s{sRB}, s{sRnd}")
        A(f"s_mov_b32 s{sH}, s{sHead}")
        q_body(A, " sc1")
        cnt_rbh(CNT_Q)
        signal(75)
        A(f"s_add_u32 s{sRnd}, s{sRnd}, 2")
        A(f"s_cmp_eq_u32 s{sRnd}, 3")
        Lq2 = A.newlabel("Lq")
        A(f"s_cbranch_scc0 {Lq2}")
        A(f"s_branch {Lq1}")
        A.label(Lq2)
    cond_block([f"s_cmp_lt_u32 s{sJ}, 3"], do_q)

    def do_att():
        A(f"s_mov_b32 s{sRnd}, 0")
        Lt = A.newlabel("Latt")
        A.label(Lt)
        A(f"s_mov_b32 s{sH}, s{sHead}")

        def wq():
            A(f"s_lshr_b32 s{sRB}, s{sRnd}, 2")
            cnt_rbh(CNT_Q)
            wait(75, 1)
        A(f"s_and_b32 s86, s{sRnd}, 3")
        cond_block(["s_cmp_eq_u32 s86, 0", f"s_cmp_lt_u32 s{sRnd}, 16"], wq)
        A(f"s_min_u32 s{sRB}, s{sRnd}, 15")
        A(f"s_lshr_b32 s86, s{sWave}, 1")
        A(f"s_add_u32 s86, s86, 15")
        A(f"s_cmp_lg_u32 s86, s{sRnd}")
        A("s_cselect_b32 s87, 1, 0")
        A(f"s_cmp_lt_u32 s{sRnd}, 15")
        A("s_cselect_b32 s87, 0, s87")

        def wkv():
            cnt_rbh(CNT_KVU)
            wait(75, 1)
            cnt_rbh(CNT_VU)
            wait(75, 1)
        cond_block([f"s_cmp_eq_u32 s{sRnd}, 0"], wkv)

        def hook():
            cnt_rbh(CNT_MEM)
            A(f"s_cmp_eq_u32 s{sRnd}, 15")
            A("s_cselect_b32 s86, 4096, 0")
            A("s_add_u32 s75, s75, s86")
            wait(75, 16)
        att_body(A, 2, " sc1", hook, rm_below=NRM, light=True, skip_sreg=87)
        A(f"s_lshl_b32 s75, s{sRnd}, 7")
        A(f"s_add_u32 s75, s75, {WS_CNT + CNT_ATT:#x}")
        signal(75)
        A(f"s_add_u32 s{sRnd}, s{sRnd}, 1")
        A(f"s_cmp_lt_u32 s{sRnd}, 17")
        Le = A.newlabel("Latte")
        A(f"s_cbranch_scc0 {Le}")
        A(f"s_branch {Lt}")
        A.label(Le)
        A("s_endpgm")
    cond_block([f"s_cmp_eq_u32 s{sJ}, 0"], do_att)

    def do_outp():
        A(f"s_mul_i32 s{sRB}, s85, 52")
        A(f"s_lshr_b32 s{sRB}, s{sRB}, 8")
        A(f"s_mul_i32 s{sTmp}, s{sRB}, 5")
        A(f"s_sub_u32 s{sH}, s85, s{sTmp}")
        A(f"s_lshl_b32 s75, s{sRB}, 7")
        A(f"s_add_u32 s75, s75, {WS_CNT + CNT_ATT:#x}")
        wait(75, 32)
        outp2_body(A)
        A("s_barrier")
        tl()
    assert all((c * 52) >> 8 == c // 5 for c in range(40))
    idx40(85, 2, 1)
    cond_block([f"s_cmp_lt_u32 s85, {5*NRM}"], do_outp)
    sF = 84
    A(f"s_sub_u32 s{sF}, s{sJ}, 2")
    A(f"s_lshl_b32 s{sF}, s{sF}, 5")
    A(f"s_cmp_eq_u32 s{sJ}, 1")
    A(f"s_cselect_b32 s{sF}, 64, s{sF}")
    A(f"s_add_u32 s{sF}, s{sF}, s{sHead}")

    def hook2(sBlk):
        A(f"s_cmp_ge_u32 s52, {8*(16-NRM) - 4}")
        A(f"s_cselect_b32 s86, 1, 0")
        A(f"s_add_u32 s75, s{sBlk}, s86")
        A(f"s_lshl_b32 s75, s75, 7")
        A(f"s_add_u32 s75, s75, {WS_CNT + CNT_ATT + NRM*128:#x}")
        wait(75, 32)
    outp_fast_body(A, sF, 8*NRM, hook2, nblk=16-NRM)
    tl()
```

```python
import struct
from asmlib import *
from layout import *


def f32bits(x):
    return struct.unpack("<I", struct.pack("<f", x))[0]


SPIN_MAX = 400000
WARM = 1
NST = 64
CDELAY = 7
KC = 1
DSLEEP = 24
AALL = 1
ADELAY = 0
VSPLIT = 4
EARLY = 1
VM1 = 0
VM2 = 0
KLATE = 0
PDELAY = 0
OOB = 0x7ff00000


def gen_rec(A, name="rec_kernel", prof=False, nsteps=64, exp=(), wrole=None):
    kernel_header(A, name)
    sWS, sM0, sW, sDBG = 4, 8, 12, 32
    sX, sT, sGrp, sMemb, sWave, sStep, sMode, sCnt = 36, 37, 38, 39, 40, 41, 42, 43
    sOffKM, sOffC, sOffD, sOffK, sTmp, sTmp2, sH, sOffU = 44, 45, 46, 47, 48, 49, 50, 51
    sRA, sRC, sRD, sRAp, sRCp, sRDp, sWarm, sOffUM = 90, 91, 92, 93, 94, 95, 96, 101
    sRCB = 101
    sMaskG = 54
    sC = 58
    sEnd = 59
    sCnts = 60
    sPr = 70
    R = RegAlloc(1, 256)
    vLane, vN, vG, vN8 = R.alloc(), R.alloc(), R.alloc(), R.alloc()
    vT0, vT1, vT2, vT3 = R.alloc(), R.alloc(), R.alloc(), R.alloc()
    vD0, vD2 = R.alloc(), R.alloc()
    vRAw, vRAr, vAst, vKMst = R.alloc(), R.alloc(), R.alloc(), R.alloc()
    vRAr2, vAst2, vVMst = R.alloc(), R.alloc(), R.alloc()
    vQo, vKo = R.alloc(), R.alloc()
    vRCw, vRCr, vCst = R.alloc(), R.alloc(), R.alloc()
    vCg = R.alloc(8)
    vDst = R.alloc()
    vK0, vK1, vU = R.alloc(), R.alloc(), R.alloc()
    vWarm = R.alloc()
    vNinf = R.alloc()
    vFlag, vSig, vOne = R.alloc(), R.alloc(), R.alloc()
    vU2 = R.alloc()
    vOnes = R.alloc(4)
    vSent = R.alloc(4)
    vDummy = R.alloc(4)
    vPub = R.alloc(2)
    vPub2 = R.alloc(2)
    assert R.next <= 64
    M = R.alloc(12)
    Mr = R.alloc(8)
    accA = R.alloc(24)
    Q = R.alloc(8)
    Qr = R.alloc(8)
    KM = R.alloc(16)
    VM = R.alloc(16)
    acc1, acc2, acc0 = R.alloc(4), R.alloc(4), R.alloc(4)
    accU = R.alloc(12)
    UA = R.alloc(6)
    P0 = R.alloc(4)
    PM, Blo = R.alloc(2), R.alloc(2)
    vMx, vMx2 = R.alloc(), R.alloc()
    vRz = R.alloc(2)
    accZ = R.alloc(4)
    accC = R.alloc(12)
    Cg = R.alloc(16)
    CR = KM
    TMP = 64
    aWA, aWC, aK, aU, aUn = 0, 120, 168, 200, 212

    def WA(t, ks):
        return a(aWA + (t * 5 + ks) * 4, 4)

    def WC(t, s_):
        return a(aWC + (t * 4 + s_) * 4, 4)

    LDS_RA = 65536
    LDS_RC = 65536 + 12288
    LDS_ROLE = 163840 - 16

    Lend = A.newlabel("Lend")
    Lfail = A.newlabel("Lfail")
    WSR = f"s[{sWS}:{sWS+3}]"

    def rtl(cond8=False):
        if "tl" not in exp:
            return
        Ls = A.newlabel("Lrtl")
        A(f"s_cmp_lg_u32 s{sWave}, 3")
        A(f"s_cbranch_scc1 {Ls}")
        if cond8:
            A(f"s_and_b32 s70, s{sStep}, 7")
            A(f"s_cmp_lg_u32 s70, 0")
            A(f"s_cbranch_scc1 {Ls}")
        A("s_memrealtime s[72:73]")
        A("s_waitcnt lgkmcnt(0)")
        A("s_mov_b64 exec, 1")
        A(f"v_mov_b32 {v(vT0)}, s72")
        A(f"v_mov_b32 {v(vT1)}, 0")
        A(f"buffer_store_dword {v(vT0)}, {v(vT1)}, {WSR}, s71 offen")
        A("s_mov_b64 exec, -1")
        A("s_add_u32 s71, s71, 4")
        A.label(Ls)

    def dbgmax(slot, wgsel=None):
        if "dbg" not in exp:
            return
        Ls = A.newlabel("Ldbg")
        A("s_memrealtime s[72:73]")
        A("s_load_dwordx2 s[88:89], s[0:1], 88")
        A("s_waitcnt lgkmcnt(0)")
        if slot != 1:
            A(f"s_cmp_lg_u32 s99, {5 if wgsel is None else wgsel}")
            A(f"s_cbranch_scc1 {Ls}")
            A("s_and_b32 s84, s98, 3")
            A("s_cmp_lg_u32 s84, 1")
            A(f"s_cbranch_scc1 {Ls}")
        else:
            A("s_cmp_lg_u32 s2, 0")
            A(f"s_cbranch_scc1 {Ls}")
        A("s_mov_b32 s84, s88")
        A("s_and_b32 s85, s89, 0xffff")
        A("s_mov_b32 s86, 256")
        A("s_mov_b32 s87, 0x00020000")
        A("v_cmp_eq_u32 vcc, 0, v0")
        A("s_and_saveexec_b64 s[88:89], vcc")
        Lx = A.newlabel("Ldbg")
        A(f"s_cbranch_execz {Lx}")
        A("s_and_b32 s72, s72, 0xffffff")
        A("v_mov_b32 v4, s72")
        A(f"v_mov_b32 v5, {slot*4}")
        A("buffer_store_dword v4, v5, s[84:87], 0 offen")
        A.label(Lx)
        A("s_mov_b64 exec, -1")
        A("v_and_b32 v4, 7, v0")
        A.label(Ls)

    def stamp(i):
        if not prof:
            return
        if "rt" in exp:
            Ls = A.newlabel("Lst")
            A(f"s_cmp_lg_u32 s{sStep}, {30 if i != 13 else 31}")
            A(f"s_cbranch_scc1 {Ls}")
            A(f"s_memrealtime s[88:89]")
            A("s_waitcnt lgkmcnt(0)")
            A(f"s_mov_b32 s{sPr+i}, s88")
            A.label(Ls)
            return
        A(f"s_memtime s[88:89]")
        A("s_waitcnt lgkmcnt(0)")
        A(f"s_sub_u32 s{sTmp2}, s88, s86")
        A(f"s_add_u32 s{sPr+i}, s{sPr+i}, s{sTmp2}")
        A("s_mov_b32 s86, s88")

    sKX, sKT, sKR = 98, 99, 97
    assert not prof or not wrole
    A("s_cmp_ge_u32 s2, 256")
    A(f"s_cbranch_scc1 {Lend}")
    if "tl" in exp:
        A("s_memrealtime s[68:69]")
    A(f"s_mov_b32 s{sKR}, 0")
    dbgmax(1)
    Lentry = A.newlabel("Lentry")
    A.label(Lentry)
    A("s_waitcnt vmcnt(0) lgkmcnt(0)")
    A("s_load_dwordx8 s[16:23], s[0:1], 32")
    A("s_load_dwordx2 s[24:25], s[0:1], 64")
    A("s_load_dwordx4 s[28:31], s[0:1], 88")
    A(f"v_and_b32 {v(vLane)}, 63, v0")
    A(f"v_lshrrev_b32 {v(vT0)}, 6, v0")
    A(f"v_and_b32 {v(vN)}, 15, v0")
    A(f"v_readfirstlane_b32 s{sWave}, {v(vT0)}")
    A(f"v_bfe_u32 {v(vG)}, v0, 4, 2")
    A(f"v_and_b32 {v(vN8)}, 7, v0")
    A("s_waitcnt lgkmcnt(0)")
    make_srd(A, sWS, 30, WS_BYTES)
    make_srd(A, sM0, 16, 10240)
    make_srd(A, sDBG, 28, 256)
    make_srd(A, sW, 18, 640 * 4096 * 2)

    def confirm(swave, force_jump=False):
        Lskip, Lw0, Lp = A.newlabel("Lcf"), A.newlabel("Lcf0"), A.newlabel("Lcfp")
        A(f"s_cmp_lg_u32 s{sKR}, 0")
        A(f"s_cbranch_scc1 {Lskip}")
        A(f"s_cmp_lg_u32 s{swave}, 0")
        A(f"s_cbranch_scc1 {Lw0}")
        A("s_load_dwordx2 s[88:89], s[0:1], 88")
        A("v_and_b32 v4, 7, v0")
        A("v_lshlrev_b32 v4, 5, v4")
        A("v_bfe_u32 v5, v0, 3, 1")
        A("v_lshl_add_u32 v4, v5, 2, v4")
        A("v_add_u32 v4, 16, v4")
        A("s_mov_b64 exec, 0xffff")
        A("s_mov_b32 s43, 0")
        A("s_waitcnt lgkmcnt(0)")
        A("s_and_b32 s89, s89, 0xffff")
        A("s_mov_b32 s90, 256")
        A("s_mov_b32 s91, 0x00020000")
        A.label(Lp)
        A("buffer_load_dword v5, v4, s[88:91], 0 offen sc1")
        A("s_waitcnt vmcnt(0)")
        for i in range(8):
            A(f"v_readlane_b32 s{sCnts+i}, v5, {i}")
        A("v_readlane_b32 s48, v5, 8")
        for i in range(9, 16):
            A(f"v_readlane_b32 s49, v5, {i}")
            A("s_nop 3")
            A("s_add_u32 s48, s48, s49")
        A("s_add_u32 s43, s43, 1")
        A(f"s_cmp_gt_u32 s43, {SPIN_MAX}")
        Lok = A.newlabel("Lcfo")
        A(f"s_cbranch_scc0 {Lok}")
        A("s_endpgm")
        A.label(Lok)
        A("s_cmp_lt_u32 s48, 256")
        A(f"s_cbranch_scc1 {Lp}")
        A(f"s_min_u32 s48, s{sCnts}, s{sCnts+1}")
        for i in range(2, 8):
            A(f"s_min_u32 s48, s48, s{sCnts+i}")
        A(f"s_mov_b32 s49, s{sKT}")
        for i in range(7):
            A(f"s_cmp_gt_u32 s{sKX}, {i}")
            A(f"s_cselect_b32 s43, s{sCnts+i}, 0")
            A("s_add_u32 s49, s49, s43")
        A("s_or_b32 s49, s49, 0x300")
        A(f"s_lshl_b32 s43, s{sKX}, 5")
        A(f"s_add_u32 s43, s43, s{sKT}")
        A("s_or_b32 s43, s43, 0x200")
        A(f"s_cmp_ge_u32 s48, {33 if 'slow' in exp else 32}")
        A("s_cselect_b32 s43, s43, s49")
        A("s_mov_b64 exec, 1")
        A(f"v_mov_b32 v4, {LDS_ROLE}")
        A("v_mov_b32 v5, s43")
        A("ds_write_b32 v4, v5")
        A("s_waitcnt lgkmcnt(0)")
        A("s_mov_b64 exec, -1")
        A.label(Lw0)
        A("s_barrier")
        A(f"v_mov_b32 v4, {LDS_ROLE}")
        A("ds_read_b32 v5, v4")
        A("s_waitcnt lgkmcnt(0)")
        A(f"v_readfirstlane_b32 s{sKR}, v5")
        A("s_nop 3")
        A("s_barrier")
        if force_jump:
            A(f"s_branch {Lentry}")
        else:
            A(f"s_bitcmp1_b32 s{sKR}, 8")
            A(f"s_cbranch_scc0 {Lskip}")
            A(f"s_branch {Lentry}")
        A.label(Lskip)

    Lhave = A.newlabel("Lhave")
    A(f"s_mov_b32 s{sCnt}, s{sKR}")
    A(f"s_cmp_lg_u32 s{sKR}, 0")
    A(f"s_cbranch_scc1 {Lhave}")
    A(f"s_getreg_b32 s{sKX}, hwreg(HW_REG_XCC_ID)")
    A(f"s_and_b32 s{sKX}, s{sKX}, 7")
    import parta
    A(f"s_add_u32 s61, s{sWS}, {WS_RC + 0x1fffff:#x}")
    A("s_and_b32 s61, s61, 0xffe00000")
    A(f"s_sub_u32 s61, s61, s{sWS}")
    A(f"s_sub_u32 s61, s61, {WS_RC:#x}")
    A(f"v_lshlrev_b32 {v(vT0)}, 4, v0")
    for k in range((parta.NB_INIT + 255) // 256):
        A(f"s_add_u32 s60, s2, {k*256}")
        A("s_lshl_b32 s62, s60, 12")
        A(f"s_add_u32 s63, s62, {WS_CNT:#x}")
        A("s_mov_b32 s64, 0")
        base = parta.NB_ZERO
        for off, n in parta.FILL_RANGES:
            A(f"s_add_u32 s65, s62, {off - base*4096:#x}")
            if off == WS_RC:
                A("s_add_u32 s65, s65, s61")
            A(f"s_cmp_ge_u32 s60, {base}")
            A("s_cselect_b32 s63, s65, s63")
            A("s_cselect_b32 s64, -1, s64")
            base += n // 4096
        A(f"s_cmp_ge_u32 s60, {parta.NB_INIT}")
        A(f"s_cselect_b32 s63, {OOB:#x}, s63")
        for i in range(4):
            A(f"v_mov_b32 v{64+k*4+i}, s64")
        A(f"buffer_store_dwordx4 v[{64+k*4}:{67+k*4}], {v(vT0)}, {WSR}, s63 offen sc1")
    Lel_done = A.newlabel("Lel")
    A(f"s_cmp_lg_u32 s{sWave}, 0")
    A(f"s_cbranch_scc1 {Lel_done}")
    A(f"s_lshl_b32 s{sTmp}, s{sKX}, 5")
    A(f"s_add_u32 s{sTmp}, s{sTmp}, 16")
    A(f"v_mov_b32 {v(vT0)}, s{sTmp}")
    A(f"v_mov_b32 {v(vT1)}, 1")
    A("s_mov_b64 exec, 1")
    A(f"buffer_atomic_add {v(vT1)}, {v(vT0)}, s[{sDBG}:{sDBG+3}], 0 offen sc0")
    A(f"v_mov_b32 {v(vT0)}, {LDS_ROLE}")
    A("s_waitcnt vmcnt(0)")
    A(f"ds_write_b32 {v(vT0)}, {v(vT1)}")
    A("s_waitcnt lgkmcnt(0)")
    A("s_mov_b64 exec, -1")
    A.label(Lel_done)
    A("s_waitcnt vmcnt(0)")
    A("s_barrier")
    A(f"v_mov_b32 {v(vT0)}, {LDS_ROLE}")
    A(f"ds_read_b32 {v(vT1)}, {v(vT0)}")
    A("s_waitcnt lgkmcnt(0)")
    A(f"v_readfirstlane_b32 s{sKT}, {v(vT1)}")
    A("s_nop 3")
    A("s_barrier")
    Lid = A.newlabel("Lid")
    A(f"s_cmp_lg_u32 s{sWave}, 0")
    A(f"s_cbranch_scc1 {Lid}")
    A("s_mov_b64 exec, 1")
    A(f"s_lshl_b32 s{sTmp}, s{sKX}, 5")
    A(f"s_add_u32 s{sTmp}, s{sTmp}, 20")
    A(f"v_mov_b32 {v(vT0)}, s{sTmp}")
    A(f"v_mov_b32 {v(vT1)}, 1")
    A(f"buffer_atomic_add {v(vT1)}, {v(vT0)}, s[{sDBG}:{sDBG+3}], 0 offen")
    A("s_mov_b64 exec, -1")
    A.label(Lid)
    Lsp = A.newlabel("Lsp")
    A(f"s_cmp_lt_u32 s{sKT}, 32")
    A(f"s_cbranch_scc1 {Lsp}")
    confirm(sWave, force_jump=True)
    A.label(Lsp)
    A(f"s_lshl_b32 s{sCnt}, s{sKX}, 5")
    A(f"s_add_u32 s{sCnt}, s{sCnt}, s{sKT}")
    A.label(Lhave)
    A(f"s_bfe_u32 s{sMode}, s{sCnt}, 0x10008")
    A(f"s_and_b32 s{sCnt}, s{sCnt}, 255")
    Lw = A.newlabel("Lwrole")
    Lr = A.newlabel("Lrrole")
    A(f"s_cmp_ge_u32 s{sCnt}, 128")
    if wrole:
        A(f"s_cbranch_scc0 {Lr}")
        A(f"s_branch {Lw}")
        A.label(Lr)
    else:
        A(f"s_cbranch_scc0 {Lr}")
        confirm(sWave)
        A(f"s_branch {Lend}")
        A.label(Lr)
    A(f"s_lshr_b32 s{sGrp}, s{sCnt}, 4")
    A(f"s_and_b32 s{sMemb}, s{sCnt}, 15")
    A(f"s_lshl_b32 s71, s{sCnt}, 8")
    A(f"s_add_u32 s71, s71, {WS_PROF:#x}")
    if "tl" in exp:
        A("s_mov_b64 exec, 1")
        A(f"v_mov_b32 {v(vT0)}, s68")
        A(f"v_mov_b32 {v(vT1)}, 0")
        A(f"buffer_store_dword {v(vT0)}, {v(vT1)}, {WSR}, s71 offen")
        A("s_mov_b64 exec, -1")
        A("s_add_u32 s71, s71, 4")
    rtl()

    A(f"s_mov_b32 s{sMaskG}, -1")
    A(f"s_mov_b32 s{sMaskG+1}, 0")
    A(f"s_mov_b32 s{sC}, {f32bits(SCALE*LOG2E):#x}")
    A(f"v_mov_b32 {v(vNinf)}, 0xff800000")
    for i in range(4):
        A(f"v_mov_b32 {v(vOnes+i)}, 0x3f803f80")
        A(f"v_mov_b32 {v(vSent+i)}, -1")

    A(f"s_lshr_b32 s{sTmp}, s{sMemb}, 2")
    A(f"s_lshl_b32 s{sH}, s{sGrp}, 2")
    A(f"s_add_u32 s{sH}, s{sH}, s{sTmp}")
    A(f"s_and_b32 s{sTmp}, s{sMemb}, 3")
    A(f"s_lshl_b32 s{sTmp2}, s{sH}, 8")
    A(f"s_lshl_b32 s{sCnt}, s{sTmp}, 6")
    A(f"s_add_u32 s{sTmp2}, s{sTmp2}, s{sCnt}")
    A(f"s_mul_i32 s{sCnt}, s{sWave}, {160*8192}")
    A(f"s_add_u32 s{sTmp2}, s{sTmp2}, s{sCnt}")
    A(f"v_lshrrev_b32 {v(vT0)}, 2, {v(vLane)}")
    A(f"v_lshlrev_b32 {v(vT0)}, 13, {v(vT0)}")
    A(f"v_and_b32 {v(vT1)}, 3, {v(vLane)}")
    A(f"v_lshl_add_u32 {v(vT0)}, {v(vT1)}, 4, {v(vT0)}")
    A(f"v_add_u32 {v(vT0)}, s{sTmp2}, {v(vT0)}")
    for m in range(3):
        if m:
            make_srd(A, sW, 18 + 2 * m, 640 * 4096 * 2)
        for i in range(10):
            A(f"s_mov_b32 s{sCnt}, {i*131072}")
            A(f"buffer_load_dwordx4 {v(TMP+(m*10+i)*4,4)}, {v(vT0)}, s[{sW}:{sW+3}], s{sCnt} offen")
    make_srd(A, sW, 24, 4096 * 640 * 2)
    A(f"s_lshl_b32 s{sTmp2}, s{sGrp}, 2")
    A(f"s_add_u32 s{sTmp2}, s{sTmp2}, s{sWave}")
    A(f"s_mul_i32 s{sTmp2}, s{sTmp2}, {128*1280}")
    A(f"s_mul_i32 s{sCnt}, s{sMemb}, 80")
    A(f"s_add_u32 s{sTmp2}, s{sTmp2}, s{sCnt}")
    A(f"v_lshrrev_b32 {v(vT1)}, 3, {v(vLane)}")
    A(f"v_mul_u32_u24 {v(vT1)}, 1280, {v(vT1)}")
    A(f"v_and_b32 {v(vT2)}, 7, {v(vLane)}")
    A(f"v_lshl_add_u32 {v(vT1)}, {v(vT2)}, 4, {v(vT1)}")
    A(f"v_add_u32 {v(vT1)}, s{sTmp2}, {v(vT1)}")
    for i in range(16):
        A(f"s_mov_b32 s{sCnt}, {i*8*1280}")
        A(f"buffer_load_dwordx4 {v(TMP+120+i*4,4)}, {v(vT1)}, s[{sW}:{sW+3}], s{sCnt} offen")
    A(f"s_lshl_b32 s{sTmp2}, s{sWave}, 14")
    A(f"v_lshlrev_b32 {v(vT0)}, 4, {v(vLane)}")
    A(f"v_add_u32 {v(vT0)}, s{sTmp2}, {v(vT0)}")
    A(f"v_lshrrev_b32 {v(vT1)}, 2, {v(vN)}")
    A(f"v_lshl_add_u32 {v(vT2)}, {v(vG)}, 3, {v(vT1)}")
    A(f"v_lshlrev_b32 {v(vT2)}, 6, {v(vT2)}")
    A(f"v_and_b32 {v(vT3)}, 3, {v(vN)}")
    A(f"v_lshl_add_u32 {v(vT2)}, {v(vT3)}, 3, {v(vT2)}")
    A(f"v_add_u32 {v(vT2)}, s{sTmp2}, {v(vT2)}")
    for m in range(3):
        A(f"s_waitcnt vmcnt({(2-m)*10+16})")
        for i in range(10):
            A(f"ds_write_b128 {v(vT0)}, {v(TMP+(m*10+i)*4,4)} offset:{i*1024}")
        for tt in range(2):
            for ks in range(5):
                r0 = aWA + ((m * 2 + tt) * 5 + ks) * 4
                A(f"ds_read_b64_tr_b16 {a(r0,2)}, {v(vT2)} offset:{ks*2048+tt*32}")
                A(f"ds_read_b64_tr_b16 {a(r0+2,2)}, {v(vT2)} offset:{ks*2048+tt*32+256}")
            A("s_waitcnt lgkmcnt(0)")
    A(f"v_lshl_add_u32 {v(vT2)}, {v(vG)}, 2, {v(vT1)}")
    A(f"v_lshlrev_b32 {v(vT2)}, 7, {v(vT2)}")
    A(f"v_lshl_add_u32 {v(vT2)}, {v(vT3)}, 3, {v(vT2)}")
    A(f"v_add_u32 {v(vT2)}, s{sTmp2}, {v(vT2)}")
    A("s_waitcnt vmcnt(0)")
    for i in range(16):
        A(f"ds_write_b128 {v(vT0)}, {v(TMP+120+i*4,4)} offset:{i*1024}")
        if i % 8 == 7:
            A("s_waitcnt lgkmcnt(0)")
    for tt in range(3):
        for s_ in range(4):
            r0 = aWC + (tt * 4 + s_) * 4
            A(f"ds_read_b64_tr_b16 {a(r0,2)}, {v(vT2)} offset:{s_*4096+tt*32}")
            A(f"ds_read_b64_tr_b16 {a(r0+2,2)}, {v(vT2)} offset:{s_*4096+tt*32+2048}")
        A("s_waitcnt lgkmcnt(0)")

    dbgmax(8)
    confirm(sWave)
    dbgmax(9)
    A(f"v_and_b32 {v(vN8)}, 7, v0")
    if wrole:
        import parta
        A("s_load_dwordx4 s[24:27], s[0:1], 8")
        A(f"s_lshl_b32 s{sEnd}, s{sGrp}, 4")
        A(f"s_add_u32 s{sEnd}, s{sEnd}, s{sMemb}")
        A("s_waitcnt lgkmcnt(0)")
        Lcu, Lcx, Lcy = A.newlabel("Lcu"), A.newlabel("Lcx"), A.newlabel("Lcy")
        A(f"s_cmp_lg_u32 s{sEnd}, 0")
        A(f"s_cbranch_scc1 {Lcy}")
        A(f"s_branch {Lcx}")
        A.label(Lcy)
        A(f"s_sub_u32 s{sEnd}, s{sEnd}, 1")
        parta.wt_batch(A, sEnd, sWave)
        A.label(Lcu)
        parta.const_unit(A, sEnd)
        A(f"s_add_u32 s{sEnd}, s{sEnd}, 127")
        A(f"s_cmp_le_u32 s{sEnd}, {parta.NB_FG}")
        A(f"s_cbranch_scc1 {Lcu}")
        A.label(Lcx)
        A("s_waitcnt vmcnt(0)")
        A("s_barrier")
        A("s_mov_b64 exec, 1")
        A("v_mov_b32 v1, 1")
        A("v_mov_b32 v2, 0")
        A(f"s_mov_b32 s{sTmp}, {WS_CNT + CNT_CONST:#x}")
        A(f"buffer_atomic_add v1, v2, {WSR}, s{sTmp} offen")
        A("s_mov_b64 exec, -1")
        A("s_load_dwordx2 s[16:17], s[0:1], 32")
        A(f"v_and_b32 {v(vLane)}, 63, v0")
        A(f"v_and_b32 {v(vN)}, 15, v0")
        A(f"v_bfe_u32 {v(vG)}, v0, 4, 2")
        A(f"v_and_b32 {v(vN8)}, 7, v0")
        A(f"v_mov_b32 {v(vNinf)}, 0xff800000")
        for i in range(4):
            A(f"v_mov_b32 {v(vOnes+i)}, 0x3f803f80")
            A(f"v_mov_b32 {v(vSent+i)}, -1")
        A("s_waitcnt lgkmcnt(0)")
        make_srd(A, sM0, 16, 10240)
    A(f"v_mul_u32_u24 {v(vT0)}, 1280, {v(vN8)}")
    A(f"v_lshl_add_u32 {v(vT0)}, {v(vG)}, 4, {v(vT0)}")
    A(f"s_mul_i32 s{sTmp}, s{sWave}, 320")
    A(f"v_add_u32 {v(vT0)}, s{sTmp}, {v(vT0)}")
    A(f"v_add_u32 {v(Cg+1)}, 256, {v(vT0)}")
    A(f"v_lshrrev_b32 {v(vT1)}, 3, {v(vN)}")
    A(f"v_lshl_add_u32 {v(Cg)}, {v(vT1)}, 6, {v(vT0)}")
    A(f"s_mul_i32 s{sTmp}, s{sWave}, 2560")
    A(f"v_lshlrev_b32 {v(vT0)}, 4, {v(vLane)}")
    A(f"v_add_u32 {v(vD0)}, s{sTmp}, {v(vT0)}")
    A(f"v_lshl_add_u32 {v(vT1)}, {v(vG)}, 3, {v(vN8)}")
    A(f"v_lshlrev_b32 {v(vT1)}, 4, {v(vT1)}")
    A(f"s_add_u32 s{sTmp}, s{sTmp}, 2048")
    A(f"v_add_u32 {v(vD2)}, s{sTmp}, {v(vT1)}")
    A(f"s_lshl_b32 s{sTmp2}, s{sGrp}, 2")
    A(f"s_add_u32 s{sTmp2}, s{sTmp2}, s{sWave}")
    A(f"s_mul_i32 s{sTmp}, s{sTmp2}, 6144")
    A(f"v_add_u32 {v(vQo)}, s{sTmp}, {v(vT0)}")
    A(f"v_add_u32 {v(vKo)}, 2048, {v(vQo)}")
    A(f"s_lshl_b32 s{sTmp}, s{sTmp2}, 13")
    A(f"v_add_u32 {v(vK0)}, s{sTmp}, {v(vT0)}")
    A(f"v_add_u32 {v(vK1)}, 4096, {v(vK0)}")
    A(f"s_mul_i32 s{sTmp}, s{sTmp2}, 40960")
    A(f"s_mul_i32 s{sCnt}, s{sMemb}, 2560")
    A(f"s_add_u32 s{sTmp}, s{sTmp}, s{sCnt}")
    A(f"v_lshrrev_b32 {v(vT2)}, 3, {v(vN)}")
    A(f"v_lshl_add_u32 {v(vU)}, {v(vT2)}, 9, {v(vT1)}")
    A(f"v_add_u32 {v(vU)}, s{sTmp}, {v(vU)}")
    A(f"v_mov_b32 {v(vU2)}, {OOB:#x}")
    A(f"v_cmp_gt_u32 vcc, 8, {v(vN)}")
    A("s_nop 1")
    A(f"v_cndmask_b32 {v(vU2)}, {v(vU2)}, {v(vU)}, vcc")
    A(f"s_mul_i32 s{sTmp}, s{sWave}, 3072")
    A(f"s_add_u32 s{sCnt}, s{sTmp}, {LDS_RA}")
    A(f"v_add_u32 {v(vRAw)}, s{sCnt}, {v(vT0)}")
    A(f"s_add_u32 s{sCnt}, s{sTmp}, {LDS_RC}")
    A(f"v_add_u32 {v(vRCw)}, s{sCnt}, {v(vT0)}")
    def reader(ubase_mul, ubase_add, nl, rdst, adst, pdst, pbase):
        A(f"s_mul_i32 s{sTmp}, s{sWave}, {ubase_mul}")
        A(f"s_add_u32 s{sTmp}, s{sTmp}, {ubase_add}")
        A(f"v_add_u32 {v(vT0)}, s{sTmp}, {v(vLane)}")
        A(f"v_lshrrev_b32 {v(vT1)}, 6, {v(vT0)}")
        A(f"v_bfe_u32 {v(vT2)}, {v(vT0)}, 1, 3")
        A(f"v_bfe_u32 {v(vT3)}, {v(vT0)}, 4, 2")
        A(f"v_and_b32 {v(vT0)}, 1, {v(vT0)}")
        A(f"v_lshl_add_u32 {v(rdst)}, {v(vT3)}, 4, {v(vT2)}")
        A(f"v_lshlrev_b32 {v(adst)}, 4, {v(rdst)}")
        A(f"v_lshl_add_u32 {v(rdst)}, {v(vT0)}, 3, {v(rdst)}")
        A(f"v_lshlrev_b32 {v(rdst)}, 4, {v(rdst)}")
        A(f"v_lshl_add_u32 {v(rdst)}, {v(vT1)}, 10, {v(rdst)}")
        A(f"v_add_u32 {v(rdst)}, {LDS_RA}, {v(rdst)}")
        A(f"s_and_b32 s{sTmp}, s{sMemb}, 3")
        A(f"s_lshr_b32 s{sTmp2}, s{sTmp}, 1")
        A(f"s_lshl_b32 s{sTmp2}, s{sTmp2}, 10")
        A(f"s_and_b32 s{sCnt}, s{sTmp}, 1")
        A(f"s_lshl_b32 s{sCnt}, s{sCnt}, 7")
        A(f"s_add_u32 s{sTmp2}, s{sTmp2}, s{sCnt}")
        A(f"s_mul_i32 s{sCnt}, s{sH}, 6144")
        A(f"s_add_u32 s{sTmp2}, s{sTmp2}, s{sCnt}")
        A(f"v_add_u32 {v(adst)}, s{sTmp2}, {v(adst)}")
        A(f"v_lshl_add_u32 {v(adst)}, {v(vT0)}, 3, {v(adst)}")
        A(f"v_lshl_add_u32 {v(adst)}, {v(vT1)}, 11, {v(adst)}")
        A(f"s_lshl_b32 s{sTmp2}, s{sTmp}, 9")
        A(f"s_lshl_b32 s{sCnt}, s{sH}, 11")
        A(f"s_add_u32 s{sTmp2}, s{sTmp2}, s{sCnt}")
        A(f"s_add_u32 s{sTmp2}, s{sTmp2}, {pbase:#x}")
        A(f"v_lshl_add_u32 {v(vT2)}, {v(vT3)}, 3, {v(vT2)}")
        A(f"v_lshlrev_b32 {v(vT2)}, 4, {v(vT2)}")
        A(f"v_lshl_add_u32 {v(vT2)}, {v(vT0)}, 3, {v(vT2)}")
        A(f"v_add_u32 {v(pdst)}, s{sTmp2}, {v(vT2)}")
        A(f"v_mov_b32 {v(vT3)}, {OOB:#x}")
        A(f"v_cmp_eq_u32 vcc, 0, {v(vT1)}")
        A("s_nop 1")
        A(f"v_cndmask_b32 {v(pdst)}, {v(pdst)}, {v(vT3)}, vcc")
        A(f"v_cmp_gt_u32 vcc, {nl}, {v(vLane)}")
        A("s_nop 1")
        A(f"v_cndmask_b32 {v(pdst)}, {v(vT3)}, {v(pdst)}, vcc")
        A(f"v_cndmask_b32 {v(adst)}, {v(vT3)}, {v(adst)}, vcc")
        A(f"v_cndmask_b32 {v(rdst)}, {v(vRAw)}, {v(rdst)}, vcc")
    reader(32, 0, 32, vRAr, vAst, vKMst, 0)
    reader(16, 128, 16, vRAr2, vAst2, vVMst, WS_VM - WS_KM)
    A(f"s_and_b32 s{sTmp}, s{sGrp}, 1")
    A(f"s_cmp_lt_u32 s{sWave}, 2")
    A(f"s_cselect_b32 s{sTmp}, s{sWave}, s{sTmp}")
    A(f"v_lshrrev_b32 {v(vT1)}, 3, {v(vLane)}")
    A(f"v_and_b32 {v(vT2)}, 1, {v(vLane)}")
    A(f"v_lshl_add_u32 {v(vT0)}, {v(vT1)}, 1, {v(vT2)}")
    A(f"v_bfe_u32 {v(vT2)}, {v(vLane)}, 1, 2")
    A(f"s_lshl_b32 s{sTmp2}, s{sTmp}, 2")
    A(f"v_add_u32 {v(vT2)}, s{sTmp2}, {v(vT2)}")
    A(f"v_and_b32 {v(vT3)}, 3, {v(vT0)}")
    A(f"v_lshl_add_u32 {v(vT3)}, {v(vT3)}, 4, {v(vT2)}")
    A(f"v_lshlrev_b32 {v(vT3)}, 4, {v(vT3)}")
    A(f"v_lshrrev_b32 {v(vT0)}, 2, {v(vT0)}")
    A(f"v_lshl_add_u32 {v(vT3)}, {v(vT0)}, 10, {v(vT3)}")
    A(f"v_add_u32 {v(vRCr)}, {LDS_RC}, {v(vT3)}")
    A(f"s_mul_i32 s{sCnt}, s{sMemb}, 43")
    A(f"s_lshr_b32 s{sCnt}, s{sCnt}, 8")
    A(f"s_mul_i32 s{sTmp2}, s{sMemb}, 1280")
    A(f"s_mul_i32 s{sCnt}, s{sCnt}, {16384 - 6*1280}")
    A(f"s_add_u32 s{sTmp2}, s{sTmp2}, s{sCnt}")
    A(f"s_mul_i32 s{sTmp}, s{sTmp}, 640")
    A(f"s_add_u32 s{sTmp}, s{sTmp}, s{sTmp2}")
    A(f"v_lshlrev_b32 {v(vT0)}, 4, {v(vLane)}")
    A(f"v_add_u32 {v(vCst)}, s{sTmp}, {v(vT0)}")
    for r in range(1, 8):
        A(f"s_xor_b32 s{sTmp2}, s{sGrp}, {r}")
        A(f"s_mul_i32 s{sTmp2}, s{sTmp2}, {RC_GRP}")
        A(f"v_add_u32 {v(vCg+r)}, s{sTmp2}, {v(vCst)}")
    A(f"s_mul_i32 s{sTmp}, s{sMemb}, 5")
    A(f"v_add_u32 {v(vT1)}, s{sTmp}, {v(vT1)}")
    A(f"v_lshlrev_b32 {v(vDst)}, 4, {v(vT2)}")
    A(f"v_and_b32 {v(vT2)}, 1, {v(vLane)}")
    A(f"v_lshl_add_u32 {v(vDst)}, {v(vT2)}, 3, {v(vDst)}")
    A(f"v_mul_u32_u24 {v(vT2)}, 205, {v(vT1)}")
    A(f"v_lshrrev_b32 {v(vT2)}, 12, {v(vT2)}")
    A(f"v_mul_u32_u24 {v(vT3)}, 20, {v(vT2)}")
    A(f"v_sub_u32 {v(vT1)}, {v(vT1)}, {v(vT3)}")
    A(f"v_mul_u32_u24 {v(vT2)}, 2560, {v(vT2)}")
    A(f"v_add_u32 {v(vDst)}, {v(vDst)}, {v(vT2)}")
    A(f"v_and_b32 {v(vT2)}, 3, {v(vT1)}")
    A(f"v_lshrrev_b32 {v(vT1)}, 2, {v(vT1)}")
    A(f"v_lshrrev_b32 {v(vT3)}, 1, {v(vT1)}")
    A(f"v_lshl_add_u32 {v(vDst)}, {v(vT3)}, 10, {v(vDst)}")
    A(f"v_and_b32 {v(vT3)}, 1, {v(vT1)}")
    A(f"v_lshl_add_u32 {v(vDst)}, {v(vT3)}, 7, {v(vDst)}")
    A(f"v_lshlrev_b32 {v(vT3)}, 8, {v(vT2)}")
    A(f"v_lshlrev_b32 {v(vT2)}, 7, {v(vT2)}")
    A(f"v_cmp_gt_u32 vcc, 4, {v(vT1)}")
    A("s_nop 1")
    A(f"v_cndmask_b32 {v(vT2)}, {v(vT2)}, {v(vT3)}, vcc")
    A(f"v_add_u32 {v(vDst)}, {v(vDst)}, {v(vT2)}")
    A(f"s_lshl_b32 s{sTmp}, s{sMemb}, 1")
    A(f"s_and_b32 s{sTmp2}, s{sWave}, 1")
    A(f"s_add_u32 s{sTmp}, s{sTmp}, s{sTmp2}")
    A(f"s_lshl_b32 s{sTmp}, s{sTmp}, 10")
    A(f"s_lshl_b32 s{sTmp2}, s{sGrp}, 15")
    A(f"s_add_u32 s{sTmp}, s{sTmp}, s{sTmp2}")
    A(f"v_lshlrev_b32 {v(vWarm)}, 4, {v(vLane)}")
    A(f"v_add_u32 {v(vWarm)}, s{sTmp}, {v(vWarm)}")

    A(f"s_lshl_b32 s{sTmp}, s{sGrp}, 9")
    A(f"v_and_b32 {v(vT0)}, 3, {v(vLane)}")
    A(f"v_lshlrev_b32 {v(vT0)}, 7, {v(vT0)}")
    A(f"v_add_u32 {v(vFlag)}, s{sTmp}, {v(vT0)}")
    A(f"v_bfe_u32 {v(vT0)}, {v(vLane)}, 2, 1")
    A(f"v_mul_u32_u24 {v(vT0)}, {CNT_VU - CNT_KVU:#x}, {v(vT0)}")
    A(f"v_add_u32 {v(vFlag)}, {v(vFlag)}, {v(vT0)}")
    A(f"s_lshl_b32 s{sTmp}, s{sH}, 7")
    A(f"v_mov_b32 {v(vSig)}, s{sTmp}")
    A(f"v_mov_b32 {v(vT0)}, {OOB:#x}")
    A(f"v_cmp_eq_u32 vcc, 0, {v(vLane)}")
    A("s_nop 1")
    A(f"v_cndmask_b32 {v(vSig)}, {v(vT0)}, {v(vSig)}, vcc")
    A(f"v_mov_b32 {v(vOne)}, 1")

    A(f"s_add_u32 s{sRCB}, s{sWS}, {WS_RC + 0x1fffff:#x}")
    A(f"s_and_b32 s{sRCB}, s{sRCB}, 0xffe00000")
    A(f"s_sub_u32 s{sRCB}, s{sRCB}, s{sWS}")
    Lnc = A.newlabel("Lncal")
    A(f"s_lshl_b32 s{sTmp}, s{sGrp}, 4")
    A(f"s_add_u32 s{sTmp}, s{sTmp}, s{sMemb}")
    A(f"s_add_u32 s{sTmp}, s{sTmp}, s{sWave}")
    A(f"s_cmp_lg_u32 s{sTmp}, 0")
    A(f"s_cbranch_scc1 {Lnc}")
    A("s_mov_b64 exec, 1")
    A(f"v_mov_b32 {v(vT0)}, 0")
    for c in range(2):
        A(f"s_mov_b32 s{60+c}, 0x7fffffff")
    for it in range(6):
        for c in range(2):
            A(f"s_add_u32 s{sTmp}, s{sRCB}, {RC_PROBE + c*8192:#x}")
            A(f"buffer_store_dword {v(vT0)}, {v(vT0)}, {WSR}, s{sTmp} offen sc1")
            A("s_waitcnt vmcnt(0)")
            A("s_memtime s[62:63]")
            A("s_waitcnt lgkmcnt(0)")
            A(f"buffer_load_dword {v(vT1)}, {v(vT0)}, {WSR}, s{sTmp} offen sc1")
            A("s_waitcnt vmcnt(0)")
            A("s_memtime s[64:65]")
            A("s_waitcnt lgkmcnt(0)")
            A("s_sub_u32 s64, s64, s62")
            A(f"s_min_u32 s{60+c}, s{60+c}, s64")
    A("s_cmp_le_u32 s60, s61")
    A(f"s_cselect_b32 s{sTmp}, {2 if 'badpol' in exp else 1}, {1 if 'badpol' in exp else 2}")
    A(f"v_mov_b32 {v(vT1)}, s{sTmp}")
    A(f"s_mov_b32 s{sTmp}, {WS_CNT + CNT_POL:#x}")
    A(f"buffer_store_dword {v(vT1)}, {v(vT0)}, {WSR}, s{sTmp} offen sc1")
    A("s_mov_b64 exec, -1")
    A.label(Lnc)
    Lpp, Lpd = A.newlabel("Lpp"), A.newlabel("Lppd")
    A(f"v_mov_b32 {v(vT0)}, 0")
    A(f"s_mov_b32 s{sTmp2}, {WS_CNT + CNT_POL:#x}")
    A(f"s_mov_b32 s{sCnt}, 0")
    A.label(Lpp)
    A(f"buffer_load_dword {v(vT1)}, {v(vT0)}, {WSR}, s{sTmp2} offen sc1")
    A("s_waitcnt vmcnt(0)")
    A(f"v_cmp_eq_u32 vcc, 0, {v(vT1)}")
    A(f"s_cbranch_vccz {Lpd}")
    A("s_sleep 4")
    A(f"s_add_u32 s{sCnt}, s{sCnt}, 1")
    A(f"s_cmp_lt_u32 s{sCnt}, {SPIN_MAX}")
    A(f"s_cbranch_scc1 {Lpp}")
    A(f"s_mov_b32 s{sTmp}, 6")
    A(f"s_branch {Lfail}")
    A.label(Lpd)
    A(f"v_cmp_eq_u32 vcc, 2, {v(vT1)}")
    A("s_cmp_lg_u64 vcc, 0")
    A(f"s_cselect_b32 s{sTmp}, 8192, 0")
    A(f"s_add_u32 s{sRCB}, s{sRCB}, s{sTmp}")

    def wait_kvu(srb):
        Lp_ = A.newlabel("Lkf")
        Ld_ = A.newlabel("Lkfd")
        A(f"s_lshl_b32 s{sTmp2}, s{srb}, 12")
        A(f"s_add_u32 s{sTmp2}, s{sTmp2}, {WS_CNT + CNT_KVU:#x}")
        A(f"s_mov_b32 s{sCnt}, 0")
        A.label(Lp_)
        A(f"buffer_load_dword {v(vT0)}, {v(vFlag)}, {WSR}, s{sTmp2} offen sc1")
        A("s_waitcnt vmcnt(0)")
        A(f"v_cmp_eq_u32 vcc, 0, {v(vT0)}")
        A(f"s_cbranch_vccz {Ld_}")
        A("s_sleep 4")
        A(f"s_add_u32 s{sCnt}, s{sCnt}, 1")
        A(f"s_cmp_lt_u32 s{sCnt}, {SPIN_MAX}")
        A(f"s_cbranch_scc1 {Lp_}")
        A(f"s_mov_b32 s{sTmp}, 5")
        A(f"s_branch {Lfail}")
        A.label(Ld_)

    def signal_mem(srb):
        A(f"s_lshl_b32 s{sTmp2}, s{srb}, 12")
        A(f"s_add_u32 s{sTmp2}, s{sTmp2}, {WS_CNT + CNT_MEM:#x}")
        A(f"buffer_atomic_add {v(vOne)}, {v(vSig)}, {WSR}, s{sTmp2} offen")

    A(f"s_mov_b32 s{sStep}, 0")
    dbgmax(6)
    rtl()
    if wrole:
        wait_kvu(sStep)
    A(f"s_mov_b32 s{sOffKM}, {WS_KM:#x}")
    A(f"s_mov_b32 s{sOffK}, {WS_KX:#x}")
    A(f"s_mov_b32 s{sOffU}, {WS_U:#x}")

    def k_load(f):
        vo = vK0 if f < 4 else vK1
        return f"buffer_load_dwordx4 {a(aK+f*4,4)}, {v(vo)}, {WSR}, s{sOffK} offen offset:{(f%4)*1024}"

    def u_load(t, dst):
        return f"buffer_load_dwordx4 {a(dst+t*4,4)}, {v(vU if t < 2 else vU2)}, {WSR}, s{sOffU} offen offset:{t*1024}"

    def check_sentinel(regs, tmp):
        regs = list(regs)
        A(f"v_max3_u32 {v(tmp)}, {v(regs[0])}, {v(regs[1])}, {v(regs[2])}")
        rest = regs[3:]
        while rest:
            if len(rest) >= 2:
                A(f"v_max3_u32 {v(tmp)}, {v(tmp)}, {v(rest[0])}, {v(rest[1])}")
                rest = rest[2:]
            else:
                A(f"v_max_u32 {v(tmp)}, {v(tmp)}, {v(rest[0])}")
                rest = []
        A(f"v_cmp_eq_u32 vcc, -1, {v(tmp)}")

    def poll(issue, regs, code):
        Lp_ = A.newlabel("Lpoll")
        Ld_ = A.newlabel("Lpd")
        A(f"s_mov_b32 s{sCnt}, 0")
        A.label(Lp_)
        issue()
        A("s_waitcnt vmcnt(0)")
        check_sentinel(regs, vT0)
        A(f"s_cbranch_vccz {Ld_}")
        A(f"s_add_u32 s{sCnt}, s{sCnt}, 1")
        A(f"s_cmp_lt_u32 s{sCnt}, {SPIN_MAX}")
        A(f"s_cbranch_scc1 {Lp_}")
        A(f"s_mov_b32 s{sTmp}, {code}")
        A(f"s_branch {Lfail}")
        A.label(Ld_)
        if prof:
            r = {4: 97, 1: 98, 3: 100}[code]
            A(f"s_add_u32 s{r}, s{r}, s{sCnt}")

    def store_local(instr):
        L1 = A.newlabel("Lsl")
        L2 = A.newlabel("Lsl")
        A(f"s_cmp_lg_u32 s{sMode}, 0")
        A(f"s_cbranch_scc1 {L1}")
        A(instr)
        A(f"s_branch {L2}")
        A.label(L1)
        A(instr + " sc1")
        A.label(L2)

    for f in range(8):
        A(k_load(f))
    for t in range(3):
        A(u_load(t, aUn))
    if prof:
        for i in range(16):
            A(f"s_mov_b32 s{sPr+i}, 0")
        for i in range(97, 101):
            A(f"s_mov_b32 s{i}, 0")
        A("s_memtime s[86:87]")
        A("s_waitcnt lgkmcnt(0)")

    ring = []
    ring += [f"s_and_b32 s{sTmp}, s{sStep}, 3",
             f"s_add_u32 s{sTmp2}, s{sStep}, 3",
             f"s_and_b32 s{sTmp2}, s{sTmp2}, 3",
             f"s_mul_i32 s{sRA}, s{sTmp}, {32*6144}",
             f"s_add_u32 s{sRA}, s{sRA}, {WS_RA:#x}",
             f"s_mul_i32 s{sRAp}, s{sTmp2}, {32*6144}",
             f"s_add_u32 s{sRAp}, s{sRAp}, {WS_RA:#x}",
             f"s_mul_i32 s{sRC}, s{sTmp}, {RC_SLOT}",
             f"s_add_u32 s{sRC}, s{sRC}, s{sRCB}",
             f"s_add_u32 s{sRCp}, s{sStep}, 2",
             f"s_and_b32 s{sRCp}, s{sRCp}, 3",
             f"s_mul_i32 s{sRCp}, s{sRCp}, {RC_SLOT}",
             f"s_add_u32 s{sRCp}, s{sRCp}, s{sRCB}",
             f"s_mul_i32 s{sCnt}, s{sGrp}, {RC_GRP}",
             f"s_add_u32 s{sRCp}, s{sRCp}, s{sCnt}",
             f"s_add_u32 s{sOffC}, s{sRC}, s{sCnt}",
             f"s_lshr_b32 s{sCnt}, s{sGrp}, 1",
             f"s_mul_i32 s{sCnt}, s{sCnt}, 10240",
             f"s_add_u32 s{sCnt}, s{sCnt}, {WS_RD:#x}",
             f"s_mul_i32 s{sRDp}, s{sTmp2}, {8*10240}",
             f"s_add_u32 s{sRDp}, s{sRDp}, s{sCnt}",
             f"s_add_u32 s{sTmp}, s{sStep}, 1",
             f"s_and_b32 s{sTmp}, s{sTmp}, 3",
             f"s_mul_i32 s{sRD}, s{sTmp}, {8*10240}",
             f"s_add_u32 s{sRD}, s{sRD}, s{sCnt}",
             f"s_add_u32 s{sOffK}, s{sOffK}, {32*8192}",
             f"s_add_u32 s{sOffU}, s{sOffU}, {32*40960}",
             f"s_add_u32 s{sWarm}, s{sOffK}, {WARM*32*8192}",
             f"s_min_u32 s{sWarm}, s{sWarm}, {WS_KX+63*32*8192}"]

    dbgmax(2)
    for ins in ring:
        A(ins)
    A(f"buffer_load_dwordx4 {v(M,4)}, {v(Cg)}, s[{sM0}:{sM0+3}], 0 offen")
    A(f"buffer_load_dwordx4 {v(M+4,4)}, {v(Cg)}, s[{sM0}:{sM0+3}], 0 offen offset:128")
    A(f"buffer_load_dwordx4 {v(M+8,4)}, {v(Cg+1)}, s[{sM0}:{sM0+3}], 0 offen")
    A("s_waitcnt vmcnt(0)")
    Lloop = A.newlabel("Lloop")
    A.label(Lloop)
    rtl(True)
    stamp(0)
    Bks = [M, Mr, M + 4, Mr + 4, M + 8]
    fill = [f"v_mov_b32_dpp {v(Mr+i)}, {v(M+i)} row_ror:8 row_mask:0xf bank_mask:0xf" for i in range(8)]
    fill += [f"v_accvgpr_mov_b32 {a(aU+i)}, {a(aUn+i)}" for i in range(12)]
    order = [(ks, t) for ks in (0, 2, 1) for t in range(4)]
    order += [(ks, t) for t in range(4) for ks in (3, 4)]
    for idx, (ks, t) in enumerate(order):
        c = "0" if ks == 0 else v(accA + t * 4, 4)
        A(f"v_mfma_f32_16x16x32_bf16 {v(accA+t*4,4)}, {WA(t,ks)}, {v(Bks[ks],4)}, {c}")
        for _ in range(2):
            if fill:
                A(fill.pop(0))
    assert not fill

    def merge_write(p):
        for i in range(4):
            A(f"v_mov_b32_dpp {v(accA+8*p+i)}, {v(accA+8*p+4+i)} row_ror:8 row_mask:0xf bank_mask:0xc")
        A(f"ds_write_b128 {v(vRAw)}, {v(accA+8*p,4)} offset:{p*1024}")

    vm = []
    for ks in range(5):
        for t in (4, 5):
            c = "0" if ks == 0 else v(accA + t * 4, 4)
            vm.append(f"v_mfma_f32_16x16x32_bf16 {v(accA+t*4,4)}, {WA(t,ks)}, {v(Bks[ks],4)}, {c}")

    def reduce_pub(raddr, pub, T, fillers=()):
        for w in range(4):
            A(f"ds_read_b128 {v(T+w*4,4)}, {v(raddr)} offset:{w*3072}")
        for ins in fillers:
            A(ins)
        A("s_waitcnt lgkmcnt(2)")
        A(f"v_pk_add_f32 {v(T,2)}, {v(T,2)}, {v(T+4,2)}")
        A(f"v_pk_add_f32 {v(T+2,2)}, {v(T+2,2)}, {v(T+6,2)}")
        A("s_waitcnt lgkmcnt(0)")
        A(f"v_pk_add_f32 {v(T+8,2)}, {v(T+8,2)}, {v(T+12,2)}")
        A(f"v_pk_add_f32 {v(T+10,2)}, {v(T+10,2)}, {v(T+14,2)}")
        A(f"v_pk_add_f32 {v(T,2)}, {v(T,2)}, {v(T+8,2)}")
        A(f"v_pk_add_f32 {v(T+2,2)}, {v(T+2,2)}, {v(T+10,2)}")
        A(f"v_cvt_pk_bf16_f32 {v(pub)}, {v(T)}, {v(T+1)}")
        A(f"v_cvt_pk_bf16_f32 {v(pub+1)}, {v(T+2)}, {v(T+3)}")
        A(f"v_min_u32 {v(pub)}, 0xfffffffe, {v(pub)}")
        A(f"v_min_u32 {v(pub+1)}, 0xfffffffe, {v(pub+1)}")
    A.nop(4)
    merge_write(0)
    merge_write(1)
    for ins in vm[:VM1]:
        A(ins)
    stamp(6)
    A("s_waitcnt lgkmcnt(0)")
    stamp(7)
    A("s_barrier")
    stamp(8)
    reduce_pub(vRAr, vPub, Cg, vm[VM1:VM1+VM2])
    store_local(f"buffer_store_dwordx2 {v(vPub,2)}, {v(vAst)}, {WSR}, s{sRA} offen")
    stamp(1)
    def issue_q():
        A(f"buffer_load_dwordx4 {v(Q,4)}, {v(vQo)}, {WSR}, s{sRA} offen sc1")
        A(f"buffer_load_dwordx4 {v(Q+4,4)}, {v(vQo)}, {WSR}, s{sRA} offen offset:1024 sc1")

    def issue_k():
        for c in range(2):
            A(f"buffer_load_dwordx4 {v(KM+c*8,4)}, {v(vKo)}, {WSR}, s{sRA} offen offset:{c*1024} sc1")

    def issue_v():
        for c in range(2):
            A(f"buffer_load_dwordx4 {v(VM+c*8,4)}, {v(vKo)}, {WSR}, s{sRA} offen offset:{2048+c*1024} sc1")
    for ins in vm[VM1+VM2:]:
        A(ins)
    A.nop(8)
    merge_write(2)
    if EARLY == 1:
        issue_q()
        issue_k()
    A("s_waitcnt lgkmcnt(0)")
    A("s_barrier")
    if EARLY == 2:
        issue_q()
        issue_k()
    reduce_pub(vRAr2, vPub2, Cg)
    A(f"s_cmp_eq_u32 s{sStep}, {nsteps-1}")
    Lfin = A.newlabel("Lfin")
    A(f"s_cbranch_scc1 {Lfin}")
    store_local(f"buffer_store_dwordx2 {v(vPub2,2)}, {v(vAst2)}, {WSR}, s{sRA} offen")

    if ADELAY:
        A(f"s_sleep {ADELAY}")
    Lp_, Ld_ = A.newlabel("Lpa"), A.newlabel("Lpad")
    A(f"s_mov_b32 s{sCnt}, 0")
    if EARLY:
        A("s_waitcnt vmcnt(3)")
        check_sentinel(range(Q, Q + 8), vT0)
        A(f"s_cbranch_vccz {Ld_}")
    A.label(Lp_)
    issue_q()
    issue_k()
    A("s_waitcnt vmcnt(0)")
    check_sentinel(range(Q, Q + 8), vT0)
    A(f"s_cbranch_vccz {Ld_}")
    A(f"s_add_u32 s{sCnt}, s{sCnt}, 1")
    A(f"s_cmp_lt_u32 s{sCnt}, {SPIN_MAX}")
    A(f"s_cbranch_scc1 {Lp_}")
    A(f"s_mov_b32 s{sTmp}, 1")
    A(f"s_branch {Lfail}")
    A.label(Ld_)
    if prof:
        A(f"s_add_u32 s98, s98, s{sCnt}")
    stamp(2)
    Qks = [Q, Qr, Q + 4, Qr + 4]
    A(f"v_mfma_f32_16x16x32_bf16 {v(acc1,4)}, {a(aK+0,4)}, {v(Q,4)}, 0")
    for i in range(4):
        A(f"v_mov_b32_dpp {v(Qr+i)}, {v(Q+i)} row_ror:8 row_mask:0xf bank_mask:0xf")
    A(f"v_mfma_f32_16x16x32_bf16 {v(acc2,4)}, {a(aK+16,4)}, {v(Q,4)}, 0")
    for i in range(4, 8):
        A(f"v_mov_b32_dpp {v(Qr+i)}, {v(Q+i)} row_ror:8 row_mask:0xf bank_mask:0xf")
    Lkv = A.newlabel("Lkv")
    Lkvd = A.newlabel("Lkvd")
    A(f"s_mov_b32 s{sCnt}, 0")
    A("s_waitcnt vmcnt(1)")
    A.label(Lkv)
    check_sentinel(list(range(KM, KM + 4)) + list(range(KM + 8, KM + 12)), vT0)
    A(f"s_cbranch_vccz {Lkvd}")
    issue_k()
    A("s_waitcnt vmcnt(0)")
    A(f"s_add_u32 s{sCnt}, s{sCnt}, 1")
    A(f"s_cmp_lt_u32 s{sCnt}, {SPIN_MAX}")
    A(f"s_cbranch_scc1 {Lkv}")
    A(f"s_mov_b32 s{sTmp}, 2")
    A(f"s_branch {Lfail}")
    A.label(Lkvd)
    A(f"v_mfma_f32_16x16x32_bf16 {v(acc0,4)}, {v(KM,4)}, {v(Qks[0],4)}, 0")
    for i in range(4):
        A(f"v_mov_b32_dpp {v(KM+4+i)}, {v(KM+i)} row_ror:8 row_mask:0xf bank_mask:0xf")
    A(f"v_mfma_f32_16x16x32_bf16 {v(acc1,4)}, {a(aK+8,4)}, {v(Qks[2],4)}, {v(acc1,4)}")
    A(f"v_mfma_f32_16x16x32_bf16 {v(acc2,4)}, {a(aK+24,4)}, {v(Qks[2],4)}, {v(acc2,4)}")
    A(f"v_mfma_f32_16x16x32_bf16 {v(acc0,4)}, {v(KM+8,4)}, {v(Qks[2],4)}, {v(acc0,4)}")
    for i in range(4):
        A(f"v_mov_b32_dpp {v(KM+12+i)}, {v(KM+8+i)} row_ror:8 row_mask:0xf bank_mask:0xf")
    for ks in (1, 3):
        A(f"v_mfma_f32_16x16x32_bf16 {v(acc1,4)}, {a(aK+ks*4,4)}, {v(Qks[ks],4)}, {v(acc1,4)}")
        A(f"v_mfma_f32_16x16x32_bf16 {v(acc2,4)}, {a(aK+16+ks*4,4)}, {v(Qks[ks],4)}, {v(acc2,4)}")
        A(f"v_mfma_f32_16x16x32_bf16 {v(acc0,4)}, {v(KM+ks*4,4)}, {v(Qks[ks],4)}, {v(acc0,4)}")
    issue_v()
    A.nop(5)
    stamp(9)
    S = [acc1 + i for i in range(4)] + [acc2 + i for i in range(4)] + [acc0 + i for i in range(4)]
    sm = [f"v_max3_f32 {v(vMx)}, {v(S[0])}, {v(S[1])}, {v(S[2])}",
          f"v_max3_f32 {v(vMx)}, {v(vMx)}, {v(S[3])}, {v(S[4])}",
          f"v_max3_f32 {v(vMx)}, {v(vMx)}, {v(S[5])}, {v(S[6])}"]
    for i in range(4):
        sm.append(f"v_cndmask_b32 {v(acc0+i)}, {v(vNinf)}, {v(acc0+i)}, s[{sMaskG}:{sMaskG+1}]")
    sm += [f"v_max3_f32 {v(vMx)}, {v(vMx)}, {v(S[7])}, {v(S[8])}",
           f"v_max3_f32 {v(vMx)}, {v(vMx)}, {v(S[9])}, {v(S[10])}",
           f"v_max_f32 {v(vMx)}, {v(vMx)}, {v(S[11])}",
           f"v_mov_b32 {v(vMx2)}, {v(vMx)}",
           "s_nop 1",
           f"v_permlane16_swap_b32 {v(vMx)}, {v(vMx2)}",
           "s_nop 0",
           f"v_max_f32 {v(vMx)}, {v(vMx)}, {v(vMx2)}",
           f"v_mov_b32 {v(vMx2)}, {v(vMx)}",
           "s_nop 1",
           f"v_permlane32_swap_b32 {v(vMx)}, {v(vMx2)}",
           "s_nop 0",
           f"v_max_f32 {v(vMx)}, {v(vMx)}, {v(vMx2)}",
           f"v_mul_f32 {v(vMx)}, s{sC}, {v(vMx)}"]
    for r in S:
        sm.append(f"v_fma_f32 {v(r)}, {v(r)}, s{sC}, -{v(vMx)}")
    for r in S[:VSPLIT]:
        sm.append(f"v_exp_f32 {v(r)}, {v(r)}")
    for ins in sm:
        A(ins)
    Lv, Lvd = A.newlabel("Lv"), A.newlabel("Lvd")
    A(f"s_mov_b32 s{sCnt}, 0")
    A.label(Lv)
    A("s_waitcnt vmcnt(0)")
    check_sentinel(list(range(VM, VM + 4)) + list(range(VM + 8, VM + 12)), vT0)
    A(f"s_cbranch_vccz {Lvd}")
    issue_v()
    A(f"s_add_u32 s{sCnt}, s{sCnt}, 1")
    A(f"s_cmp_lt_u32 s{sCnt}, {SPIN_MAX}")
    A(f"s_cbranch_scc1 {Lv}")
    A(f"s_mov_b32 s{sTmp}, 2")
    A(f"s_branch {Lfail}")
    A.label(Lvd)
    if prof:
        A(f"s_add_u32 s99, s99, s{sCnt}")
    um = []
    for s_ in (0, 2, 1, 3):
        for t in range(3):
            c = "0" if s_ == 0 else v(accU + t * 4, 4)
            um.append(f"v_mfma_f32_16x16x32_bf16 {v(accU+t*4,4)}, {v(VM+s_*4,4)}, {WC(t,s_)}, {c}")
    sm = [f"v_mov_b32_dpp {v(VM+4+i)}, {v(VM+i)} row_ror:8 row_mask:0xf bank_mask:0xf" for i in range(4)]
    sm += [f"v_mov_b32_dpp {v(VM+12+i)}, {v(VM+8+i)} row_ror:8 row_mask:0xf bank_mask:0xf" for i in range(4)]
    for r in S[VSPLIT:]:
        sm.append(f"v_exp_f32 {v(r)}, {v(r)}")
    sm.append("s_nop 0")
    for i in range(4):
        sm.append(f"v_cvt_pk_bf16_f32 {v(P0+i)}, {v(S[2*i])}, {v(S[2*i+1])}")
    sm.append(f"v_cvt_pk_bf16_f32 {v(Blo)}, {v(S[8])}, {v(S[9])}")
    sm.append(f"v_cvt_pk_bf16_f32 {v(Blo+1)}, {v(S[10])}, {v(S[11])}")
    for idx in range(max(len(sm) // 2 + 1, len(um))):
        if um:
            A(um.pop(0))
        for _ in range(2):
            if sm:
                A(sm.pop(0))
    assert not um and not sm
    pre = [u_load(t, aUn) for t in range(3)] + ([] if KLATE else [k_load(f) for f in range(8)])
    if "nokv" in exp:
        pre = []
    stamp(3)
    def pl(n=1):
        for _ in range(n):
            A(pre.pop(0) if pre else "s_nop 0")
    A(f"v_mfma_f32_16x16x32_bf16 {v(accZ,4)}, {v(vOnes,4)}, {v(P0,4)}, 0")
    for t in range(3):
        A(f"v_mfma_f32_16x16x32_bf16 {v(accC+t*4,4)}, {a(aU+t*4,4)}, {v(P0,4)}, 0")
        pl()
    A(f"v_mfma_f32_16x16x16_bf16 {v(accZ,4)}, {v(vOnes,2)}, {v(Blo,2)}, {v(accZ,4)}")
    pl(2)
    for t in range(3):
        A(f"v_cvt_pk_bf16_f32 {v(UA+t*2)}, {v(accU+t*4)}, {v(accU+t*4+1)}")
        A(f"v_cvt_pk_bf16_f32 {v(UA+t*2+1)}, {v(accU+t*4+2)}, {v(accU+t*4+3)}")
    pl(1)
    A(f"v_rcp_f32 {v(vRz)}, {v(accZ)}")
    for t in range(3):
        A(f"v_mfma_f32_16x16x16_bf16 {v(accC+t*4,4)}, {v(UA+t*2,2)}, {v(Blo,2)}, {v(accC+t*4,4)}")
    A(f"v_mov_b32 {v(vRz+1)}, {v(vRz)}")
    pl(5)
    A.nop(1)
    stamp(10)
    for t in range(3):
        A(f"v_pk_mul_f32 {v(accC+t*4,2)}, {v(accC+t*4,2)}, {v(vRz,2)}")
        A(f"v_pk_mul_f32 {v(accC+t*4+2,2)}, {v(accC+t*4+2,2)}, {v(vRz,2)}")
        A(f"ds_write_b128 {v(vRCw)}, {v(accC+t*4,4)} offset:{t*1024}")
    assert not pre
    A("s_waitcnt lgkmcnt(0)")
    stamp(11)
    A("s_barrier")
    stamp(12)
    A("s_mov_b32 exec_hi, 0xff")
    for w in range(4):
        A(f"ds_read_b128 {v(Cg+w*4,4)}, {v(vRCr)} offset:{w*3072}")
    A("s_waitcnt lgkmcnt(2)")
    for i in range(4):
        A(f"v_add_f32 {v(Cg+i)}, {v(Cg+i)}, {v(Cg+4+i)}")
    A("s_waitcnt lgkmcnt(0)")
    for i in range(4):
        A(f"v_add_f32 {v(Cg+8+i)}, {v(Cg+8+i)}, {v(Cg+12+i)}")
    for i in range(4):
        A(f"v_add_f32 {v(Cg+i)}, {v(Cg+i)}, {v(Cg+8+i)}")

    def persist(final=False):
        A("s_mov_b64 exec, -1")
        if KLATE and not final:
            for f in range(8):
                A(k_load(f))
        A(f"buffer_store_dwordx2 {v(vPub,2)}, {v(vKMst)}, {WSR}, s{sOffKM} offen" + (" sc1" if wrole else ""))
        A(f"buffer_store_dwordx2 {v(vPub2,2)}, {v(vVMst)}, {WSR}, s{sOffKM} offen" + (" sc1" if wrole else ""))
        if wrole and not final:
            Lns = A.newlabel("Lns")
            A(f"s_and_b32 s{sTmp}, s{sStep}, 3")
            A(f"s_cmp_lg_u32 s{sTmp}, 0")
            A(f"s_cbranch_scc1 {Lns}")
            A(f"s_cmp_eq_u32 s{sStep}, 0")
            A(f"s_cbranch_scc1 {Lns}")
            A(f"s_lshr_b32 s{sTmp}, s{sStep}, 2")
            A(f"s_sub_u32 s{sTmp}, s{sTmp}, 1")
            signal_mem(sTmp)
            A.label(Lns)
            Lns2 = A.newlabel("Lns")
            A(f"s_cmp_lg_u32 s{sStep}, 62")
            A(f"s_cbranch_scc1 {Lns2}")
            A(f"s_mov_b32 s{sTmp}, 16")
            signal_mem(sTmp)
            A.label(Lns2)

    def background(storer):
        persist()
        store_local(f"buffer_store_dwordx2 {v(vSent,2)}, {v(vAst)}, {WSR}, s{sRAp} offen"); store_local(f"buffer_store_dwordx2 {v(vSent,2)}, {v(vAst2)}, {WSR}, s{sRAp} offen")
        A("s_mov_b32 exec_hi, 0xff")
        if storer:
            for kc in range(KC):
                A(f"buffer_store_dwordx4 {v(vSent,4)}, {v(vCst)}, {WSR}, s{sRCp} offen sc1")
                if kc < KC - 1:
                    A(f"s_add_u32 s{sRCp}, s{sRCp}, {8*20480}")
            if "nokv" not in exp:
                A("s_mov_b64 exec, -1")
                A(f"buffer_load_dwordx4 {v(vDummy,4)}, {v(vWarm)}, {WSR}, s{sWarm} offen")
        else:
            store_local(f"buffer_store_dwordx2 {v(vSent,2)}, {v(vDst)}, {WSR}, s{sRDp} offen")

    Lpw = A.newlabel("Lpw")
    Lcdone = A.newlabel("Lcdone")
    A(f"s_cmp_ge_u32 s{sWave}, 2")
    A(f"s_cbranch_scc1 {Lpw}")
    for i in range(4):
        A(f"v_min_u32 {v(Cg+i)}, 0xfffffffe, {v(Cg+i)}")
    for kc in range(KC):
        A(f"buffer_store_dwordx4 {v(Cg,4)}, {v(vCst)}, {WSR}, s{sOffC} offen sc1")
        if kc < KC - 1:
            A(f"s_add_u32 s{sOffC}, s{sOffC}, {8*20480}")
    stamp(4)
    background(True)
    if DSLEEP:
        A(f"s_sleep {DSLEEP}")
    A(f"s_branch {Lcdone}")
    A.label(Lpw)
    stamp(4)
    Lw3 = A.newlabel("Lw3")
    A(f"s_cmp_eq_u32 s{sWave}, 3")
    A(f"s_cbranch_scc1 {Lw3}")
    background(False)
    A(f"s_mov_b32 s{sEnd}, s{sRC}")

    def advance():
        A(f"s_add_u32 s{sStep}, s{sStep}, 1")
        A(f"s_add_u32 s{sOffKM}, s{sOffKM}, {32*2048}")
        A(f"s_mov_b32 s{sOffD}, s{sRD}")
        for ins in ring:
            A(ins)
    advance()
    if CDELAY:
        A(f"s_sleep {CDELAY}")

    def issue_c():
        for r in range(1, 8):
            A(f"buffer_load_dwordx4 {v(CR+(r-1)*4,4)}, {v(vCg+r)}, {WSR}, s{sEnd} offen sc1")
    poll(issue_c, range(CR, CR + 28), 3)
    stamp(5)
    c = CR
    for i in (0, 2):
        A(f"v_pk_add_f32 {v(Cg+i,2)}, {v(Cg+i,2)}, {v(c+i,2)}")
        A(f"v_pk_add_f32 {v(Cg+4+i,2)}, {v(c+4+i,2)}, {v(c+8+i,2)}")
        A(f"v_pk_add_f32 {v(Cg+8+i,2)}, {v(c+12+i,2)}, {v(c+16+i,2)}")
        A(f"v_pk_add_f32 {v(Cg+12+i,2)}, {v(c+20+i,2)}, {v(c+24+i,2)}")
    for i in (0, 2):
        A(f"v_pk_add_f32 {v(Cg+i,2)}, {v(Cg+i,2)}, {v(Cg+4+i,2)}")
        A(f"v_pk_add_f32 {v(Cg+8+i,2)}, {v(Cg+8+i,2)}, {v(Cg+12+i,2)}")
    for i in (0, 2):
        A(f"v_pk_add_f32 {v(Cg+i,2)}, {v(Cg+i,2)}, {v(Cg+8+i,2)}")
    A(f"v_cvt_pk_bf16_f32 {v(Cg+4)}, {v(Cg)}, {v(Cg+1)}")
    A(f"v_cvt_pk_bf16_f32 {v(Cg+5)}, {v(Cg+2)}, {v(Cg+3)}")
    A(f"v_min_u32 {v(Cg+4)}, 0xfffffffe, {v(Cg+4)}")
    A(f"v_min_u32 {v(Cg+5)}, 0xfffffffe, {v(Cg+5)}")
    store_local(f"buffer_store_dwordx2 {v(Cg+4,2)}, {v(vDst)}, {WSR}, s{sOffD} offen")
    A("s_mov_b64 exec, -1")
    Ldp = A.newlabel("Ldp")
    A(f"s_branch {Ldp}")
    A.label(Lw3)
    persist()
    store_local(f"buffer_store_dwordx2 {v(vSent,2)}, {v(vAst)}, {WSR}, s{sRAp} offen"); store_local(f"buffer_store_dwordx2 {v(vSent,2)}, {v(vAst2)}, {WSR}, s{sRAp} offen")
    Lnf = A.newlabel("Lnf")
    if wrole:
        A("s_mov_b64 exec, -1")
        A(f"s_and_b32 s{sTmp}, s{sStep}, 3")
        A(f"s_cmp_lg_u32 s{sTmp}, 1")
        A(f"s_cbranch_scc1 {Lnf}")
        A(f"s_add_u32 s{sEnd}, s{sStep}, 3")
        A(f"s_lshr_b32 s{sEnd}, s{sEnd}, 2")
        A(f"s_cmp_gt_u32 s{sEnd}, 15")
        A(f"s_cbranch_scc1 {Lnf}")
        wait_kvu(sEnd)
        A(f"s_branch {Lcdone}")
    A.label(Lnf)
    if DSLEEP:
        A(f"s_sleep {DSLEEP}")
    A.label(Lcdone)
    A("s_mov_b64 exec, -1")
    advance()
    A.label(Ldp)
    stamp(13)

    if PDELAY:
        Lpd = A.newlabel("Lpdl")
        A(f"s_cmp_lg_u32 s{sWave}, 2")
        A(f"s_cbranch_scc1 {Lpd}")
        A(f"s_sleep {PDELAY}")
        A.label(Lpd)

    def issue_d():
        A(f"buffer_load_dwordx4 {v(M,4)}, {v(vD0)}, {WSR}, s{sOffD} offen sc1")
        A(f"buffer_load_dwordx4 {v(M+4,4)}, {v(vD0)}, {WSR}, s{sOffD} offen offset:1024 sc1")
        A(f"buffer_load_dwordx4 {v(M+8,4)}, {v(vD2)}, {WSR}, s{sOffD} offen sc1")
    poll(issue_d, range(M, M + 12), 4)
    A(f"s_branch {Lloop}")

    A.label(Lfin)
    persist(True)
    A("s_mov_b64 exec, -1")
    rtl()
    if wrole:
        A("s_waitcnt vmcnt(0)")
        A(f"s_mov_b32 s{sTmp}, 15")
        signal_mem(sTmp)
        dbgmax(3)
    if prof:
        A(f"s_lshl_b32 s{sTmp}, s{sGrp}, 4")
        A(f"s_add_u32 s{sTmp}, s{sTmp}, s{sMemb}")
        A(f"s_lshl_b32 s{sTmp}, s{sTmp}, 2")
        A(f"s_add_u32 s{sTmp}, s{sTmp}, s{sWave}")
        A(f"s_lshl_b32 s{sTmp}, s{sTmp}, 6")
        A(f"s_add_u32 s{sTmp}, s{sTmp}, {WS_PROF:#x}")
        A("s_mov_b64 exec, 1")
        A(f"s_lshl_b32 s97, s97, 16")
        A(f"s_or_b32 s{sPr+14}, s97, s98")
        A(f"s_lshl_b32 s99, s99, 16")
        A(f"s_or_b32 s{sPr+15}, s99, s100")
        for i in range(16):
            A(f"v_mov_b32 {v(vT0)}, s{sPr+i}")
            A(f"v_mov_b32 {v(vT1)}, {i*4}")
            A(f"buffer_store_dword {v(vT0)}, {v(vT1)}, {WSR}, s{sTmp} offen")
    A(f"s_branch {Lend}")
    A.label(Lfail)
    A("s_mov_b64 exec, 1")
    A(f"v_mov_b32 {v(vT0)}, s{sTmp}")
    A(f"v_mov_b32 {v(vT1)}, 0")
    A(f"v_or_b32 {v(vT0)}, 0x100, {v(vT0)}")
    A(f"buffer_store_dword {v(vT0)}, {v(vT1)}, s[{sDBG}:{sDBG+3}], 0 offen")
    A.label(Lend)
    A("s_endpgm")
    if wrole:
        A.label(Lw)
        A(f"s_sub_u32 s54, s{sCnt}, 128")
        wrole(A, 54, confirm, dbgmax)
        dbgmax(15, 13)
        A("s_endpgm")
    return kernel_desc(name, 512, 102, 256)
```

```python
from asmlib import *
from layout import *
from wside import *
import parta

SPIN = 4000000
sW, sJ, sHead, sRnd, sPoll = 70, 71, 72, 73, 74


TL = False
A3_AT = 9
NRM = 6
STAG = 3
HOLD3 = 0
HOLD1 = 0
SC = " sc1"


def wrole(A, sIdx, confirm, dbgmax):
    Lq = A.newlabel("Lwq")

    def tl():
        if not TL:
            return
        Ls = A.newlabel("Ltl")
        A(f"s_cmp_lg_u32 s{sWave}, 0")
        A(f"s_cbranch_scc1 {Ls}")
        A("s_memrealtime s[78:79]")
        A("s_waitcnt lgkmcnt(0)")
        A("s_mov_b64 exec, 1")
        A("v_mov_b32 v4, s78")
        A("v_mov_b32 v5, 0")
        A(f"buffer_store_dword v4, v5, {srd(sWS)}, s80 offen")
        A("s_mov_b64 exec, -1")
        A("s_add_u32 s80, s80, 4")
        A.label(Ls)
        return 1
    A(f"s_mov_b32 s{sW}, s{sIdx}")
    A("s_load_dwordx4 s[24:27], s[0:1], 24")
    A("s_load_dwordx8 s[28:35], s[0:1], 40")
    A("s_load_dwordx2 s[36:37], s[0:1], 96")
    A("s_load_dwordx2 s[38:39], s[0:1], 80")
    A("s_load_dwordx2 s[76:77], s[0:1], 0")
    A("v_and_b32 v1, 63, v0")
    A("v_lshrrev_b32 v5, 6, v0")
    A("v_and_b32 v2, 15, v0")
    A(f"v_readfirstlane_b32 s{sWave}, v5")
    A("v_bfe_u32 v3, v0, 4, 2")
    A("s_waitcnt lgkmcnt(0)")
    make_srd(A, sWS, 36, WS_BYTES)
    A(f"s_lshr_b32 s{sHead}, s{sW}, 5")
    A(f"s_lshl_b32 s{sHead}, s{sHead}, 3")
    A(f"s_and_b32 s{sTmp}, s{sW}, 7")
    A(f"s_add_u32 s{sHead}, s{sHead}, s{sTmp}")
    A(f"s_bfe_u32 s{sJ}, s{sW}, 0x20003")
    A(f"s_lshl_b32 s80, s{sW}, 8")
    A(f"s_add_u32 s80, s80, {WS_PROF + 65536:#x}")
    tl()

    def signal(off_sreg, n=1, stride=0):
        Ls = A.newlabel("Lsig")
        A("s_waitcnt vmcnt(0)")
        A("s_barrier")
        A(f"s_cmp_lg_u32 s{sWave}, 0")
        A(f"s_cbranch_scc1 {Ls}")
        A("s_mov_b64 exec, 1")
        A("v_mov_b32 v4, 1")
        A("v_mov_b32 v5, 0")
        for i in range(n):
            A(f"buffer_atomic_add v4, v5, {srd(sWS)}, s{off_sreg} offen")
            if i < n - 1:
                A(f"s_add_u32 s{off_sreg}, s{off_sreg}, {stride}")
        A("s_mov_b64 exec, -1")
        A.label(Ls)
        tl()

    def wait(off_sreg, target):
        Lp, Ld = A.newlabel("Lwt"), A.newlabel("Lwtd")
        A(f"s_cmp_lg_u32 s{sWave}, 0")
        A(f"s_cbranch_scc1 {Ld}")
        A("v_mov_b32 v5, 0")
        A(f"s_mov_b32 s{sPoll}, 0")
        A.label(Lp)
        A(f"buffer_load_dword v4, v5, {srd(sWS)}, s{off_sreg} offen sc1")
        A("s_waitcnt vmcnt(0)")
        A(f"v_cmp_gt_u32 vcc, {target:#x}, v4")
        A(f"s_cbranch_vccz {Ld}")
        A("s_sleep 8")
        A(f"s_add_u32 s{sPoll}, s{sPoll}, 1")
        A(f"s_cmp_lt_u32 s{sPoll}, {SPIN}")
        A(f"s_cbranch_scc1 {Lp}")
        A.label(Ld)
        A("s_barrier")
        tl()

    def cnt_rbh(base):
        A(f"s_lshl_b32 s75, s{sRB}, 12")
        A(f"s_lshl_b32 s{sTmp}, s{sH}, 7")
        A(f"s_add_u32 s75, s75, s{sTmp}")
        A(f"s_add_u32 s75, s75, {WS_CNT + base:#x}")

    def cond_block(cmps, body):
        Lskip = A.newlabel("Lcs")
        for c in cmps:
            Lgo = A.newlabel("Lcg")
            A(c)
            A(f"s_cbranch_scc1 {Lgo}")
            A(f"s_branch {Lskip}")
            A.label(Lgo)
        body()
        A.label(Lskip)

    def dw(slot):
        A("s_mov_b64 s[92:93], s[72:73]")
        dbgmax(slot)
        A("s_mov_b64 s[72:73], s[92:93]")

    def confirm_lds():
        confirm(sWave)

    def hook_vu():
        dw(10)
        confirm(sWave)
        dw(11)

    if HOLD3:
        cond_block([f"s_cmp_eq_u32 s{sJ}, 3"], lambda: [A("s_sleep 127") for _ in range(HOLD3)])
    if HOLD1:
        cond_block([f"s_cmp_eq_u32 s{sJ}, 1"], lambda: [A("s_sleep 127") for _ in range(HOLD1)])
    def do_vu():
        A(f"s_mov_b32 s{sRB}, s{sJ}")
        A(f"s_mov_b32 s{sH}, s{sHead}")
        kvu_body(A, 2, SC, tl=tl, mode="vu", u_hook=hook_vu)
        cnt_rbh(CNT_VU)
        signal(75)
        dw(7)
    cond_block([f"s_cmp_lt_u32 s{sJ}, 2"], do_vu)

    def do_k():
        A(f"s_mov_b32 s{sRB}, 0")
        A(f"s_mov_b32 s{sH}, s{sHead}")
        kvu_body(A, 4, SC, tl=tl, mode="k")
        confirm_lds()
        cnt_rbh(CNT_KVU)
        signal(75, 2, 4096)
    cond_block([f"s_cmp_eq_u32 s{sJ}, 2"], do_k)
    A(f"s_add_u32 s{sRnd}, s{sJ}, 4")
    A(f"s_sub_u32 s86, 5, s{sJ}")
    A(f"s_cmp_lt_u32 s{sJ}, 2")
    A(f"s_cselect_b32 s{sRnd}, s{sRnd}, s86")
    Lk = A.newlabel("Lkvu")
    A.label(Lk)
    A(f"s_mov_b32 s{sRB}, s{sRnd}")
    A(f"s_mov_b32 s{sH}, s{sHead}")
    kvu_body(A, 2, SC, tl=tl, u_hook=confirm_lds)
    cnt_rbh(CNT_KVU)
    signal(75, 2, CNT_VU - CNT_KVU)
    A(f"s_add_u32 s{sRnd}, s{sRnd}, 4")
    A(f"s_cmp_lt_u32 s{sRnd}, 8")
    Lk2 = A.newlabel("Lkvu2")
    A(f"s_cbranch_scc0 {Lk2}")
    A(f"s_branch {Lk}")
    A.label(Lk2)
    def idx40(dst, ja, jb):
        A(f"s_add_u32 s{dst}, s{sHead}, 32")
        A(f"s_cmp_eq_u32 s{sJ}, {jb}")
        A(f"s_cselect_b32 s{dst}, s{dst}, 99")
        A(f"s_cmp_eq_u32 s{sJ}, {ja}")
        A(f"s_cselect_b32 s{dst}, s{sHead}, s{dst}")

    def do_a1():
        A(f"s_mov_b32 s75, {WS_CNT + CNT_CONST:#x}")
        wait(75, 512)
        A(f"s_and_b32 s{sRB}, s85, 7")
        A(f"s_lshr_b32 s{sH}, s85, 3")
        parta.a1_body(A, 76, " sc1")
        A(f"s_mov_b32 s75, {WS_CNT + CNT_A1:#x}")
        signal(75)
    idx40(85, 1, 2)
    cond_block(["s_cmp_lt_u32 s85, 40"], do_a1)
    A(f"s_mov_b32 s{sRB}, s{sJ}")
    A(f"s_mov_b32 s{sH}, s{sHead}")
    kvu_body(A, 4, SC, seg_base=32, tl=tl)
    A(f"s_lshl_b32 s{sRB}, s{sJ}, 1")
    A(f"s_add_u32 s{sRB}, s{sRB}, 8")
    cnt_rbh(CNT_KVU)
    signal(75, 2, 4096)
    cnt_rbh(CNT_VU)
    signal(75, 2, 4096)

    def do_a2():
        A(f"s_mov_b32 s75, {WS_CNT + CNT_A1:#x}")
        wait(75, 40)
        La = A.newlabel("La2l")
        A.label(La)
        A(f"s_lshl_b32 s{sH}, s85, 2")
        A(f"s_add_u32 s{sH}, s{sH}, s{sWave}")
        cond_block([f"s_cmp_le_u32 s{sH}, 320"], lambda: parta.a2_body(A, " sc1"))
        A(f"s_mov_b32 s75, {WS_CNT + CNT_A2:#x}")
        signal(75)
        A("s_add_u32 s85, s85, 32")
        A("s_cmp_lt_u32 s85, 64")
        Lb = A.newlabel("La2e")
        A(f"s_cbranch_scc0 {Lb}")
        A(f"s_branch {La}")
        A.label(Lb)
    A(f"s_add_u32 s85, s{sHead}, 56")
    A(f"s_cmp_lt_u32 s{sHead}, 8")
    A(f"s_cselect_b32 s85, 99, s85")
    A(f"s_cmp_lt_u32 s{sJ}, 2")
    A(f"s_cselect_b32 s85, 99, s85")
    A(f"s_cmp_eq_u32 s{sJ}, 3")
    A(f"s_cselect_b32 s85, s{sHead}, s85")
    cond_block(["s_cmp_lt_u32 s85, 81"], do_a2)

    def do_a3():
        A(f"s_mov_b32 s75, {WS_CNT + CNT_A2:#x}")
        wait(75, 81)
        A(f"s_and_b32 s{sRB}, s{sHead}, 1")
        A(f"s_lshr_b32 s{sH}, s{sHead}, 1")
        parta.a3_body(A)
        A("s_barrier")
        tl()
    cond_block([f"s_cmp_eq_u32 s{sJ}, 3"], do_a3)
    def do_q():
        A(f"s_mov_b32 s{sRnd}, s{sJ}")
        Lq1 = A.newlabel("Lq")
        A.label(Lq1)
        A(f"s_mov_b32 s{sRB}, s{sRnd}")
        A(f"s_mov_b32 s{sH}, s{sHead}")
        q_body(A, " sc1")
        cnt_rbh(CNT_Q)
        signal(75)
        A(f"s_add_u32 s{sRnd}, s{sRnd}, 2")
        A(f"s_cmp_eq_u32 s{sRnd}, 3")
        Lq2 = A.newlabel("Lq")
        A(f"s_cbranch_scc0 {Lq2}")
        A(f"s_branch {Lq1}")
        A.label(Lq2)
    cond_block([f"s_cmp_lt_u32 s{sJ}, 3"], do_q)

    def do_att():
        A(f"s_mov_b32 s{sRnd}, 0")
        Lt = A.newlabel("Latt")
        A.label(Lt)
        A(f"s_mov_b32 s{sH}, s{sHead}")

        def wq():
            A(f"s_lshr_b32 s{sRB}, s{sRnd}, 2")
            cnt_rbh(CNT_Q)
            wait(75, 1)
        A(f"s_and_b32 s86, s{sRnd}, 3")
        cond_block(["s_cmp_eq_u32 s86, 0", f"s_cmp_lt_u32 s{sRnd}, 16"], wq)
        A(f"s_min_u32 s{sRB}, s{sRnd}, 15")
        A(f"s_lshr_b32 s86, s{sWave}, 1")
        A(f"s_add_u32 s86, s86, 15")
        A(f"s_cmp_lg_u32 s86, s{sRnd}")
        A("s_cselect_b32 s87, 1, 0")
        A(f"s_cmp_lt_u32 s{sRnd}, 15")
        A("s_cselect_b32 s87, 0, s87")

        def wkv():
            cnt_rbh(CNT_KVU)
            wait(75, 1)
            cnt_rbh(CNT_VU)
            wait(75, 1)
        cond_block([f"s_cmp_eq_u32 s{sRnd}, 0"], wkv)

        def hook():
            cnt_rbh(CNT_MEM)
            A(f"s_cmp_eq_u32 s{sRnd}, 15")
            A("s_cselect_b32 s86, 4096, 0")
            A("s_add_u32 s75, s75, s86")
            wait(75, 16)
        att_body(A, 2, " sc1", hook, rm_below=NRM, light=True, skip_sreg=87)
        A(f"s_lshl_b32 s75, s{sRnd}, 7")
        A(f"s_add_u32 s75, s75, {WS_CNT + CNT_ATT:#x}")
        signal(75)
        A(f"s_add_u32 s{sRnd}, s{sRnd}, 1")
        A(f"s_cmp_lt_u32 s{sRnd}, 17")
        Le = A.newlabel("Latte")
        A(f"s_cbranch_scc0 {Le}")
        A(f"s_branch {Lt}")
        A.label(Le)
        A("s_endpgm")
    cond_block([f"s_cmp_eq_u32 s{sJ}, 0"], do_att)

    def do_outp():
        A(f"s_mul_i32 s{sRB}, s85, 52")
        A(f"s_lshr_b32 s{sRB}, s{sRB}, 8")
        A(f"s_mul_i32 s{sTmp}, s{sRB}, 5")
        A(f"s_sub_u32 s{sH}, s85, s{sTmp}")
        A(f"s_lshl_b32 s75, s{sRB}, 7")
        A(f"s_add_u32 s75, s75, {WS_CNT + CNT_ATT:#x}")
        wait(75, 32)
        outp2_body(A)
        A("s_barrier")
        tl()
    assert all((c * 52) >> 8 == c // 5 for c in range(40))
    idx40(85, 2, 1)
    cond_block([f"s_cmp_lt_u32 s85, {5*NRM}"], do_outp)
    sF = 84
    A(f"s_sub_u32 s{sF}, s{sJ}, 2")
    A(f"s_lshl_b32 s{sF}, s{sF}, 5")
    A(f"s_cmp_eq_u32 s{sJ}, 1")
    A(f"s_cselect_b32 s{sF}, 64, s{sF}")
    A(f"s_add_u32 s{sF}, s{sF}, s{sHead}")

    def hook2(sBlk):
        A(f"s_cmp_ge_u32 s52, {8*(16-NRM) - 4}")
        A(f"s_cselect_b32 s86, 1, 0")
        A(f"s_add_u32 s75, s{sBlk}, s86")
        A(f"s_lshl_b32 s75, s75, 7")
        A(f"s_add_u32 s75, s75, {WS_CNT + CNT_ATT + NRM*128:#x}")
        wait(75, 32)
    outp_fast_body(A, sF, 8*NRM, hook2, nblk=16-NRM)
    tl()
```
